```python
import torch

def _softmax(x, axis=-1):
    return torch.softmax(x, dim=axis)

def _gelu(x):
    return torch.nn.functional.gelu(x, approximate='tanh')

def _silu(x):
    return torch.nn.functional.silu(x)

def _sigmoid(x):
    return torch.sigmoid(x)

def _layernorm(x, axis=-1, eps=1e-05):
    m = x.mean(dim=axis, keepdim=True)
    v = x.var(dim=axis, keepdim=True, unbiased=False)
    return (x - m) / torch.sqrt(v + eps)

def _scatter_add(tgt, idx, src, axis=0):
    return tgt.clone().index_add_(axis, idx, src)

def _segment_sum(src, seg, n):
    out = torch.zeros((n,) + src.shape[1:], dtype=src.dtype)
    return out.index_add_(0, seg, src)

def _pad(x, pw):
    flat = tuple((v for pair in reversed(pw) for v in pair))
    return torch.nn.functional.pad(x, flat)
kernel_name = 'interleave_layers__linear_attn_block__memory_aug_recurrent_mem_tr__prompt'

def setup_inputs():

    _w = lambda a: (lambda t: t.to(torch.bfloat16) if t.is_floating_point() else t)(torch.as_tensor(a))

    def _A_setup():
        B, S, D = (1, 2048, 512)
        return {'x': _w((lambda *s: torch.randn(*s, dtype=torch.bfloat16) * 0.05)(B, S, D)), 'wqkv': _w((lambda *s: torch.randn(*s, dtype=torch.bfloat16) * 0.05)(D, 3 * D)), 'wo': _w((lambda *s: torch.randn(*s, dtype=torch.bfloat16) * 0.05)(D, D))}
    _A_in = _A_setup()

    def _B_setup():
        B, S, Dm = (1, 2048, 512)
        H, Dh = (32, 128)
        M, seg = (8, 32)
        seg = min(seg, S)
        S = S // seg * seg
        return {'x': _w((lambda *s: torch.randn(*s, dtype=torch.bfloat16) * 0.05)(B, S, Dm)), 'mem0': _w((lambda *s: torch.randn(*s, dtype=torch.bfloat16) * 0.4)(B, M, Dm)), 'Wq': _w((lambda *s: torch.randn(*s, dtype=torch.bfloat16) * 3.2)(Dm, H, Dh) * Dm ** (-0.5)), 'Wk': _w((lambda *s: torch.randn(*s, dtype=torch.bfloat16) * 3.2)(Dm, H, Dh) * Dm ** (-0.5)), 'Wv': _w((lambda *s: torch.randn(*s, dtype=torch.bfloat16) * 0.4)(Dm, H, Dh) * Dm ** (-0.5)), 'Wo': _w((lambda *s: torch.randn(*s, dtype=torch.bfloat16) * 0.4)(H, Dh, Dm) * (H * Dh) ** (-0.5)), 'seg_len': seg}
    _B_in = _B_setup()
    return {'A_x': _A_in['x'], 'A_wqkv': _A_in['wqkv'], 'A_wo': _A_in['wo'], 'B_x': _B_in['x'], 'B_mem0': _B_in['mem0'], 'B_Wq': _B_in['Wq'], 'B_Wk': _B_in['Wk'], 'B_Wv': _B_in['Wv'], 'B_Wo': _B_in['Wo'], 'B_seg_len': _B_in['seg_len']}

def reference(A_x, A_wqkv, A_wo, B_x, B_mem0, B_Wq, B_Wk, B_Wv, B_Wo, B_seg_len):

    def _A_ref(x, wqkv, wo):
        B, S, D = x.shape
        H = 32
        Dh = D // H
        qkv = (lambda x, *d: x.permute(*d))((x @ wqkv).reshape(B, S, 3, H, Dh), 2, 0, 3, 1, 4)
        q, k, v = (qkv[0], qkv[1], qkv[2])
        phi = lambda t: torch.where(t > 0, t + 1, torch.exp(t)) + 1e-06
        pq, pk = (phi(q), phi(k))
        kv = torch.einsum('bhsd,bhse->bhde', pk, v)
        z = torch.einsum('bhsd->bhd', pk)
        num = torch.einsum('bhqd,bhde->bhqe', pq, kv)
        den = torch.einsum('bhqd,bhd->bhq', pq, z)[..., None] + 1e-06
        o = num / den
        return (lambda x, *d: x.permute(*d))(o, 0, 2, 1, 3).reshape(B, S, D) @ wo

    def _B_ref(x, mem0, Wq, Wk, Wv, Wo, seg_len):
        B, S, Dm = x.shape
        H, Dh = (Wq.shape[1], Wq.shape[2])
        M = mem0.shape[1]
        scale = Dh ** (-0.5)
        n_seg = S // seg_len
        L = M + seg_len
        idx = torch.arange(L)
        mask = (idx[:, None] < M) | (idx[:, None] >= idx[None, :])
        mem = mem0
        outs = []
        for s in range(n_seg):
            xs = x[:, s * seg_len:(s + 1) * seg_len, :].clone()
            h = torch.concatenate([mem, xs], axis=1)
            q = torch.einsum('btd,dhe->bhte', h, Wq)
            k = torch.einsum('btd,dhe->bhte', h, Wk)
            v = torch.einsum('btd,dhe->bhte', h, Wv)
            scores = torch.einsum('bhqe,bhke->bhqk', q, k) * scale
            scores = torch.where(mask[None, None], scores, -1000000000.0)
            p = _softmax(scores, axis=-1)
            o = torch.einsum('bhqk,bhke->bhqe', p, v)
            o = torch.einsum('bhte,hed->btd', o, Wo)
            mem = o[:, :M, :].clone()
            outs.append(o[:, M:, :])
        return torch.concatenate(outs, axis=1)
    x = A_x
    x = x + _A_ref(_layernorm(x, axis=-1), A_wqkv, A_wo)
    x = x + _B_ref(_layernorm(x, axis=-1), B_mem0, B_Wq, B_Wk, B_Wv, B_Wo, B_seg_len)
    x = x + _A_ref(_layernorm(x, axis=-1), A_wqkv, A_wo)
    x = x + _B_ref(_layernorm(x, axis=-1), B_mem0, B_Wq, B_Wk, B_Wv, B_Wo, B_seg_len)
    return x
```

```python
import re

def v(i, n=1):
    return "v%d" % i if n == 1 else "v[%d:%d]" % (i, i + n - 1)
def a(i, n=1):
    return "a%d" % i if n == 1 else "a[%d:%d]" % (i, i + n - 1)
def s(i, n=1):
    return "s%d" % i if n == 1 else "s[%d:%d]" % (i, i + n - 1)
def R(i, n=1):
    return v(i, n) if i < 256 else a(i - 256, n)

_REG = re.compile(r"\b([vas])(?:(\d+)|\[(\d+):(\d+)\])")
def regs_of(op):
    out = []
    for m in _REG.finditer(op):
        k = m.group(1)
        if m.group(2) is not None:
            out.append((k, int(m.group(2))))
        else:
            out += [(k, i) for i in range(int(m.group(3)), int(m.group(4)) + 1)]
    if re.search(r"\bvcc\b", op): out.append(("vcc", 0))
    if re.search(r"\bexec\b", op): out.append(("exec", 0))
    if re.search(r"\bm0\b", op): out.append(("m0", 0))
    return out

TRANS = ("v_exp_f32", "v_log_f32", "v_rcp_f32", "v_rsq_f32", "v_sqrt_f32", "v_sin_f32", "v_cos_f32")

class Ins:
    __slots__ = ("text", "mn", "ops", "wr", "rd", "kind", "srcc", "srcab", "line")
    def __init__(self, text):
        self.text = text
        t = text.split(";")[0].strip()
        parts = t.split(None, 1)
        self.mn = parts[0]
        rest = parts[1] if len(parts) > 1 else ""
        ops = [o.strip() for o in re.split(r",(?![^\[]*\])", rest)] if rest else []
        self.ops = ops
        mn = self.mn
        self.srcc = []; self.srcab = []
        wr = []; rd = []
        if mn.startswith("v_mfma"):
            self.kind = "mfma"
            wr = regs_of(ops[0]); self.srcab = regs_of(ops[1]) + regs_of(ops[2]); self.srcc = regs_of(ops[3].split()[0])
            rd = self.srcab + self.srcc
        elif mn.startswith("v_smfmac"):
            self.kind = "mfma"
            wr = regs_of(ops[0]); self.srcab = regs_of(ops[1]) + regs_of(ops[2]) + regs_of(ops[3].split()[0]); self.srcc = regs_of(ops[0])
            rd = self.srcab + self.srcc
        elif mn.startswith("v_cmp"):
            self.kind = "valu"; wr = regs_of(ops[0]); rd = sum((regs_of(o) for o in ops[1:]), [])
        elif mn.startswith("v_permlane") and "swap" in mn:
            self.kind = "perm"; wr = regs_of(ops[0]) + regs_of(ops[1]); rd = list(wr)
        elif mn.startswith("v_readfirstlane") or mn.startswith("v_readlane"):
            self.kind = "rdlane"; wr = regs_of(ops[0]); rd = sum((regs_of(o) for o in ops[1:]), [])
        elif mn.startswith("v_"):
            self.kind = "valu"
            if "_co_" in mn:
                wr = regs_of(ops[0]) + regs_of(ops[1]); rd = sum((regs_of(o) for o in ops[2:]), [])
            else:
                wr = regs_of(ops[0]); rd = sum((regs_of(o) for o in ops[1:]), [])
                if mn.startswith("v_fmac") or mn.startswith("v_dot2c") or "dpp" in text and ("bank_mask:0xf" not in text or "row_mask:0xf" not in text):
                    rd += wr
                if mn.startswith("v_cndmask") and len(ops) == 3: rd.append(("vcc", 0))
            if mn.startswith(TRANS): self.kind = "trans"
            if "_dpp" in mn or "row_ror" in text or "quad_perm" in text or "row_shr" in text or "row_bcast" in text or "row_newbcast" in text: self.kind = "dpp"
            if mn.startswith("v_dot"): self.kind = "dot"
        elif mn.startswith("ds_read") or "_rtn_" in mn or mn.startswith("ds_bpermute") or mn.startswith("ds_swizzle"):
            self.kind = "dsrd"; wr = regs_of(ops[0]); rd = sum((regs_of(o) for o in ops[1:]), [])
        elif mn.startswith("ds_"):
            self.kind = "dswr"; rd = sum((regs_of(o) for o in ops), [])
        elif mn.startswith("global_load_lds") or (mn.startswith("buffer_load") and " lds" in t):
            self.kind = "dma"; rd = sum((regs_of(o) for o in ops), []) + [("m0", 0)]
        elif mn.startswith("global_load") or mn.startswith("buffer_load"):
            self.kind = "vmld"; wr = regs_of(ops[0]); rd = sum((regs_of(o) for o in ops[1:]), [])
        elif mn.startswith("global_store") or mn.startswith("buffer_store"):
            self.kind = "vmst"; rd = sum((regs_of(o) for o in ops), [])
        elif mn.startswith("global_atomic") or mn.startswith("buffer_atomic"):
            self.kind = "vmst"; rd = sum((regs_of(o) for o in ops), [])
            if " sc0" in t: wr = regs_of(ops[0]); self.kind = "vmld"
        elif mn.startswith("s_"):
            self.kind = "salu"
            if mn in ("s_waitcnt", "s_barrier", "s_nop", "s_branch", "s_endpgm", "s_setprio", "s_sleep") or mn.startswith("s_cbranch"):
                pass
            elif mn.startswith("s_cmp") or mn.startswith("s_bitcmp"):
                rd = sum((regs_of(o) for o in ops), [])
            else:
                wr = regs_of(ops[0]); rd = sum((regs_of(o) for o in ops[1:]), [])
                if "saveexec" in mn: wr.append(("exec", 0))
        else:
            raise ValueError("unknown instruction kind: " + text)
        self.wr = wr; self.rd = rd
    def states(self):
        if self.mn == "s_nop": return int(self.ops[0], 0) + 1
        return 1

def mfma_passes(mn):
    if "32x32" in mn: return 8
    return 4

class Asm:
    def __init__(self):
        self.lines = []
        self.ins = []
        self.uid = 0
    def raw(self, text):
        self.lines.append(text)
    def comment(self, t):
        self.lines.append("    ; " + t)
    def label(self, name):
        self.lines.append(name + ":")
        self.ins.append(("label", name))
    def newlabel(self, base):
        self.uid += 1
        return "%s_%d" % (base, self.uid)
    def __call__(self, text):
        for t in text.strip().split("\n"):
            t = t.strip()
            if not t or t.startswith(";"):
                continue
            i = Ins(t); i.line = len(self.lines)
            self.ins.append(i)
            self.lines.append("    " + t)
    def nop(self, n):
        while n > 0:
            k = min(n, 16); self("s_nop %d" % (k - 1)); n -= k
    def text(self):
        return "\n".join(self.lines) + "\n"

    def check(self):
        seq = self.ins
        labels = {x[1]: i for i, x in enumerate(seq) if isinstance(x, tuple)}
        errs = []
        def scan(window):
            n = len(window)
            for j in range(n):
                c = window[j]
                dist = 0
                for i in range(j - 1, max(-1, j - 24), -1):
                    p = window[i]
                    need = self.need(p, c)
                    if need > dist:
                        errs.append("hazard: need %d have %d\n   P: %s\n   C: %s (line %d)" % (need, dist, p.text, c.text, c.line))
                    dist += p.states()
                    if dist >= 20: break
        lin = [x for x in seq if not isinstance(x, tuple)]
        scan(lin)
        for i, x in enumerate(seq):
            if isinstance(x, tuple): continue
            if x.mn.startswith("s_cbranch") or x.mn == "s_branch":
                tgt = x.ops[0]
                if tgt not in labels: continue
                before = [y for y in seq[max(0, i - 30):i + 1] if not isinstance(y, tuple)]
                after = []
                for y in seq[labels[tgt]:labels[tgt] + 30]:
                    if isinstance(y, tuple): continue
                    after.append(y)
                    if y.mn == "s_branch" or y.mn == "s_endpgm": break
                w = before + after
                nb = len(before)
                for j in range(nb, len(w)):
                    c = w[j]; dist = sum(q.states() for q in w[nb:j])
                    for k in range(nb - 1, -1, -1):
                        p = w[k]
                        need = self.need(p, c)
                        if need > dist:
                            errs.append("hazard(branch %s): need %d have %d\n   P: %s\n   C: %s (line %d)" % (tgt, need, dist, p.text, c.text, c.line))
                        dist += p.states()
                        if dist >= 20: break
        return sorted(set(errs))

    @staticmethod
    def need(p, c):
        VALU = ("valu", "trans", "dpp", "perm", "rdlane", "dot")
        pw = set(p.wr); cr = set(c.rd); cw = set(c.wr)
        vw = {r for r in pw if r[0] in "va" and r[0] != "vcc"}
        sw = {r for r in pw if r[0] in ("s", "vcc")}
        need = 0
        if p.kind == "mfma":
            ps = mfma_passes(p.mn)
            full = {4: 8, 8: 12}[ps]; part = {4: 6, 8: 10}[ps]; war = {4: 3, 8: 7}[ps]
            if c.kind == "mfma":
                if vw & set(c.srcab): need = max(need, full)
                if vw & set(c.srcc):
                    same = (sorted(c.srcc) == sorted(p.wr)) and c.mn == p.mn
                    if not same: need = max(need, full)
                elif vw & cw: need = max(need, part)
            elif c.kind != "salu":
                if vw & (cr | cw): need = max(need, full)
            if c.kind in VALU and set(p.srcc) & cw: need = max(need, war)
        if p.kind in VALU:
            if c.kind == "mfma" and vw & cr: need = max(need, 2)
            if c.kind in ("perm", "dpp") and vw & cr: need = max(need, 2)
            if c.kind == "rdlane" and vw & cr: need = max(need, 1)
            if p.kind == "trans" and c.kind in VALU and c.kind != "trans" and vw & cr: need = max(need, 1)
            if p.kind == "trans" and c.kind in ("mfma", "dswr", "vmst") and vw & cr: need = max(need, 2)
            if p.kind == "dot" and vw & (cr | cw) and c.mn != p.mn and c.kind != "salu": need = max(need, 3)
            if sw and c.kind in VALU and sw & cr: need = max(need, 4 if c.kind == "rdlane" else 2)
            if sw and c.kind in ("vmld", "vmst", "dma") and sw & cr: need = max(need, 5)
            if ("exec", 0) in pw: need = max(need, 5 if c.kind in VALU or c.kind == "mfma" else 0)
        if p.kind == "salu":
            if ("m0", 0) in pw and c.kind == "dma": need = max(need, 1)
            if ("exec", 0) in pw and c.kind == "dpp": need = max(need, 0)
        if p.kind == "vmst" and ("x4" in p.mn or "x3" in p.mn):
            data = set(regs_of(p.ops[1])) if p.mn.startswith("global") else set(regs_of(p.ops[0]))
            if data & cw: need = max(need, 2 if c.kind in VALU else 1)
        return need
```

```python
from common import *
import math, struct

L_KX = 0
L_VX = 8192
L_MEM = 16384
L_Z = 24576
L_O = 28672
L_VM = 30720

def f32bits(x): return struct.unpack("<I", struct.pack("<f", x))[0]

def wq_base(t, c):
    if t < 4:
        assert c >= 2
        return 256 + 8 * (t * 6 + c - 2)
    return 128 + 64 * (t - 4) + 8 * c
def wo_base(j, ch):
    return 256 + 192 + 8 * (ch * 4 + j)

def gen_chain(A, opt):
    cold = Cold()
    nokv = opt.get("nokv", False)
    LAST = opt.get("last", 63)
    VL16, VSENT, VMLD, VZR, VZW, VOW, VWO, VPST, VMST, VIDX = 1, 11, 3, 4, 5, 6, 7, 8, 9, 10
    SEL, EXP, VMA, PM, PMB = 12, 16, 18, 20, 22
    LS, LT = 100, 101
    PT = 2
    VA = 24
    AF = 40
    FR = [48, 56, 64, 96, 104, 112, 120, 32]
    Q0, K0, Q1, K1, V0, V1 = 72, 76, 80, 84, 88, 92
    ZF, KX1, KX2 = 96, 112, 24
    S1, S2, S0 = 40, 44, 48
    M0_, M1_, T0_, T1_ = 52, 53, 54, 55
    VXC = 72
    PX, O0, O1 = 88, 92, 104
    OP, OA = 52, 104
    WACC = [40, 44, 48, 52, 72, 76, 88, 92]
    SLOTS = [80, 56, 64, 112, 120, 24, 32, 96]
    RB, RD, RT = 96, 80, 84
    G0, G1 = 40, 44
    sL, sSEG, sIT = 48, 49, 50
    sMASK, sP0, sP1, sMG, sMR, sPR, sKV, sKM, sFM, sFKV, sR0, sR1 = 52, 54, 56, 58, 60, 62, 64, 68, 70, 72, 74, 78
    sC, sM0, sM1 = 76, 77, 51
    sST = 80

    tr_pos = opt.get("trace", 0)
    tr_used = []
    def tr(k):
        if not (tr_pos >> k) & 1: return
        if len(tr_used) >= 10: raise ValueError("too many trace points")
        A("s_memtime s[%d:%d]" % (sST + 2 * len(tr_used), sST + 1 + 2 * len(tr_used)))
        tr_used.append(k)

    A.label("L_chain")
    T = 40
    A("v_and_b32 v%d, 63, v0" % T)
    A("v_and_b32 v%d, 15, v0" % (T + 1))
    A("v_bfe_u32 v%d, v0, 4, 2" % (T + 2))
    A("v_lshlrev_b32 v%d, 4, v%d" % (VL16, T))
    A("v_mov_b32 v%d, -1" % VSENT)
    A("v_lshlrev_b32 v%d, 3, v%d" % (VZR, T))
    A("s_lshl_b32 s40, s%d, 10" % S_WAVE)
    A("v_lshlrev_b32 v%d, 5, v%d" % (VZW, T + 1))
    A("v_lshl_add_u32 v%d, v%d, 3, v%d" % (VZW, T + 2, VZW))
    A("v_add_u32 v%d, s40, v%d" % (VZW, VZW))
    A("s_lshr_b32 s41, s%d, 1" % S_WAVE)
    A("s_lshl_b32 s41, s41, 10")
    A("s_and_b32 s42, s%d, 1" % S_WAVE)
    A("s_lshl_b32 s42, s42, 5")
    A("s_add_u32 s41, s41, s42")
    A("s_add_u32 s41, s41, %d" % (L_O - 32))
    A("v_add_u32 v%d, s41, v%d" % (VOW, VL16))
    A("v_add_u32 v%d, 0x%x, v%d" % (T + 5, L_MEM, VL16))
    A("v_and_b32 v%d, 2, v%d" % (T + 3, T))
    A("v_cmp_ne_u32 vcc, 0, v%d" % (T + 3))
    A("v_mov_b32 v%d, 0xeeee" % (T + 6))
    A("v_mov_b32 v%d, 0x4444" % (T + 7))
    A("v_cndmask_b32 v%d, v%d, v%d, vcc" % (VOW, T + 5, VOW))
    A("v_cndmask_b32 v%d, v%d, v%d, vcc" % (VIDX, T + 7, T + 6))
    A("v_lshrrev_b32 v%d, 3, v%d" % (T + 5, T + 1))
    A("v_lshlrev_b32 v%d, 13, v%d" % (VWO, T + 5))
    A("v_and_b32 v%d, 7, v%d" % (T + 5, T + 1))
    A("v_lshl_add_u32 v%d, v%d, 3, v%d" % (T + 5, T + 2, T + 5))
    A("v_lshl_add_u32 v%d, v%d, 4, v%d" % (VWO, T + 5, VWO))
    A("s_lshl_b32 s41, s%d, 15" % S_WAVE)
    A("s_add_u32 s41, s41, %d" % L_WO)
    A("v_add_u32 v%d, s41, v%d" % (VWO, VWO))
    A("s_lshl_b32 s41, s%d, 11" % S_WAVE)
    A("v_add_u32 v%d, s41, v%d" % (VMLD, VL16))
    A("s_mov_b32 s%d, s41" % sM0)
    A("s_add_u32 s%d, s41, %d" % (sM1, L_VX))
    A("v_lshrrev_b32 v%d, 2, v%d" % (T + 5, T + 1))
    A("v_lshlrev_b32 v%d, 13, v%d" % (VPST, T + 5))
    A("v_and_b32 v%d, 3, v%d" % (T + 5, T + 1))
    A("v_lshl_add_u32 v%d, v%d, 2, v%d" % (T + 6, T + 2, T + 5))
    A("v_lshl_add_u32 v%d, v%d, 4, v%d" % (VPST, T + 6, VPST))
    A("s_lshl_b32 s41, s%d, 16" % S_WAVE)
    A("s_lshl_b32 s42, s%d, 8" % S_HEAD)
    A("s_add_u32 s41, s41, s42")
    A("v_add_u32 v%d, s41, v%d" % (VPST, VPST))
    A("v_and_b32 v%d, 12, v%d" % (T + 6, T + 1))
    A("v_add_u32 v%d, v%d, v%d" % (T + 6, T + 6, T + 2))
    A("v_lshlrev_b32 v%d, 4, v%d" % (VMST, T + 6))
    A("v_lshl_add_u32 v%d, v%d, 2, v%d" % (VMST, T + 5, VMST))
    A("v_add_u32 v%d, s42, v%d" % (VMST, VMST))
    A("v_and_b32 v%d, 1, v%d" % (T + 5, T))
    A("v_lshlrev_b32 v%d, 4, v%d" % (T + 5, T + 5))
    A("v_mov_b32 v%d, 0x3f80" % (T + 7))
    A("v_lshlrev_b32 v%d, v%d, v%d" % (T + 7, T + 5, T + 7))
    A("v_cndmask_b32_e64 v%d, v%d, 0, vcc" % (T + 7, T + 7))
    A("v_lshrrev_b32 v%d, 2, v%d" % (T + 6, T + 1))
    for rr in range(4):
        A("v_cmp_eq_u32 vcc, %d, v%d" % (rr ^ 2, T + 6))
        A.nop(2)
        A("v_cndmask_b32 v%d, 0, v%d, vcc" % (SEL + rr, T + 7))
    for r in (EXP, VMA, PM, PMB): A("v_mov_b64 v[%d:%d], 0" % (r, r + 1))
    A("s_mov_b32 s%d, 0x%x" % (sC, f32bits(128 ** -0.5 * math.log2(math.e))))
    A("s_mov_b32 s%d, 0" % sIT)
    A("s_mov_b32 s%d, 0" % sL)
    load_head_weights(A, 40, wq_base, "chain", "mod4", vwo=VWO, wo_base=wo_base)
    opt["init_wait"](A)

    def pkadd(d): A("v_pk_add_f32 v[%d:%d], v[%d:%d], v[%d:%d]" % (d, d + 1, d, d + 1, d + 2, d + 3))
    def cvt(d, x, y): A("v_cvt_pk_bf16_f32 v%d, v%d, v%d" % (d, x, y))
    def rd128(d, addr, off): A("ds_read_b128 v[%d:%d], v%d offset:%d" % (d, d + 3, addr, off))
    def z64(r): A("v_mov_b64 v[%d:%d], 0" % (r, r + 1))

    def setup_part_bases():
        sadd64(A, sKV, sKV, 32 * 8192)
        sadd64(A, sKV + 2, sKV + 2, 32 * 8192)
        sadd64(A, sKM, sKM, 32 * 8192)
        sadd64(A, sFM, sFM, 4)
        A("s_and_b32 s40, s%d, 1" % sIT)
        A("s_lshl_b32 s40, s40, 18")
        A("s_add_u32 s41, s40, 0x%x" % OFF_CPART); sadd64(A, sP0, S_WS, "s41")
        sadd64(A, sP1, sP0, 32768)
        A("s_lshl_b32 s42, s%d, 13" % S_HEAD)
        sadd64(A, sR0, sP0, "s42")
        sadd64(A, sR1, sR0, 4096)
        A("s_xor_b32 s41, s41, 0x40000")
        A("s_add_u32 s41, s41, s42"); sadd64(A, sPR, S_WS, "s41")
    def prefetch_own():
        for p in range(1, 4): A("v_xor_b32 v%d, %d, v%d" % (VA + p - 1, p * 2048, VMLD))
        for n, (X, Tt, cc) in enumerate([(0, 0, 0), (1, 0, 0), (0, 1, 0), (1, 1, 0), (0, 0, 1), (1, 0, 1), (0, 1, 1), (1, 1, 1)]):
            f = (X * 2 + Tt) * 2 + cc
            for hB in range(2): rd128(FR[n] + 4 * hB, VWO, 16384 + f * 1024 + hB * 512)
    def kv_check(tmp, sreg):
        if nokv: return
        lp = A.newlabel("Lkvp"); ok = A.newlabel("Lkvo")
        A.label(ok)
        A("s_bitcmp0_b64 s[%d:%d], %s" % (sMASK, sMASK + 1, sreg))
        A("s_cbranch_scc1 %s" % lp)
        def blk(A):
            A.label(lp)
            A("v_lshrrev_b32 v%d, 2, v%d" % (tmp, VL16))
            A("global_load_dword v%d, v%d, s[%d:%d] sc1" % (tmp, tmp, sFKV, sFKV + 1))
            A("s_waitcnt vmcnt(0)")
            A("v_cmp_ne_u32 s[%d:%d], 0, v%d" % (sMASK, sMASK + 1, tmp))
            A("s_sleep 1")
            spin_guard(A)
            A("s_branch %s" % ok)
        cold.add(blk)
    def kv_ops():
        return [["s_mov_b32 m0, s%d" % sM0, "s_nop 0",
                 "global_load_lds_dwordx4 v%d, s[%d:%d] sc1" % (VMLD, sKV, sKV + 1)],
                ["global_load_lds_dwordx4 v%d, s[%d:%d] offset:1024 sc1" % (VMLD, sKV, sKV + 1), "s_mov_b32 m0, s%d" % sM1],
                ["global_load_lds_dwordx4 v%d, s[%d:%d] sc1" % (VMLD, sKV + 2, sKV + 3)],
                ["global_load_lds_dwordx4 v%d, s[%d:%d] offset:1024 sc1" % (VMLD, sKV + 2, sKV + 3)]]
    def exp_st():
        return "global_store_dwordx4 v%d, v[%d:%d], s[%d:%d] sc1" % (VMLD, EXP, EXP + 3, sKM, sKM + 1)
    def flag(tmp, off):
        A("v_mov_b32 v%d, 0" % tmp)
        A("global_store_dword v%d, v%d, s[%d:%d] offset:%d sc1" % (tmp, VSENT, sFM, sFM + 1, off))

    A.label("L_ch_layer")
    A("s_mov_b32 s%d, 0" % sSEG)
    A("s_mov_b64 s[%d:%d], 0" % (sMASK, sMASK + 1))
    A("s_lshl_b32 s40, s%d, 5" % sL)
    A("s_add_u32 s40, s40, s%d" % S_HEAD)
    A("s_lshl_b32 s40, s40, 8")
    A("s_add_u32 s41, s40, 0x%x" % F_KV)
    sadd64(A, sFKV, S_WS, "s41")
    A("s_add_u32 s41, s40, 0x%x" % (F_M - 12))
    sadd64(A, sFM, S_WS, "s41")
    A("s_lshl_b32 s40, s%d, 11" % sL)
    A("s_add_u32 s40, s40, s%d" % S_HEAD)
    A("s_lshl_b32 s40, s40, 13")
    A("s_add_u32 s41, s40, 0x%x" % OFF_KX); sadd64(A, sKV, S_WS, "s41")
    A("s_add_u32 s41, s40, 0x%x" % OFF_VX); sadd64(A, sKV + 2, S_WS, "s41")
    A("s_add_u32 s41, s40, 0x%x" % (OFF_KM - 2 * 32 * 8192)); sadd64(A, sKM, S_WS, "s41")
    A("v_bfe_u32 v27, v0, 2, 2")
    A("v_and_b32 v28, 1, v0")
    A("v_lshl_add_u32 v27, v27, 1, v28")
    A("v_lshlrev_b32 v27, 10, v27")
    A("v_bfe_u32 v28, v0, 1, 1")
    A("v_lshl_add_u32 v27, v28, 2, v27")
    A("v_bfe_u32 v28, v0, 4, 2")
    A("v_lshl_add_u32 v27, v28, 5, v27")
    A("s_lshl_b32 s40, s%d, 8" % S_WAVE)
    A("v_add_u32 v27, s40, v27")
    for i in range(2):
        for p in range(4):
            A("global_load_dword v%d, v27, s[%d:%d] offset:%d" % (G0 + 4 * i + p, S_MEM0, S_MEM0 + 1, i * 128 + p * 8))
    kv_check(28, "s%d" % sSEG)
    for g_ in kv_ops():
        for t in g_: A(t)
        A("s_nop 0")
    for r in range(0, 24, 2): z64(Q0 + r)
    setup_part_bases()
    prefetch_own()
    A("s_waitcnt vmcnt(0)")
    A("ds_write_b128 v%d, v[%d:%d] offset:%d" % (VMLD, G0, G0 + 3, L_MEM))
    A("ds_write_b128 v%d, v[%d:%d] offset:%d" % (VMLD, G1, G1 + 3, L_MEM + 1024))
    A("s_waitcnt lgkmcnt(2)")
    A("s_branch L_ch_step")

    A.raw(".p2align 6")
    PA = opt.get("pa", 1)
    def ldA():
        A("global_load_dwordx4 v[%d:%d], v%d, s[%d:%d] sc1" % (G0, G0 + 3, VMLD, sMG, sMG + 1))
        A("global_load_dwordx4 v[%d:%d], v%d, s[%d:%d] offset:1024 sc1" % (G1, G1 + 3, VMLD, sMG, sMG + 1))
    A.label("L_ch_retryA")
    ldA()
    spin_guard(A)
    A.label("L_ch_pollA")
    A("s_waitcnt vmcnt(%d) lgkmcnt(0)" % (2 * (PA - 1)))
    A("v_max_u32 v%d, v%d, v%d" % (PT, G0, G1))
    A("v_cmp_eq_u32 vcc, -1, v%d" % PT)
    A("ds_write_b128 v%d, v[%d:%d] offset:%d" % (VMLD, G0, G0 + 3, L_MEM))
    A("ds_write_b128 v%d, v[%d:%d] offset:%d" % (VMLD, G1, G1 + 3, L_MEM + 1024))
    A("s_cbranch_vccnz L_ch_retryA")
    if tr_pos:
        tr(26)
        lt = A.newlabel("Ltr")
        A("s_cmp_eq_u32 s%d, %d" % (sIT, opt.get("trit", 100)))
        A("s_cbranch_scc1 %s" % lt)
        A.label(lt + "b")
        def blk(A):
            A.label(lt)
            A("s_waitcnt lgkmcnt(0)")
            A("s_lshl_b32 s40, s%d, 2" % S_HEAD)
            A("s_add_u32 s40, s40, s%d" % S_WAVE)
            A("s_lshl_b32 s40, s40, 7")
            A("s_add_u32 s40, s40, 0x%x" % OFF_STAMP)
            sadd64(A, 42, S_WS, "s40")
            A("v_mov_b32 v27, 0")
            for n, k in enumerate(tr_used):
                A("v_mov_b32 v28, s%d" % (sST + 2 * n))
                A("global_store_dword v27, v28, s[42:43] offset:%d" % (4 * k))
            A("s_branch %s" % (lt + "b"))
        cold.add(blk)
    A.label("L_ch_step")
    tr(0)
    def smfr(acc, c, breg):
        A("v_smfmac_f32_16x16x64_bf16 v[%d:%d], v[%d:%d], %s, v%d" % (acc, acc + 3, AF + 4 * c, AF + 4 * c + 3, R(breg, 8), VIDX))
    def smf(acc, c, tile): smfr(acc, c, wq_base(tile, c))
    accs = [Q0, K0, Q1, K1]
    for n in range(4): smfr(accs[n], 0, FR[n])
    A("s_waitcnt lgkmcnt(0)")
    A("s_barrier")
    tr(1)
    own = [lambda n=n: smfr(accs[n], 1, FR[4 + n]) for n in range(4)] + \
          [lambda a_=a_, c=c, t=t: smf(a_, c, t) for c in range(2) for a_, t in ((V0, 4), (V1, 5))]
    rd128(AF + 8, VA, L_MEM)
    for c in range(3, 8):
        rd128(AF + 4 * c, VA + c // 2 - 1, L_MEM + (c & 1) * 1024)
        own.pop(0)()
    own.pop(0)()
    if not opt.get("norearm"):
        store_mixed(A, cold, ["global_store_dword v%d, v%d, s[%d:%d]" % (VMLD, VSENT, sPR, sPR + 1),
                              "global_store_dword v%d, v%d, s[%d:%d] offset:1024" % (VMLD, VSENT, sPR, sPR + 1)])
    own.pop(0)(); own.pop(0)()
    tr(2)
    extra = 0
    for c in range(2, 8):
        A("s_waitcnt lgkmcnt(%d)" % (7 - c + extra))
        smf(Q0, c, 0)
        if c >= 4:
            rd128(KX1 + 4 * (c - 4), VL16, L_KX + (c - 4) * 1024); extra += 1
        if c == 2:
            A("s_cmp_eq_u32 s%d, 0" % sSEG)
            A("s_cbranch_scc1 L_ch_noexp0")
            if not opt.get("noexp"): A(exp_st())
            A.label("L_ch_noexp0")
        smf(K0, c, 2)
        if c == 3:
            A("s_cmp_lt_u32 s%d, 2" % sSEG)
            A("s_cbranch_scc1 L_ch_noflag")
            A("global_store_dword v%d, v%d, s[%d:%d] sc1" % (PM + 1, VSENT, sFM, sFM + 1))
            A.label("L_ch_noflag")
    tr(3)
    for c in range(2, 8):
        smf(Q1, c, 1)
        if c <= 3: rd128(KX2 + 8 * (3 - c), VL16, L_KX + 4096 + (3 - c) * 2048)
        if c == 5: pkadd(K0); pkadd(Q0)
        if c == 6: A("ds_write_b64 v%d, v[%d:%d] offset:%d" % (VZW, K0 + 2, K0 + 3, L_Z))
        smf(K1, c, 3)
        if c <= 3: rd128(KX2 + 8 * (3 - c) + 4, VL16, L_KX + 4096 + (3 - c) * 2048 + 1024)
        if c == 4: A.nop(1)
        if c == 5: cvt(K0 + 2, K0, K0 + 1); cvt(K0 + 3, Q0, Q0 + 1)
        if c == 6: rd128(VXC, VMLD, L_VX); A("v_mov_b32 v%d, v%d" % (EXP, K0 + 2))
        if c == 7: rd128(VXC + 4, VMLD, L_VX + 1024)
    tr(4)
    vq = [x for c in range(2, 8) for x in ((V0, c, 4), (V1, c, 5))]
    def vs(n=1):
        for _ in range(n):
            if vq: smf(*vq.pop(0))
    vs(2); A.nop(5)
    pkadd(Q1); pkadd(K1)
    cvt(K1 + 3, Q1, Q1 + 1); cvt(K1 + 2, K1, K1 + 1)
    A("ds_write_b64 v%d, v[%d:%d] offset:%d" % (VZW, K1 + 2, K1 + 3, L_Z + 512))
    tr(5)
    vs(1)
    A("v_mov_b32 v%d, v%d" % (EXP + 1, K1 + 2))
    vs(opt.get("vpre", 4) - 1)
    A("s_waitcnt lgkmcnt(0)")
    tr(6)
    A("s_barrier")
    tr(7)
    for dc in range(4):
        for Tt in range(2):
            A("ds_read_b64_tr_b16 v[%d:%d], v%d offset:%d" % (ZF + 4 * dc + 2 * Tt, ZF + 4 * dc + 2 * Tt + 1, VZR, L_Z + dc * 1024 + Tt * 512))
            if dc >= 1: vs()
    assert not vq
    A("s_cmp_eq_u32 s%d, %d" % (sSEG, LAST))
    A("s_cbranch_scc1 L_ch_last")
    tr(8)
    def mf(d, x, y, c, k32=True):
        n = 4 if k32 else 2
        A("v_mfma_f32_16x16x%d_bf16 v[%d:%d], v[%d:%d], v[%d:%d], %s" % (32 if k32 else 16, d, d + 3, x, x + n - 1, y, y + n - 1, c))
    acc = lambda r: "v[%d:%d]" % (r, r + 3)
    wrd = []
    for i in range(8):
        off = (i & 3) * 2048 + (i >> 2) * 1024
        wrd += [(SLOTS[i], VWO, off), (SLOTS[i] + 4, VWO, off + 512)]
    under = wrd[:6]
    A("s_add_u32 s41, s%d, 1" % sSEG)
    if PA > 1: A("s_waitcnt vmcnt(2)")
    kv_check(PT, "s41")
    kvo = kv_ops()
    if opt.get("nodma"): kvo = [["s_nop 0"]] * 4
    wrd = wrd[6:]
    n_under = 0
    for dc in range(4):
        A("s_waitcnt lgkmcnt(%d)" % (8 - 2 * (dc + 1) + n_under))
        z = ZF + 4 * dc
        mf(S1, KX1 + 4 * dc, z, "0" if dc == 0 else acc(S1))
        if dc != 2: rd128(*under.pop(0)); n_under += 1
        else: pkadd(V0); pkadd(V1)
        mf(S2, KX2 + 4 * dc, z, "0" if dc == 0 else acc(S2))
        if dc != 2: rd128(*under.pop(0)); n_under += 1
        else: cvt(VMA, V0, V0 + 1); cvt(VMA + 1, V1, V1 + 1)
        if dc == 3:
            for t in kvo.pop(0): A(t)
        mf(S0, z, z, "0" if dc == 0 else acc(S0))
        if dc < 3:
            for t in kvo.pop(0): A(t)
    assert not under
    tr(9)
    A("s_add_u32 s40, s%d, 1" % sIT)
    A("s_and_b32 s40, s40, 3")
    A("v_mov_b32 v%d, 0" % PT)
    A("s_lshl_b32 s40, s40, 13")
    A("v_max3_f32 v%d, v%d, v%d, v%d" % (M0_, S1, S1 + 1, S1 + 2))
    A("s_add_u32 s40, s40, 0x%x" % OFF_CMEM)
    A("v_max3_f32 v%d, v%d, v%d, v%d" % (M1_, S1 + 3, S2, S2 + 1))
    A("v_max3_f32 v%d, v%d, v%d, v%d" % (M0_, M0_, S2 + 2, S2 + 3))
    tr(10)
    A("v_max3_f32 v%d, v%d, v%d, v%d" % (M1_, M1_, S0, S0 + 1))
    A("v_max_f32 v%d, v%d, v%d" % (T0_, M0_, M1_))
    A("v_max_f32 v%d, v%d, v%d" % (T1_, M0_, M1_))
    sadd64(A, sMG, S_WS, "s40")
    A("v_permlane32_swap_b32 v%d, v%d" % (T0_, T1_))
    A("v_max_f32 v%d, v%d, v%d" % (M0_, T0_, T1_))
    A("v_max_f32 v%d, v%d, v%d" % (M1_, T0_, T1_))
    A.nop(2)
    A("v_permlane16_swap_b32 v%d, v%d" % (M0_, M1_))
    A("v_max_f32 v%d, v%d, v%d" % (M0_, M0_, M1_))
    A("v_mul_f32 v%d, s%d, v%d" % (M0_, sC, M0_))
    tr(11)
    sregs = [S1 + r for r in range(4)] + [S2 + r for r in range(4)] + [S0, S0 + 1]
    for k, r in enumerate(sregs):
        A("v_fma_f32 v%d, v%d, s%d, -v%d" % (r, r, sC, M0_))
        if k >= 1: A("v_exp_f32 v%d, v%d" % (sregs[k - 1], sregs[k - 1]))
        if k == 5: cvt(PX, S1, S1 + 1)
        if k == 6: cvt(PX + 1, S1 + 2, S1 + 3)
        if k == 8: cvt(PX + 2, S2, S2 + 1)
    cvt(PX + 3, S2 + 2, S2 + 3)
    A("v_exp_f32 v%d, v%d" % (sregs[9], sregs[9]))
    tr(12)
    A("s_nop 0")
    mf(O1, VXC + 4, PX, "0")
    cvt(PM, S0, S0 + 1)
    cvt(PMB + 1, S0, S0 + 1)
    mf(O0, VXC, PX, "0")
    A("v_add_f32 v%d, v%d, v%d" % (LS, S1, S1 + 1))
    A("v_add_f32 v%d, v%d, v%d" % (LT, S1 + 2, S1 + 3))
    A("v_add_f32 v%d, v%d, v%d" % (LS, LS, S2))
    A("v_add_f32 v%d, v%d, v%d" % (LT, LT, S2 + 1))
    A("v_add_f32 v%d, v%d, v%d" % (LS, LS, S2 + 2))
    A("v_add_f32 v%d, v%d, v%d" % (LT, LT, S2 + 3))
    mf(O1, VMA, PMB, acc(O1), k32=False)
    A("v_add_f32 v%d, v%d, v%d" % (LS, LS, S0))
    A("v_add_f32 v%d, v%d, v%d" % (LT, LT, S0 + 1))
    mf(O0, VMA, PM, acc(O0), k32=False)
    tr(13)
    A("v_add_f32 v%d, v%d, v%d" % (M0_, LS, LT))
    A("v_add_f32 v%d, v%d, v%d" % (M1_, LS, LT))
    z64(WACC[0]); z64(WACC[0] + 2)
    A("v_permlane32_swap_b32 v%d, v%d" % (M0_, M1_))
    A("v_add_f32 v%d, v%d, v%d" % (LS, M0_, M1_))
    A("v_add_f32 v%d, v%d, v%d" % (LT, M0_, M1_))
    z64(WACC[1]); z64(WACC[1] + 2)
    A("v_permlane16_swap_b32 v%d, v%d" % (LS, LT))
    A("v_add_f32 v%d, v%d, v%d" % (LS, LS, LT))
    A("v_rcp_f32 v%d, v%d" % (LS, LS))
    z64(WACC[2])
    for r in (O1, O1 + 2, O0, O0 + 2):
        A("v_pk_mul_f32 v[%d:%d], v[%d:%d], v[%d:%d] op_sel_hi:[1,0]" % (r, r + 1, r, r + 1, LS, LS + 1))
    cvt(OP + 2, O1, O1 + 1); cvt(OP + 3, O1 + 2, O1 + 3); cvt(OP, O0, O0 + 1); cvt(OP + 1, O0 + 2, O0 + 3)
    A("ds_write_b128 v%d, v[%d:%d]" % (VOW, OP, OP + 3))
    tr(14)
    npre = opt.get("npre", 2)
    for _ in range(npre): rd128(*wrd.pop(0))
    z64(WACC[2] + 2)
    for t in (4, 5, 6): z64(WACC[t]); z64(WACC[t] + 2)
    A("s_waitcnt vmcnt(%d) lgkmcnt(%d)" % (0 if opt.get("nodma") else 4, npre))
    tr(15)
    A("s_barrier")
    tr(16)
    rd128(OA, VL16, L_O); rd128(OA + 4, VL16, L_O + 1024)
    z64(WACC[3]); z64(WACC[3] + 2); z64(WACC[7]); z64(WACC[7] + 2)
    def epi_ops(q):
        t = WACC[4 * q:4 * q + 4]
        ops = ["v_pk_add_f32 v[%d:%d], v[%d:%d], v[%d:%d]" % (d, d + 1, d, d + 1, d + 2, d + 3) for d in t]
        ops += ["v_cvt_pk_bf16_f32 v%d, v%d, v%d" % (t[0] + 2, t[0], t[1]),
                "v_cvt_pk_bf16_f32 v%d, v%d, v%d" % (t[0] + 3, t[0] + 1, t[1] + 1),
                "v_cvt_pk_bf16_f32 v%d, v%d, v%d" % (t[0], t[2], t[3]),
                "v_cvt_pk_bf16_f32 v%d, v%d, v%d" % (t[0] + 1, t[2] + 1, t[3] + 1),
                "v_min_u32 v%d, -2, v%d" % (t[0], t[0])]
        return ops, t[0]
    e0, d0 = epi_ops(0)
    nlate = len(wrd)
    issued = 0
    for i in range(16):
        q, ch, j = i >> 3, (i >> 2) & 1, i & 3
        if i == 0: A("s_waitcnt lgkmcnt(1)")
        if i == 4: A("s_waitcnt lgkmcnt(%d)" % issued)
        if q == 1:
            need = 2 * (i - 8) + 2 - (16 - nlate)
            if need > 0: A("s_waitcnt lgkmcnt(%d)" % (issued - need))
        b = wo_base(j, ch) if q == 0 else SLOTS[ch * 4 + j]
        a_ = WACC[4 * q + j]
        A("v_smfmac_f32_16x16x64_bf16 v[%d:%d], v[%d:%d], %s, v%d" % (a_, a_ + 3, OA + 4 * ch, OA + 4 * ch + 3, R(b, 8), VIDX))
        if i == 0: tr(17)
        if i == 7: tr(18)
        if i == 15: tr(19)
        if wrd: rd128(*wrd.pop(0)); issued += 1
        if i == 9:
            A("s_and_b32 s40, s%d, 3" % sIT); A("s_lshl_b32 s40, s40, 13")
        if i == 10:
            A("s_add_u32 s40, s40, 0x%x" % OFF_CMEM)
        if i >= 11:
            for _ in range(2):
                if e0: A(e0.pop(0))
    assert not e0 and not wrd
    store_mixed(A, cold, ["global_store_dwordx4 v%d, v[%d:%d], s[%d:%d]" % (VPST, d0, d0 + 3, sP0, sP0 + 1)])
    e1, d1 = epi_ops(1)
    z64(M0_ + 4)
    for t in e1: A(t)
    store_mixed(A, cold, ["global_store_dwordx4 v%d, v[%d:%d], s[%d:%d]" % (VPST, d1, d1 + 3, sP1, sP1 + 1)])
    tr(20)
    sadd64(A, sMR, S_WS, "s40")
    A("s_add_u32 s%d, s%d, 1" % (sSEG, sSEG))
    A("s_add_u32 s%d, s%d, 1" % (sIT, sIT))
    for r in (4, 6, 16, 18, 20, 22): z64(Q0 + r)
    A("s_cmp_lg_u32 s%d, 0" % S_WAVE)
    A("s_cbranch_scc1 L_ch_nored")
    if opt.get("d1", 0): A.nop(opt["d1"])
    def ldB(i):
        b = sR0 if i < 4 else sR1
        A("global_load_dwordx4 v[%d:%d], v%d, s[%d:%d] offset:%d sc1" % (RB + 4 * i, RB + 4 * i + 3, VL16, b, b + 1, (i & 3) * 1024))
    tr(21)
    A.label("L_ch_rB")
    for i in range(8): ldB(i)
    spin_guard(A)
    A("s_waitcnt vmcnt(7)")
    A("v_cmp_eq_u32 vcc, -1, v%d" % RB)
    mf(RD, SEL, RB, "0")
    A("s_cbranch_vccnz L_ch_rB")
    tr(22)
    for i in range(1, 8):
        A("s_waitcnt vmcnt(%d)" % (7 - i))
        mf(RD, SEL, RB + 4 * i, acc(RD))
        if i == 2: A("v_max_u32 v%d, v%d, v%d" % (RT, RB + 4, RB + 8))
        if i in (4, 6): A("v_max3_u32 v%d, v%d, v%d, v%d" % (RT, RT, RB + 4 * i - 4, RB + 4 * i))
    tr(23)
    A("v_max_u32 v%d, v%d, v%d" % (RT, RT, RB + 28))
    A("v_cmp_eq_u32 vcc, -1, v%d" % RT)
    A.nop(5)
    A("s_cbranch_vccnz L_ch_rB")
    cvt(RT, RD, RD + 1)
    A("v_min_u32 v%d, -2, v%d" % (RT, RT))
    store_mixed(A, cold, ["global_store_dword v%d, v%d, s[%d:%d]" % (VMST, RT, sMG, sMG + 1),
                          "global_store_dword v%d, v%d, s[%d:%d]" % (VMST, VSENT, sMR, sMR + 1)])
    tr(24)
    A("s_barrier")
    setup_part_bases()
    for r in (0, 2, 8, 10, 12, 14): z64(Q0 + r)
    A("s_waitcnt vmcnt(2)")
    prefetch_own()
    A.label("L_ch_firstA")
    for k in range(PA):
        tr(25) if k == 0 else None
        ldA()
        if k < PA - 1: A.nop(opt.get("d5", 24))
    A("s_branch L_ch_pollA")
    A.label("L_ch_nored")
    setup_part_bases()
    prefetch_own()
    for r in (0, 2, 8, 10, 12, 14): z64(Q0 + r)
    A("s_barrier")
    if opt.get("d3", 0): A.nop(opt["d3"])
    A("s_branch L_ch_firstA")

    A.label("L_ch_last")
    sadd64(A, sKM, sKM, 32 * 8192)
    A.nop(6)
    pkadd(V0); pkadd(V1)
    cvt(VMA, V0, V0 + 1); cvt(VMA + 1, V1, V1 + 1)
    A(exp_st())
    A("s_waitcnt vmcnt(0) lgkmcnt(0)")
    A("s_barrier")
    if LAST >= 1: A("global_store_dword v%d, v%d, s[%d:%d] offset:4 sc1" % (PM + 1, VSENT, sFM, sFM + 1))
    A("global_store_dword v%d, v%d, s[%d:%d] offset:8 sc1" % (PM + 1, VSENT, sFM, sFM + 1))
    A("s_add_u32 s%d, s%d, 1" % (sL, sL))
    A("s_cmp_lt_u32 s%d, %d" % (sL, opt.get("layers", 2)))
    A("s_cbranch_scc1 L_ch_layer")
    A("s_branch L_end")
    cold.emit(A)
```

```python
from asmlib import *
NAME = "interleave_layers__linear_attn_block__memory_aug_recurrent_mem_tr__prompt"
KNAME = NAME + "_kernel"

F_X1  = 0x0000
F_Y2  = 0x4000
F_PB  = 0x8000
F_PA  = 0xC000
F_KV  = 0x10000
F_M   = 0x14000
F_AKV = 0x18000
OFF_CPART = 0x100000
OFF_CMEM  = 0x180000
OFF_Y0 = 0x200000
OFF_X1 = 0x400000
OFF_Y1 = 0x800000
OFF_X2 = 0xC00000
OFF_Y2 = 0xE00000
OFF_AKV = 0x1000000
OFF_PW = 0x2000000
OFF_KX = 0x4000000
OFF_VX = 0x6000000
OFF_QX = 0x8000000
OFF_KM = 0xA000000
OFF_STAMP = 0xC000000

S_WS = 4
S_AX = 8
S_WQKV = 10
S_AWO = 12
S_MEM0 = 16
S_WQ = 18
S_WK = 20
S_WV = 22
S_WO = 24
S_OUT = 28
S_DBG = 30
S_GRP = 32
S_HEAD = 33
S_WAVE = 34
S_MIXED = 35
S_T0 = 36

LDS_BYTES = 163840
L_WO = 32768

def sadd64(A, d, b, imm_or_s):
    x = imm_or_s if isinstance(imm_or_s, str) else "0x%x" % imm_or_s
    A("s_add_u32 s%d, s%d, %s" % (d, b, x))
    A("s_addc_u32 s%d, s%d, 0" % (d + 1, b + 1))

def load_head_weights(A, vt, wq_base, wo_rowmap, wo_colmap, vwo=None, wo_base=None):
    VOFFW, VOFFO, VTR, VTRO, VWB, VX = vt, vt + 1, vt + 2, vt + 3, vt + 4, vt + 5
    TMP = vt + 8
    assert TMP % 2 == 0
    A("v_and_b32 %s, 63, v0" % v(VX))
    A("v_lshrrev_b32 %s, 2, %s" % (v(VOFFW), v(VX)))
    A("v_lshlrev_b32 %s, 10, %s" % (v(VOFFO), v(VOFFW)))
    A("v_lshlrev_b32 %s, 13, %s" % (v(VOFFW), v(VOFFW)))
    A("v_and_b32 %s, 3, %s" % (v(VTR), v(VX)))
    A("v_lshlrev_b32 %s, 4, %s" % (v(VTR), v(VTR)))
    A("v_add_u32 %s, %s, %s" % (v(VOFFW), v(VOFFW), v(VTR)))
    A("v_add_u32 %s, %s, %s" % (v(VOFFO), v(VOFFO), v(VTR)))
    A("s_lshl_b32 s40, s%d, 8" % S_HEAD)
    A("s_lshl_b32 s41, s%d, 6" % S_WAVE)
    A("s_add_u32 s40, s40, s41")
    A("v_add_u32 %s, s40, %s" % (v(VOFFW), v(VOFFW)))
    A("s_lshl_b32 s40, s%d, 17" % S_HEAD)
    A("s_lshl_b32 s41, s%d, 8" % S_WAVE)
    A("s_add_u32 s40, s40, s41")
    A("v_add_u32 %s, s40, %s" % (v(VOFFO), v(VOFFO)))
    A("s_lshl_b32 s46, s%d, 15" % S_WAVE)
    A("s_add_u32 s46, s46, %d" % L_WO)
    A("v_lshrrev_b32 %s, 4, %s" % (v(TMP), v(VX)))
    A("v_bfe_u32 %s, %s, 2, 2" % (v(TMP + 1), v(VX)))
    A("v_and_b32 %s, 3, %s" % (v(TMP + 2), v(VX)))
    A("v_lshl_add_u32 %s, %s, 3, %s" % (v(VTR), v(TMP), v(TMP + 1)))
    A("v_lshlrev_b32 %s, 6, %s" % (v(VTR), v(VTR)))
    A("v_lshl_add_u32 %s, %s, 3, %s" % (v(VTR), v(TMP + 2), v(VTR)))
    A("v_add_u32 %s, s46, %s" % (v(VTR), v(VTR)))
    if wo_rowmap == "chain":
        A("v_lshrrev_b32 %s, 1, %s" % (v(TMP + 3), v(TMP + 1)))
        A("v_lshlrev_b32 %s, 5, %s" % (v(TMP + 3), v(TMP + 3)))
        A("v_and_b32 %s, 1, %s" % (v(TMP + 4), v(TMP)))
        A("v_lshl_add_u32 %s, %s, 4, %s" % (v(TMP + 3), v(TMP + 4), v(TMP + 3)))
        A("v_lshrrev_b32 %s, 1, %s" % (v(TMP + 4), v(TMP)))
        A("v_lshl_add_u32 %s, %s, 2, %s" % (v(TMP + 3), v(TMP + 4), v(TMP + 3)))
        A("v_and_b32 %s, 1, %s" % (v(TMP + 4), v(TMP + 1)))
        A("v_add_u32 %s, %s, %s" % (v(TMP + 3), v(TMP + 3), v(TMP + 4)))
        rowimm = lambda ch, hB, hh: 64 * ch + 8 * hB + 2 * hh
    else:
        A("v_lshl_add_u32 %s, %s, 2, %s" % (v(TMP + 3), v(TMP), v(TMP + 1)))
        rowimm = lambda ch, hB, hh: 64 * ch + 32 * hB + 16 * hh
    A("v_lshlrev_b32 %s, 6, %s" % (v(VTRO), v(TMP + 3)))
    A("v_lshl_add_u32 %s, %s, 3, %s" % (v(VTRO), v(TMP + 2), v(VTRO)))
    A("v_add_u32 %s, s46, %s" % (v(VTRO), v(VTRO)))
    A("v_and_b32 %s, 15, %s" % (v(TMP + 4), v(VX)))
    if wo_colmap == "mod4":
        A("v_and_b32 %s, 3, %s" % (v(TMP + 5), v(TMP + 4)))
        A("v_lshlrev_b32 %s, 11, %s" % (v(VWB), v(TMP + 5)))
        A("v_lshrrev_b32 %s, 2, %s" % (v(TMP + 5), v(TMP + 4)))
        A("v_lshl_add_u32 %s, %s, 3, %s" % (v(TMP + 5), v(TMP), v(TMP + 5)))
        A("v_lshl_add_u32 %s, %s, 4, %s" % (v(VWB), v(TMP + 5), v(VWB)))
        wbimm = lambda ch, hB, Tn: ch * 1024 + hB * 512 + Tn * 64
    else:
        A("v_bfe_u32 %s, %s, 2, 1" % (v(TMP + 5), v(TMP + 4)))
        A("v_lshlrev_b32 %s, 12, %s" % (v(VWB), v(TMP + 5)))
        A("v_lshrrev_b32 %s, 3, %s" % (v(TMP + 5), v(TMP + 4)))
        A("v_lshlrev_b32 %s, 2, %s" % (v(TMP + 5), v(TMP + 5)))
        A("v_and_b32 %s, 3, %s" % (v(TMP + 6), v(TMP + 4)))
        A("v_add_u32 %s, %s, %s" % (v(TMP + 5), v(TMP + 5), v(TMP + 6)))
        A("v_lshl_add_u32 %s, %s, 4, %s" % (v(TMP + 5), v(TMP), v(TMP + 5)))
        A("v_lshl_add_u32 %s, %s, 4, %s" % (v(VWB), v(TMP + 5), v(VWB)))
        wbimm = lambda ch, hB, Tn: ch * 2048 + hB * 1024 + Tn * 128
    A("v_add_u32 %s, s46, %s" % (v(VWB), v(VWB)))

    chain = wo_rowmap == "chain"
    if chain:
        pieces = [(0, 1), (0, 2), (0, 3), (1, 1), (1, 2), (1, 3), (2, 0), (2, 1), (2, 2), (2, 3),
                  (3, 0), (3, 1), (3, 2), (3, 3), (0, 0), (1, 0)]
    else:
        pieces = [(X, rb) for X in range(4) for rb in range(4)]
    def issue(p):
        slot = p % 4
        X, rb = pieces[p]
        if X < 3:
            base = (S_WQ, S_WK, S_WV)[X]
            if chain:
                A("s_xor_b32 s45, s%d, %d" % (S_WAVE, rb))
                A("s_lshl_b32 s45, s45, 20")
                sadd64(A, 42, base, "s45")
            else:
                sadd64(A, 42, base, rb * 128 * 8192)
            step = 16 * 8192; voff = VOFFW
        else:
            sadd64(A, 42, S_WO, rb * 64)
            step = 16 * 1024; voff = VOFFO
        A("s_add_u32 s44, s46, %d" % (slot * 8192))
        for i in range(8):
            A("s_mov_b32 m0, s44")
            A("s_add_u32 s44, s44, 1024")
            A("global_load_lds_dwordx4 %s, s[42:43]" % v(voff))
            if i < 7: sadd64(A, 42, 42, step)
    def qkv_reads(slot, dstf):
        for cc in range(2):
            for T in range(2):
                for hB in range(2):
                    for hh in range(2):
                        off = slot * 8192 + (64 * cc + 32 * hB + 4 * hh) * 64 + T * 32
                        A("ds_read_b64_tr_b16 %s, %s offset:%d" % (R(dstf(T, cc) + hB * 4 + hh * 2, 2), v(VTR), off))
    issued = 0
    for p in range(4): issue(p); issued += 1
    for p in range(16):
        slot = p % 4
        X, rb = pieces[p]
        A("s_waitcnt vmcnt(%d)" % (8 * (issued - 1 - p)))
        if X < 3 and not (chain and p >= 14):
            qkv_reads(slot, lambda T, cc: wq_base(2 * X + T, 2 * rb + cc))
            A("s_waitcnt lgkmcnt(0)")
        elif X < 3:
            qkv_reads(slot, lambda T, cc: TMP + 32 * X + (T * 2 + cc) * 8)
            if p == 15:
                A("s_waitcnt lgkmcnt(0)")
                for f in range(8):
                    for hB in range(2):
                        A("ds_write_b128 %s, %s offset:%d" % (v(vwo), v(TMP + f * 8 + hB * 4, 4), 16384 + f * 1024 + hB * 512))
                A("s_waitcnt lgkmcnt(0)")
        else:
            for ch in range(2):
                for hB in range(2):
                    for Tn in range(2):
                        for hh in range(2):
                            dst = TMP + ((ch * 2 + hB) * 2 + Tn) * 4 + hh * 2
                            off = slot * 8192 + rowimm(ch, hB, hh) * 64 + Tn * 32
                            A("ds_read_b64_tr_b16 %s, %s offset:%d" % (v(dst, 2), v(VTRO), off))
            A("s_waitcnt lgkmcnt(0)")
            for ch in range(2):
                for hB in range(2):
                    for Tn in range(2):
                        src = TMP + ((ch * 2 + hB) * 2 + Tn) * 4
                        A("ds_write_b128 %s, %s offset:%d" % (v(VWB), v(src, 4), slot * 8192 + wbimm(ch, hB, Tn)))
            A("s_waitcnt lgkmcnt(0)")
            if chain and p == 11:
                for ch in range(2):
                    for jj in range(4):
                        for hB in range(2):
                            A("ds_read_b128 %s, %s offset:%d" % (R(wo_base(jj, ch) + hB * 4, 4), v(vwo), 16384 + jj * 2048 + ch * 1024 + hB * 512))
                A("s_waitcnt lgkmcnt(0)")
        if chain and p == 10: continue
        while issued < 16 and issued <= p + 4:
            issue(issued); issued += 1


class Cold:
    def __init__(self): self.blocks = []
    def add(self, fn): self.blocks.append(fn)
    def emit(self, A):
        for fn in self.blocks: fn(A)
        self.blocks = []

def store_mixed(A, cold, text):
    l1 = A.newlabel("Lmx"); l2 = A.newlabel("Lmy")
    A("s_cbranch_scc1 %s" % l1) if False else None
    A("s_cmp_lg_u32 s%d, 0" % S_MIXED)
    A("s_cbranch_scc1 %s" % l1)
    for t in text: A(t)
    A.label(l2)
    def blk(A):
        A.label(l1)
        for t in text: A(t + " sc1")
        A("s_branch %s" % l2)
    cold.add(blk)


S_SPIN = 101
def spin_guard(A):
    A("s_add_u32 s%d, s%d, 1" % (S_SPIN, S_SPIN))
    A("s_cmp_gt_u32 s%d, 0x40000" % S_SPIN)
    A("s_cbranch_scc1 L_end")
```

```python
from common import *
import math, struct
def f32bits(x): return struct.unpack("<I", struct.pack("<f", x))[0]
LOG2E = math.log2(math.e)

def mfma(A, d, x, y, c, k32=True):
    n = 4 if k32 else 2
    A("v_mfma_f32_16x16x%d_bf16 %s, %s, %s, %s" % (32 if k32 else 16, v(d, 4), R(x, n), R(y, n), c if isinstance(c, str) else v(c, 4)))
def cvt(A, d, x, y): A("v_cvt_pk_bf16_f32 v%d, v%d, v%d" % (d, x, y))
def rd128(A, d, addr, off): A("ds_read_b128 v[%d:%d], v%d offset:%d" % (d, d + 3, addr, off))

def wait_flags(A, vtmp, voff, sbase, sleep=2):
    lp = A.newlabel("Lwf"); ok = A.newlabel("Lwo")
    A.label(lp)
    A("global_load_dword v%d, v%d, s[%d:%d] sc1" % (vtmp, voff, sbase, sbase + 1))
    A("s_waitcnt vmcnt(0)")
    A("v_cmp_eq_u32 vcc, 0, v%d" % vtmp)
    A("s_cbranch_vccz %s" % ok)
    A("s_sleep %d" % sleep)
    spin_guard(A)
    A("s_branch %s" % lp)
    A.label(ok)

def row_allsum16(A, regs, tmp):
    src, dst = list(regs), list(tmp)
    for sh in (8, 4, 2, 1):
        if len(regs) < 3: A.nop(3 - len(regs))
        for a_, b_ in zip(src, dst):
            A("v_add_f32_dpp v%d, v%d, v%d row_ror:%d row_mask:0xf bank_mask:0xf" % (b_, a_, a_, sh))
        src, dst = dst, src

def swap_sum(A, r, t, which):
    A("v_mov_b32 v%d, v%d" % (t, r))
    A.nop(2)
    A("v_permlane%d_swap_b32 v%d, v%d" % (which, r, t))
    A("v_add_f32 v%d, v%d, v%d" % (r, r, t))

def sel_const(A, SEL, T):
    A("v_and_b32 v%d, 1, v0" % T)
    A("v_lshlrev_b32 v%d, 4, v%d" % (T, T))
    A("v_mov_b32 v%d, 0x3f80" % (T + 1))
    A("v_lshlrev_b32 v%d, v%d, v%d" % (T + 1, T, T + 1))
    A("v_bfe_u32 v%d, v0, 1, 2" % T)
    for rr in range(4):
        A("v_cmp_eq_u32 vcc, %d, v%d" % (rr, T))
        A.nop(2)
        A("v_cndmask_b32 v%d, 0, v%d, vcc" % (SEL + rr, T + 1))

def reduce_consts(A, VRLD, VROW, VFL, T):
    A("v_and_b32 v%d, 15, v0" % T)
    A("v_bfe_u32 v%d, v0, 4, 2" % (T + 1))
    A("s_lshl_b32 s40, s%d, 8" % S_WAVE)
    A("v_lshlrev_b32 v%d, 10, v%d" % (VRLD, T + 1))
    A("v_lshl_add_u32 v%d, v%d, 4, v%d" % (VRLD, T, VRLD))
    A("v_add_u32 v%d, s40, v%d" % (VRLD, VRLD))
    A("v_and_b32 v%d, 1, v%d" % (T + 1, T + 1))
    A("v_lshlrev_b32 v%d, 3, v%d" % (VROW, T + 1))
    A("v_lshl_add_u32 v%d, v%d, 4, v%d" % (VROW, T, VROW))
    A("v_add_u32 v%d, s40, v%d" % (VROW, VROW))
    A("v_and_b32 v%d, 31, v0" % VFL)
    A("v_lshlrev_b32 v%d, 2, v%d" % (VFL, VFL))

def reduce_row(A, cold, W, SEL, VRLD, VROW, VFL, sPART, sPF, sRES, sX, sY, sOF, lds_off, final_cond):
    RB, RD, XR, T = W, W + 32, W + 36, W + 40
    A("global_load_dwordx2 v[%d:%d], v%d, s[%d:%d] sc1" % (XR, XR + 1, VROW, sRES, sRES + 1))
    wait_flags(A, T, VFL, sPF, sleep=1)
    for i in range(8):
        if i > 0: sadd64(A, sPART, sPART, 4096)
        A("global_load_dwordx4 v[%d:%d], v%d, s[%d:%d] sc1" % (RB + 4 * i, RB + 4 * i + 3, VRLD, sPART, sPART + 1))
    for i in range(8):
        A("s_waitcnt vmcnt(%d)" % (7 - i))
        mfma(A, RD, SEL, RB + 4 * i, "0" if i == 0 else RD)
    A("v_lshlrev_b32 v%d, 16, v%d" % (T, XR))
    A("v_and_b32 v%d, 0xffff0000, v%d" % (T + 1, XR))
    A("v_lshlrev_b32 v%d, 16, v%d" % (T + 2, XR + 1))
    A("v_and_b32 v%d, 0xffff0000, v%d" % (T + 3, XR + 1))
    A.nop(4)
    cvt(A, XR, RD, RD + 1); cvt(A, XR + 1, RD + 2, RD + 3)
    A("v_lshlrev_b32 v%d, 16, v%d" % (RD, XR))
    A("v_and_b32 v%d, 0xffff0000, v%d" % (RD + 1, XR))
    A("v_lshlrev_b32 v%d, 16, v%d" % (RD + 2, XR + 1))
    A("v_and_b32 v%d, 0xffff0000, v%d" % (RD + 3, XR + 1))
    for r in range(4): A("v_add_f32 v%d, v%d, v%d" % (RD + r, RD + r, T + r))
    cvt(A, XR, RD, RD + 1); cvt(A, XR + 1, RD + 2, RD + 3)
    lfin = A.newlabel("Lfin"); ldone = A.newlabel("Lrdone")
    final_cond(A)
    A("s_cbranch_scc1 %s" % lfin)
    A("global_store_dwordx2 v%d, v[%d:%d], s[%d:%d] sc1" % (VROW, XR, XR + 1, sX, sX + 1))
    A("v_lshlrev_b32 v%d, 16, v%d" % (RD, XR))
    A("v_and_b32 v%d, 0xffff0000, v%d" % (RD + 1, XR))
    A("v_lshlrev_b32 v%d, 16, v%d" % (RD + 2, XR + 1))
    A("v_and_b32 v%d, 0xffff0000, v%d" % (RD + 3, XR + 1))
    S, Q = T, T + 1
    A("v_add_f32 v%d, v%d, v%d" % (S, RD, RD + 1))
    A("v_mul_f32 v%d, v%d, v%d" % (Q, RD, RD))
    A("v_add_f32 v%d, v%d, v%d" % (S, S, RD + 2))
    A("v_fmac_f32 v%d, v%d, v%d" % (Q, RD + 1, RD + 1))
    A("v_add_f32 v%d, v%d, v%d" % (S, S, RD + 3))
    A("v_fmac_f32 v%d, v%d, v%d" % (Q, RD + 2, RD + 2))
    A("v_fmac_f32 v%d, v%d, v%d" % (Q, RD + 3, RD + 3))
    A.nop(1)
    row_allsum16(A, [S, Q], [T + 2, T + 3])
    swap_sum(A, S, T + 2, 16); swap_sum(A, Q, T + 3, 16)
    A("s_lshl_b32 s40, s%d, 3" % S_WAVE)
    A("s_add_u32 s40, s40, %d" % lds_off)
    A("v_mov_b32 v%d, s40" % (T + 2))
    A("v_mov_b32 v%d, %d" % (T + 3, lds_off))
    A("ds_write_b64 v%d, v[%d:%d]" % (T + 2, S, Q))
    A("s_waitcnt lgkmcnt(0)")
    A("s_barrier")
    rd128(A, RB, T + 3, 0); rd128(A, RB + 4, T + 3, 16)
    A("s_waitcnt lgkmcnt(0)")
    A("v_pk_add_f32 v[%d:%d], v[%d:%d], v[%d:%d]" % (RB, RB + 1, RB, RB + 1, RB + 2, RB + 3))
    A("v_pk_add_f32 v[%d:%d], v[%d:%d], v[%d:%d]" % (RB + 4, RB + 5, RB + 4, RB + 5, RB + 6, RB + 7))
    A("v_pk_add_f32 v[%d:%d], v[%d:%d], v[%d:%d]" % (RB, RB + 1, RB, RB + 1, RB + 4, RB + 5))
    ln_finish(A, RB, RB + 1, T)
    for r in range(4):
        A("v_sub_f32 v%d, v%d, v%d" % (RD + r, RD + r, T))
        A("v_mul_f32 v%d, v%d, v%d" % (RD + r, RD + r, T + 1))
    cvt(A, XR + 2, RD, RD + 1); cvt(A, XR + 3, RD + 2, RD + 3)
    A("global_store_dwordx2 v%d, v[%d:%d], s[%d:%d] sc1" % (VROW, XR + 2, XR + 3, sY, sY + 1))
    A("s_waitcnt vmcnt(0)")
    A("s_barrier")
    A("v_mov_b32 v%d, 0" % T)
    A("v_mov_b32 v%d, 1" % (T + 1))
    A("global_store_dword v%d, v%d, s[%d:%d] sc1" % (T, T + 1, sOF, sOF + 1))
    A.label(ldone)
    def blk(A):
        A.label(lfin)
        A("global_store_dwordx2 v%d, v[%d:%d], s[%d:%d]" % (VROW, XR, XR + 1, sX, sX + 1))
        A("s_branch %s" % ldone)
    cold.add(blk)

def ln_finish(A, S, Q, T):
    A("v_mul_f32 v%d, 0x%x, v%d" % (T, f32bits(1 / 512), S))
    A("v_mul_f32 v%d, 0x%x, v%d" % (T + 1, f32bits(1 / 512), Q))
    A("v_fma_f32 v%d, -v%d, v%d, v%d" % (T + 1, T, T, T + 1))
    A("v_max_f32 v%d, 0, v%d" % (T + 1, T + 1))
    A("v_add_f32 v%d, 0x%x, v%d" % (T + 1, f32bits(1e-5), T + 1))
    A("v_rsq_f32 v%d, v%d" % (T + 1, T + 1))
    A.nop(1)

def prepass(A):
    A("s_lshl_b32 s37, s2, 13")
    A("s_lshl_b32 s38, s%d, 11" % S_WAVE)
    A("s_add_u32 s37, s37, s38")
    A("v_and_b32 v12, 63, v0")
    A("v_lshl_add_u32 v12, v12, 4, s37")
    A("global_load_dwordx4 v[16:19], v12, s[%d:%d]" % (S_AX, S_AX + 1))
    A("global_load_dwordx4 v[20:23], v12, s[%d:%d] offset:1024" % (S_AX, S_AX + 1))
    sadd64(A, 38, S_WS, OFF_Y0)
    for k in range(2):
        X = 16 + 4 * k; U = 24 + 8 * k; S, Q = 40 + 2 * k, 41 + 2 * k
        A("s_waitcnt vmcnt(%d)" % (1 - k))
        for r in range(4):
            A("v_lshlrev_b32 v%d, 16, v%d" % (U + 2 * r, X + r))
            A("v_and_b32 v%d, 0xffff0000, v%d" % (U + 2 * r + 1, X + r))
        A("v_add_f32 v%d, v%d, v%d" % (S, U, U + 1))
        A("v_mul_f32 v%d, v%d, v%d" % (Q, U, U))
        A("v_fmac_f32 v%d, v%d, v%d" % (Q, U + 1, U + 1))
        for r in range(2, 8):
            A("v_add_f32 v%d, v%d, v%d" % (S, S, U + r))
            A("v_fmac_f32 v%d, v%d, v%d" % (Q, U + r, U + r))
    A.nop(1)
    row_allsum16(A, [40, 41, 42, 43], [44, 45, 46, 47])
    for r in range(4): swap_sum(A, 40 + r, 44, 16)
    for r in range(4): swap_sum(A, 40 + r, 44, 32)
    for k in range(2):
        X = 16 + 4 * k; U = 24 + 8 * k
        ln_finish(A, 40 + 2 * k, 41 + 2 * k, 48)
        for r in range(8):
            A("v_sub_f32 v%d, v%d, v48" % (U + r, U + r))
            A("v_mul_f32 v%d, v%d, v49" % (U + r, U + r))
        for r in range(4): cvt(A, X + r, U + 2 * r, U + 2 * r + 1)
        A("global_store_dwordx4 v12, v[%d:%d], s[38:39] offset:%d sc1" % (X, X + 3, 1024 * k))

def publish_partials(A, cold, T, sPF):
    A("s_waitcnt vmcnt(0)")
    A("s_barrier")
    A("s_lshl_b32 s40, s%d, 2" % S_HEAD)
    A("v_mov_b32 v%d, s40" % T)
    A("v_mov_b32 v%d, 1" % (T + 1))
    store_mixed(A, cold, ["global_store_dword v%d, v%d, s[%d:%d]" % (T, T + 1, sPF, sPF + 1)])

def wqw(t, c):
    return 256 + 64 * t + 8 * c if t < 4 else 128 + 64 * (t - 4) + 8 * c

def gen_bworker(A, opt):
    cold = Cold()
    NB = opt["NB"]
    VL16, VW2K, VYG, VKST, VZR, VZW, VWO, VPST, VRLD, VROW, VFL = range(1, 12)
    SEL, BIAS = 12, 16
    VQF, VVF, VOW, VKM, ZERO, PMA, PMB = 24, 25, 26, 27, 29, 28, 30
    W = 32
    L_Q, L_K, L_V, L_Z, L_ST = 0, 8192, 16384, 24576, 28672
    sL, sSEG, sIT, sC = 48, 49, 50, 51
    sA, sB, sCc, sD, sE, sF, sG = 52, 54, 56, 58, 60, 62, 64
    sT = 66
    A.label("L_bworker")
    T = 40
    A("v_and_b32 v%d, 63, v0" % T)
    A("v_and_b32 v%d, 15, v0" % (T + 1))
    A("v_bfe_u32 v%d, v0, 4, 2" % (T + 2))
    A("v_lshlrev_b32 v%d, 4, v%d" % (VL16, T))
    A("s_lshl_b32 s40, s%d, 11" % S_WAVE)
    A("v_add_u32 v%d, s40, v%d" % (VW2K, VL16))
    A("s_lshl_b32 s41, s%d, 8" % S_WAVE)
    A("v_lshlrev_b32 v%d, 10, v%d" % (VYG, T + 1))
    A("v_lshl_add_u32 v%d, v%d, 4, v%d" % (VYG, T + 2, VYG))
    A("v_add_u32 v%d, s41, v%d" % (VYG, VYG))
    A("v_lshlrev_b32 v%d, 15, v%d" % (VPST, T + 1))
    A("v_lshl_add_u32 v%d, v%d, 4, v%d" % (VPST, T + 2, VPST))
    A("v_add_u32 v%d, s41, v%d" % (VPST, VPST))
    A("s_lshl_b32 s40, s%d, 10" % S_WAVE)
    A("v_add_u32 v%d, s40, v%d" % (VKST, VL16))
    A("v_lshlrev_b32 v%d, 3, v%d" % (VZR, T))
    A("v_lshlrev_b32 v%d, 5, v%d" % (VZW, T + 1))
    A("v_lshl_add_u32 v%d, v%d, 3, v%d" % (VZW, T + 2, VZW))
    A("v_add_u32 v%d, s40, v%d" % (VZW, VZW))
    A("s_lshl_b32 s40, s%d, 15" % S_WAVE)
    A("s_add_u32 s40, s40, %d" % L_WO)
    A("v_add_u32 v%d, s40, v%d" % (VWO, VL16))
    A("s_and_b32 s42, s%d, 1" % S_WAVE)
    A("s_lshr_b32 s43, s%d, 1" % S_WAVE)
    A("s_lshl_b32 s40, s42, 12")
    A("v_add_u32 v%d, s40, v%d" % (VQF, VL16))
    A("s_lshl_b32 s41, s43, 11")
    A("v_add_u32 v%d, s41, v%d" % (VOW, VQF))
    A("s_lshl_b32 s41, s43, 12")
    A("v_add_u32 v%d, s41, v%d" % (VVF, VL16))
    A("v_add_u32 v%d, 8, v%d" % (VKM, VVF))
    A("s_lshl_b32 s40, s42, 4")
    A("v_add_u32 v%d, s40, v%d" % (T + 3, T + 1))
    A("v_lshlrev_b32 v%d, 2, v%d" % (T + 4, T + 2))
    A("v_mov_b32 v%d, 0x%x" % (T + 6, f32bits(-1e30)))
    for kt in range(2):
        for r in range(4):
            A("v_add_u32 v%d, %d, v%d" % (T + 5, 16 * kt + r, T + 4))
            A("v_cmp_gt_u32 vcc, v%d, v%d" % (T + 5, T + 3))
            A.nop(2)
            A("v_cndmask_b32 v%d, 0, v%d, vcc" % (BIAS + 4 * kt + r, T + 6))
    A("v_mov_b64 v[28:29], 0"); A("v_mov_b64 v[30:31], 0")
    sel_const(A, SEL, T)
    reduce_consts(A, VRLD, VROW, VFL, T)
    A("s_mov_b32 s%d, 0x%x" % (sC, f32bits(128 ** -0.5 * LOG2E)))
    load_head_weights(A, 40, wqw, "worker", "quad")
    opt["init_wait"](A)
    A("s_mov_b32 s%d, 0" % sL)
    A("s_mov_b32 s%d, 0" % sIT)

    def tile_off():
        A("s_lshl_b32 s40, s%d, 6" % sL)
        A("s_add_u32 s40, s40, s%d" % sSEG)
        A("s_lshl_b32 s%d, s40, 5" % sT)
        A("s_add_u32 s%d, s%d, s%d" % (sT, sT, S_HEAD))
        A("s_lshl_b32 s%d, s%d, 13" % (sT, sT))
    def head_flag(dst, base):
        A("s_lshl_b32 s41, s%d, 5" % sL)
        A("s_add_u32 s41, s41, s%d" % S_HEAD)
        A("s_lshl_b32 s41, s41, 6")
        A("s_add_u32 s41, s41, s%d" % sSEG)
        A("s_lshl_b32 s41, s41, 2")
        A("s_add_u32 s41, s41, 0x%x" % base)
        sadd64(A, dst, S_WS, "s41")

    A.label("L_bw_layer")
    A("s_sub_u32 s%d, s%d, 1" % (sSEG, S_GRP))
    A.label("L_bw_p1")
    tile_off()
    A("s_lshl_b32 s41, s40, 7")
    A("s_add_u32 s41, s41, 0x%x" % F_X1); sadd64(A, sA, S_WS, "s41")
    A("s_lshl_b32 s41, s40, 15")
    A("s_add_u32 s41, s41, 0x%x" % OFF_Y1); sadd64(A, sB, S_WS, "s41")
    sadd64(A, sCc, sB, 16384)
    wait_flags(A, W, VFL, sA)
    A("s_lshl_b32 s42, s%d, 13" % S_WAVE)
    for kl in range(4):
        for mt in range(2):
            b = sB if mt == 0 else sCc
            A("s_add_u32 s43, s42, %d" % ((kl * 2 + mt) * 1024 - kl * 64 + 4096))
            A("s_sub_u32 s43, s43, 4096")
            A("s_mov_b32 m0, s43")
            A("s_nop 0")
            A("global_load_lds_dwordx4 v%d, s[%d:%d] offset:%d sc1" % (VYG, b, b + 1, kl * 64))
    A("s_add_u32 s41, s%d, 0x%x" % (sT, OFF_KX)); sadd64(A, sD, S_WS, "s41")
    A("s_add_u32 s41, s%d, 0x%x" % (sT, OFF_VX)); sadd64(A, sE, S_WS, "s41")
    A("s_add_u32 s41, s%d, 0x%x" % (sT, OFF_QX)); sadd64(A, sF, S_WS, "s41")
    head_flag(sG, F_KV)
    A("s_waitcnt vmcnt(0)")
    A("s_barrier")
    ACC, YF = 32, 80
    acc = lambda t, mt: ACC + (t * 2 + mt) * 4
    rd128(A, YF, VL16, 0); rd128(A, YF + 4, VL16, 1024)
    for ks in range(16):
        y = YF + 8 * (ks & 1)
        if ks < 15:
            yn = YF + 8 * ((ks + 1) & 1)
            rd128(A, yn, VL16, (ks + 1) * 2048); rd128(A, yn + 4, VL16, (ks + 1) * 2048 + 1024)
        A("s_waitcnt lgkmcnt(%d)" % (2 if ks < 15 else 0))
        for t in (2, 3, 4, 5, 0, 1):
            wf = wqw(t, 0) + 4 * ks
            for mt in range(2):
                c = "0" if ks == 0 else acc(t, mt)
                if t < 4: mfma(A, acc(t, mt), wf, y + 4 * mt, c)
                else: mfma(A, acc(t, mt), y + 4 * mt, wf, c)
    A.nop(4)
    O = 96
    def pack(dst, a0, a1):
        cvt(A, dst, a0, a0 + 1); cvt(A, dst + 1, a0 + 2, a0 + 3); cvt(A, dst + 2, a1, a1 + 1); cvt(A, dst + 3, a1 + 2, a1 + 3)
    sadd64(A, sA, sD, 4096); sadd64(A, sB, sF, 4096)
    for mt in range(2):
        pack(O + 4 * mt, acc(2, mt), acc(3, mt))
        b = sD if mt == 0 else sA
        A("global_store_dwordx4 v%d, v[%d:%d], s[%d:%d] sc1" % (VKST, O + 4 * mt, O + 4 * mt + 3, b, b + 1))
    for Tt in range(2):
        pack(O + 8 + 4 * Tt, acc(4 + Tt, 0), acc(4 + Tt, 1))
        A("global_store_dwordx4 v%d, v[%d:%d], s[%d:%d] offset:%d sc1" % (VW2K, O + 8 + 4 * Tt, O + 11 + 4 * Tt, sE, sE + 1, 1024 * Tt))
    for mt in range(2):
        pack(O + 16 + 4 * mt, acc(0, mt), acc(1, mt))
        b = sF if mt == 0 else sB
        A("global_store_dwordx4 v%d, v[%d:%d], s[%d:%d]" % (VKST, O + 16 + 4 * mt, O + 19 + 4 * mt, b, b + 1))
    A("s_waitcnt vmcnt(2)")
    A("s_barrier")
    A("v_mov_b32 v%d, 1" % W)
    A("global_store_dword v%d, v%d, s[%d:%d] sc1" % (ZERO, W, sG, sG + 1))
    A("s_add_u32 s%d, s%d, %d" % (sSEG, sSEG, NB))
    A("s_cmp_lt_u32 s%d, 64" % sSEG)
    A("s_cbranch_scc1 L_bw_p1")

    A("s_sub_u32 s%d, s%d, 1" % (sSEG, S_GRP))
    A("s_waitcnt vmcnt(0)")
    A.label("L_bw_p2")
    tile_off()
    A("s_mov_b32 s47, s40")
    A("s_lshl_b32 s42, s%d, 11" % S_WAVE)
    for k, off in enumerate((OFF_QX, OFF_KX, OFF_VX)):
        A("s_add_u32 s41, s%d, 0x%x" % (sT, off)); sadd64(A, sA, S_WS, "s41")
        A("s_add_u32 s43, s42, %d" % (k * 8192))
        A("s_mov_b32 m0, s43")
        A("s_nop 0")
        A("global_load_lds_dwordx4 v%d, s[%d:%d] sc1" % (VW2K, sA, sA + 1))
        A("global_load_lds_dwordx4 v%d, s[%d:%d] offset:1024 sc1" % (VW2K, sA, sA + 1))
    head_flag(sG, F_M)
    A("s_add_u32 s41, s%d, 0x%x" % (sT, OFF_KM)); sadd64(A, sA, S_WS, "s41")
    wait_flags(A, W, ZERO, sG)
    KE, VM = 96, 100
    A("global_load_dwordx2 v[%d:%d], v%d, s[%d:%d] sc1" % (KE, KE + 1, VW2K, sA, sA + 1))
    A("global_load_dwordx2 v[%d:%d], v%d, s[%d:%d] sc1" % (VM, VM + 1, VKM, sA, sA + 1))
    A("global_load_dwordx2 v[%d:%d], v%d, s[%d:%d] offset:2048 sc1" % (VM + 2, VM + 3, VKM, sA, sA + 1))
    A("s_and_b32 s41, s%d, 1" % sIT)
    A("s_lshl_b32 s43, s%d, 1" % S_GRP)
    A("s_add_u32 s41, s41, s43")
    A("s_lshl_b32 s41, s41, 21")
    A("s_add_u32 s41, s41, 0x%x" % OFF_PW); sadd64(A, sB, S_WS, "s41")
    A("s_lshl_b32 s41, s%d, 10" % S_HEAD); sadd64(A, sCc, sB, "s41")
    sadd64(A, sD, sCc, 16 * 32768)
    A("s_lshl_b32 s41, s%d, 15" % S_HEAD); sadd64(A, sB, sB, "s41")
    A("s_lshl_b32 s41, s47, 7")
    A("s_add_u32 s41, s41, 0x%x" % F_PB); sadd64(A, sE, S_WS, "s41")
    A("v_mov_b32 v%d, 0" % (KE + 3))
    A("s_waitcnt vmcnt(0)")
    A("v_mov_b32 v%d, v%d" % (KE + 2, KE + 1))
    A("v_mov_b32 v%d, 0" % (KE + 1))
    A("ds_write_b64 v%d, v[%d:%d] offset:%d" % (VZW, KE, KE + 1, L_Z))
    A("ds_write_b64 v%d, v[%d:%d] offset:%d" % (VZW, KE + 2, KE + 3, L_Z + 512))
    A("s_waitcnt lgkmcnt(0)")
    A("s_barrier")
    QF, ZF, KF = 32, 48, 64
    S0, S1, S2 = 104, 108, 112
    for dc in range(4): rd128(A, QF + 4 * dc, VQF, L_Q + dc * 1024)
    for dc in range(4):
        for Tt in range(2):
            A("ds_read_b64_tr_b16 v[%d:%d], v%d offset:%d" % (ZF + 4 * dc + 2 * Tt, ZF + 4 * dc + 2 * Tt + 1, VZR, L_Z + dc * 1024 + Tt * 512))
    A("s_waitcnt lgkmcnt(0)")
    for i in range(8): rd128(A, KF + 4 * i, VL16, L_K + i * 1024)
    for dc in range(4): mfma(A, S0, ZF + 4 * dc, QF + 4 * dc, "0" if dc == 0 else S0)
    A("s_waitcnt lgkmcnt(0)")
    A("s_barrier")
    for dc in range(4):
        mfma(A, S1, KF + 4 * dc, QF + 4 * dc, BIAS if dc == 0 else S1)
        mfma(A, S2, KF + 16 + 4 * dc, QF + 4 * dc, BIAS + 4 if dc == 0 else S2)
    VF = 48
    for i in range(4): rd128(A, VF + 4 * i, VVF, L_V + i * 1024)
    A.nop(4)
    M0_, M1_, T0_, T1_, LS, LT, PX = 116, 117, 118, 119, 120, 121, 124
    A("v_max3_f32 v%d, v%d, v%d, v%d" % (M0_, S1, S1 + 1, S1 + 2))
    A("v_max3_f32 v%d, v%d, v%d, v%d" % (M1_, S1 + 3, S2, S2 + 1))
    A("v_max3_f32 v%d, v%d, v%d, v%d" % (M0_, M0_, S2 + 2, S2 + 3))
    A("v_max3_f32 v%d, v%d, v%d, v%d" % (M1_, M1_, S0, S0 + 1))
    A("v_max_f32 v%d, v%d, v%d" % (T0_, M0_, M1_))
    A("v_max_f32 v%d, v%d, v%d" % (T1_, M0_, M1_))
    A.nop(2)
    A("v_permlane32_swap_b32 v%d, v%d" % (T0_, T1_))
    A("v_max_f32 v%d, v%d, v%d" % (M0_, T0_, T1_))
    A("v_max_f32 v%d, v%d, v%d" % (M1_, T0_, T1_))
    A.nop(2)
    A("v_permlane16_swap_b32 v%d, v%d" % (M0_, M1_))
    A("v_max_f32 v%d, v%d, v%d" % (M0_, M0_, M1_))
    A("v_mul_f32 v%d, s%d, v%d" % (M0_, sC, M0_))
    sregs = [S1 + r for r in range(4)] + [S2 + r for r in range(4)] + [S0, S0 + 1]
    for r in sregs: A("v_fma_f32 v%d, v%d, s%d, -v%d" % (r, r, sC, M0_))
    for r in sregs: A("v_exp_f32 v%d, v%d" % (r, r))
    cvt(A, PX, S1, S1 + 1); cvt(A, PX + 1, S1 + 2, S1 + 3); cvt(A, PX + 2, S2, S2 + 1); cvt(A, PX + 3, S2 + 2, S2 + 3)
    cvt(A, PMA, S0, S0 + 1); cvt(A, PMB + 1, S0, S0 + 1)
    A("s_waitcnt lgkmcnt(0)")
    OC = 64
    for i in range(4): mfma(A, OC + 4 * i, VF + 4 * i, PX, "0")
    A("v_add_f32 v%d, v%d, v%d" % (LS, S1, S1 + 1))
    A("v_add_f32 v%d, v%d, v%d" % (LT, S1 + 2, S1 + 3))
    for a_, b_ in ((S2, S2 + 1), (S2 + 2, S2 + 3), (S0, S0 + 1)):
        A("v_add_f32 v%d, v%d, v%d" % (LS, LS, a_)); A("v_add_f32 v%d, v%d, v%d" % (LT, LT, b_))
    for i in range(4): mfma(A, OC + 4 * i, VM + 2 * (i >> 1), PMA if (i & 1) == 0 else PMB, OC + 4 * i, k32=False)
    A("v_add_f32 v%d, v%d, v%d" % (LS, LS, LT))
    swap_sum(A, LS, LT, 32); swap_sum(A, LS, LT, 16)
    A("v_rcp_f32 v%d, v%d" % (LS, LS))
    A.nop(1)
    for r in range(0, 16, 2):
        A("v_pk_mul_f32 v[%d:%d], v[%d:%d], v[%d:%d] op_sel_hi:[1,0]" % (OC + r, OC + r + 1, OC + r, OC + r + 1, LS, LS + 1))
    for f in range(2):
        pack(32 + 4 * f, OC + 8 * f, OC + 8 * f + 4)
        A("ds_write_b128 v%d, v[%d:%d] offset:%d" % (VOW, 32 + 4 * f, 35 + 4 * f, L_Q + f * 1024))
    A("s_waitcnt lgkmcnt(0)")
    A("s_barrier")
    OF, BF, PA = 32, 64, 96
    for i in range(8): rd128(A, OF + 4 * i, VL16, L_Q + i * 1024)
    def wo_reads(b):
        for P in range(2):
            for f in range(4):
                rd128(A, BF + (P * 4 + f) * 4, VWO, b * 8192 + P * 4096 + f * 1024)
    for b in range(4):
        wo_reads(b)
        for P in range(2):
            for f in range(4):
                A("s_waitcnt lgkmcnt(%d)" % (7 - (P * 4 + f)))
                for qt in range(2):
                    d = PA + (qt * 2 + P) * 4
                    mfma(A, d, BF + (P * 4 + f) * 4, OF + (qt * 4 + f) * 4, "0" if f == 0 else d)
        A.nop(8)
        for qt in range(2):
            o = 112 + 4 * qt
            pack(o, PA + qt * 8, PA + qt * 8 + 4)
            sb = sCc if qt == 0 else sD
            store_mixed(A, cold, ["global_store_dwordx4 v%d, v[%d:%d], s[%d:%d] offset:%d" % (VPST, o, o + 3, sb, sb + 1, b * 64)])
    publish_partials(A, cold, W, sE)
    A("s_lshl_b32 s41, s%d, 5" % sSEG)
    A("s_add_u32 s41, s41, s%d" % S_HEAD)
    A("s_lshl_b32 s42, s41, 10")
    A("s_lshl_b32 s43, s%d, 21" % sL)
    A("s_add_u32 s43, s43, s42")
    A("s_add_u32 s43, s43, 0x%x" % OFF_X1); sadd64(A, sA, S_WS, "s43")
    A("s_add_u32 s43, s42, 0x%x" % OFF_Y2); sadd64(A, sD, S_WS, "s43")
    A("s_lshl_b32 s41, s41, 2")
    A("s_add_u32 s41, s41, 0x%x" % F_Y2); sadd64(A, sF, S_WS, "s41")
    A("s_add_u32 s43, s42, 0x%x" % OFF_X2); sadd64(A, sCc, S_WS, "s43")
    A("s_cmp_eq_u32 s%d, 0" % sL)
    A("s_cbranch_scc1 L_bw_x2")
    sadd64(A, sCc, S_OUT, "s42")
    A.label("L_bw_x2")
    reduce_row(A, cold, W, SEL, VRLD, VROW, VFL, sB, sE, sA, sCc, sD, sF, L_ST,
               lambda A: A("s_cmp_eq_u32 s%d, 1" % sL))
    A("s_add_u32 s%d, s%d, 1" % (sIT, sIT))
    A("s_add_u32 s%d, s%d, %d" % (sSEG, sSEG, NB))
    A("s_cmp_lt_u32 s%d, 64" % sSEG)
    A("s_cbranch_scc1 L_bw_p2")
    A("s_add_u32 s%d, s%d, 1" % (sL, sL))
    A("s_cmp_lt_u32 s%d, %d" % (sL, opt.get("layers", 2)))
    A("s_cbranch_scc1 L_bw_layer")
    A("s_branch L_end")
    cold.emit(A)

def gen_aworker(A, opt):
    cold = Cold()
    NB, NA = opt["NB"], opt["NA"]
    VL16, VL8, VYA, VPST, VRLD, VROW, VFL, VAF, ZERO, VPQ = range(1, 11)
    SEL, ONES = 12, 16
    KVA, ZA = 18, 20
    KV, ZS = 24, 28
    W = 32
    WO = 128
    WQ = 256
    L_W, L_WOI, L_PQ, L_ST = 0, 49152, 65536, 98304
    sL, sSEG, sIT, sI, sAG = 48, 49, 50, 51, 66
    sA, sB, sCc, sD, sE, sF, sG = 52, 54, 56, 58, 60, 62, 64
    sLE = 67
    A.label("L_aworker")
    A("s_sub_u32 s%d, s%d, %d" % (sAG, S_GRP, NB + 1))
    T = 40
    A("v_and_b32 v%d, 63, v0" % T)
    A("v_and_b32 v%d, 15, v0" % (T + 1))
    A("v_bfe_u32 v%d, v0, 4, 2" % (T + 2))
    A("v_lshlrev_b32 v%d, 4, v%d" % (VL16, T))
    A("v_lshlrev_b32 v%d, 3, v%d" % (VL8, T))
    A("s_and_b32 s42, s%d, 1" % S_WAVE)
    A("s_lshr_b32 s43, s%d, 1" % S_WAVE)
    A("s_lshl_b32 s40, s42, 14")
    A("v_lshlrev_b32 v%d, 10, v%d" % (VYA, T + 1))
    A("v_lshl_add_u32 v%d, v%d, 4, v%d" % (VYA, T + 2, VYA))
    A("v_add_u32 v%d, s40, v%d" % (VYA, VYA))
    A("s_lshl_b32 s40, s42, 19")
    A("s_lshl_b32 s41, s43, 9")
    A("s_add_u32 s40, s40, s41")
    A("v_lshlrev_b32 v%d, 15, v%d" % (VPST, T + 1))
    A("v_lshl_add_u32 v%d, v%d, 4, v%d" % (VPST, T + 2, VPST))
    A("v_add_u32 v%d, s40, v%d" % (VPST, VPST))
    A("s_lshl_b32 s40, s42, 9")
    A("s_add_u32 s40, s40, %d" % L_PQ)
    A("v_add_u32 v%d, s40, v%d" % (VPQ, VL8))
    A("v_min_u32 v%d, %d, v%d" % (VAF, 4 * NA - 1, T))
    A("v_lshlrev_b32 v%d, 2, v%d" % (VAF, VAF))
    A("v_mov_b32 v%d, 0" % ZERO)
    A("v_mov_b32 v%d, 0x3f803f80" % ONES)
    A("v_mov_b32 v%d, 0x3f803f80" % (ONES + 1))
    A("s_mov_b32 s%d, 0x%x" % (sLE, f32bits(LOG2E)))
    sel_const(A, SEL, T + 3)
    reduce_consts(A, VRLD, VROW, VFL, T + 3)
    A("v_lshrrev_b32 v%d, 1, v%d" % (T + 3, T))
    A("v_mul_u32_u24 v%d, 3072, v%d" % (T + 3, T + 3))
    A("v_and_b32 v%d, 1, v%d" % (T + 4, T))
    A("v_lshl_add_u32 v%d, v%d, 4, v%d" % (T + 3, T + 4, T + 3))
    A("s_lshl_b32 s40, s%d, 5" % S_HEAD)
    A("s_mul_i32 s41, s%d, %d" % (S_WAVE, 128 * 3072))
    A("s_add_u32 s40, s40, s41")
    A("v_add_u32 v%d, s40, v%d" % (T + 3, T + 3))
    A("s_lshl_b32 s44, s%d, 12" % S_WAVE)
    for t in range(3):
        for i in range(4):
            sadd64(A, sA, S_WQKV, t * 1024 + i * 32 * 3072)
            A("s_add_u32 s45, s44, %d" % (L_W + t * 16384 + i * 1024))
            A("s_mov_b32 m0, s45")
            A("s_nop 0")
            A("global_load_lds_dwordx4 v%d, s[%d:%d]" % (T + 3, sA, sA + 1))
    A("s_lshl_b32 s40, s%d, 14" % S_HEAD)
    A("s_add_u32 s40, s40, s44")
    sadd64(A, sA, S_AWO, "s40")
    A("s_add_u32 s45, s44, %d" % L_WOI)
    A("s_mov_b32 m0, s45")
    A("s_nop 0")
    for i in range(4): A("global_load_lds_dwordx4 v%d, s[%d:%d] offset:%d" % (VL16, sA, sA + 1, i * 1024))
    A("v_bfe_u32 v%d, v0, 2, 2" % (T + 4))
    A("v_and_b32 v%d, 3, v0" % (T + 5))
    A("v_lshl_add_u32 v%d, v%d, 3, v%d" % (T + 6, T + 2, T + 4))
    A("v_lshlrev_b32 v%d, 5, v%d" % (T + 6, T + 6))
    A("v_lshl_add_u32 v%d, v%d, 3, v%d" % (T + 6, T + 5, T + 6))
    A("v_lshl_add_u32 v%d, v%d, 2, v%d" % (T + 7, T + 2, T + 4))
    A("v_lshlrev_b32 v%d, 10, v%d" % (T + 7, T + 7))
    A("v_lshl_add_u32 v%d, v%d, 4, v%d" % (T + 7, T + 5, T + 7))
    A("s_lshl_b32 s41, s43, 9")
    A("s_add_u32 s41, s41, %d" % L_WOI)
    A("v_add_u32 v%d, s41, v%d" % (T + 7, T + 7))
    A("s_waitcnt vmcnt(0)")
    A("s_barrier")
    for t in range(3):
        for ks in range(16):
            for hh in range(2):
                A("ds_read_b64_tr_b16 %s, v%d offset:%d" % (R(WQ + (t * 16 + ks) * 4 + 2 * hh, 2), T + 6, L_W + t * 16384 + (32 * ks + 4 * hh) * 32))
            if ks % 4 == 3: A("s_waitcnt lgkmcnt(0)")
    for b in range(8):
        for P in range(2):
            A("ds_read_b64_tr_b16 %s, v%d offset:%d" % (v(WO + (b * 2 + P) * 2, 2), T + 7, b * 64 + P * 8))
    A("s_waitcnt lgkmcnt(0)")
    opt["init_wait"](A)
    A("s_mov_b32 s%d, 0" % sL)
    A("s_mov_b32 s%d, 0" % sIT)

    A.label("L_aw_layer")
    for r in range(0, 8, 2): A("v_mov_b64 v[%d:%d], 0" % (KV + r, KV + r + 1))
    A("s_lshr_b32 s%d, s%d, 1" % (sI, S_WAVE))
    A.label("L_aw_s1")
    A("s_mul_i32 s%d, s%d, %d" % (sSEG, sI, NA))
    A("s_add_u32 s%d, s%d, s%d" % (sSEG, sSEG, sAG))
    A("s_cmp_ge_u32 s%d, 64" % sSEG)
    A("s_cbranch_scc1 L_aw_s1done")
    A("s_lshl_b32 s41, s%d, 15" % sSEG)
    A("s_cmp_eq_u32 s%d, 0" % sL)
    A("s_cbranch_scc1 L_aw_y0")
    A("s_lshl_b32 s42, s%d, 7" % sSEG)
    A("s_add_u32 s42, s42, 0x%x" % F_Y2); sadd64(A, sA, S_WS, "s42")
    wait_flags(A, W, VFL, sA)
    A("s_add_u32 s41, s41, 0x%x" % (OFF_Y2 - OFF_Y0))
    A.label("L_aw_y0")
    A("s_add_u32 s41, s41, 0x%x" % OFF_Y0); sadd64(A, sA, S_WS, "s41")
    YF = 32
    for ks in range(16):
        A("global_load_dwordx4 v[%d:%d], v%d, s[%d:%d] offset:%d sc1" % (YF + 4 * ks, YF + 4 * ks + 3, VYA, sA, sA + 1, ks * 64))
    Q, K, V = 96, 100, 104
    for ks in range(16):
        A("s_waitcnt vmcnt(%d)" % (15 - ks))
        mfma(A, K, YF + 4 * ks, WQ + (16 + ks) * 4, "0" if ks == 0 else K)
        mfma(A, Q, WQ + ks * 4, YF + 4 * ks, "0" if ks == 0 else Q)
        mfma(A, V, YF + 4 * ks, WQ + (32 + ks) * 4, "0" if ks == 0 else V)
    A("s_lshl_b32 s41, s%d, 10" % sI)
    A("v_add_u32 v108, s41, v%d" % VPQ)
    A.nop(5)
    E = 112
    def phi(X):
        for r in range(4):
            A("v_mul_f32 v%d, s%d, v%d" % (E + r, sLE, X + r))
            A("v_min_f32 v%d, 0, v%d" % (E + r, E + r))
        for r in range(4): A("v_exp_f32 v%d, v%d" % (E + r, E + r))
        for r in range(4): A("v_max_f32 v%d, 0, v%d" % (X + r, X + r))
        for r in range(4): A("v_add_f32 v%d, 0x%x, v%d" % (E + r, f32bits(1e-6), E + r))
        for r in range(4): A("v_add_f32 v%d, v%d, v%d" % (X + r, X + r, E + r))
    phi(K)
    cvt(A, 116, K, K + 1); cvt(A, 117, K + 2, K + 3)
    cvt(A, 118, V, V + 1); cvt(A, 119, V + 2, V + 3)
    phi(Q)
    mfma(A, KV, 116, 118, KV, k32=False)
    mfma(A, ZS, 116, ONES, ZS, k32=False)
    cvt(A, 120, Q, Q + 1); cvt(A, 121, Q + 2, Q + 3)
    A("ds_write_b64 v108, v[120:121]")
    A("s_add_u32 s%d, s%d, 2" % (sI, sI))
    A("s_branch L_aw_s1")
    A.label("L_aw_s1done")
    A("s_lshl_b32 s41, s%d, 5" % sL)
    A("s_add_u32 s41, s41, s%d" % S_HEAD)
    A("s_lshl_b32 s42, s41, 6")
    A("s_add_u32 s42, s42, 0x%x" % F_AKV); sadd64(A, sB, S_WS, "s42")
    A("s_lshl_b32 s41, s41, 15")
    A("s_add_u32 s41, s41, 0x%x" % OFF_AKV); sadd64(A, sA, S_WS, "s41")
    A("s_lshl_b32 s42, s%d, 2" % sAG)
    A("s_add_u32 s42, s42, s%d" % S_WAVE)
    A("s_lshl_b32 s43, s42, 11"); sadd64(A, sCc, sA, "s43")
    A("s_lshl_b32 s42, s42, 2")
    A("v_mov_b32 v%d, s42" % W)
    A("v_mov_b32 v%d, 1" % (W + 1))
    A("global_store_dwordx4 v%d, v[%d:%d], s[%d:%d] sc1" % (VL16, KV, KV + 3, sCc, sCc + 1))
    A("global_store_dwordx4 v%d, v[%d:%d], s[%d:%d] offset:1024 sc1" % (VL16, ZS, ZS + 3, sCc, sCc + 1))
    A("s_waitcnt vmcnt(0) lgkmcnt(0)")
    A("global_store_dword v%d, v%d, s[%d:%d] sc1" % (W, W + 1, sB, sB + 1))
    A("s_barrier")
    wait_flags(A, W, VAF, sB, sleep=1)
    NP = 4 * NA
    for p in range(NP):
        if p and p % 2 == 0: sadd64(A, sA, sA, 4096)
        for k in range(2):
            A("global_load_dwordx4 v[%d:%d], v%d, s[%d:%d] offset:%d sc1" % (W + 8 * p + 4 * k, W + 8 * p + 4 * k + 3, VL16, sA, sA + 1, (p & 1) * 2048 + k * 1024))
    A("s_waitcnt vmcnt(0)")
    for p in range(1, NP):
        for r in range(0, 8, 2):
            A("v_pk_add_f32 v[%d:%d], v[%d:%d], v[%d:%d]" % (W + r, W + r + 1, W + r, W + r + 1, W + 8 * p + r, W + 8 * p + r + 1))
    cvt(A, KVA, W, W + 1); cvt(A, KVA + 1, W + 2, W + 3); cvt(A, ZA, W + 4, W + 5); cvt(A, ZA + 1, W + 6, W + 7)
    A("s_mov_b32 s%d, 0" % sI)
    A("s_mov_b32 s%d, s%d" % (sSEG, sAG))
    A.label("L_aw_s2")
    A("s_lshl_b32 s41, s%d, 10" % sI)
    A("v_add_u32 v%d, s41, v%d" % (W, VPQ))
    A("ds_read_b64 v[%d:%d], v%d" % (W + 2, W + 3, W))
    A("s_and_b32 s41, s%d, 1" % sIT)
    A("s_lshl_b32 s43, s%d, 1" % S_GRP)
    A("s_add_u32 s41, s41, s43")
    A("s_lshl_b32 s41, s41, 21")
    A("s_add_u32 s41, s41, 0x%x" % OFF_PW); sadd64(A, sB, S_WS, "s41")
    A("s_lshl_b32 s41, s%d, 10" % S_HEAD); sadd64(A, sCc, sB, "s41")
    A("s_lshl_b32 s41, s%d, 15" % S_HEAD); sadd64(A, sB, sB, "s41")
    A("s_lshl_b32 s47, s%d, 6" % sL)
    A("s_add_u32 s47, s47, s%d" % sSEG)
    A("s_lshl_b32 s41, s47, 7")
    A("s_add_u32 s41, s41, 0x%x" % F_PA); sadd64(A, sE, S_WS, "s41")
    A("s_waitcnt lgkmcnt(0)")
    NU, DE = W + 4, W + 8
    mfma(A, DE, ZA, W + 2, "0", k32=False)
    mfma(A, NU, KVA, W + 2, "0", k32=False)
    A.nop(7)
    A("v_add_f32 v%d, 0x%x, v%d" % (DE, f32bits(1e-6), DE))
    A("v_rcp_f32 v%d, v%d" % (DE, DE))
    A.nop(1)
    for r in (0, 2):
        A("v_pk_mul_f32 v[%d:%d], v[%d:%d], v[%d:%d] op_sel_hi:[1,0]" % (NU + r, NU + r + 1, NU + r, NU + r + 1, DE, DE + 1))
    cvt(A, W + 2, NU, NU + 1); cvt(A, W + 3, NU + 2, NU + 3)
    A.nop(2)
    PA = W + 16
    for i in range(16): mfma(A, PA + 4 * i, WO + 2 * i, W + 2, "0", k32=False)
    for b in range(8):
        a0 = PA + 8 * b
        if b == 6: A.nop(2)
        cvt(A, a0, a0, a0 + 1); cvt(A, a0 + 1, a0 + 2, a0 + 3); cvt(A, a0 + 2, a0 + 4, a0 + 5); cvt(A, a0 + 3, a0 + 6, a0 + 7)
        store_mixed(A, cold, ["global_store_dwordx4 v%d, v[%d:%d], s[%d:%d] offset:%d" % (VPST, a0, a0 + 3, sCc, sCc + 1, b * 64)])
    publish_partials(A, cold, W, sE)
    A("s_lshl_b32 s41, s%d, 5" % sSEG)
    A("s_add_u32 s41, s41, s%d" % S_HEAD)
    A("s_lshl_b32 s42, s41, 10")
    A("s_lshl_b32 s43, s%d, 21" % sL)
    A("s_add_u32 s43, s43, s42")
    A("s_add_u32 s44, s43, 0x%x" % OFF_X1); sadd64(A, sCc, S_WS, "s44")
    A("s_add_u32 s44, s43, 0x%x" % OFF_Y1); sadd64(A, sD, S_WS, "s44")
    A("s_lshl_b32 s44, s47, 5")
    A("s_add_u32 s44, s44, s%d" % S_HEAD)
    A("s_lshl_b32 s44, s44, 2")
    A("s_add_u32 s44, s44, 0x%x" % F_X1); sadd64(A, sF, S_WS, "s44")
    A("s_add_u32 s44, s42, 0x%x" % OFF_X2); sadd64(A, sA, S_WS, "s44")
    A("s_cmp_lg_u32 s%d, 0" % sL)
    A("s_cbranch_scc1 L_aw_res")
    sadd64(A, sA, S_AX, "s42")
    A.label("L_aw_res")
    reduce_row(A, cold, W, SEL, VRLD, VROW, VFL, sB, sE, sA, sCc, sD, sF, L_ST,
               lambda A: A("s_cmp_eq_u32 s%d, 2" % sL))
    A("s_add_u32 s%d, s%d, 1" % (sIT, sIT))
    A("s_add_u32 s%d, s%d, 1" % (sI, sI))
    A("s_add_u32 s%d, s%d, %d" % (sSEG, sSEG, NA))
    A("s_cmp_lt_u32 s%d, 64" % sSEG)
    A("s_cbranch_scc1 L_aw_s2")
    A("s_add_u32 s%d, s%d, 1" % (sL, sL))
    A("s_cmp_lt_u32 s%d, %d" % (sL, opt.get("layers", 2)))
    A("s_cbranch_scc1 L_aw_layer")
    A("s_branch L_end")
    cold.emit(A)
```

```python
import sys
from common import *
import chain, workers

HEADER = open('cdna_kernels/%s.s.ref' % NAME).read().split('; Override launch')[0]

def prologue(A, opt):
    A("s_cmp_ge_u32 s2, 256")
    A("s_cbranch_scc1 L_end")
    A("s_mov_b32 s%d, 0" % S_SPIN)
    A("s_load_dwordx4 s[8:11], s[0:1], 0")
    A("s_load_dwordx2 s[12:13], s[0:1], 16")
    A("s_load_dwordx4 s[16:19], s[0:1], 32")
    A("s_load_dwordx4 s[20:23], s[0:1], 48")
    A("s_load_dwordx2 s[24:25], s[0:1], 64")
    A("s_load_dwordx4 s[28:31], s[0:1], 80")
    A("s_load_dwordx2 s[4:5], s[0:1], 96")
    A("s_getreg_b32 s36, hwreg(HW_REG_XCC_ID)")
    A("s_and_b32 s36, s36, 15")
    A("v_lshrrev_b32 v1, 6, v0")
    A("s_nop 0")
    A("v_readfirstlane_b32 s%d, v1" % S_WAVE)
    A("s_waitcnt lgkmcnt(0)")
    A("s_cmp_lg_u32 s%d, 0" % S_WAVE)
    A("s_cbranch_scc1 L_noticket")
    A("s_lshl_b32 s37, s36, 2")
    A("v_mov_b32 v1, s37")
    A("v_mov_b32 v2, 1")
    A("s_mov_b64 exec, 1")
    A("global_atomic_add v3, v1, v2, s[%d:%d] sc0" % (S_DBG, S_DBG + 1))
    A("s_mov_b64 exec, -1")
    A.label("L_noticket")
    A("s_lshl_b32 s37, s2, 10")
    A("v_lshl_add_u32 v4, v0, 2, s37")
    A("v_mov_b32 v5, 0")
    A("global_store_dword v4, v5, s[%d:%d] sc1" % (S_WS, S_WS + 1))
    A("s_lshl_b32 s37, s2, 12")
    A("s_add_u32 s37, s37, 0x100000")
    A("v_lshl_add_u32 v4, v0, 4, s37")
    A("v_mov_b64 v[8:9], -1")
    A("v_mov_b64 v[10:11], -1")
    A("global_store_dwordx4 v4, v[8:11], s[%d:%d] sc1" % (S_WS, S_WS + 1))
    if opt.get("prepass"): opt["prepass"](A)
    A("s_waitcnt vmcnt(0)")
    A("v_mov_b32 v6, 0")
    A("s_cmp_lg_u32 s%d, 0" % S_WAVE)
    A("s_cbranch_scc1 L_nowr")
    A("s_mov_b64 exec, 1")
    A("ds_write_b32 v6, v3")
    A("s_mov_b64 exec, -1")
    A.label("L_nowr")
    A("s_waitcnt lgkmcnt(0)")
    A("s_barrier")
    A("ds_read_b32 v3, v6")
    A("s_cmp_lg_u32 s%d, 0" % S_WAVE)
    A("s_cbranch_scc1 L_nodone")
    A("s_and_b32 s37, s36, 7")
    A("s_lshl_b32 s37, s37, 2")
    A("s_add_u32 s37, s37, 64")
    A("v_mov_b32 v1, s37")
    A("v_mov_b32 v2, 1")
    A("s_mov_b64 exec, 1")
    A("global_atomic_add v1, v2, s[%d:%d]" % (S_DBG, S_DBG + 1))
    A("s_mov_b64 exec, -1")
    A.label("L_nodone")
    A("s_waitcnt lgkmcnt(0)")
    A("v_readfirstlane_b32 s%d, v3" % S_HEAD)
    A("s_mov_b32 s%d, s36" % S_GRP)
    A("s_barrier")
    A("s_cmp_ge_u32 s%d, 8" % S_GRP)
    A("s_cbranch_scc1 L_overflow")
    A("s_cmp_ge_u32 s%d, 32" % S_HEAD)
    A("s_cbranch_scc1 L_overflow")
    A.label("L_roles")

def init_wait(A, vt=40):
    lp = A.newlabel("Liw")
    A("v_and_b32 v%d, 31, v0" % (vt + 1))
    A("v_lshlrev_b32 v%d, 2, v%d" % (vt + 1, vt + 1))
    A.label(lp)
    A("global_load_dword v%d, v%d, s[%d:%d] sc1" % (vt, vt + 1, S_DBG, S_DBG + 1))
    A("s_waitcnt vmcnt(0)")
    A("s_mov_b32 s36, 0")
    for i in range(8):
        A("v_readlane_b32 s37, v%d, %d" % (vt, 16 + i))
        A("s_add_u32 s36, s36, s37")
    A("s_cmp_ge_u32 s36, 256")
    l2 = A.newlabel("Liwd")
    A("s_cbranch_scc1 %s" % l2)
    A("s_sleep 2")
    spin_guard(A)
    A("s_branch %s" % lp)
    A.label(l2)
    A("s_and_b32 s37, s%d, 15" % S_GRP)
    A("s_nop 3")
    A("v_readlane_b32 s37, v%d, s37" % vt)
    A("s_cmp_lt_u32 s37, 32")
    A("s_cselect_b32 s%d, 1, 0" % S_MIXED)

def overflow(A):
    A.label("L_overflow")
    A("s_cmp_lg_u32 s%d, 0" % S_WAVE)
    A("s_cbranch_scc1 L_of1")
    A("v_mov_b32 v1, 96")
    A("v_mov_b32 v2, 1")
    A("s_mov_b64 exec, 1")
    A("global_atomic_add v3, v1, v2, s[%d:%d] sc0" % (S_DBG, S_DBG + 1))
    A("s_waitcnt vmcnt(0)")
    A("ds_write_b32 v6, v3")
    A("s_mov_b64 exec, -1")
    A.label("L_of1")
    A("s_waitcnt lgkmcnt(0)")
    A("s_barrier")
    A("ds_read_b32 v3, v6")
    A("s_waitcnt lgkmcnt(0)")
    A("v_readfirstlane_b32 s38, v3")
    A("s_barrier")
    A("s_mov_b32 s%d, 0" % S_GRP)
    init_wait(A)
    A("s_mov_b32 s%d, 0" % S_GRP)
    A.label("L_of2")
    A("s_nop 3")
    A("v_readlane_b32 s37, v40, s%d" % S_GRP)
    A("s_min_u32 s37, s37, 32")
    A("s_sub_u32 s39, 32, s37")
    A("s_cmp_lt_u32 s38, s39")
    A("s_cbranch_scc1 L_of3")
    A("s_sub_u32 s38, s38, s39")
    A("s_add_u32 s%d, s%d, 1" % (S_GRP, S_GRP))
    A("s_cmp_lt_u32 s%d, 8" % S_GRP)
    A("s_cbranch_scc1 L_of2")
    A("s_branch L_end")
    A.label("L_of3")
    A("s_add_u32 s%d, s37, s38" % S_HEAD)
    A("s_and_b32 s%d, s%d, 31" % (S_HEAD, S_HEAD))
    A("s_branch L_roles")

def build(opt, roles):
    A = Asm()
    A.raw(HEADER.rstrip())
    A.raw("; @launch grid=(256,1,1) block=(256,1,1) lds=%d" % LDS_BYTES)
    A.raw('.amdgcn_target "amdgcn-amd-amdhsa--gfx950"')
    A.raw(".text\n.globl %s\n.p2align 8\n.type %s,@function" % (KNAME, KNAME))
    A.label(KNAME)
    opt["init_wait"] = init_wait
    prologue(A, opt)
    roles(A, opt)
    overflow(A)
    A.label("L_end")
    A("s_endpgm")
    A.raw('''.section .rodata,"a"
.p2align 6
.amdhsa_kernel %s
  .amdhsa_next_free_vgpr 512
  .amdhsa_next_free_sgpr 102
  .amdhsa_accum_offset 256
  .amdhsa_group_segment_fixed_size 0
  .amdhsa_kernarg_size 104
  .amdhsa_user_sgpr_count 2
  .amdhsa_user_sgpr_kernarg_segment_ptr 1
  .amdhsa_system_sgpr_workgroup_id_x 1
.end_amdhsa_kernel''' % KNAME)
    errs = A.check()
    for e in errs: print(e, file=sys.stderr)
    return A.text(), errs

def roles_chain_only(A, opt):
    A("s_cmp_lg_u32 s%d, 0" % S_GRP)
    A("s_cbranch_scc1 L_end")
    chain.gen_chain(A, opt)

def roles_full(A, opt):
    A("s_cmp_gt_u32 s%d, %d" % (S_GRP, opt["NB"]))
    A("s_cbranch_scc1 L_aworker")
    A("s_cmp_lg_u32 s%d, 0" % S_GRP)
    A("s_cbranch_scc1 L_bworker")
    chain.gen_chain(A, opt)
    workers.gen_bworker(A, opt)
    workers.gen_aworker(A, opt)

if __name__ == "__main__":
    mode = sys.argv[1]; out = sys.argv[2]
    opt = {}
    for kv in sys.argv[3:]:
        k, x = kv.split("="); opt[k] = int(x)
    if mode == "chain":
        opt["nokv"] = True
        t, errs = build(opt, roles_chain_only)
    if mode == "full":
        opt.setdefault("NB", 4); opt["NA"] = 7 - opt["NB"]
        for k, x in (("pa", 2), ("d1", 75), ("d3", 40)): opt.setdefault(k, x)
        opt["prepass"] = workers.prepass
        t, errs = build(opt, roles_full)
    open(out, "w").write(t)
    print("wrote", out, len(t), "bytes;", len(errs), "hazards")
```

```python
from common import *
import math, struct

L_KX = 0
L_VX = 8192
L_MEM = 16384
L_Z = 24576
L_O = 28672
L_VM = 30720

def f32bits(x): return struct.unpack("<I", struct.pack("<f", x))[0]

def wq_base(t, c):
    if t < 4:
        assert c >= 2
        return 256 + 8 * (t * 6 + c - 2)
    return 128 + 64 * (t - 4) + 8 * c
def wo_base(j, ch):
    return 256 + 192 + 8 * (ch * 4 + j)

def gen_chain(A, opt):
    cold = Cold()
    nokv = opt.get("nokv", False)
    LAST = opt.get("last", 63)
    VL16, VSENT, VMLD, VZR, VZW, VOW, VWO, VPST, VMST, VIDX = 1, 11, 3, 4, 5, 6, 7, 8, 9, 10
    SELV, EXP, VMA, PM, PMB = 12, 16, 18, 20, 22
    CP = 14
    PT, VL4, VFA = 27, 2, 0
    VA = 24
    AF = 40
    FR = [48, 56, 64, 96, 104, 112, 120, 32]
    Q0, K0, Q1, K1, V0, V1 = 72, 76, 80, 84, 88, 92
    ZF, KX1, KX2 = 96, 112, 24
    S1, S2, S0 = 40, 44, 48
    M0_, M1_, T0_, T1_ = 52, 53, 54, 55
    VXC = 72
    PX, O0, O1, LA, ONES = 88, 92, 104, 108, 100
    OP, OA = 52, 104
    WACC = [40, 44, 48, 52, 72, 76, 88, 92]
    SLOTS = [80, 56, 64, 112, 120, 24, 32, 96]
    RB, RD, RT, SEL = 96, 80, 84, 60
    G0, G1 = 40, 44
    sSM = 88
    sL, sSEG, sIT = 48, 49, 50
    sMASK, sP0, sP1, sMG, sMR, sPR, sKV, sKM, sFM, sFKV, sR0, sR1 = 52, 54, 56, 58, 60, 62, 64, 68, 70, 72, 74, 78
    sC, sM0, sM1, sFW = 96, 77, 51, 76
    sST = 80
    NTR = 4

    tr_pos = opt.get("trace", 0)
    tr_used = []
    def tr(k):
        if not (tr_pos >> k) & 1: return
        if len(tr_used) >= NTR: raise ValueError("too many trace points")
        A("%s s[%d:%d]" % ("s_memrealtime" if opt.get("rtclk") else "s_memtime", sST + 2 * len(tr_used), sST + 1 + 2 * len(tr_used)))
        tr_used.append(k)

    A.label("L_chain")
    T = 40
    A("v_and_b32 v%d, 63, v0" % T)
    A("v_and_b32 v%d, 15, v0" % (T + 1))
    A("v_bfe_u32 v%d, v0, 4, 2" % (T + 2))
    A("v_lshlrev_b32 v%d, 4, v%d" % (VL16, T))
    A("v_mov_b32 v%d, -1" % VSENT)
    A("v_lshlrev_b32 v%d, 2, v%d" % (VL4, T))
    A("v_lshlrev_b32 v%d, 3, v%d" % (VZR, T))
    A("s_lshl_b32 s40, s%d, 10" % S_WAVE)
    A("v_lshlrev_b32 v%d, 5, v%d" % (VZW, T + 1))
    A("v_lshl_add_u32 v%d, v%d, 3, v%d" % (VZW, T + 2, VZW))
    A("v_add_u32 v%d, s40, v%d" % (VZW, VZW))
    A("s_lshr_b32 s41, s%d, 1" % S_WAVE)
    A("s_lshl_b32 s41, s41, 10")
    A("s_and_b32 s42, s%d, 1" % S_WAVE)
    A("s_lshl_b32 s42, s42, 5")
    A("s_add_u32 s41, s41, s42")
    A("s_add_u32 s41, s41, %d" % (L_O - 32))
    A("v_add_u32 v%d, s41, v%d" % (VOW, VL16))
    A("v_add_u32 v%d, 0x%x, v%d" % (T + 5, L_MEM, VL16))
    A("v_and_b32 v%d, 2, v%d" % (T + 3, T))
    A("v_cmp_ne_u32 vcc, 0, v%d" % (T + 3))
    A("v_mov_b32 v%d, 0xeeee" % (T + 6))
    A("v_mov_b32 v%d, 0x4444" % (T + 7))
    A("v_cndmask_b32 v%d, v%d, v%d, vcc" % (VOW, T + 5, VOW))
    A("v_cndmask_b32 v%d, v%d, v%d, vcc" % (VIDX, T + 7, T + 6))
    A("v_lshrrev_b32 v%d, 3, v%d" % (T + 5, T + 1))
    A("v_lshlrev_b32 v%d, 13, v%d" % (VWO, T + 5))
    A("v_and_b32 v%d, 7, v%d" % (T + 5, T + 1))
    A("v_lshl_add_u32 v%d, v%d, 3, v%d" % (T + 5, T + 2, T + 5))
    A("v_lshl_add_u32 v%d, v%d, 4, v%d" % (VWO, T + 5, VWO))
    A("s_lshl_b32 s41, s%d, 15" % S_WAVE)
    A("s_add_u32 s41, s41, %d" % L_WO)
    A("v_add_u32 v%d, s41, v%d" % (VWO, VWO))
    A("s_lshl_b32 s41, s%d, 11" % S_WAVE)
    A("v_add_u32 v%d, s41, v%d" % (VMLD, VL16))
    A("s_mov_b32 s%d, s41" % sM0)
    A("s_add_u32 s%d, s41, %d" % (sM1, L_VX))
    A("v_lshrrev_b32 v%d, 2, v%d" % (T + 5, T + 1))
    A("v_lshlrev_b32 v%d, 13, v%d" % (VPST, T + 5))
    A("v_and_b32 v%d, 3, v%d" % (T + 5, T + 1))
    A("v_lshl_add_u32 v%d, v%d, 2, v%d" % (T + 6, T + 2, T + 5))
    A("v_lshl_add_u32 v%d, v%d, 4, v%d" % (VPST, T + 6, VPST))
    A("s_lshl_b32 s41, s%d, 16" % S_WAVE)
    A("s_lshl_b32 s42, s%d, 8" % S_HEAD)
    A("s_add_u32 s41, s41, s42")
    A("v_add_u32 v%d, s41, v%d" % (VPST, VPST))
    A("v_and_b32 v%d, 12, v%d" % (T + 6, T + 1))
    A("v_add_u32 v%d, v%d, v%d" % (T + 6, T + 6, T + 2))
    A("v_lshlrev_b32 v%d, 4, v%d" % (VMST, T + 6))
    A("v_lshl_add_u32 v%d, v%d, 2, v%d" % (VMST, T + 5, VMST))
    A("v_add_u32 v%d, s42, v%d" % (VMST, VMST))
    A("v_and_b32 v%d, 1, v%d" % (T + 5, T))
    A("v_lshlrev_b32 v%d, 4, v%d" % (T + 5, T + 5))
    A("v_mov_b32 v%d, 0x3f80" % (T + 7))
    A("v_lshlrev_b32 v%d, v%d, v%d" % (T + 7, T + 5, T + 7))
    A("v_cndmask_b32_e64 v%d, v%d, 0, vcc" % (SELV, T + 7))
    A("v_lshrrev_b32 v%d, 2, v%d" % (T + 6, T + 1))
    for rr in range(4): A("v_cmp_eq_u32 s[%d:%d], %d, v%d" % (sSM + 2 * rr, sSM + 2 * rr + 1, rr ^ 2, T + 6))
    for r in (EXP, VMA, PM, PMB): A("v_mov_b64 v[%d:%d], 0" % (r, r + 1))
    A("s_mov_b32 s%d, 0x%x" % (sC, f32bits(128 ** -0.5 * math.log2(math.e))))
    A("s_mov_b32 s%d, s%d" % (sC + 1, sC))
    A("s_cmp_eq_u32 s%d, 3" % S_WAVE)
    A("s_cselect_b32 s%d, 2, 64" % sFW)
    A("s_mov_b32 s%d, 0" % sIT)
    A("s_mov_b32 s%d, 0" % sL)
    rt_stamp(A, opt, 500, 40, 41)
    load_head_weights(A, 40, wq_base, "chain", "mod4", vwo=VWO, wo_base=wo_base)
    rt_stamp(A, opt, 501, 40, 41)
    opt["init_wait"](A)
    rt_stamp(A, opt, 502, 40, 41)

    def pkadd(d): A("v_pk_add_f32 v[%d:%d], v[%d:%d], v[%d:%d]" % (d, d + 1, d, d + 1, d + 2, d + 3))
    def add1(d, e): A("v_add_f32 v%d, v%d, v%d" % (d + e, d + e, d + 2 + e))
    def cvt(d, x, y): A("v_cvt_pk_bf16_f32 v%d, v%d, v%d" % (d, x, y))
    def rd128(d, addr, off): A("ds_read_b128 v[%d:%d], v%d offset:%d" % (d, d + 3, addr, off))
    def z64(r): A("v_mov_b64 v[%d:%d], 0" % (r, r + 1))

    def setup_part_bases():
        sadd64(A, sKV, sKV, 32 * 8192)
        sadd64(A, sKV + 2, sKV + 2, 32 * 8192)
        sadd64(A, sKM, sKM, 32 * 8192)
        sadd64(A, sFM, sFM, 4)
        A("s_and_b32 s40, s%d, 1" % sIT)
        A("s_lshl_b32 s40, s40, 18")
        A("s_add_u32 s41, s40, 0x%x" % OFF_CPART); sadd64(A, sP0, S_WS, "s41")
        sadd64(A, sP1, sP0, 32768)
        A("s_lshl_b32 s42, s%d, 13" % S_HEAD)
        sadd64(A, sR0, sP0, "s42")
        sadd64(A, sR1, sR0, 4096)
        A("s_xor_b32 s41, s41, 0x40000")
        A("s_add_u32 s41, s41, s42"); sadd64(A, sPR, S_WS, "s41")
    def prefetch_own():
        for p in range(1, 4): A("v_xor_b32 v%d, %d, v%d" % (VA + p - 1, p * 2048, VMLD))
        for n, (X, Tt, cc) in enumerate([(0, 0, 0), (1, 0, 0), (0, 1, 0), (1, 1, 0), (0, 0, 1), (1, 0, 1), (0, 1, 1), (1, 1, 1)]):
            f = (X * 2 + Tt) * 2 + cc
            for hB in range(2): rd128(FR[n] + 4 * hB, VWO, 16384 + f * 1024 + hB * 512)
    def kv_check(tmp, sreg):
        if nokv: return
        lp = A.newlabel("Lkvp"); ok = A.newlabel("Lkvo")
        A.label(ok)
        A("s_bitcmp0_b64 s[%d:%d], %s" % (sMASK, sMASK + 1, sreg))
        A("s_cbranch_scc1 %s" % lp)
        def blk(A):
            A.label(lp)
            A("global_load_dword v%d, v%d, s[%d:%d] sc1" % (tmp, VL4, sFKV, sFKV + 1))
            A("s_waitcnt vmcnt(0)")
            A("v_cmp_ne_u32 s[%d:%d], 0, v%d" % (sMASK, sMASK + 1, tmp))
            A("s_sleep 1")
            spin_guard(A)
            A("s_branch %s" % ok)
        cold.add(blk)
    def kv_ops():
        return [["s_mov_b32 m0, s%d" % sM0, "s_nop 0",
                 "global_load_lds_dwordx4 v%d, s[%d:%d] sc1" % (VMLD, sKV, sKV + 1)],
                ["global_load_lds_dwordx4 v%d, s[%d:%d] offset:1024 sc1" % (VMLD, sKV, sKV + 1), "s_mov_b32 m0, s%d" % sM1],
                ["global_load_lds_dwordx4 v%d, s[%d:%d] sc1" % (VMLD, sKV + 2, sKV + 3)],
                ["global_load_lds_dwordx4 v%d, s[%d:%d] offset:1024 sc1" % (VMLD, sKV + 2, sKV + 3)]]
    def exp_st():
        return "global_store_dwordx4 v%d, v[%d:%d], s[%d:%d] sc1" % (VMLD, EXP, EXP + 3, sKM, sKM + 1)
    def flag(tmp, off):
        A("v_mov_b32 v%d, 0" % tmp)
        A("global_store_dword v%d, v%d, s[%d:%d] offset:%d sc1" % (tmp, VSENT, sFM, sFM + 1, off))

    A.label("L_ch_layer")
    A("s_mov_b32 s%d, 0" % sSEG)
    A("s_mov_b64 s[%d:%d], 0" % (sMASK, sMASK + 1))
    A("s_lshl_b32 s40, s%d, 5" % sL)
    A("s_add_u32 s40, s40, s%d" % S_HEAD)
    A("s_lshl_b32 s40, s40, 8")
    A("s_add_u32 s41, s40, 0x%x" % F_KV)
    sadd64(A, sFKV, S_WS, "s41")
    A("s_add_u32 s41, s40, 0x%x" % (F_M - 12))
    sadd64(A, sFM, S_WS, "s41")
    A("s_lshl_b32 s40, s%d, 11" % sL)
    A("s_add_u32 s40, s40, s%d" % S_HEAD)
    A("s_lshl_b32 s40, s40, 13")
    A("s_add_u32 s41, s40, 0x%x" % OFF_KX); sadd64(A, sKV, S_WS, "s41")
    A("s_add_u32 s41, s40, 0x%x" % OFF_VX); sadd64(A, sKV + 2, S_WS, "s41")
    A("s_add_u32 s41, s40, 0x%x" % (OFF_KM - 2 * 32 * 8192)); sadd64(A, sKM, S_WS, "s41")
    A("v_bfe_u32 v27, v2, 4, 2")
    A("v_bfe_u32 v28, v2, 2, 1")
    A("v_lshl_add_u32 v27, v27, 1, v28")
    A("v_lshlrev_b32 v27, 10, v27")
    A("v_bfe_u32 v28, v2, 3, 1")
    A("v_lshl_add_u32 v27, v28, 2, v27")
    A("v_bfe_u32 v28, v2, 6, 2")
    A("v_lshl_add_u32 v27, v28, 5, v27")
    A("v_mov_b32 v%d, 0" % VFA)
    A("s_lshl_b32 s40, s%d, 8" % S_WAVE)
    A("v_add_u32 v27, s40, v27")
    for i in range(2):
        for p in range(4):
            A("global_load_dword v%d, v27, s[%d:%d] offset:%d" % (G0 + 4 * i + p, S_MEM0, S_MEM0 + 1, i * 128 + p * 8))
    kv_check(28, "s%d" % sSEG)
    for g_ in kv_ops():
        for t in g_: A(t)
        A("s_nop 0")
    if opt.get("rt") or opt.get("cyc"):
        A("s_add_u32 s47, s%d, 400" % sL)
        rt_stamp(A, dict(rt=opt.get("rt") or 2), "s47", 27, 28)
    for r in range(0, 24, 2): z64(Q0 + r)
    setup_part_bases()
    prefetch_own()
    A("s_waitcnt vmcnt(0)")
    A("ds_write_b128 v%d, v[%d:%d] offset:%d" % (VMLD, G0, G0 + 3, L_MEM))
    A("ds_write_b128 v%d, v[%d:%d] offset:%d" % (VMLD, G1, G1 + 3, L_MEM + 1024))
    A("s_waitcnt lgkmcnt(2)")
    A("s_branch L_ch_step")

    A.raw(".p2align 6")
    PA = opt.get("pa", 1)
    def ldA():
        A("global_load_dwordx4 v[%d:%d], v%d, s[%d:%d] sc1" % (G0, G0 + 3, VMLD, sMG, sMG + 1))
        A("global_load_dwordx4 v[%d:%d], v%d, s[%d:%d] offset:1024 sc1" % (G1, G1 + 3, VMLD, sMG, sMG + 1))
    A.label("L_ch_retryA")
    ldA()
    spin_guard(A)
    A.label("L_ch_pollA")
    A("s_waitcnt vmcnt(%d) lgkmcnt(0)" % (2 * (PA - 1)))
    A("v_max_u32 v%d, v%d, v%d" % (PT, G0, G1))
    A("v_cmp_eq_u32 vcc, -1, v%d" % PT)
    A("ds_write_b128 v%d, v[%d:%d] offset:%d" % (VMLD, G0, G0 + 3, L_MEM))
    A("ds_write_b128 v%d, v[%d:%d] offset:%d" % (VMLD, G1, G1 + 3, L_MEM + 1024))
    A("s_cbranch_vccnz L_ch_retryA")
    if tr_pos:
        tr(26)
        lt = A.newlabel("Ltr")
        A("s_cmp_eq_u32 s%d, %d" % (sIT, opt.get("trit", 100)))
        A("s_cbranch_scc1 %s" % lt)
        A.label(lt + "b")
        def blk(A):
            A.label(lt)
            A("s_waitcnt lgkmcnt(0)")
            A("s_lshl_b32 s40, s%d, 2" % S_HEAD)
            A("s_add_u32 s40, s40, s%d" % S_WAVE)
            A("s_lshl_b32 s40, s40, 7")
            A("s_add_u32 s40, s40, 0x%x" % (OFF_STAMP + 0x400000))
            sadd64(A, 42, S_WS, "s40")
            A("v_mov_b32 v27, 0")
            for n, k in enumerate(tr_used):
                A("v_mov_b32 v28, s%d" % (sST + 2 * n))
                A("global_store_dword v27, v28, s[42:43] offset:%d" % (4 * k))
            A("s_branch %s" % (lt + "b"))
        cold.add(blk)
    A.label("L_ch_step")
    tr(0)
    def smfr(acc, c, breg):
        A("v_smfmac_f32_16x16x64_bf16 v[%d:%d], v[%d:%d], %s, v%d" % (acc, acc + 3, AF + 4 * c, AF + 4 * c + 3, R(breg, 8), VIDX))
    def smf(acc, c, tile): smfr(acc, c, wq_base(tile, c))
    accs = [Q0, K0, Q1, K1]
    def mf(d, x, y, c, k32=True):
        n = 4 if k32 else 2
        A("v_mfma_f32_16x16x%d_bf16 v[%d:%d], v[%d:%d], v[%d:%d], %s" % (32 if k32 else 16, d, d + 3, x, x + n - 1, y, y + n - 1, c))
    acc = lambda r: "v[%d:%d]" % (r, r + 3)
    def trd(k):
        dc, Tt = k >> 1, k & 1
        A("ds_read_b64_tr_b16 v[%d:%d], v%d offset:%d" % (ZF + 2 * k, ZF + 2 * k + 1, VZR, L_Z + dc * 1024 + Tt * 512))
    for n in range(4): smfr(accs[n], 0, FR[n])
    A("s_waitcnt lgkmcnt(0)")
    A("s_barrier")
    tr(1)
    own = [lambda n=n: smfr(accs[n], 1, FR[4 + n]) for n in range(4)] + \
          [lambda a_=a_, c=c, t=t: smf(a_, c, t) for c in range(2) for a_, t in ((V0, 4), (V1, 5))]
    rd128(AF + 8, VA, L_MEM)
    for c in range(3, 8):
        rd128(AF + 4 * c, VA + c // 2 - 1, L_MEM + (c & 1) * 1024)
        own.pop(0)()
    own.pop(0)(); own.pop(0)()
    if PA > 1: A("s_waitcnt vmcnt(0)")
    if not opt.get("norearm"):
        store_mixed(A, cold, ["global_store_dword v%d, v%d, s[%d:%d]" % (VMLD, VSENT, sPR, sPR + 1),
                              "global_store_dword v%d, v%d, s[%d:%d] offset:1024" % (VMLD, VSENT, sPR, sPR + 1)])
    A("s_cmp_lt_u32 s%d, s%d" % (sSEG, sFW))
    A("s_cbranch_scc0 L_ch_flag")
    A.label("L_ch_noflag")
    own.pop(0)()
    A("s_cmp_eq_u32 s%d, 0" % sSEG)
    A("s_cselect_b32 s40, 4, s%d" % S_WAVE)
    EM = opt.get("em", 0)
    def exp_turn(k):
        if opt.get("noexp"): return
        l = A.newlabel("Lex")
        if EM == 0 and k == 0:
            A("s_cbranch_scc1 %s" % l); A(exp_st()); A.label(l)
        if EM == 1 and k in (0, 2):
            A("s_cbranch_scc1 %s" % l)
            A("global_store_dwordx2 v%d, v[%d:%d], s[%d:%d] offset:%d sc1" % (VMLD, EXP + k, EXP + k + 1, sKM, sKM + 1, 4 * k))
            A.label(l)
        if EM == 2:
            A("s_cmp_lg_u32 s40, %d" % k); A("s_cbranch_scc1 %s" % l); A(exp_st()); A.label(l)
        if EM == 3 and k in (0, 2):
            A("s_cmp_lg_u32 s41, %d" % (k >> 1)); A("s_cbranch_scc1 %s" % l); A(exp_st()); A.label(l)
    if EM == 3: A("s_lshr_b32 s41, s40, 1")
    tr(2)
    kx = [(KX1 + 4 * d, VL16, L_KX + d * 1024) for d in range(4)] + [(KX2 + 4 * d, VL16, L_KX + 4096 + d * 1024) for d in range(4)]
    extra = 0
    for c in range(2, 8):
        A("s_waitcnt lgkmcnt(%d)" % (7 - c + extra))
        smf(Q0, c, 0)
        if c >= 4: rd128(*kx.pop(0)); extra += 1
        else: exp_turn(2 * (c - 2))
        smf(K0, c, 2)
        if c >= 4: rd128(*kx.pop(0)); extra += 1
        else: exp_turn(2 * (c - 2) + 1)
    assert not kx
    tr(3)
    seq = [(a_, c, t) for c in range(2, 8) for a_, t in ((Q1, 1), (K1, 3))]
    for i, x in enumerate(seq):
        smf(*x)
        if i == 0: A("s_add_u32 s41, s%d, 1" % sSEG); A.nop(2)
        if i == 1:
            if not nokv:
                A("v_cmp_ne_u32 vcc, 0, v%d" % VFA)
                A("s_or_b64 s[%d:%d], s[%d:%d], vcc" % (sMASK, sMASK + 1, sMASK, sMASK + 1))
            else: A.nop(2)
        if i == 2: add1(Q0, 0)
        if i == 3: add1(Q0, 1)
        if i == 4: add1(K0, 0)
        if i == 5: add1(K0, 1)
        if i == 6: cvt(K0 + 3, Q0, Q0 + 1)
        if i == 7: cvt(K0 + 2, K0, K0 + 1)
        if i == 8:
            A("ds_write_b64 v%d, v[%d:%d] offset:%d" % (VZW, K0 + 2, K0 + 3, L_Z)); A("v_mov_b32 v%d, v%d" % (EXP, K0 + 2))
        if i == 9: rd128(VXC, VMLD, L_VX)
        if i == 10: rd128(VXC + 4, VMLD, L_VX + 1024)
    tr(4)
    vq = [x for c in range(2, 8) for x in ((V0, c, 4), (V1, c, 5))]
    def vs(n=1):
        for _ in range(n):
            if vq: smf(*vq.pop(0))
    vs(); A.nop(3); vs(); A.nop(2)
    add1(Q1, 0); add1(Q1, 1); add1(K1, 0); add1(K1, 1)
    cvt(K1 + 3, Q1, Q1 + 1); cvt(K1 + 2, K1, K1 + 1)
    A("ds_write_b64 v%d, v[%d:%d] offset:%d" % (VZW, K1 + 2, K1 + 3, L_Z + 512))
    tr(5)
    vs()
    A("v_mov_b32 v%d, v%d" % (EXP + 1, K1 + 2))
    vs(opt.get("vpre", 4) - 1)
    A("s_waitcnt lgkmcnt(0)")
    A("s_barrier")
    tr(6)
    trd(0); trd(1)
    for k in range(2, 8):
        vs(); trd(k)
    assert not vq
    A("s_cmp_eq_u32 s%d, %d" % (sSEG, LAST))
    A("s_cbranch_scc1 L_ch_last")
    vq_last = []
    kv_check(52, "s41")
    kvo = kv_ops()
    if opt.get("nodma"): kvo = [["s_nop 0"]] * 4
    wrd = []
    for i in range(8):
        off = (i >> 1) * 2048 + (i & 1) * 1024
        wrd += [(SLOTS[i], VWO, off), (SLOTS[i] + 4, VWO, off + 512)]
    def w(): rd128(*wrd.pop(0))
    nw = 0
    for dc in range(4):
        A("s_waitcnt lgkmcnt(%d)" % (6 - 2 * dc + nw))
        z = ZF + 4 * dc
        mf(S1, KX1 + 4 * dc, z, "0" if dc == 0 else acc(S1))
        if dc < 3: w(); nw += 1
        if dc == 2: add1(V0, 1)
        if dc == 3: cvt(VMA, V0, V0 + 1)
        mf(S2, KX2 + 4 * dc, z, "0" if dc == 0 else acc(S2))
        if dc < 3: w(); nw += 1
        if dc == 2: add1(V1, 0)
        if dc == 3: cvt(VMA + 1, V1, V1 + 1)
        mf(S0, z, z, "0" if dc == 0 else acc(S0))
        for t in kvo.pop(0): A(t)
        if dc == 1: add1(V0, 0)
        if dc == 2: add1(V1, 1)
    tr(7)
    if not nokv: A("global_load_dword v%d, v%d, s[%d:%d] sc1" % (VFA, VL4, sFKV, sFKV + 1))
    else: A("s_nop 0")
    A("v_mov_b32 v%d, 0x3f803f80" % ONES)
    A("v_mov_b32 v%d, 0x3f803f80" % (ONES + 1))
    A("v_max3_f32 v%d, v%d, v%d, v%d" % (M0_, S1, S1 + 1, S1 + 2))
    A("v_mov_b32 v%d, 0x3f803f80" % (ONES + 2))
    A("v_max3_f32 v%d, v%d, v%d, v%d" % (M1_, S1 + 3, S2, S2 + 1))
    A("v_max3_f32 v%d, v%d, v%d, v%d" % (M0_, M0_, S2 + 2, S2 + 3))
    A("v_max3_f32 v%d, v%d, v%d, v%d" % (M1_, M1_, S0, S0 + 1))
    A("v_max_f32 v%d, v%d, v%d" % (T0_, M0_, M1_))
    A("v_max_f32 v%d, v%d, v%d" % (T1_, M0_, M1_))
    A("v_mov_b32 v%d, 0x3f803f80" % (ONES + 3))
    A("s_add_u32 s40, s%d, 1" % sIT)
    A("v_permlane32_swap_b32 v%d, v%d" % (T0_, T1_))
    A("v_max_f32 v%d, v%d, v%d" % (M0_, T0_, T1_))
    A("v_max_f32 v%d, v%d, v%d" % (M1_, T0_, T1_))
    A("s_and_b32 s40, s40, 3")
    A("s_lshl_b32 s40, s40, 13")
    A("v_permlane16_swap_b32 v%d, v%d" % (M0_, M1_))
    A("v_max_f32 v%d, v%d, v%d" % (M0_, M0_, M1_))
    A("v_mul_f32 v%d, s%d, v%d" % (M0_, sC, M0_))
    tr(8)
    def pkf(r): A("v_pk_fma_f32 v[%d:%d], v[%d:%d], s[%d:%d], v[%d:%d] op_sel_hi:[1,0,0] neg_lo:[0,0,1] neg_hi:[0,0,1]" % (r, r + 1, r, r + 1, sC, sC + 1, M0_, M0_ + 1))
    def ex(r): A("v_exp_f32 v%d, v%d" % (r, r))
    pkf(S1); pkf(S1 + 2); ex(S1); ex(S1 + 1); pkf(S2); ex(S1 + 2); ex(S1 + 3); pkf(S2 + 2)
    cvt(PX, S1, S1 + 1); ex(S2); ex(S2 + 1); cvt(PX + 1, S1 + 2, S1 + 3); pkf(S0); ex(S2 + 2); ex(S2 + 3)
    cvt(PX + 2, S2, S2 + 1); ex(S0); cvt(PX + 3, S2 + 2, S2 + 3); ex(S0 + 1)
    tr(9)
    A("s_add_u32 s40, s40, 0x%x" % OFF_CMEM)
    mf(LA, ONES, PX, "0")
    cvt(PM, S0, S0 + 1)
    mf(O1, VXC + 4, PX, "0")
    w(); cvt(PMB + 1, S0, S0 + 1)
    mf(O0, VXC, PX, "0")
    w(); sadd64(A, sMG, S_WS, "s40")
    A("v_mov_b32 v%d, 0" % S1)
    mf(LA, ONES, PM, acc(LA), k32=False)
    w(); A("v_mov_b32 v%d, 0" % (S1 + 1)); A.nop(1)
    mf(O1, VMA, PMB, acc(O1), k32=False)
    w(); A("v_mov_b32 v%d, 0" % (S1 + 2))
    mf(O0, VMA, PM, acc(O0), k32=False)
    A("v_mov_b32 v%d, 0" % (S1 + 3))
    z64(WACC[1]); z64(WACC[1] + 2)
    A("v_rcp_f32 v%d, v%d" % (LA, LA))
    z64(WACC[2])
    for r in (O1, O1 + 2, O0, O0 + 2):
        if r == O0: z64(WACC[2] + 2)
        A("v_pk_mul_f32 v[%d:%d], v[%d:%d], v[%d:%d] op_sel_hi:[1,0]" % (r, r + 1, r, r + 1, LA, LA + 1))
    cvt(OP + 2, O1, O1 + 1); cvt(OP + 3, O1 + 2, O1 + 3); cvt(OP, O0, O0 + 1); cvt(OP + 1, O0 + 2, O0 + 3)
    A("ds_write_b128 v%d, v[%d:%d]" % (VOW, OP, OP + 3))
    tr(10)
    for t in (4, 5, 6, 7): z64(WACC[t]); z64(WACC[t] + 2)
    for _ in range(opt.get("wfill", 4)): A("v_mov_b32 v%d, 0" % CP)
    A("s_waitcnt vmcnt(%d) lgkmcnt(0)" % (0 if opt.get("nodma") else 4 if nokv else 5))
    tr(11)
    A("s_barrier")
    tr(12)
    rd128(OA, VL16, L_O); rd128(OA + 4, VL16, L_O + 1024)
    z64(WACC[3]); z64(WACC[3] + 2)
    A("s_and_b32 s40, s%d, 3" % sIT); A("s_lshl_b32 s40, s40, 13"); A("s_add_u32 s40, s40, 0x%x" % OFF_CMEM)
    def tile_ops(d): return ["v_add_f32 v%d, v%d, v%d" % (d + e, d + e, d + 2 + e) for e in range(2)]
    def cv(d, x, y): return "v_cvt_pk_bf16_f32 v%d, v%d, v%d" % (d, x, y)
    t0, t1 = WACC[:4], WACC[4:]
    order = [(j, ch) for j in range(8) for ch in range(2)]
    a0, a1, a2, a3 = [tile_ops(x) for x in t0]
    b0, b1, b2, b3 = [tile_ops(x) for x in t1]
    mn = lambda r: "v_min_u32 v%d, -2, v%d" % (r, r)
    fill = {3: ["s_nop 0"], 4: [a0[0]], 5: [a0[1]], 6: [a1[0]], 7: [a1[1]], 8: [cv(t0[0] + 2, t0[0], t0[1]), a2[0]],
            9: [cv(t0[0] + 3, t0[0] + 1, t0[1] + 1), a2[1]], 10: ["s_nop 0", a3[0]], 11: [a3[1], cv(t0[0], t0[2], t0[3])],
            12: [cv(t0[0] + 1, t0[2] + 1, t0[3] + 1), mn(t0[0])], 13: [b0[0]], 14: [b0[1], b1[0]], 15: [b1[1]]}
    nlate = len(wrd)
    issued = 0
    for i, (Tt, ch) in enumerate(order):
        if i == 0: A("s_waitcnt lgkmcnt(1)")
        if i == 1: A("s_waitcnt lgkmcnt(%d)" % issued)
        if i >= 8:
            need = 2 * (i - 8) + 2 - (16 - nlate)
            if need > 0: A("s_waitcnt lgkmcnt(%d)" % (issued - need))
        b = wo_base(Tt, ch) if i < 8 else SLOTS[i - 8]
        a_ = WACC[Tt]
        A("v_smfmac_f32_16x16x64_bf16 v[%d:%d], v[%d:%d], %s, v%d" % (a_, a_ + 3, OA + 4 * ch, OA + 4 * ch + 3, R(b, 8), VIDX))
        if i == 0: tr(13)
        if i == 7: tr(14)
        if i == 15: tr(15)
        if wrd: rd128(*wrd.pop(0)); issued += 1
        for t in fill.get(i, []): A(t)
        if i == 12:
            store_mixed(A, cold, ["global_store_dwordx4 v%d, v[%d:%d], s[%d:%d]" % (VPST, t0[0], t0[0] + 3, sP0, sP0 + 1)])
    assert not wrd
    for t in [cv(t1[0] + 2, t1[0], t1[1]), cv(t1[0] + 3, t1[0] + 1, t1[1] + 1)] + b2 + ["s_nop 2"] + b3 + \
             [cv(t1[0], t1[2], t1[3]), cv(t1[0] + 1, t1[2] + 1, t1[3] + 1), mn(t1[0])]: A(t)
    store_mixed(A, cold, ["global_store_dwordx4 v%d, v[%d:%d], s[%d:%d]" % (VPST, t1[0], t1[0] + 3, sP1, sP1 + 1)])
    tr(20)
    sadd64(A, sMR, S_WS, "s40")
    A("s_add_u32 s%d, s%d, 1" % (sSEG, sSEG))
    A("s_add_u32 s%d, s%d, 1" % (sIT, sIT))
    for r in (4, 6, 16, 18, 20, 22): z64(Q0 + r)
    A("s_cmp_lg_u32 s%d, 0" % S_WAVE)
    A("s_cbranch_scc1 L_ch_nored")
    for rr in range(4): A("v_cndmask_b32 v%d, 0, v%d, s[%d:%d]" % (SEL + rr, SELV, sSM + 2 * rr, sSM + 2 * rr + 1))
    if opt.get("d1", 0): A.nop(opt["d1"])
    def ldB(i):
        b = sR0 if i < 4 else sR1
        A("global_load_dwordx4 v[%d:%d], v%d, s[%d:%d] offset:%d sc1" % (RB + 4 * i, RB + 4 * i + 3, VL16, b, b + 1, (i & 3) * 1024))
    tr(21)
    A.label("L_ch_rB")
    for i in range(8): ldB(i)
    spin_guard(A)
    A("s_waitcnt vmcnt(7)")
    A("v_cmp_eq_u32 vcc, -1, v%d" % RB)
    mf(RD, SEL, RB, "0")
    A("s_cbranch_vccnz L_ch_rB")
    tr(22)
    for i in range(1, 8):
        A("s_waitcnt vmcnt(%d)" % (7 - i))
        mf(RD, SEL, RB + 4 * i, acc(RD))
        if i == 2: A("v_max_u32 v%d, v%d, v%d" % (RT, RB + 4, RB + 8))
        if i in (4, 6): A("v_max3_u32 v%d, v%d, v%d, v%d" % (RT, RT, RB + 4 * i - 4, RB + 4 * i))
    tr(23)
    A("v_max_u32 v%d, v%d, v%d" % (RT, RT, RB + 28))
    A("v_cmp_eq_u32 vcc, -1, v%d" % RT)
    A.nop(5)
    A("s_cbranch_vccnz L_ch_rB")
    cvt(RT, RD, RD + 1)
    A("v_min_u32 v%d, -2, v%d" % (RT, RT))
    store_mixed(A, cold, ["global_store_dword v%d, v%d, s[%d:%d]" % (VMST, RT, sMG, sMG + 1),
                          "global_store_dword v%d, v%d, s[%d:%d]" % (VMST, VSENT, sMR, sMR + 1)])
    tr(24)
    A("s_barrier")
    setup_part_bases()
    if opt.get("d6", 0): A.nop(opt["d6"])
    tr(25)
    ldA()
    prefetch_own()
    for k in range(1, PA): ldA()
    for r in (0, 2, 8, 10, 12, 14): z64(Q0 + r)
    A("s_branch L_ch_pollA")
    A.label("L_ch_firstA")
    for k in range(PA):
        ldA()
        if k < PA - 1: A.nop(opt.get("d5", 24))
    A("s_branch L_ch_pollA")
    A.label("L_ch_nored")
    rt_stamp(A, opt, "s%d" % sIT, RT, RT + 1)
    setup_part_bases()
    prefetch_own()
    for r in (0, 2, 8, 10, 12, 14): z64(Q0 + r)
    A("s_barrier")
    if opt.get("d3", 0): A.nop(opt["d3"])
    A("s_branch L_ch_firstA")

    A.label("L_ch_flag")
    A("s_mov_b64 exec, 1")
    A("global_store_dword v%d, v%d, s[%d:%d] sc1" % (PM + 1, VSENT, sFM, sFM + 1))
    A("s_mov_b64 exec, -1")
    A("s_branch L_ch_noflag")
    A.label("L_ch_last")
    for x in vq_last: smf(*x)
    sadd64(A, sKM, sKM, 32 * 8192)
    A.nop(6)
    pkadd(V0); pkadd(V1)
    cvt(VMA, V0, V0 + 1); cvt(VMA + 1, V1, V1 + 1)
    A(exp_st())
    A("s_waitcnt vmcnt(0) lgkmcnt(0)")
    A("s_barrier")
    A("s_mov_b64 exec, 1")
    if LAST >= 1: A("global_store_dword v%d, v%d, s[%d:%d] offset:4 sc1" % (PM + 1, VSENT, sFM, sFM + 1))
    A("global_store_dword v%d, v%d, s[%d:%d] offset:8 sc1" % (PM + 1, VSENT, sFM, sFM + 1))
    A("s_mov_b64 exec, -1")
    if opt.get("rt") or opt.get("cyc"):
        A("s_add_u32 s47, s%d, 410" % sL)
        rt_stamp(A, dict(rt=opt.get("rt") or 2), "s47", 27, 28)
    A("s_add_u32 s%d, s%d, 1" % (sL, sL))
    A("s_cmp_lt_u32 s%d, %d" % (sL, opt.get("layers", 2)))
    A("s_cbranch_scc1 L_ch_layer")
    A("s_branch L_end")
    cold.emit(A)
```

```python
from asmlib import *
NAME = "interleave_layers__linear_attn_block__memory_aug_recurrent_mem_tr__prompt"
KNAME = NAME + "_kernel"

F_X1  = 0x0000
F_Y2  = 0x4000
F_PB  = 0x8000
F_PA  = 0xC000
F_KV  = 0x10000
F_Q   = 0x1C000
F_M   = 0x14000
F_AKV = 0x18000
OFF_CPART = 0x100000
OFF_CMEM  = 0x180000
OFF_Y0 = 0x200000
OFF_X1 = 0x400000
OFF_Y1 = 0x800000
OFF_X2 = 0xC00000
OFF_Y2 = 0xE00000
OFF_AKV = 0x1000000
OFF_PW = 0x2000000
OFF_KX = 0x4000000
OFF_VX = 0x6000000
OFF_QX = 0x8000000
OFF_KM = 0xA000000
OFF_STAMP = 0xC000000

S_WS = 4
S_AX = 8
S_WQKV = 10
S_AWO = 12
S_MEM0 = 16
S_WQ = 18
S_WK = 20
S_WV = 22
S_WO = 24
S_OUT = 28
S_DBG = 30
S_GRP = 32
S_HEAD = 33
S_WAVE = 34
S_MIXED = 35
S_T0 = 36

LDS_BYTES = 163840
L_WO = 32768

def sadd64(A, d, b, imm_or_s):
    x = imm_or_s if isinstance(imm_or_s, str) else "0x%x" % imm_or_s
    A("s_add_u32 s%d, s%d, %s" % (d, b, x))
    A("s_addc_u32 s%d, s%d, 0" % (d + 1, b + 1))

def load_head_weights(A, vt, wq_base, wo_rowmap, wo_colmap, vwo=None, wo_base=None):
    VOFFW, VOFFO, VTR, VTRO, VWB, VX = vt, vt + 1, vt + 2, vt + 3, vt + 4, vt + 5
    TMP = vt + 8
    assert TMP % 2 == 0
    A("v_and_b32 %s, 63, v0" % v(VX))
    A("v_lshrrev_b32 %s, 2, %s" % (v(VOFFW), v(VX)))
    A("v_lshlrev_b32 %s, 10, %s" % (v(VOFFO), v(VOFFW)))
    A("v_lshlrev_b32 %s, 13, %s" % (v(VOFFW), v(VOFFW)))
    A("v_and_b32 %s, 3, %s" % (v(VTR), v(VX)))
    A("v_lshlrev_b32 %s, 4, %s" % (v(VTR), v(VTR)))
    A("v_add_u32 %s, %s, %s" % (v(VOFFW), v(VOFFW), v(VTR)))
    A("v_add_u32 %s, %s, %s" % (v(VOFFO), v(VOFFO), v(VTR)))
    A("s_lshl_b32 s40, s%d, 8" % S_HEAD)
    A("s_lshl_b32 s41, s%d, 6" % S_WAVE)
    A("s_add_u32 s40, s40, s41")
    A("v_add_u32 %s, s40, %s" % (v(VOFFW), v(VOFFW)))
    A("s_lshl_b32 s40, s%d, 17" % S_HEAD)
    A("s_lshl_b32 s41, s%d, 8" % S_WAVE)
    A("s_add_u32 s40, s40, s41")
    A("v_add_u32 %s, s40, %s" % (v(VOFFO), v(VOFFO)))
    A("s_lshl_b32 s46, s%d, 15" % S_WAVE)
    A("s_add_u32 s46, s46, %d" % L_WO)
    A("v_lshrrev_b32 %s, 4, %s" % (v(TMP), v(VX)))
    A("v_bfe_u32 %s, %s, 2, 2" % (v(TMP + 1), v(VX)))
    A("v_and_b32 %s, 3, %s" % (v(TMP + 2), v(VX)))
    A("v_lshl_add_u32 %s, %s, 3, %s" % (v(VTR), v(TMP), v(TMP + 1)))
    A("v_lshlrev_b32 %s, 6, %s" % (v(VTR), v(VTR)))
    A("v_lshl_add_u32 %s, %s, 3, %s" % (v(VTR), v(TMP + 2), v(VTR)))
    A("v_add_u32 %s, s46, %s" % (v(VTR), v(VTR)))
    if wo_rowmap == "chain":
        A("v_lshrrev_b32 %s, 1, %s" % (v(TMP + 3), v(TMP + 1)))
        A("v_lshlrev_b32 %s, 5, %s" % (v(TMP + 3), v(TMP + 3)))
        A("v_and_b32 %s, 1, %s" % (v(TMP + 4), v(TMP)))
        A("v_lshl_add_u32 %s, %s, 4, %s" % (v(TMP + 3), v(TMP + 4), v(TMP + 3)))
        A("v_lshrrev_b32 %s, 1, %s" % (v(TMP + 4), v(TMP)))
        A("v_lshl_add_u32 %s, %s, 2, %s" % (v(TMP + 3), v(TMP + 4), v(TMP + 3)))
        A("v_and_b32 %s, 1, %s" % (v(TMP + 4), v(TMP + 1)))
        A("v_add_u32 %s, %s, %s" % (v(TMP + 3), v(TMP + 3), v(TMP + 4)))
        rowimm = lambda ch, hB, hh: 64 * ch + 8 * hB + 2 * hh
    else:
        A("v_lshl_add_u32 %s, %s, 2, %s" % (v(TMP + 3), v(TMP), v(TMP + 1)))
        rowimm = lambda ch, hB, hh: 64 * ch + 32 * hB + 16 * hh
    A("v_lshlrev_b32 %s, 6, %s" % (v(VTRO), v(TMP + 3)))
    A("v_lshl_add_u32 %s, %s, 3, %s" % (v(VTRO), v(TMP + 2), v(VTRO)))
    A("v_add_u32 %s, s46, %s" % (v(VTRO), v(VTRO)))
    A("v_and_b32 %s, 15, %s" % (v(TMP + 4), v(VX)))
    if wo_colmap == "mod4":
        A("v_and_b32 %s, 3, %s" % (v(TMP + 5), v(TMP + 4)))
        A("v_lshlrev_b32 %s, 11, %s" % (v(VWB), v(TMP + 5)))
        A("v_lshrrev_b32 %s, 2, %s" % (v(TMP + 5), v(TMP + 4)))
        A("v_lshl_add_u32 %s, %s, 3, %s" % (v(TMP + 5), v(TMP), v(TMP + 5)))
        A("v_lshl_add_u32 %s, %s, 4, %s" % (v(VWB), v(TMP + 5), v(VWB)))
        wbimm = lambda ch, hB, Tn: ch * 1024 + hB * 512 + Tn * 64
    else:
        A("v_bfe_u32 %s, %s, 2, 1" % (v(TMP + 5), v(TMP + 4)))
        A("v_lshlrev_b32 %s, 12, %s" % (v(VWB), v(TMP + 5)))
        A("v_lshrrev_b32 %s, 3, %s" % (v(TMP + 5), v(TMP + 4)))
        A("v_lshlrev_b32 %s, 2, %s" % (v(TMP + 5), v(TMP + 5)))
        A("v_and_b32 %s, 3, %s" % (v(TMP + 6), v(TMP + 4)))
        A("v_add_u32 %s, %s, %s" % (v(TMP + 5), v(TMP + 5), v(TMP + 6)))
        A("v_lshl_add_u32 %s, %s, 4, %s" % (v(TMP + 5), v(TMP), v(TMP + 5)))
        A("v_lshl_add_u32 %s, %s, 4, %s" % (v(VWB), v(TMP + 5), v(VWB)))
        wbimm = lambda ch, hB, Tn: ch * 2048 + hB * 1024 + Tn * 128
    A("v_add_u32 %s, s46, %s" % (v(VWB), v(VWB)))

    chain = wo_rowmap == "chain"
    if chain:
        pieces = [(0, 1), (0, 2), (0, 3), (1, 1), (1, 2), (1, 3), (2, 0), (2, 1), (2, 2), (2, 3),
                  (3, 0), (3, 1), (3, 2), (3, 3), (0, 0), (1, 0)]
    else:
        pieces = [(X, rb) for X in range(3) for rb in range(4)]
    def issue(p):
        slot = p % 4
        X, rb = pieces[p]
        if X < 3:
            base = (S_WQ, S_WK, S_WV)[X]
            if chain:
                A("s_xor_b32 s45, s%d, %d" % (S_WAVE, rb))
                A("s_lshl_b32 s45, s45, 20")
                sadd64(A, 42, base, "s45")
            else:
                sadd64(A, 42, base, rb * 128 * 8192)
            step = 16 * 8192; voff = VOFFW
        else:
            sadd64(A, 42, S_WO, rb * 64)
            step = 16 * 1024; voff = VOFFO
        A("s_add_u32 s44, s46, %d" % (slot * 8192))
        for i in range(8):
            A("s_mov_b32 m0, s44")
            A("s_add_u32 s44, s44, 1024")
            A("global_load_lds_dwordx4 %s, s[42:43]" % v(voff))
            if i < 7: sadd64(A, 42, 42, step)
    def qkv_reads(slot, dstf):
        for cc in range(2):
            for T in range(2):
                for hB in range(2):
                    for hh in range(2):
                        off = slot * 8192 + (64 * cc + 32 * hB + 4 * hh) * 64 + T * 32
                        A("ds_read_b64_tr_b16 %s, %s offset:%d" % (R(dstf(T, cc) + hB * 4 + hh * 2, 2), v(VTR), off))
    issued = 0
    for p in range(4): issue(p); issued += 1
    NPC = len(pieces)
    for p in range(NPC):
        slot = p % 4
        X, rb = pieces[p]
        A("s_waitcnt vmcnt(%d)" % (8 * (issued - 1 - p)))
        if X < 3 and not (chain and p >= 14):
            qkv_reads(slot, lambda T, cc: wq_base(2 * X + T, 2 * rb + cc))
            A("s_waitcnt lgkmcnt(0)")
        elif X < 3:
            qkv_reads(slot, lambda T, cc: TMP + 32 * X + (T * 2 + cc) * 8)
            if p == 15:
                A("s_waitcnt lgkmcnt(0)")
                for f in range(8):
                    for hB in range(2):
                        A("ds_write_b128 %s, %s offset:%d" % (v(vwo), v(TMP + f * 8 + hB * 4, 4), 16384 + f * 1024 + hB * 512))
                A("s_waitcnt lgkmcnt(0)")
        else:
            for ch in range(2):
                for hB in range(2):
                    for Tn in range(2):
                        for hh in range(2):
                            dst = TMP + ((ch * 2 + hB) * 2 + Tn) * 4 + hh * 2
                            off = slot * 8192 + rowimm(ch, hB, hh) * 64 + Tn * 32
                            A("ds_read_b64_tr_b16 %s, %s offset:%d" % (v(dst, 2), v(VTRO), off))
            A("s_waitcnt lgkmcnt(0)")
            for ch in range(2):
                for hB in range(2):
                    for Tn in range(2):
                        src = TMP + ((ch * 2 + hB) * 2 + Tn) * 4
                        A("ds_write_b128 %s, %s offset:%d" % (v(VWB), v(src, 4), slot * 8192 + wbimm(ch, hB, Tn)))
            A("s_waitcnt lgkmcnt(0)")
            if chain and p == 11:
                for ch in range(2):
                    for jj in range(4):
                        for hB in range(2):
                            A("ds_read_b128 %s, %s offset:%d" % (R(wo_base(jj, ch) + hB * 4, 4), v(vwo), 16384 + jj * 2048 + ch * 1024 + hB * 512))
                A("s_waitcnt lgkmcnt(0)")
        if chain and p == 10: continue
        while issued < NPC and issued <= p + 4:
            issue(issued); issued += 1


class Cold:
    def __init__(self): self.blocks = []
    def add(self, fn): self.blocks.append(fn)
    def emit(self, A):
        for fn in self.blocks: fn(A)
        self.blocks = []

def store_mixed(A, cold, text):
    l1 = A.newlabel("Lmx"); l2 = A.newlabel("Lmy")
    A("s_cbranch_scc1 %s" % l1) if False else None
    A("s_cmp_lg_u32 s%d, 0" % S_MIXED)
    A("s_cbranch_scc1 %s" % l1)
    for t in text: A(t)
    A.label(l2)
    def blk(A):
        A.label(l1)
        for t in text: A(t + " sc1")
        A("s_branch %s" % l2)
    cold.add(blk)


S_SPIN = 101
def spin_guard(A):
    A("s_add_u32 s%d, s%d, 1" % (S_SPIN, S_SPIN))
    A("s_cmp_gt_u32 s%d, 0x40000" % S_SPIN)
    A("s_cbranch_scc1 L_end")


def rt_stamp(A, opt, idx, va, vb):
    if not opt.get("rt"): return
    A("s_memtime s[98:99]" if opt.get("rt") == 2 else "s_memrealtime s[98:99]")
    A("s_lshl_b32 s100, s%d, 5" % S_GRP)
    A("s_add_u32 s100, s100, s%d" % S_HEAD)
    A("s_lshl_b32 s100, s100, 2")
    A("s_add_u32 s100, s100, s%d" % S_WAVE)
    A("s_lshl_b32 s100, s100, 9")
    A("s_add_u32 s100, s100, %s" % idx)
    A("s_lshl_b32 s100, s100, 2")
    A("s_add_u32 s100, s100, 0x%x" % OFF_STAMP)
    A("v_mov_b32 v%d, s100" % va)
    A("s_waitcnt lgkmcnt(0)")
    A("v_mov_b32 v%d, s98" % vb)
    A("global_store_dword v%d, v%d, s[%d:%d]" % (va, vb, S_WS, S_WS + 1))
```

```python
from common import *
import math, struct
def f32bits(x): return struct.unpack("<I", struct.pack("<f", x))[0]
LOG2E = math.log2(math.e)
ZZ = [1]

def mfma(A, d, x, y, c, k32=True):
    n = 4 if k32 else 2
    A("v_mfma_f32_16x16x%d_bf16 %s, %s, %s, %s" % (32 if k32 else 16, v(d, 4), R(x, n), R(y, n), c if isinstance(c, str) else v(c, 4)))
def cvt(A, d, x, y): A("v_cvt_pk_bf16_f32 v%d, v%d, v%d" % (d, x, y))
def rd128(A, d, addr, off): A("ds_read_b128 v[%d:%d], v%d offset:%d" % (d, d + 3, addr, off))

def wait_flags(A, vtmp, voff, sbase, sleep=2):
    lp = A.newlabel("Lwf"); ok = A.newlabel("Lwo")
    A.label(lp)
    A("global_load_dword v%d, v%d, s[%d:%d] sc1" % (vtmp, voff, sbase, sbase + 1))
    A("s_waitcnt vmcnt(0)")
    A("v_cmp_eq_u32 vcc, 0, v%d" % vtmp)
    A("s_cbranch_vccz %s" % ok)
    A("s_sleep %d" % (sleep * ZZ[0]))
    spin_guard(A)
    A("s_branch %s" % lp)
    A.label(ok)

def row_allsum16(A, regs, tmp):
    src, dst = list(regs), list(tmp)
    for sh in (8, 4, 2, 1):
        if len(regs) < 3: A.nop(3 - len(regs))
        for a_, b_ in zip(src, dst):
            A("v_add_f32_dpp v%d, v%d, v%d row_ror:%d row_mask:0xf bank_mask:0xf" % (b_, a_, a_, sh))
        src, dst = dst, src

def swap_sum(A, r, t, which):
    A("v_mov_b32 v%d, v%d" % (t, r))
    A.nop(2)
    A("v_permlane%d_swap_b32 v%d, v%d" % (which, r, t))
    A("v_add_f32 v%d, v%d, v%d" % (r, r, t))

def sel_const(A, SEL, T):
    A("v_and_b32 v%d, 1, v0" % T)
    A("v_lshlrev_b32 v%d, 4, v%d" % (T, T))
    A("v_mov_b32 v%d, 0x3f80" % (T + 1))
    A("v_lshlrev_b32 v%d, v%d, v%d" % (T + 1, T, T + 1))
    A("v_bfe_u32 v%d, v0, 1, 2" % T)
    for rr in range(4):
        A("v_cmp_eq_u32 vcc, %d, v%d" % (rr, T))
        A.nop(2)
        A("v_cndmask_b32 v%d, 0, v%d, vcc" % (SEL + rr, T + 1))

def reduce_consts(A, VRLD, VROW, VFL, T):
    A("v_and_b32 v%d, 15, v0" % T)
    A("v_bfe_u32 v%d, v0, 4, 2" % (T + 1))
    A("s_lshl_b32 s40, s%d, 8" % S_WAVE)
    A("v_lshlrev_b32 v%d, 10, v%d" % (VRLD, T + 1))
    A("v_lshl_add_u32 v%d, v%d, 4, v%d" % (VRLD, T, VRLD))
    A("v_add_u32 v%d, s40, v%d" % (VRLD, VRLD))
    A("v_and_b32 v%d, 1, v%d" % (T + 1, T + 1))
    A("v_lshlrev_b32 v%d, 3, v%d" % (VROW, T + 1))
    A("v_lshl_add_u32 v%d, v%d, 4, v%d" % (VROW, T, VROW))
    A("v_add_u32 v%d, s40, v%d" % (VROW, VROW))
    A("v_and_b32 v%d, 31, v0" % VFL)
    A("v_lshlrev_b32 v%d, 2, v%d" % (VFL, VFL))

def one_lane(A, text):
    A("s_mov_b64 exec, 1")
    A(text)
    A("s_mov_b64 exec, -1")

def reduce_row(A, cold, W, SEL, VRLD, VROW, VFL, VL16, sPART, sPF, sRES, sX, sY, sOF, lds_off, final_cond, defer=None):
    RB, RD, XR, T = W, W + 32, W + 36, W + 40
    rtp(A, 10)
    wait_flags(A, T, VFL, sPF, sleep=1)
    rtp(A, 11)
    for i in range(8):
        if i > 0: sadd64(A, sPART, sPART, 4096)
        A("global_load_dwordx4 v[%d:%d], v%d, s[%d:%d] sc1" % (RB + 4 * i, RB + 4 * i + 3, VRLD, sPART, sPART + 1))
    A("v_lshlrev_b32 v%d, 16, v%d" % (T, XR))
    A("v_and_b32 v%d, 0xffff0000, v%d" % (T + 1, XR))
    A("v_lshlrev_b32 v%d, 16, v%d" % (T + 2, XR + 1))
    A("v_and_b32 v%d, 0xffff0000, v%d" % (T + 3, XR + 1))
    A("v_add_u32 v%d, %d, v%d" % (T + 4, lds_off + 32, VROW))
    A("s_lshl_b32 s40, s%d, 3" % S_WAVE)
    A("s_add_u32 s40, s40, %d" % lds_off)
    A("v_mov_b32 v%d, s40" % (T + 5))
    for i in range(8):
        A("s_waitcnt vmcnt(%d)" % (7 - i))
        mfma(A, RD, SEL, RB + 4 * i, "0" if i == 0 else RD)
    A.nop(8)
    rtp(A, 12)
    cvt(A, XR, RD, RD + 1); cvt(A, XR + 1, RD + 2, RD + 3)
    A("v_lshlrev_b32 v%d, 16, v%d" % (RD, XR))
    A("v_and_b32 v%d, 0xffff0000, v%d" % (RD + 1, XR))
    A("v_lshlrev_b32 v%d, 16, v%d" % (RD + 2, XR + 1))
    A("v_and_b32 v%d, 0xffff0000, v%d" % (RD + 3, XR + 1))
    for r in range(4): A("v_add_f32 v%d, v%d, v%d" % (RD + r, RD + r, T + r))
    cvt(A, XR, RD, RD + 1); cvt(A, XR + 1, RD + 2, RD + 3)
    A("ds_write_b64 v%d, v[%d:%d]" % (T + 4, XR, XR + 1))
    A("v_lshlrev_b32 v%d, 16, v%d" % (RD, XR))
    A("v_and_b32 v%d, 0xffff0000, v%d" % (RD + 1, XR))
    A("v_lshlrev_b32 v%d, 16, v%d" % (RD + 2, XR + 1))
    A("v_and_b32 v%d, 0xffff0000, v%d" % (RD + 3, XR + 1))
    S, Q = T, T + 1
    A("v_add_f32 v%d, v%d, v%d" % (S, RD, RD + 1))
    A("v_mul_f32 v%d, v%d, v%d" % (Q, RD, RD))
    A("v_add_f32 v%d, v%d, v%d" % (S, S, RD + 2))
    A("v_fmac_f32 v%d, v%d, v%d" % (Q, RD + 1, RD + 1))
    A("v_add_f32 v%d, v%d, v%d" % (S, S, RD + 3))
    A("v_fmac_f32 v%d, v%d, v%d" % (Q, RD + 2, RD + 2))
    A("v_fmac_f32 v%d, v%d, v%d" % (Q, RD + 3, RD + 3))
    A.nop(1)
    row_allsum16(A, [S, Q], [T + 2, T + 3])
    A("v_mov_b64 v[%d:%d], v[%d:%d]" % (T + 2, T + 3, S, Q))
    A.nop(2)
    A("v_permlane16_swap_b32 v%d, v%d" % (S, T + 2))
    A("v_permlane16_swap_b32 v%d, v%d" % (Q, T + 3))
    A("v_pk_add_f32 v[%d:%d], v[%d:%d], v[%d:%d]" % (S, Q, S, Q, T + 2, T + 3))
    A("ds_write_b64 v%d, v[%d:%d]" % (T + 5, S, Q))
    A("s_waitcnt lgkmcnt(0)")
    A("s_barrier")
    rtp(A, 13)
    ldone = A.newlabel("Lrdone"); lfin = A.newlabel("Lfin")
    A("s_cmp_lg_u32 s%d, 0" % S_WAVE)
    A("s_cbranch_scc1 %s" % ldone)
    A("v_mov_b32 v%d, %d" % (T + 3, lds_off))
    rd128(A, RB + 8, VL16, lds_off + 32)
    rd128(A, RB, T + 3, 0); rd128(A, RB + 4, T + 3, 16)
    final_cond(A)
    A("s_waitcnt lgkmcnt(2)")
    A("s_cbranch_scc1 %s" % lfin)
    A("global_store_dwordx4 v%d, v[%d:%d], s[%d:%d] sc1" % (VL16, RB + 8, RB + 11, sX, sX + 1))
    U = RB + 16
    for r in range(4):
        A("v_lshlrev_b32 v%d, 16, v%d" % (U + 2 * r, RB + 8 + r))
        A("v_and_b32 v%d, 0xffff0000, v%d" % (U + 2 * r + 1, RB + 8 + r))
    A("s_waitcnt lgkmcnt(0)")
    A("v_pk_add_f32 v[%d:%d], v[%d:%d], v[%d:%d]" % (RB, RB + 1, RB, RB + 1, RB + 2, RB + 3))
    A("v_pk_add_f32 v[%d:%d], v[%d:%d], v[%d:%d]" % (RB + 4, RB + 5, RB + 4, RB + 5, RB + 6, RB + 7))
    A("v_pk_add_f32 v[%d:%d], v[%d:%d], v[%d:%d]" % (RB, RB + 1, RB, RB + 1, RB + 4, RB + 5))
    ln_finish(A, RB, RB + 1, T)
    for r in range(8):
        A("v_sub_f32 v%d, v%d, v%d" % (U + r, U + r, T))
        A("v_mul_f32 v%d, v%d, v%d" % (U + r, U + r, T + 1))
    for r in range(4): cvt(A, RB + 12 + r, U + 2 * r, U + 2 * r + 1)
    A("s_and_b32 s40, s%d, 15" % S_HEAD)
    A("s_lshl_b32 s40, s40, 4")
    A("v_xor_b32 v%d, s40, v%d" % (T + 2, VL16))
    A("global_store_dwordx4 v%d, v[%d:%d], s[%d:%d] sc1" % (T + 2, RB + 12, RB + 15, sY, sY + 1))
    if defer is None:
        A("v_mov_b32 v%d, 1" % (T + 1))
        A("s_waitcnt vmcnt(0)")
        one_lane(A, "global_store_dword v%d, v%d, s[%d:%d] sc1" % (VL16, T + 1, sOF, sOF + 1))
    else:
        A("s_mov_b64 s[%d:%d], s[%d:%d]" % (defer + 1, defer + 2, sOF, sOF + 1))
        A("s_mov_b32 s%d, 1" % defer)
    A.label(ldone)
    def blk(A):
        A.label(lfin)
        A("global_store_dwordx4 v%d, v[%d:%d], s[%d:%d]" % (VL16, RB + 8, RB + 11, sX, sX + 1))
        A("s_waitcnt lgkmcnt(0)")
        A("s_branch %s" % ldone)
    cold.add(blk)

def flush_deferred(A, defer, VL16, ONE):
    l = A.newlabel("Lfd")
    A("s_cmp_eq_u32 s%d, 0" % defer)
    A("s_cbranch_scc1 %s" % l)
    one_lane(A, "global_store_dword v%d, v%d, s[%d:%d] sc1" % (VL16, ONE, defer + 1, defer + 2))
    A("s_mov_b32 s%d, 0" % defer)
    A.label(l)

def ln_finish(A, S, Q, T):
    A("v_mul_f32 v%d, 0x%x, v%d" % (T, f32bits(1 / 512), S))
    A("v_mul_f32 v%d, 0x%x, v%d" % (T + 1, f32bits(1 / 512), Q))
    A("v_fma_f32 v%d, -v%d, v%d, v%d" % (T + 1, T, T, T + 1))
    A("v_max_f32 v%d, 0, v%d" % (T + 1, T + 1))
    A("v_add_f32 v%d, 0x%x, v%d" % (T + 1, f32bits(1e-5), T + 1))
    A("v_rsq_f32 v%d, v%d" % (T + 1, T + 1))
    A.nop(1)

def prepass(A):
    A("s_lshl_b32 s37, s2, 13")
    A("s_lshl_b32 s38, s%d, 11" % S_WAVE)
    A("s_add_u32 s37, s37, s38")
    A("v_and_b32 v12, 63, v0")
    A("v_lshl_add_u32 v12, v12, 4, s37")
    A("global_load_dwordx4 v[16:19], v12, s[%d:%d]" % (S_AX, S_AX + 1))
    A("global_load_dwordx4 v[20:23], v12, s[%d:%d] offset:1024" % (S_AX, S_AX + 1))
    sadd64(A, 38, S_WS, OFF_Y0)
    for k in range(2):
        X = 16 + 4 * k; U = 24 + 8 * k; S, Q = 40 + 2 * k, 41 + 2 * k
        A("s_waitcnt vmcnt(%d)" % (1 - k))
        for r in range(4):
            A("v_lshlrev_b32 v%d, 16, v%d" % (U + 2 * r, X + r))
            A("v_and_b32 v%d, 0xffff0000, v%d" % (U + 2 * r + 1, X + r))
        A("v_add_f32 v%d, v%d, v%d" % (S, U, U + 1))
        A("v_mul_f32 v%d, v%d, v%d" % (Q, U, U))
        A("v_fmac_f32 v%d, v%d, v%d" % (Q, U + 1, U + 1))
        for r in range(2, 8):
            A("v_add_f32 v%d, v%d, v%d" % (S, S, U + r))
            A("v_fmac_f32 v%d, v%d, v%d" % (Q, U + r, U + r))
    A.nop(1)
    row_allsum16(A, [40, 41, 42, 43], [44, 45, 46, 47])
    for r in range(4): swap_sum(A, 40 + r, 44, 16)
    for r in range(4): swap_sum(A, 40 + r, 44, 32)
    for k in range(2):
        X = 16 + 4 * k; U = 24 + 8 * k
        ln_finish(A, 40 + 2 * k, 41 + 2 * k, 48)
        for r in range(8):
            A("v_sub_f32 v%d, v%d, v48" % (U + r, U + r))
            A("v_mul_f32 v%d, v%d, v49" % (U + r, U + r))
        for r in range(4): cvt(A, X + r, U + 2 * r, U + 2 * r + 1)
        A("s_lshr_b32 s40, s37, 10")
        A("s_add_u32 s40, s40, %d" % k)
        A("s_and_b32 s40, s40, 15")
        A("s_lshl_b32 s40, s40, 4")
        A("v_xor_b32 v13, s40, v12")
        A("global_store_dwordx4 v13, v[%d:%d], s[38:39] offset:%d sc1" % (X, X + 3, 1024 * k))

def publish_partials(A, cold, T, sPF):
    A("s_lshl_b32 s40, s%d, 2" % S_HEAD)
    A("v_mov_b32 v%d, s40" % T)
    A("v_mov_b32 v%d, 1" % (T + 1))
    rtp(A, 8)
    A("s_waitcnt vmcnt(0)")
    rtp(A, 9)
    A("s_barrier")
    l = A.newlabel("Lpp")
    A("s_cmp_lg_u32 s%d, 1" % S_WAVE)
    A("s_cbranch_scc1 %s" % l)
    A("s_mov_b64 exec, 1")
    store_mixed(A, cold, ["global_store_dword v%d, v%d, s[%d:%d]" % (T, T + 1, sPF, sPF + 1)])
    A("s_mov_b64 exec, -1")
    A.label(l)

def wqw(t, c):
    return 256 + 64 * t + 8 * c if t < 4 else 128 + 64 * (t - 4) + 8 * c

def frag_addrs(A, VA4, T):
    A("v_and_b32 v%d, 15, v0" % T)
    A("v_bfe_u32 v%d, v0, 4, 2" % (T + 1))
    for q in range(4):
        A("v_add_u32 v%d, %d, v%d" % (T + 2, 4 * q, T + 1))
        A("v_xor_b32 v%d, v%d, v%d" % (T + 2, T + 2, T))
        A("v_lshlrev_b32 v%d, 4, v%d" % (T + 2, T + 2))
        A("v_lshl_add_u32 v%d, v%d, 10, v%d" % (VA4 + q, T, T + 2))

def signal_last(A, T, lds_off, text):
    l = A.newlabel("Lsg")
    A("v_mov_b32 v%d, %d" % (T, lds_off))
    A("v_mov_b32 v%d, 1" % (T + 1))
    A("s_mov_b64 exec, 1")
    A("ds_add_rtn_u32 v%d, v%d, v%d" % (T, T, T + 1))
    A("s_waitcnt lgkmcnt(0)")
    A("v_readfirstlane_b32 s40, v%d" % T)
    A("s_and_b32 s40, s40, 3")
    A("s_cmp_lg_u32 s40, 3")
    A("s_cbranch_scc1 %s" % l)
    A(text)
    A.label(l)
    A("s_mov_b64 exec, -1")

def rts(A, opt, sL, sSEG, base, W):
    if opt.get("rt"):
        A("s_lshl_b32 s97, s%d, 6" % sL)
        A("s_add_u32 s97, s97, s%d" % sSEG)
        A("s_add_u32 s97, s97, %d" % base)
        rt_stamp(A, opt, "s97", W, W + 1)

_RTP = {"opt": None, "it": 50}
def rtp(A, k, va=230):
    opt = _RTP["opt"]
    if not opt or not opt.get("rt2"): return
    l = A.newlabel("Lrtp")
    A("s_cmp_lg_u32 s%d, 20" % _RTP["it"])
    A("s_cbranch_scc1 %s" % l)
    rt_stamp(A, dict(rt=1), 460 + k, va, va + 1)
    A.label(l)

def pack(A, dst, a0, a1):
    cvt(A, dst, a0, a0 + 1); cvt(A, dst + 1, a0 + 2, a0 + 3); cvt(A, dst + 2, a1, a1 + 1); cvt(A, dst + 3, a1 + 2, a1 + 3)

def tile_off(A, dst, sL, sSEG):
    A("s_lshl_b32 s40, s%d, 6" % sL)
    A("s_add_u32 s40, s40, s%d" % sSEG)
    A("s_lshl_b32 s%d, s40, 5" % dst)
    A("s_add_u32 s%d, s%d, s%d" % (dst, dst, S_HEAD))
    A("s_lshl_b32 s%d, s%d, 13" % (dst, dst))
def head_flag(A, dst, base, sL, sSEG, shift):
    A("s_lshl_b32 s41, s%d, 5" % sL)
    A("s_add_u32 s41, s41, s%d" % S_HEAD)
    A("s_lshl_b32 s41, s41, 6")
    A("s_add_u32 s41, s41, s%d" % sSEG)
    A("s_lshl_b32 s41, s41, %d" % shift)
    A("s_add_u32 s41, s41, 0x%x" % base)
    sadd64(A, dst, S_WS, "s41")

def gen_p1(A, opt):
    cold = Cold()
    NP1 = opt["NP1"]
    VY, VW2K, VL16, VKST, VFL, ZERO, ONE, VF = range(1, 9)
    VA4 = 10
    L_CNT = 65536
    W = 16
    sL, sSEG, sNX, sPRE, sSLOT, sT = 48, 49, 50, 51, 66, 67
    sA, sB, sCc, sD, sE, sF, sG, sGP = 52, 54, 56, 58, 60, 62, 64, 68
    A.label("L_p1")
    T = 40
    A("v_and_b32 v%d, 63, v0" % T)
    A("v_and_b32 v%d, 15, v0" % (T + 1))
    A("v_bfe_u32 v%d, v0, 4, 2" % (T + 2))
    A("v_lshlrev_b32 v%d, 4, v%d" % (VY, T))
    A("s_lshl_b32 s40, s%d, 11" % S_WAVE)
    A("v_add_u32 v%d, s40, v%d" % (VW2K, VY))
    A("v_mov_b32 v%d, v%d" % (VL16, VY))
    frag_addrs(A, VA4, T + 3)
    A("s_lshl_b32 s40, s%d, 10" % S_WAVE)
    A("v_add_u32 v%d, s40, v%d" % (VKST, VY))
    A("v_and_b32 v%d, 31, v0" % VFL)
    A("v_lshlrev_b32 v%d, 2, v%d" % (VFL, VFL))
    A("v_mov_b32 v%d, 0" % ZERO)
    A("v_mov_b32 v%d, 1" % ONE)
    if opt.get("late", 1): opt["init_wait"](A)
    load_head_weights(A, 40, wqw, "worker", "quad")
    rt_stamp(A, opt, 501, 40, 41)
    if not opt.get("late", 1): opt["init_wait"](A)
    A("s_barrier")
    A("v_mov_b32 v%d, %d" % (W, L_CNT))
    A("v_mov_b64 v[%d:%d], 0" % (W + 2, W + 3))
    A("ds_write_b64 v%d, v[%d:%d]" % (W, W + 2, W + 3))
    A("s_waitcnt lgkmcnt(0)")
    A("s_barrier")
    A("s_mov_b32 s%d, 0" % sL)
    A("s_lshl_b32 s%d, s%d, 13" % (sSLOT, S_WAVE))

    def xflag(dst, sseg):
        A("s_lshl_b32 s40, s%d, 6" % sL)
        A("s_add_u32 s40, s40, s%d" % sseg)
        A("s_lshl_b32 s41, s40, 7")
        A("s_add_u32 s41, s41, 0x%x" % F_X1); sadd64(A, dst, S_WS, "s41")
    def dma(sseg):
        A("s_lshl_b32 s40, s%d, 6" % sL)
        A("s_add_u32 s40, s40, s%d" % sseg)
        A("s_lshl_b32 s41, s40, 15")
        A("s_lshl_b32 s42, s%d, 13" % S_WAVE)
        A("s_add_u32 s41, s41, s42")
        A("s_add_u32 s41, s41, 0x%x" % OFF_Y1); sadd64(A, sB, S_WS, "s41")
        sadd64(A, sCc, sB, 4096)
        for hf in range(2):
            A("s_add_u32 s43, s%d, %d" % (sSLOT, hf * 4096))
            A("s_mov_b32 m0, s43")
            A("s_nop 0")
            b = sB if hf == 0 else sCc
            for i in range(4): A("global_load_lds_dwordx4 v%d, s[%d:%d] offset:%d sc1" % (VL16, b, b + 1, i * 1024))
        A("s_xor_b32 s%d, s%d, 32768" % (sSLOT, sSLOT))

    def qflag():
        sadd64(A, sGP, sGP, F_Q - F_KV)
        signal_last(A, W, L_CNT + 4, "global_store_dword v%d, v%d, s[%d:%d] sc1" % (ZERO, ONE, sGP, sGP + 1))
    def yrd(dst, ks):
        rd128(A, dst, VA4 + (ks & 3), (ks >> 2) * 256); rd128(A, dst + 4, VA4 + (ks & 3), (ks >> 2) * 256 + 16384)
    A.label("L_p1_layer")
    A("s_sub_u32 s%d, s%d, 1" % (sSEG, S_GRP))
    xflag(sA, sSEG)
    wait_flags(A, W, VFL, sA, sleep=1)
    dma(sSEG)
    head_flag(A, sGP, F_KV, sL, sSEG, 2)
    A("s_mov_b32 s%d, 0" % sPRE)
    A.label("L_p1_loop")
    A("s_add_u32 s%d, s%d, %d" % (sNX, sSEG, NP1))
    A("s_min_u32 s44, s%d, 63" % sNX)
    xflag(sA, 44)
    A("global_load_dword v%d, v%d, s[%d:%d] sc1" % (VF, VFL, sA, sA + 1))
    tile_off(A, sT, sL, sSEG)
    A("s_add_u32 s41, s%d, 0x%x" % (sT, OFF_KX)); sadd64(A, sD, S_WS, "s41")
    A("s_add_u32 s41, s%d, 0x%x" % (sT, OFF_VX)); sadd64(A, sE, S_WS, "s41")
    A("s_add_u32 s41, s%d, 0x%x" % (sT, OFF_QX)); sadd64(A, sF, S_WS, "s41")
    head_flag(A, sG, F_KV, sL, sSEG, 2)
    A("s_waitcnt vmcnt(0)")
    A("s_cmp_eq_u32 s%d, 0" % sPRE)
    A("s_cbranch_scc1 L_p1_noq")
    qflag()
    A.label("L_p1_noq")
    A("s_barrier")
    ACC, YF = 32, 80
    yrd(YF, 0)
    A("v_cmp_eq_u32 vcc, 0, v%d" % VF)
    A("s_mov_b32 s%d, 1" % sPRE)
    A("s_cmp_ge_u32 s%d, 64" % sNX)
    A("s_cbranch_scc1 L_p1_nopre")
    A("s_cbranch_vccnz L_p1_nopre")
    dma(sNX)
    A("s_mov_b32 s%d, 2" % sPRE)
    A.label("L_p1_nopre")
    acc = lambda t, mt: ACC + (t * 2 + mt) * 4
    O = 96
    for tiles in ((2, 3, 4, 5), (0, 1)):
        for ks in range(16):
            y = YF + 8 * (ks & 1)
            last = ks == 15 and tiles == (0, 1)
            if not last:
                kn = (ks + 1) & 15
                yn = YF + 8 * (kn & 1)
                yrd(yn, kn)
            A("s_waitcnt lgkmcnt(%d)" % (0 if last else 2))
            for t in tiles:
                wf = wqw(t, 0) + 4 * ks
                for mt in range(2):
                    c = "0" if ks == 0 else acc(t, mt)
                    if t < 4: mfma(A, acc(t, mt), wf, y + 4 * mt, c)
                    else: mfma(A, acc(t, mt), y + 4 * mt, wf, c)
            if tiles == (0, 1):
                if ks in (1, 2):
                    mt = ks - 1
                    pack(A, O + 4 * mt, acc(2, mt), acc(3, mt))
                    if mt == 1: sadd64(A, sD, sD, 4096)
                    A("global_store_dwordx4 v%d, v[%d:%d], s[%d:%d] sc1" % (VKST, O + 4 * mt, O + 4 * mt + 3, sD, sD + 1))
                if ks in (3, 4):
                    Tt = ks - 3
                    pack(A, O + 8 + 4 * Tt, acc(4 + Tt, 0), acc(4 + Tt, 1))
                    A("global_store_dwordx4 v%d, v[%d:%d], s[%d:%d] offset:%d sc1" % (VW2K, O + 8 + 4 * Tt, O + 11 + 4 * Tt, sE, sE + 1, 1024 * Tt))
    for q in range(4): A("v_xor_b32 v%d, 32768, v%d" % (VA4 + q, VA4 + q))
    A("s_waitcnt vmcnt(0)")
    signal_last(A, W, L_CNT, "global_store_dword v%d, v%d, s[%d:%d] sc1" % (ZERO, ONE, sG, sG + 1))
    for mt in range(2):
        pack(A, O + 16 + 4 * mt, acc(0, mt), acc(1, mt))
        if mt == 1: sadd64(A, sF, sF, 4096)
        A("global_store_dwordx4 v%d, v[%d:%d], s[%d:%d] sc1" % (VKST, O + 16 + 4 * mt, O + 19 + 4 * mt, sF, sF + 1))
    rts(A, opt, sL, sSEG, 0, W)
    A("s_mov_b64 s[%d:%d], s[%d:%d]" % (sGP, sGP + 1, sG, sG + 1))
    A("s_mov_b32 s%d, s%d" % (sSEG, sNX))
    A("s_cmp_eq_u32 s%d, 2" % sPRE)
    A("s_cbranch_scc1 L_p1_loop")
    A("s_waitcnt vmcnt(0)")
    qflag()
    A("s_mov_b32 s%d, 0" % sPRE)
    A("s_cmp_ge_u32 s%d, 64" % sSEG)
    A("s_cbranch_scc1 L_p1_next")
    wait_flags(A, W, VFL, sA, sleep=1)
    dma(sSEG)
    A("s_branch L_p1_loop")
    A.label("L_p1_next")
    A("s_add_u32 s%d, s%d, 1" % (sL, sL))
    A("s_cmp_lt_u32 s%d, %d" % (sL, opt.get("layers", 2)))
    A("s_cbranch_scc1 L_p1_layer")
    A("s_branch L_end")
    cold.emit(A)

def gen_p2(A, opt):
    cold = Cold()
    NP1, NP2 = opt["NP1"], opt["NP2"]
    VL16, VW2K, VS, VF8, VZR, VZW, VF, VPST, VRLD, VROW, VFL = range(1, 12)
    SEL, BIAS = 12, 16
    VQF, VVF, VOW, VKM, ZERO, PMA, PMB = 24, 25, 26, 27, 29, 28, 30
    W = 32
    RW = 160
    VTW, VTR = 208, 212
    L_TP = 65536
    WO = 256
    SLOT = 24576
    L_Q, L_K, L_V, L_Z, L_O, L_ST = 0, 8192, 16384, 49152, 53248, 61440
    sL, sSEG, sIT, sC = 48, 49, 50, 51
    sA, sB, sCc, sD, sE, sF, sG, sH, sX, sY = 52, 54, 56, 58, 60, 62, 64, 68, 70, 72
    sT, sNX, sPRE, sSLOT = 66, 67, 74, 75
    sDEF, sMM, sKP, sKN = 77, 80, 76, 82
    VFM, VL4, ONE, KE2 = 216, 217, 218, 220
    A.label("L_p2")
    T = 40
    A("v_and_b32 v%d, 63, v0" % T)
    A("v_and_b32 v%d, 15, v0" % (T + 1))
    A("v_bfe_u32 v%d, v0, 4, 2" % (T + 2))
    A("v_lshlrev_b32 v%d, 4, v%d" % (VL16, T))
    A("v_mov_b32 v%d, v%d" % (VS, VL16))
    A("s_lshl_b32 s40, s%d, 11" % S_WAVE)
    A("v_add_u32 v%d, s40, v%d" % (VW2K, VL16))
    A("s_mov_b32 s%d, s40" % sSLOT)
    A("s_lshl_b32 s41, s%d, 8" % S_WAVE)
    A("v_lshlrev_b32 v%d, 15, v%d" % (VPST, T + 2))
    A("v_lshl_add_u32 v%d, v%d, 4, v%d" % (VPST, T + 1, VPST))
    A("v_add_u32 v%d, s41, v%d" % (VPST, VPST))
    A("s_lshl_b32 s41, s%d, 13" % S_WAVE)
    A("s_add_u32 s41, s41, %d" % L_TP)
    for b in range(4):
        A("v_add_u32 v%d, %d, v%d" % (T + 3, 4 * b, T + 2))
        A("v_xor_b32 v%d, v%d, v%d" % (T + 3, T + 3, T + 1))
        A("v_lshlrev_b32 v%d, 4, v%d" % (T + 3, T + 3))
        A("v_lshl_add_u32 v%d, v%d, 8, v%d" % (T + 3, T + 1, T + 3))
        A("v_add_u32 v%d, s41, v%d" % (VTW + b, T + 3))
        A("v_lshlrev_b32 v%d, 8, v%d" % (T + 4, T + 2))
        A("v_lshl_add_u32 v%d, v%d, 0, v%d" % (T + 3, T + 3, T + 4))
        A("v_lshlrev_b32 v%d, 8, v%d" % (T + 4, T + 1))
        A("v_sub_u32 v%d, v%d, v%d" % (T + 3, T + 3, T + 4))
        A("v_add_u32 v%d, s41, v%d" % (VTR + b, T + 3))
    A("s_lshl_b32 s40, s%d, 10" % S_WAVE)
    A("v_lshlrev_b32 v%d, 3, v%d" % (VZR, T))
    A("v_lshlrev_b32 v%d, 5, v%d" % (VZW, T + 1))
    A("v_lshl_add_u32 v%d, v%d, 3, v%d" % (VZW, T + 2, VZW))
    A("v_add_u32 v%d, s40, v%d" % (VZW, VZW))
    A("v_and_b32 v%d, 1, v0" % VF8)
    A("v_mul_u32_u24 v%d, 0x%x, v%d" % (VF8, F_Q - F_KV, VF8))
    A("s_and_b32 s42, s%d, 1" % S_WAVE)
    A("s_lshr_b32 s43, s%d, 1" % S_WAVE)
    A("s_lshl_b32 s40, s42, 12")
    A("v_add_u32 v%d, s40, v%d" % (VQF, VL16))
    A("s_lshl_b32 s41, s43, 11")
    A("v_add_u32 v%d, s41, v%d" % (VOW, VQF))
    A("s_lshl_b32 s41, s43, 12")
    A("v_add_u32 v%d, s41, v%d" % (VVF, VL16))
    A("v_add_u32 v%d, 8, v%d" % (VKM, VVF))
    A("s_lshl_b32 s40, s42, 4")
    A("v_add_u32 v%d, s40, v%d" % (T + 3, T + 1))
    A("v_lshlrev_b32 v%d, 2, v%d" % (T + 4, T + 2))
    A("v_mov_b32 v%d, 0x%x" % (T + 6, f32bits(-1e30)))
    for kt in range(2):
        for r in range(4):
            A("v_add_u32 v%d, %d, v%d" % (T + 5, 16 * kt + r, T + 4))
            A("v_cmp_gt_u32 vcc, v%d, v%d" % (T + 5, T + 3))
            A.nop(2)
            A("v_cndmask_b32 v%d, 0, v%d, vcc" % (BIAS + 4 * kt + r, T + 6))
    A("v_mov_b64 v[28:29], 0"); A("v_mov_b64 v[30:31], 0")
    sel_const(A, SEL, T + 5)
    reduce_consts(A, VRLD, VROW, VFL, T + 5)
    A("s_mov_b32 s%d, 0x%x" % (sC, f32bits(128 ** -0.5 * LOG2E)))
    opt["init_wait"](A, 60)
    A("v_lshrrev_b32 v%d, 2, v%d" % (T + 5, T))
    A("v_lshlrev_b32 v%d, 10, v%d" % (T + 5, T + 5))
    A("v_and_b32 v%d, 3, v%d" % (T + 6, T))
    A("v_lshl_add_u32 v%d, v%d, 4, v%d" % (T + 5, T + 6, T + 5))
    A("s_lshl_b32 s40, s%d, 17" % S_HEAD)
    A("s_lshl_b32 s41, s%d, 8" % S_WAVE)
    A("s_add_u32 s40, s40, s41")
    A("v_add_u32 v%d, s40, v%d" % (T + 5, T + 5))
    A("s_lshl_b32 s46, s%d, 15" % S_WAVE)
    for b in range(4):
        for i in range(8):
            sadd64(A, sA, S_WO, b * 64 + i * 16384)
            A("s_add_u32 s44, s46, %d" % (b * 8192 + i * 1024))
            A("s_mov_b32 m0, s44")
            A("s_nop 0")
            A("global_load_lds_dwordx4 v%d, s[%d:%d]" % (T + 5, sA, sA + 1))
    A("v_bfe_u32 v%d, v0, 2, 2" % (T + 7))
    A("v_add_u32 v%d, v%d, v%d" % (T + 7, T + 7, T + 4))
    A("v_lshlrev_b32 v%d, 6, v%d" % (T + 7, T + 7))
    A("v_lshl_add_u32 v%d, v%d, 4, v%d" % (T + 7, T + 6, T + 7))
    A("v_add_u32 v%d, s46, v%d" % (T + 7, T + 7))
    for b in range(4):
        A("s_waitcnt vmcnt(%d)" % (8 * (3 - b)))
        for P in range(2):
            for f in range(4):
                for hh in range(2):
                    A("ds_read_b64_tr_b16 %s, v%d offset:%d" % (R(WO + ((b * 2 + P) * 4 + f) * 4 + 2 * hh, 2), T + 7, b * 8192 + (32 * f + 16 * hh) * 64 + P * 8))
        A("s_waitcnt lgkmcnt(0)")
    rt_stamp(A, opt, 501, 40, 41)
    A("s_barrier")
    A("s_mov_b32 s%d, 0" % sL)
    A("s_mov_b32 s%d, 0" % sIT)
    A("s_mov_b32 s%d, 0" % sDEF)
    A("s_mov_b64 s[%d:%d], s[%d:%d]" % (sDEF + 1, sDEF + 2, S_WS, S_WS + 1))
    A("v_lshrrev_b32 v%d, 2, v%d" % (VL4, VL16))
    A("v_mov_b32 v%d, 1" % ONE)

    def dma(sseg):
        tile_off(A, 45, sL, sseg)
        for k, off in enumerate((OFF_QX, OFF_KX, OFF_VX)):
            A("s_add_u32 s41, s45, 0x%x" % off); sadd64(A, 42, S_WS, "s41")
            A("s_add_u32 s44, s%d, %d" % (sSLOT, k * 8192))
            A("s_mov_b32 m0, s44")
            A("s_nop 0")
            A("global_load_lds_dwordx4 v%d, s[42:43] sc1" % VW2K)
            A("global_load_lds_dwordx4 v%d, s[42:43] offset:1024 sc1" % VW2K)
        A("s_cmp_ge_u32 s%d, %d" % (sSLOT, SLOT))
        A("s_cselect_b32 s44, %d, %d" % (-SLOT, SLOT)) if False else None
        A("s_mov_b32 s44, %d" % SLOT)
        A("s_cselect_b32 s44, %d, s44" % -SLOT)
        A("s_add_u32 s%d, s%d, s44" % (sSLOT, sSLOT))

    A.label("L_p2_layer")
    A("s_sub_u32 s%d, s%d, %d" % (sSEG, S_GRP, NP1 + 1))
    head_flag(A, sH, F_KV, sL, sSEG, 2)
    A("s_mov_b64 s[%d:%d], 0" % (sMM, sMM + 1))
    A("s_mov_b32 s%d, 0" % sKP)
    A("s_mov_b32 s44, 0")
    head_flag(A, sG, F_M, sL, 44, 2)
    wait_flags(A, W, VF8, sH)
    dma(sSEG)
    A("s_waitcnt vmcnt(0)")
    A.label("L_p2_loop")
    _RTP["opt"] = opt
    rtp(A, 0)
    tile_off(A, sT, sL, sSEG)
    A("s_mov_b32 s47, s40")
    A("s_add_u32 s%d, s%d, %d" % (sNX, sSEG, NP2))
    A("s_min_u32 s44, s%d, 63" % sNX)
    head_flag(A, sH, F_KV, sL, 44, 2)
    A("s_add_u32 s41, s%d, 0x%x" % (sT, OFF_KM)); sadd64(A, sA, S_WS, "s41")
    sadd64(A, sKN, sA, NP2 * 32 * 8192)
    A("s_and_b32 s41, s%d, 1" % sIT)
    A("s_lshl_b32 s43, s%d, 1" % S_GRP)
    A("s_add_u32 s41, s41, s43")
    A("s_lshl_b32 s41, s41, 21")
    A("s_add_u32 s41, s41, 0x%x" % OFF_PW); sadd64(A, sB, S_WS, "s41")
    A("s_lshl_b32 s41, s%d, 10" % S_HEAD); sadd64(A, sCc, sB, "s41")
    A("s_lshl_b32 s41, s%d, 15" % S_HEAD); sadd64(A, sB, sB, "s41")
    A("s_lshl_b32 s41, s47, 7")
    A("s_add_u32 s41, s41, 0x%x" % F_PB); sadd64(A, sE, S_WS, "s41")
    A("s_lshl_b32 s41, s%d, 5" % sSEG)
    A("s_add_u32 s41, s41, s%d" % S_HEAD)
    A("s_lshl_b32 s42, s41, 10")
    A("s_lshl_b32 s43, s%d, 21" % sL)
    A("s_add_u32 s43, s43, s42")
    A("s_add_u32 s43, s43, 0x%x" % OFF_X1); sadd64(A, 44, S_WS, "s43")
    A("global_load_dwordx2 v[%d:%d], v%d, s[44:45] sc1" % (RW + 36, RW + 37, VROW))
    A("s_add_u32 s43, s42, 0x%x" % OFF_Y2); sadd64(A, sY, S_WS, "s43")
    A("s_lshl_b32 s41, s41, 2")
    A("s_add_u32 s41, s41, 0x%x" % F_Y2); sadd64(A, sF, S_WS, "s41")
    A("s_add_u32 s43, s42, 0x%x" % OFF_X2); sadd64(A, sX, S_WS, "s43")
    A("s_cmp_eq_u32 s%d, 0" % sL)
    A("s_cbranch_scc1 L_p2_x2")
    sadd64(A, sX, S_OUT, "s42")
    A.label("L_p2_x2")
    A("global_load_dword v%d, v%d, s[%d:%d] sc1" % (VF, VF8, sH, sH + 1))
    KE, VM = 96, 100
    def km_loads(k, m, sp):
        A("global_load_dwordx2 v[%d:%d], v%d, s[%d:%d] sc1" % (k, k + 1, VW2K, sp, sp + 1))
        A("global_load_dwordx2 v[%d:%d], v%d, s[%d:%d] sc1" % (m, m + 1, VKM, sp, sp + 1))
        A("global_load_dwordx2 v[%d:%d], v%d, s[%d:%d] offset:2048 sc1" % (m + 2, m + 3, VKM, sp, sp + 1))
    A("s_cmp_eq_u32 s%d, 0" % sKP)
    A("s_cbranch_scc1 L_p2_kmwait")
    A("v_mov_b64 v[%d:%d], v[%d:%d]" % (KE, KE + 1, KE2, KE2 + 1))
    A("v_mov_b64 v[%d:%d], v[%d:%d]" % (VM, VM + 1, KE2 + 2, KE2 + 3))
    A("v_mov_b64 v[%d:%d], v[%d:%d]" % (VM + 2, VM + 3, KE2 + 4, KE2 + 5))
    A("global_load_dword v%d, v%d, s[%d:%d] sc1" % (VFM, VL4, sG, sG + 1))
    A.label("L_p2_kmok")
    def blk(A):
        A.label("L_p2_kmwait")
        A("global_load_dword v%d, v%d, s[%d:%d] sc1" % (VFM, VL4, sG, sG + 1))
        A("s_waitcnt vmcnt(0)")
        flush_deferred(A, sDEF, VL16, ONE)
        A("v_cmp_ne_u32 s[%d:%d], 0, v%d" % (sMM, sMM + 1, VFM))
        A("s_bitcmp1_b64 s[%d:%d], s%d" % (sMM, sMM + 1, sSEG))
        A("s_cbranch_scc1 L_p2_kmgo")
        A("s_sleep %d" % ZZ[0])
        spin_guard(A)
        A("s_branch L_p2_kmwait")
        A.label("L_p2_kmgo")
        km_loads(KE, VM, sA)
        A("s_branch L_p2_kmok")
    cold.add(blk)
    rts(A, opt, sL, sSEG, 128, W)
    rtp(A, 1)
    A("s_barrier")
    QF, ZF, KF, VFR = 32, 48, 64, 128
    S0, S1, S2 = 104, 108, 112
    A("v_add_u32 v%d, v%d, v%d" % (116, VS, VQF))
    A("v_sub_u32 v%d, v%d, v%d" % (116, 116, VL16))
    A("v_add_u32 v%d, v%d, v%d" % (117, VS, VVF))
    A("v_sub_u32 v%d, v%d, v%d" % (117, 117, VL16))
    for dc in range(4): rd128(A, QF + 4 * dc, 116, L_Q + dc * 1024)
    for i in range(8): rd128(A, KF + 4 * i, VS, L_K + i * 1024)
    A("v_mov_b32 v%d, 0" % (KE + 3))
    A("s_waitcnt lgkmcnt(4)")
    for dc in range(4): mfma(A, S1, KF + 4 * dc, QF + 4 * dc, BIAS if dc == 0 else S1)
    A("s_waitcnt lgkmcnt(0)")
    for i in range(4): rd128(A, VFR + 4 * i, 117, L_V + i * 1024)
    for dc in range(4): mfma(A, S2, KF + 16 + 4 * dc, QF + 4 * dc, BIAS + 4 if dc == 0 else S2)
    A("s_cmp_lg_u32 s%d, 0" % sKP)
    A("s_cbranch_scc1 L_p2_kmin")
    A("s_waitcnt vmcnt(0)")
    A.label("L_p2_kmin")
    rtp(A, 2)
    A("v_mov_b32 v%d, v%d" % (KE + 2, KE + 1))
    A("v_mov_b32 v%d, 0" % (KE + 1))
    A("ds_write_b64 v%d, v[%d:%d] offset:%d" % (VZW, KE, KE + 1, L_Z))
    A("ds_write_b64 v%d, v[%d:%d] offset:%d" % (VZW, KE + 2, KE + 3, L_Z + 512))
    A("s_waitcnt lgkmcnt(0)")
    A("s_barrier")
    for dc in range(4):
        for Tt in range(2):
            A("ds_read_b64_tr_b16 v[%d:%d], v%d offset:%d" % (ZF + 4 * dc + 2 * Tt, ZF + 4 * dc + 2 * Tt + 1, VZR, L_Z + dc * 1024 + Tt * 512))
    A("s_waitcnt lgkmcnt(0)")
    for dc in range(4): mfma(A, S0, ZF + 4 * dc, QF + 4 * dc, "0" if dc == 0 else S0)
    rtp(A, 3)
    M0_, M1_, T0_, T1_, LS, LT, PX = 116, 117, 118, 119, 120, 121, 124
    A("v_max3_f32 v%d, v%d, v%d, v%d" % (M0_, S1, S1 + 1, S1 + 2))
    A("v_max3_f32 v%d, v%d, v%d, v%d" % (M1_, S1 + 3, S2, S2 + 1))
    A("v_max3_f32 v%d, v%d, v%d, v%d" % (M0_, M0_, S2 + 2, S2 + 3))
    A("v_xor_b32 v%d, %d, v%d" % (VS, SLOT, VS))
    A.nop(4)
    A("v_max3_f32 v%d, v%d, v%d, v%d" % (M1_, M1_, S0, S0 + 1))
    A("v_max_f32 v%d, v%d, v%d" % (T0_, M0_, M1_))
    A("v_max_f32 v%d, v%d, v%d" % (T1_, M0_, M1_))
    A.nop(2)
    A("v_permlane32_swap_b32 v%d, v%d" % (T0_, T1_))
    A("v_max_f32 v%d, v%d, v%d" % (M0_, T0_, T1_))
    A("v_max_f32 v%d, v%d, v%d" % (M1_, T0_, T1_))
    A.nop(2)
    A("v_permlane16_swap_b32 v%d, v%d" % (M0_, M1_))
    A("v_max_f32 v%d, v%d, v%d" % (M0_, M0_, M1_))
    A("v_mul_f32 v%d, s%d, v%d" % (M0_, sC, M0_))
    sregs = [S1 + r for r in range(4)] + [S2 + r for r in range(4)] + [S0, S0 + 1]
    for r in sregs: A("v_fma_f32 v%d, v%d, s%d, -v%d" % (r, r, sC, M0_))
    for r in sregs: A("v_exp_f32 v%d, v%d" % (r, r))
    cvt(A, PX, S1, S1 + 1); cvt(A, PX + 1, S1 + 2, S1 + 3); cvt(A, PX + 2, S2, S2 + 1); cvt(A, PX + 3, S2 + 2, S2 + 3)
    cvt(A, PMA, S0, S0 + 1); cvt(A, PMB + 1, S0, S0 + 1)
    OC = 64
    for i in range(4): mfma(A, OC + 4 * i, VFR + 4 * i, PX, "0")
    A("v_add_f32 v%d, v%d, v%d" % (LS, S1, S1 + 1))
    A("v_add_f32 v%d, v%d, v%d" % (LT, S1 + 2, S1 + 3))
    for a_, b_ in ((S2, S2 + 1), (S2 + 2, S2 + 3), (S0, S0 + 1)):
        A("v_add_f32 v%d, v%d, v%d" % (LS, LS, a_)); A("v_add_f32 v%d, v%d, v%d" % (LT, LT, b_))
    for i in range(4): mfma(A, OC + 4 * i, VM + 2 * (i >> 1), PMA if (i & 1) == 0 else PMB, OC + 4 * i, k32=False)
    A("v_add_f32 v%d, v%d, v%d" % (LS, LS, LT))
    swap_sum(A, LS, LT, 32); swap_sum(A, LS, LT, 16)
    A("v_rcp_f32 v%d, v%d" % (LS, LS))
    A.nop(1)
    for r in range(0, 16, 2):
        A("v_pk_mul_f32 v[%d:%d], v[%d:%d], v[%d:%d] op_sel_hi:[1,0]" % (OC + r, OC + r + 1, OC + r, OC + r + 1, LS, LS + 1))
    for f in range(2):
        pack(A, 32 + 4 * f, OC + 8 * f, OC + 8 * f + 4)
        A("ds_write_b128 v%d, v[%d:%d] offset:%d" % (VOW, 32 + 4 * f, 35 + 4 * f, L_O + f * 1024))
    rtp(A, 4)
    A("s_mov_b32 s%d, 0" % sPRE)
    A("s_mov_b32 s%d, 0" % sKP)
    A("s_waitcnt vmcnt(0)")
    A("v_cmp_eq_u32 vcc, 0, v%d" % VF)
    flush_deferred(A, sDEF, VL16, ONE)
    A("v_cmp_ne_u32 s[%d:%d], 0, v%d" % (sMM, sMM + 1, VFM))
    A("s_cmp_ge_u32 s%d, 64" % sNX)
    A("s_cbranch_scc1 L_p2_nopre")
    A("s_cbranch_vccnz L_p2_nopre")
    dma(sNX)
    A("s_mov_b32 s%d, 1" % sPRE)
    A("s_bitcmp0_b64 s[%d:%d], s%d" % (sMM, sMM + 1, sNX))
    A("s_cbranch_scc1 L_p2_nopre")
    km_loads(KE2, KE2 + 2, sKN)
    A("s_mov_b32 s%d, 1" % sKP)
    A.label("L_p2_nopre")
    A("s_waitcnt lgkmcnt(0)")
    A("s_barrier")
    OF, PA = 32, 64
    rtp(A, 5)
    for f in range(4):
        for qt in range(2): rd128(A, OF + (qt * 4 + f) * 4, VL16, L_O + (qt * 4 + f) * 1024)
    def out_ops(b):
        ops = []
        for qt in range(2):
            a0 = PA + b * 16 + qt * 8
            ops += [lambda a0=a0: cvt(A, a0, a0, a0 + 1), lambda a0=a0: cvt(A, a0 + 1, a0 + 2, a0 + 3),
                    lambda a0=a0: cvt(A, a0 + 2, a0 + 4, a0 + 5), lambda a0=a0: cvt(A, a0 + 3, a0 + 6, a0 + 7)]
            ops.append(lambda a0=a0, qt=qt: A("ds_write_b128 v%d, v[%d:%d] offset:%d" % (VTW + b, a0, a0 + 3, qt * 4096)))
        return ops
    pend = []
    for b in range(4):
        n = 0
        for f in range(4):
            if b == 0: A("s_waitcnt lgkmcnt(%d)" % (6 - 2 * f))
            for P in range(2):
                for qt in range(2):
                    d = PA + b * 16 + qt * 8 + P * 4
                    mfma(A, d, WO + ((b * 2 + P) * 4 + f) * 4, OF + (qt * 4 + f) * 4, "0" if f == 0 else d)
                    n += 1
                    if n > 5 and pend: pend.pop(0)()
        assert not pend
        pend = out_ops(b)
    A.nop(8)
    for o in pend: o()
    rtp(A, 6)
    for i in range(8): rd128(A, 32 + 4 * i, VTR + (i & 3), i * 1024)
    for i in range(8):
        A("s_waitcnt lgkmcnt(%d)" % (7 - i))
        store_mixed(A, cold, ["global_store_dwordx4 v%d, v[%d:%d], s[%d:%d]" % (VPST, 32 + 4 * i, 35 + 4 * i, sCc, sCc + 1)])
        if i < 7: sadd64(A, sCc, sCc, 4 * 32768)
    publish_partials(A, cold, 64, sE)
    reduce_row(A, cold, RW, SEL, VRLD, VROW, VFL, VL16, sB, sE, None, sX, sY, sF, L_ST,
               lambda A: A("s_cmp_eq_u32 s%d, 1" % sL), defer=sDEF)
    rtp(A, 14)
    rts(A, opt, sL, sSEG, 256, W)
    A("s_add_u32 s%d, s%d, 1" % (sIT, sIT))
    A("s_mov_b32 s%d, s%d" % (sSEG, sNX))
    A("s_cmp_eq_u32 s%d, 1" % sPRE)
    A("s_cbranch_scc1 L_p2_loop")
    A("s_waitcnt vmcnt(0)")
    flush_deferred(A, sDEF, VL16, ONE)
    A("s_cmp_ge_u32 s%d, 64" % sSEG)
    A("s_cbranch_scc1 L_p2_next")
    wait_flags(A, W, VF8, sH)
    dma(sSEG)
    A("s_waitcnt vmcnt(0)")
    A("s_branch L_p2_loop")
    A.label("L_p2_next")
    A("s_add_u32 s%d, s%d, 1" % (sL, sL))
    A("s_cmp_lt_u32 s%d, %d" % (sL, opt.get("layers", 2)))
    A("s_cbranch_scc1 L_p2_layer")
    A("s_branch L_end")
    cold.emit(A)

def gen_aworker(A, opt):
    cold = Cold()
    NB, NA = opt["NP1"] + opt["NP2"], opt["NA"]
    VL16, VL8, VYA, VPST, VRLD, VROW, VFL, VAF, ZERO, VPQ = range(1, 11)
    SEL, ONES = 12, 16
    KVA, ZA = 18, 20
    KV, ZS = 24, 28
    W = 32
    WO = 128
    RW = 160
    WQ = 256
    L_W, L_WOI, L_PQ, L_ST = 0, 49152, 131072, 32768
    VA4, VTW, VTR = 208, 212, 220
    sL, sSEG, sIT, sI, sAG = 48, 49, 50, 51, 66
    sA, sB, sCc, sD, sE, sF, sG = 52, 54, 56, 58, 60, 62, 64
    sLE = 67
    A.label("L_aworker")
    A("s_sub_u32 s%d, s%d, %d" % (sAG, S_GRP, NB + 1))
    T = 40
    A("v_and_b32 v%d, 63, v0" % T)
    A("v_and_b32 v%d, 15, v0" % (T + 1))
    A("v_bfe_u32 v%d, v0, 4, 2" % (T + 2))
    A("v_lshlrev_b32 v%d, 4, v%d" % (VL16, T))
    A("v_lshlrev_b32 v%d, 3, v%d" % (VL8, T))
    A("s_and_b32 s42, s%d, 1" % S_WAVE)
    A("s_lshr_b32 s43, s%d, 1" % S_WAVE)
    frag_addrs(A, VA4, T + 3)
    A("s_lshl_b32 s40, s%d, 15" % S_WAVE)
    for q in range(4): A("v_add_u32 v%d, s40, v%d" % (VA4 + q, VA4 + q))
    A("v_lshrrev_b32 v%d, 5, v%d" % (T + 3, T))
    A("v_and_b32 v%d, 31, v%d" % (T + 4, T))
    A("s_lshl_b32 s40, s42, 19")
    A("s_lshl_b32 s41, s43, 9")
    A("s_add_u32 s40, s40, s41")
    A("v_lshlrev_b32 v%d, 15, v%d" % (VPST, T + 3))
    A("v_lshl_add_u32 v%d, v%d, 4, v%d" % (VPST, T + 4, VPST))
    A("v_add_u32 v%d, s40, v%d" % (VPST, VPST))
    A("s_lshl_b32 s41, s%d, 13" % S_WAVE)
    for b in range(8):
        A("v_add_u32 v%d, %d, v%d" % (T + 5, 4 * b, T + 2))
        A("v_xor_b32 v%d, v%d, v%d" % (T + 5, T + 5, T + 1))
        A("v_lshlrev_b32 v%d, 4, v%d" % (T + 5, T + 5))
        A("v_lshl_add_u32 v%d, v%d, 9, v%d" % (T + 5, T + 1, T + 5))
        A("v_add_u32 v%d, s41, v%d" % (VTW + b, T + 5))
    for i in range(8):
        A("v_add_u32 v%d, %d, v%d" % (T + 5, 2 * i, T + 3))
        A("v_xor_b32 v%d, v%d, v%d" % (T + 6, T + 5, T + 4))
        A("v_lshlrev_b32 v%d, 4, v%d" % (T + 6, T + 6))
        A("v_lshl_add_u32 v%d, v%d, 9, v%d" % (T + 6, T + 5, T + 6))
        A("v_add_u32 v%d, s41, v%d" % (VTR + i, T + 6))
    A("s_lshl_b32 s40, s42, 9")
    A("s_add_u32 s40, s40, %d" % L_PQ)
    A("v_add_u32 v%d, s40, v%d" % (VPQ, VL8))
    A("v_min_u32 v%d, %d, v%d" % (VAF, 4 * NA - 1, T))
    A("v_lshlrev_b32 v%d, 2, v%d" % (VAF, VAF))
    A("v_mov_b32 v%d, 0" % ZERO)
    A("v_mov_b32 v%d, 0x3f803f80" % ONES)
    A("v_mov_b32 v%d, 0x3f803f80" % (ONES + 1))
    A("s_mov_b32 s%d, 0x%x" % (sLE, f32bits(LOG2E)))
    sel_const(A, SEL, T + 3)
    reduce_consts(A, VRLD, VROW, VFL, T + 3)
    A("v_lshrrev_b32 v%d, 1, v%d" % (T + 3, T))
    A("v_mul_u32_u24 v%d, 3072, v%d" % (T + 3, T + 3))
    A("v_and_b32 v%d, 1, v%d" % (T + 4, T))
    A("v_lshl_add_u32 v%d, v%d, 4, v%d" % (T + 3, T + 4, T + 3))
    A("s_lshl_b32 s40, s%d, 5" % S_HEAD)
    A("s_mul_i32 s41, s%d, %d" % (S_WAVE, 128 * 3072))
    A("s_add_u32 s40, s40, s41")
    A("v_add_u32 v%d, s40, v%d" % (T + 3, T + 3))
    A("s_lshl_b32 s44, s%d, 12" % S_WAVE)
    for t in range(3):
        for i in range(4):
            sadd64(A, sA, S_WQKV, t * 1024 + i * 32 * 3072)
            A("s_add_u32 s45, s44, %d" % (L_W + t * 16384 + i * 1024))
            A("s_mov_b32 m0, s45")
            A("s_nop 0")
            A("global_load_lds_dwordx4 v%d, s[%d:%d]" % (T + 3, sA, sA + 1))
    A("s_lshl_b32 s40, s%d, 14" % S_HEAD)
    A("s_add_u32 s40, s40, s44")
    sadd64(A, sA, S_AWO, "s40")
    A("s_add_u32 s45, s44, %d" % L_WOI)
    A("s_mov_b32 m0, s45")
    A("s_nop 0")
    for i in range(4): A("global_load_lds_dwordx4 v%d, s[%d:%d] offset:%d" % (VL16, sA, sA + 1, i * 1024))
    A("v_bfe_u32 v%d, v0, 2, 2" % (T + 4))
    A("v_and_b32 v%d, 3, v0" % (T + 5))
    A("v_lshl_add_u32 v%d, v%d, 3, v%d" % (T + 6, T + 2, T + 4))
    A("v_lshlrev_b32 v%d, 5, v%d" % (T + 6, T + 6))
    A("v_lshl_add_u32 v%d, v%d, 3, v%d" % (T + 6, T + 5, T + 6))
    A("v_lshl_add_u32 v%d, v%d, 2, v%d" % (T + 7, T + 2, T + 4))
    A("v_lshlrev_b32 v%d, 10, v%d" % (T + 7, T + 7))
    A("v_lshl_add_u32 v%d, v%d, 4, v%d" % (T + 7, T + 5, T + 7))
    A("s_lshl_b32 s41, s43, 9")
    A("s_add_u32 s41, s41, %d" % L_WOI)
    A("v_add_u32 v%d, s41, v%d" % (T + 7, T + 7))
    A("s_waitcnt vmcnt(0)")
    A("s_barrier")
    for t in range(3):
        for ks in range(16):
            for hh in range(2):
                A("ds_read_b64_tr_b16 %s, v%d offset:%d" % (R(WQ + (t * 16 + ks) * 4 + 2 * hh, 2), T + 6, L_W + t * 16384 + (32 * ks + 4 * hh) * 32))
            if ks % 4 == 3: A("s_waitcnt lgkmcnt(0)")
    for b in range(8):
        for P in range(2):
            A("ds_read_b64_tr_b16 %s, v%d offset:%d" % (v(WO + (b * 2 + P) * 2, 2), T + 7, b * 64 + P * 8))
    A("s_waitcnt lgkmcnt(0)")
    A("s_barrier")
    rt_stamp(A, opt, 501, 40, 41)
    opt["init_wait"](A)
    rt_stamp(A, opt, 502, 40, 41)
    A("s_mov_b32 s%d, 0" % sL)
    A("s_mov_b32 s%d, 0" % sIT)

    A.label("L_aw_layer")
    A("s_barrier")
    for r in range(0, 8, 2): A("v_mov_b64 v[%d:%d], 0" % (KV + r, KV + r + 1))
    A("s_lshr_b32 s%d, s%d, 1" % (sI, S_WAVE))
    YB = [0, 16384]
    YF = 32
    Q, K, V, E = 96, 100, 104, 112
    def seg_of(dst, add):
        A("s_add_u32 s%d, s%d, %d" % (dst, sI, add))
        A("s_mul_i32 s%d, s%d, %d" % (dst, dst, NA))
        A("s_add_u32 s%d, s%d, s%d" % (dst, dst, sAG))
    def y_loads(buf, sseg, flags):
        A("s_lshl_b32 s41, s%d, 15" % sseg)
        A("s_and_b32 s42, s%d, 1" % S_WAVE)
        A("s_lshl_b32 s42, s42, 14")
        A("s_add_u32 s41, s41, s42")
        A("s_add_u32 s41, s41, 0x%x" % (OFF_Y2 if flags else OFF_Y0)); sadd64(A, sA, S_WS, "s41")
        A("s_lshl_b32 s43, s%d, 15" % S_WAVE)
        for qd in range(4):
            A("s_add_u32 s42, s43, %d" % (buf + qd * 4096))
            A("s_mov_b32 m0, s42")
            if qd: sadd64(A, sA, sA, 4096)
            else: A("s_nop 0")
            for i in range(4): A("global_load_lds_dwordx4 v%d, s[%d:%d] offset:%d sc1" % (VL16, sA, sA + 1, i * 1024))
    def phi(X):
        for r in range(4):
            A("v_mul_f32 v%d, s%d, v%d" % (E + r, sLE, X + r))
            A("v_min_f32 v%d, 0, v%d" % (E + r, E + r))
        for r in range(4): A("v_exp_f32 v%d, v%d" % (E + r, E + r))
        for r in range(4): A("v_max_f32 v%d, 0, v%d" % (X + r, X + r))
        for r in range(4): A("v_add_f32 v%d, 0x%x, v%d" % (E + r, f32bits(1e-6), E + r))
        for r in range(4): A("v_add_f32 v%d, v%d, v%d" % (X + r, X + r, E + r))
    def unit(buf, younger):
        A("s_waitcnt vmcnt(%d)" % younger)
        for ks in range(16):
            rd128(A, YF + 4 * ks, VA4 + (ks & 3), buf + (ks >> 2) * 256)
            if ks == 7: break
        for ks in range(16):
            if ks + 8 < 16: rd128(A, YF + 4 * (ks + 8), VA4 + (ks & 3), buf + ((ks + 8) >> 2) * 256)
            A("s_waitcnt lgkmcnt(%d)" % min(8, 15 - ks))
            mfma(A, K, YF + 4 * ks, WQ + (16 + ks) * 4, "0" if ks == 0 else K)
            mfma(A, Q, WQ + ks * 4, YF + 4 * ks, "0" if ks == 0 else Q)
            mfma(A, V, YF + 4 * ks, WQ + (32 + ks) * 4, "0" if ks == 0 else V)
        A("s_lshl_b32 s41, s%d, 10" % sI)
        A("v_add_u32 v108, s41, v%d" % VPQ)
        A.nop(5)
        phi(K)
        cvt(A, 116, K, K + 1); cvt(A, 117, K + 2, K + 3)
        cvt(A, 118, V, V + 1); cvt(A, 119, V + 2, V + 3)
        phi(Q)
        mfma(A, KV, 116, 118, KV, k32=False)
        mfma(A, ZS, 116, ONES, ZS, k32=False)
        cvt(A, 120, Q, Q + 1); cvt(A, 121, Q + 2, Q + 3)
        A("ds_write_b64 v108, v[120:121]")
        rts(A, dict(opt, rt=opt.get("rt") and younger == 0), sL, sSEG, 0, 122)
        A("s_add_u32 s%d, s%d, 2" % (sI, sI))
    A("s_cmp_lg_u32 s%d, 0" % sL)
    A("s_cbranch_scc1 L_aw_s1f")
    seg_of(sSEG, 0)
    y_loads(YB[0], sSEG, False)
    A.label("L_aw_s1")
    for par in range(2):
        seg_of(44, 2)
        A("s_cmp_ge_u32 s44, 64")
        A("s_cbranch_scc1 L_aw_s1t%d" % par)
        y_loads(YB[1 - par], 44, False)
        unit(YB[par], 16)
    A("s_branch L_aw_s1")
    for par in range(2):
        A.label("L_aw_s1t%d" % par)
        seg_of(sSEG, 0)
        unit(YB[par], 0)
        A("s_branch L_aw_s1done")
    A.label("L_aw_s1f")
    seg_of(sSEG, 0)
    A("s_cmp_ge_u32 s%d, 64" % sSEG)
    A("s_cbranch_scc1 L_aw_s1done")
    A("s_lshl_b32 s42, s%d, 7" % sSEG)
    A("s_add_u32 s42, s42, 0x%x" % F_Y2); sadd64(A, sA, S_WS, "s42")
    wait_flags(A, W, VFL, sA, sleep=1)
    y_loads(YB[0], sSEG, True)
    unit(YB[0], 0)
    A("s_branch L_aw_s1f")
    A.label("L_aw_s1done")
    A("s_lshl_b32 s41, s%d, 5" % sL)
    A("s_add_u32 s41, s41, s%d" % S_HEAD)
    A("s_lshl_b32 s42, s41, 6")
    A("s_add_u32 s42, s42, 0x%x" % F_AKV); sadd64(A, sB, S_WS, "s42")
    A("s_lshl_b32 s41, s41, 15")
    A("s_add_u32 s41, s41, 0x%x" % OFF_AKV); sadd64(A, sA, S_WS, "s41")
    A("s_lshl_b32 s42, s%d, 2" % sAG)
    A("s_add_u32 s42, s42, s%d" % S_WAVE)
    A("s_lshl_b32 s43, s42, 11"); sadd64(A, sCc, sA, "s43")
    A("s_lshl_b32 s42, s42, 2")
    A("v_mov_b32 v%d, s42" % W)
    A("v_mov_b32 v%d, 1" % (W + 1))
    A("global_store_dwordx4 v%d, v[%d:%d], s[%d:%d] sc1" % (VL16, KV, KV + 3, sCc, sCc + 1))
    A("global_store_dwordx4 v%d, v[%d:%d], s[%d:%d] offset:1024 sc1" % (VL16, ZS, ZS + 3, sCc, sCc + 1))
    A("s_waitcnt vmcnt(0) lgkmcnt(0)")
    one_lane(A, "global_store_dword v%d, v%d, s[%d:%d] sc1" % (W, W + 1, sB, sB + 1))
    A("s_barrier")
    wait_flags(A, W, VAF, sB, sleep=1)
    NP = 4 * NA
    for p in range(NP):
        if p and p % 2 == 0: sadd64(A, sA, sA, 4096)
        for k in range(2):
            A("global_load_dwordx4 v[%d:%d], v%d, s[%d:%d] offset:%d sc1" % (W + 8 * p + 4 * k, W + 8 * p + 4 * k + 3, VL16, sA, sA + 1, (p & 1) * 2048 + k * 1024))
    A("s_waitcnt vmcnt(0)")
    for p in range(1, NP):
        for r in range(0, 8, 2):
            A("v_pk_add_f32 v[%d:%d], v[%d:%d], v[%d:%d]" % (W + r, W + r + 1, W + r, W + r + 1, W + 8 * p + r, W + 8 * p + r + 1))
    cvt(A, KVA, W, W + 1); cvt(A, KVA + 1, W + 2, W + 3); cvt(A, ZA, W + 4, W + 5); cvt(A, ZA + 1, W + 6, W + 7)
    if opt.get("rt"):
        A("s_add_u32 s97, s%d, 400" % sL)
        rt_stamp(A, opt, "s97", W + 2, W + 3)
    A("s_mov_b32 s%d, 0" % sI)
    A("s_mov_b32 s%d, s%d" % (sSEG, sAG))
    A.label("L_aw_s2")
    rtp(A, 0, 230)
    A("s_lshl_b32 s41, s%d, 10" % sI)
    A("v_add_u32 v%d, s41, v%d" % (W, VPQ))
    A("ds_read_b64 v[%d:%d], v%d" % (W + 2, W + 3, W))
    A("s_and_b32 s41, s%d, 1" % sIT)
    A("s_lshl_b32 s43, s%d, 1" % S_GRP)
    A("s_add_u32 s41, s41, s43")
    A("s_lshl_b32 s41, s41, 21")
    A("s_add_u32 s41, s41, 0x%x" % OFF_PW); sadd64(A, sB, S_WS, "s41")
    A("s_lshl_b32 s41, s%d, 10" % S_HEAD); sadd64(A, sCc, sB, "s41")
    A("s_lshl_b32 s41, s%d, 15" % S_HEAD); sadd64(A, sB, sB, "s41")
    A("s_lshl_b32 s47, s%d, 6" % sL)
    A("s_add_u32 s47, s47, s%d" % sSEG)
    A("s_lshl_b32 s41, s47, 7")
    A("s_add_u32 s41, s41, 0x%x" % F_PA); sadd64(A, sE, S_WS, "s41")
    A("s_lshl_b32 s41, s%d, 5" % sSEG)
    A("s_add_u32 s41, s41, s%d" % S_HEAD)
    A("s_lshl_b32 s42, s41, 10")
    A("s_lshl_b32 s43, s%d, 21" % sL)
    A("s_add_u32 s43, s43, s42")
    A("s_add_u32 s44, s43, 0x%x" % OFF_X1); sadd64(A, sG, S_WS, "s44")
    A("s_add_u32 s44, s43, 0x%x" % OFF_Y1); sadd64(A, sD, S_WS, "s44")
    A("s_lshl_b32 s44, s47, 5")
    A("s_add_u32 s44, s44, s%d" % S_HEAD)
    A("s_lshl_b32 s44, s44, 2")
    A("s_add_u32 s44, s44, 0x%x" % F_X1); sadd64(A, sF, S_WS, "s44")
    A("s_add_u32 s44, s42, 0x%x" % OFF_X2); sadd64(A, sA, S_WS, "s44")
    A("s_cmp_lg_u32 s%d, 0" % sL)
    A("s_cbranch_scc1 L_aw_res")
    sadd64(A, sA, S_AX, "s42")
    A.label("L_aw_res")
    A("global_load_dwordx2 v[%d:%d], v%d, s[%d:%d] sc1" % (RW + 36, RW + 37, VROW, sA, sA + 1))
    A("s_waitcnt lgkmcnt(0)")
    NU, DE = W + 4, W + 8
    mfma(A, DE, ZA, W + 2, "0", k32=False)
    mfma(A, NU, KVA, W + 2, "0", k32=False)
    A.nop(7)
    A("v_add_f32 v%d, 0x%x, v%d" % (DE, f32bits(1e-6), DE))
    A("v_rcp_f32 v%d, v%d" % (DE, DE))
    A.nop(1)
    for r in (0, 2):
        A("v_pk_mul_f32 v[%d:%d], v[%d:%d], v[%d:%d] op_sel_hi:[1,0]" % (NU + r, NU + r + 1, NU + r, NU + r + 1, DE, DE + 1))
    cvt(A, W + 2, NU, NU + 1); cvt(A, W + 3, NU + 2, NU + 3)
    A.nop(2)
    PA = W + 16
    rtp(A, 5, 230)
    for i in range(16): mfma(A, PA + 4 * i, WO + 2 * i, W + 2, "0", k32=False)
    for b in range(8):
        a0 = PA + 8 * b
        if b == 6: A.nop(2)
        cvt(A, a0, a0, a0 + 1); cvt(A, a0 + 1, a0 + 2, a0 + 3); cvt(A, a0 + 2, a0 + 4, a0 + 5); cvt(A, a0 + 3, a0 + 6, a0 + 7)
        A("ds_write_b128 v%d, v[%d:%d]" % (VTW + b, a0, a0 + 3))
    for i in range(8): rd128(A, PA + 4 * i, VTR + i, 0)
    for i in range(8):
        A("s_waitcnt lgkmcnt(%d)" % (7 - i))
        store_mixed(A, cold, ["global_store_dwordx4 v%d, v[%d:%d], s[%d:%d]" % (VPST, PA + 4 * i, PA + 4 * i + 3, sCc, sCc + 1)])
        if i < 7: sadd64(A, sCc, sCc, 2 * 32768)
    publish_partials(A, cold, W, sE)
    reduce_row(A, cold, RW, SEL, VRLD, VROW, VFL, VL16, sB, sE, None, sG, sD, sF, L_ST,
               lambda A: A("s_cmp_eq_u32 s%d, 2" % sL))
    rtp(A, 14, 230)
    rts(A, opt, sL, sSEG, 256, W)
    A("s_add_u32 s%d, s%d, 1" % (sIT, sIT))
    A("s_add_u32 s%d, s%d, 1" % (sI, sI))
    A("s_add_u32 s%d, s%d, %d" % (sSEG, sSEG, NA))
    A("s_cmp_lt_u32 s%d, 64" % sSEG)
    A("s_cbranch_scc1 L_aw_s2")
    A("s_add_u32 s%d, s%d, 1" % (sL, sL))
    A("s_cmp_lt_u32 s%d, %d" % (sL, opt.get("layers", 2)))
    A("s_cbranch_scc1 L_aw_layer")
    A("s_branch L_end")
    cold.emit(A)
```

```python
import sys
from common import *
import chain, workers

HEADER = open('cdna_kernels/%s.s.ref' % NAME).read().split('; Override launch')[0]

def prologue(A, opt):
    A("s_cmp_ge_u32 s2, 256")
    A("s_cbranch_scc1 L_end")
    A("s_mov_b32 s%d, 0" % S_SPIN)
    A("s_load_dwordx4 s[8:11], s[0:1], 0")
    A("s_load_dwordx2 s[12:13], s[0:1], 16")
    A("s_load_dwordx4 s[16:19], s[0:1], 32")
    A("s_load_dwordx4 s[20:23], s[0:1], 48")
    A("s_load_dwordx2 s[24:25], s[0:1], 64")
    A("s_load_dwordx4 s[28:31], s[0:1], 80")
    A("s_load_dwordx2 s[4:5], s[0:1], 96")
    A("s_getreg_b32 s36, hwreg(HW_REG_XCC_ID)")
    A("s_and_b32 s36, s36, 15")
    A("v_lshrrev_b32 v1, 6, v0")
    A("s_nop 0")
    A("v_readfirstlane_b32 s%d, v1" % S_WAVE)
    A("s_waitcnt lgkmcnt(0)")
    A("s_cmp_lg_u32 s%d, 0" % S_WAVE)
    A("s_cbranch_scc1 L_noticket")
    A("s_lshl_b32 s37, s36, 2")
    A("v_mov_b32 v1, s37")
    A("v_mov_b32 v2, 1")
    A("s_mov_b64 exec, 1")
    A("global_atomic_add v3, v1, v2, s[%d:%d] sc0" % (S_DBG, S_DBG + 1))
    A("s_mov_b64 exec, -1")
    A.label("L_noticket")
    A("s_lshl_b32 s37, s2, 10")
    A("v_lshl_add_u32 v4, v0, 2, s37")
    A("v_mov_b32 v5, 0")
    A("global_store_dword v4, v5, s[%d:%d] sc1" % (S_WS, S_WS + 1))
    A("s_lshl_b32 s37, s2, 12")
    A("s_add_u32 s37, s37, 0x100000")
    A("v_lshl_add_u32 v4, v0, 4, s37")
    A("v_mov_b64 v[8:9], -1")
    A("v_mov_b64 v[10:11], -1")
    A("global_store_dwordx4 v4, v[8:11], s[%d:%d] sc1" % (S_WS, S_WS + 1))
    if opt.get("prepass"): opt["prepass"](A)
    A("s_waitcnt vmcnt(0)")
    A("v_mov_b32 v6, 0")
    A("s_cmp_lg_u32 s%d, 0" % S_WAVE)
    A("s_cbranch_scc1 L_nowr")
    A("s_mov_b64 exec, 1")
    A("ds_write_b32 v6, v3")
    A("s_mov_b64 exec, -1")
    A.label("L_nowr")
    A("s_waitcnt lgkmcnt(0)")
    A("s_barrier")
    A("ds_read_b32 v3, v6")
    A("s_cmp_lg_u32 s%d, 0" % S_WAVE)
    A("s_cbranch_scc1 L_nodone")
    A("s_and_b32 s37, s36, 7")
    A("s_lshl_b32 s37, s37, 2")
    A("s_add_u32 s37, s37, 64")
    A("v_mov_b32 v1, s37")
    A("v_mov_b32 v2, 1")
    A("s_mov_b64 exec, 1")
    A("global_atomic_add v1, v2, s[%d:%d]" % (S_DBG, S_DBG + 1))
    A("s_mov_b64 exec, -1")
    A.label("L_nodone")
    A("s_waitcnt lgkmcnt(0)")
    A("v_readfirstlane_b32 s%d, v3" % S_HEAD)
    A("s_mov_b32 s%d, s36" % S_GRP)
    A("s_barrier")
    A("s_cmp_ge_u32 s%d, 8" % S_GRP)
    A("s_cbranch_scc1 L_overflow")
    A("s_cmp_ge_u32 s%d, 32" % S_HEAD)
    A("s_cbranch_scc1 L_overflow")
    A.label("L_roles")

def init_wait(A, vt=40):
    lp = A.newlabel("Liw")
    A("v_and_b32 v%d, 31, v0" % (vt + 1))
    A("v_lshlrev_b32 v%d, 2, v%d" % (vt + 1, vt + 1))
    A.label(lp)
    A("global_load_dword v%d, v%d, s[%d:%d] sc1" % (vt, vt + 1, S_DBG, S_DBG + 1))
    A("s_waitcnt vmcnt(0)")
    A("s_mov_b32 s36, 0")
    for i in range(8):
        A("v_readlane_b32 s37, v%d, %d" % (vt, 16 + i))
        A("s_add_u32 s36, s36, s37")
    A("s_cmp_ge_u32 s36, 256")
    l2 = A.newlabel("Liwd")
    A("s_cbranch_scc1 %s" % l2)
    A("s_sleep 2")
    spin_guard(A)
    A("s_branch %s" % lp)
    A.label(l2)
    A("s_and_b32 s37, s%d, 15" % S_GRP)
    A("s_nop 3")
    A("v_readlane_b32 s37, v%d, s37" % vt)
    A("s_cmp_lt_u32 s37, 32")
    A("s_cselect_b32 s%d, 1, 0" % S_MIXED)

def overflow(A):
    A.label("L_overflow")
    A("s_cmp_lg_u32 s%d, 0" % S_WAVE)
    A("s_cbranch_scc1 L_of1")
    A("v_mov_b32 v1, 96")
    A("v_mov_b32 v2, 1")
    A("s_mov_b64 exec, 1")
    A("global_atomic_add v3, v1, v2, s[%d:%d] sc0" % (S_DBG, S_DBG + 1))
    A("s_waitcnt vmcnt(0)")
    A("ds_write_b32 v6, v3")
    A("s_mov_b64 exec, -1")
    A.label("L_of1")
    A("s_waitcnt lgkmcnt(0)")
    A("s_barrier")
    A("ds_read_b32 v3, v6")
    A("s_waitcnt lgkmcnt(0)")
    A("v_readfirstlane_b32 s38, v3")
    A("s_barrier")
    A("s_mov_b32 s%d, 0" % S_GRP)
    init_wait(A)
    A("s_mov_b32 s%d, 0" % S_GRP)
    A.label("L_of2")
    A("s_nop 3")
    A("v_readlane_b32 s37, v40, s%d" % S_GRP)
    A("s_min_u32 s37, s37, 32")
    A("s_sub_u32 s39, 32, s37")
    A("s_cmp_lt_u32 s38, s39")
    A("s_cbranch_scc1 L_of3")
    A("s_sub_u32 s38, s38, s39")
    A("s_add_u32 s%d, s%d, 1" % (S_GRP, S_GRP))
    A("s_cmp_lt_u32 s%d, 8" % S_GRP)
    A("s_cbranch_scc1 L_of2")
    A("s_branch L_end")
    A.label("L_of3")
    A("s_add_u32 s%d, s37, s38" % S_HEAD)
    A("s_and_b32 s%d, s%d, 31" % (S_HEAD, S_HEAD))
    A("s_branch L_roles")

def build(opt, roles):
    A = Asm()
    A.raw(HEADER.rstrip())
    A.raw("; @launch grid=(256,1,1) block=(256,1,1) lds=%d" % LDS_BYTES)
    A.raw('.amdgcn_target "amdgcn-amd-amdhsa--gfx950"')
    A.raw(".text\n.globl %s\n.p2align 8\n.type %s,@function" % (KNAME, KNAME))
    A.label(KNAME)
    opt["init_wait"] = init_wait
    prologue(A, opt)
    roles(A, opt)
    overflow(A)
    A.label("L_end")
    A("s_endpgm")
    A.raw('''.section .rodata,"a"
.p2align 6
.amdhsa_kernel %s
  .amdhsa_next_free_vgpr 512
  .amdhsa_next_free_sgpr 102
  .amdhsa_accum_offset 256
  .amdhsa_group_segment_fixed_size 0
  .amdhsa_kernarg_size 104
  .amdhsa_user_sgpr_count 2
  .amdhsa_user_sgpr_kernarg_segment_ptr 1
  .amdhsa_system_sgpr_workgroup_id_x 1
.end_amdhsa_kernel''' % KNAME)
    errs = A.check()
    for e in errs: print(e, file=sys.stderr)
    return A.text(), errs

def roles_chain_only(A, opt):
    A("s_cmp_lg_u32 s%d, 0" % S_GRP)
    A("s_cbranch_scc1 L_end")
    chain.gen_chain(A, opt)

def roles_full(A, opt):
    A("s_cmp_gt_u32 s%d, %d" % (S_GRP, opt["NP1"] + opt["NP2"]))
    A("s_cbranch_scc1 L_aworker")
    A("s_cmp_gt_u32 s%d, %d" % (S_GRP, opt["NP1"]))
    A("s_cbranch_scc1 L_p2")
    A("s_cmp_lg_u32 s%d, 0" % S_GRP)
    A("s_cbranch_scc1 L_p1")
    chain.gen_chain(A, opt)
    workers.gen_p1(A, opt)
    workers.gen_p2(A, opt)
    workers.gen_aworker(A, opt)

if __name__ == "__main__":
    mode = sys.argv[1]; out = sys.argv[2]
    opt = {}
    for kv in sys.argv[3:]:
        k, x = kv.split("="); opt[k] = int(x)
    if mode == "chain":
        opt["nokv"] = True
        opt.setdefault("cyc", 1)
        t, errs = build(opt, roles_chain_only)
    if mode == "full":
        opt.setdefault("NP1", 2); opt.setdefault("NP2", 3); opt["NA"] = 7 - opt["NP1"] - opt["NP2"]
        for k, x in (("pa", 2), ("d1", 60), ("d3", 28), ("d5", 20)): opt.setdefault(k, x)
        opt["prepass"] = workers.prepass
        workers.ZZ[0] = opt.get("zz", 1)
        t, errs = build(opt, roles_full)
    open(out, "w").write(t)
    print("wrote", out, len(t), "bytes;", len(errs), "hazards")
```

```python
from common import *
import math, struct

L_KX = 0
L_VX = 8192
L_MEM = 16384
L_Z = 24576
L_O = 28672
L_VM = 30720

def f32bits(x): return struct.unpack("<I", struct.pack("<f", x))[0]

def wq_base(t, c):
    if t < 4:
        assert c >= 2
        return 256 + 8 * (t * 6 + c - 2)
    return 128 + 64 * (t - 4) + 8 * c
def wo_base(j, ch):
    return 256 + 192 + 8 * (ch * 4 + j)

def gen_chain(A, opt):
    cold = Cold()
    nokv = opt.get("nokv", False)
    LAST = opt.get("last", 63)
    EE = opt.get("ee", 0)
    VL16, VSENT, VMLD, VZR, VZW, VOW, VWO, VPST, VMST, VIDX = 1, 11, 3, 4, 5, 6, 7, 8, 9, 10
    SELV, EXP, VMA, PM, PMB = 12, 16, 18, 20, 22
    CP = 14
    PT, VL4, VFA = 27, 2, 0
    VA = 24
    AF = 40
    FR = [48, 56, 64, 96, 104, 112, 120, 32]
    Q0, K0, Q1, K1, V0, V1 = 72, 76, 80, 84, 88, 92
    ZF, KX1, KX2 = 96, 112, 24
    S1, S2, S0 = 40, 44, 48
    M0_, M1_, T0_, T1_ = 52, 53, 54, 55
    VXC = 72
    PX, O0, O1, LA, ONES = 88, 92, 104, 108, 100
    OP, OA = 52, 104
    WACC = [40, 44, 48, 52, 72, 76, 88, 92]
    SLOTS = [80, 56, 64, 112, 120, 24, 32, 96]
    RB, RD, RT, SEL = 96, 80, 84, 60
    G0, G1 = 40, 44
    sSM = 88
    sL, sSEG, sIT = 48, 49, 50
    sMASK, sP0, sP1, sMG, sMR, sPR, sKV, sKM, sFM, sFKV, sR0, sR1 = 52, 54, 56, 58, 60, 62, 64, 68, 70, 72, 74, 78
    sC, sM0, sM1, sFW = 96, 77, 51, 76
    sST = 80
    NTR = 4

    tr_pos = opt.get("trace", 0)
    tr_used = []
    def tr(k):
        if not (tr_pos >> k) & 1: return
        if len(tr_used) >= NTR: raise ValueError("too many trace points")
        A("%s s[%d:%d]" % ("s_memrealtime" if opt.get("rtclk") else "s_memtime", sST + 2 * len(tr_used), sST + 1 + 2 * len(tr_used)))
        tr_used.append(k)

    A.label("L_chain")
    T = 40
    A("v_and_b32 v%d, 63, v0" % T)
    A("v_and_b32 v%d, 15, v0" % (T + 1))
    A("v_bfe_u32 v%d, v0, 4, 2" % (T + 2))
    A("v_lshlrev_b32 v%d, 4, v%d" % (VL16, T))
    A("v_mov_b32 v%d, -1" % VSENT)
    A("v_lshlrev_b32 v%d, 2, v%d" % (VL4, T))
    A("v_lshlrev_b32 v%d, 3, v%d" % (VZR, T))
    A("s_lshl_b32 s40, s%d, 10" % S_WAVE)
    A("v_lshlrev_b32 v%d, 5, v%d" % (VZW, T + 1))
    A("v_lshl_add_u32 v%d, v%d, 3, v%d" % (VZW, T + 2, VZW))
    A("v_add_u32 v%d, s40, v%d" % (VZW, VZW))
    A("s_lshr_b32 s41, s%d, 1" % S_WAVE)
    A("s_lshl_b32 s41, s41, 10")
    A("s_and_b32 s42, s%d, 1" % S_WAVE)
    A("s_lshl_b32 s42, s42, 5")
    A("s_add_u32 s41, s41, s42")
    A("s_add_u32 s41, s41, %d" % (L_O - 32))
    A("v_add_u32 v%d, s41, v%d" % (VOW, VL16))
    A("v_add_u32 v%d, 0x%x, v%d" % (T + 5, L_MEM, VL16))
    A("v_and_b32 v%d, 2, v%d" % (T + 3, T))
    A("v_cmp_ne_u32 vcc, 0, v%d" % (T + 3))
    A("v_mov_b32 v%d, 0xeeee" % (T + 6))
    A("v_mov_b32 v%d, 0x4444" % (T + 7))
    A("v_cndmask_b32 v%d, v%d, v%d, vcc" % (VOW, T + 5, VOW))
    A("v_cndmask_b32 v%d, v%d, v%d, vcc" % (VIDX, T + 7, T + 6))
    A("v_lshrrev_b32 v%d, 3, v%d" % (T + 5, T + 1))
    A("v_lshlrev_b32 v%d, 13, v%d" % (VWO, T + 5))
    A("v_and_b32 v%d, 7, v%d" % (T + 5, T + 1))
    A("v_lshl_add_u32 v%d, v%d, 3, v%d" % (T + 5, T + 2, T + 5))
    A("v_lshl_add_u32 v%d, v%d, 4, v%d" % (VWO, T + 5, VWO))
    A("s_lshl_b32 s41, s%d, 15" % S_WAVE)
    A("s_add_u32 s41, s41, %d" % L_WO)
    A("v_add_u32 v%d, s41, v%d" % (VWO, VWO))
    A("s_lshl_b32 s41, s%d, 11" % S_WAVE)
    A("v_add_u32 v%d, s41, v%d" % (VMLD, VL16))
    A("s_mov_b32 s%d, s41" % sM0)
    A("s_add_u32 s%d, s41, %d" % (sM1, L_VX))
    A("v_lshrrev_b32 v%d, 2, v%d" % (T + 5, T + 1))
    A("v_lshlrev_b32 v%d, 13, v%d" % (VPST, T + 5))
    A("v_and_b32 v%d, 3, v%d" % (T + 5, T + 1))
    A("v_lshl_add_u32 v%d, v%d, 2, v%d" % (T + 6, T + 2, T + 5))
    A("v_lshl_add_u32 v%d, v%d, 4, v%d" % (VPST, T + 6, VPST))
    A("s_lshl_b32 s41, s%d, 16" % S_WAVE)
    A("s_lshl_b32 s42, s%d, 8" % S_HEAD)
    A("s_add_u32 s41, s41, s42")
    A("v_add_u32 v%d, s41, v%d" % (VPST, VPST))
    A("v_and_b32 v%d, 12, v%d" % (T + 6, T + 1))
    A("v_add_u32 v%d, v%d, v%d" % (T + 6, T + 6, T + 2))
    A("v_lshlrev_b32 v%d, 4, v%d" % (VMST, T + 6))
    A("v_lshl_add_u32 v%d, v%d, 2, v%d" % (VMST, T + 5, VMST))
    A("v_add_u32 v%d, s42, v%d" % (VMST, VMST))
    A("v_and_b32 v%d, 1, v%d" % (T + 5, T))
    A("v_lshlrev_b32 v%d, 4, v%d" % (T + 5, T + 5))
    A("v_mov_b32 v%d, 0x3f80" % (T + 7))
    A("v_lshlrev_b32 v%d, v%d, v%d" % (T + 7, T + 5, T + 7))
    A("v_cndmask_b32_e64 v%d, v%d, 0, vcc" % (SELV, T + 7))
    A("v_lshrrev_b32 v%d, 2, v%d" % (T + 6, T + 1))
    for rr in range(4): A("v_cmp_eq_u32 s[%d:%d], %d, v%d" % (sSM + 2 * rr, sSM + 2 * rr + 1, rr ^ 2, T + 6))
    for r in (EXP, VMA, PM, PMB): A("v_mov_b64 v[%d:%d], 0" % (r, r + 1))
    A("s_mov_b32 s%d, 0x%x" % (sC, f32bits(128 ** -0.5 * math.log2(math.e))))
    A("s_mov_b32 s%d, s%d" % (sC + 1, sC))
    A("s_cmp_eq_u32 s%d, 3" % S_WAVE)
    A("s_cselect_b32 s%d, %d, 64" % (sFW, 2 - EE))
    A("s_mov_b32 s%d, 0" % sIT)
    A("s_mov_b32 s%d, 0" % sL)
    rt_stamp(A, opt, 500, 40, 41)
    A("v_mov_b64 v[44:45], -1"); A("v_mov_b64 v[46:47], -1")
    A("s_lshl_b32 s40, s%d, 13" % S_HEAD)
    for k in range(2):
        A("s_add_u32 s41, s40, 0x%x" % (OFF_CPART + k * 0x40000)); sadd64(A, 42, S_WS, "s41")
        for i in range(2): A("global_store_dwordx4 v%d, v[44:47], s[42:43] offset:%d sc1" % (VMLD, i * 1024))
    A("s_lshl_b32 s41, s%d, 13" % S_WAVE)
    A("s_add_u32 s41, s41, 0x%x" % OFF_CMEM); sadd64(A, 42, S_WS, "s41")
    A("global_store_dword v%d, v44, s[42:43] sc1" % VMST)
    load_head_weights(A, 40, wq_base, True, vwo=VWO, wo_base=wo_base)
    rt_stamp(A, opt, 501, 40, 41)
    opt["arrive"](A, "own")
    opt["init_wait"](A, kind="own")
    opt["init_wait"](A)
    rt_stamp(A, opt, 502, 40, 41)

    def pkadd(d): A("v_pk_add_f32 v[%d:%d], v[%d:%d], v[%d:%d]" % (d, d + 1, d, d + 1, d + 2, d + 3))
    def add1(d, e): A("v_add_f32 v%d, v%d, v%d" % (d + e, d + e, d + 2 + e))
    def cvt(d, x, y): A("v_cvt_pk_bf16_f32 v%d, v%d, v%d" % (d, x, y))
    def rd128(d, addr, off): A("ds_read_b128 v[%d:%d], v%d offset:%d" % (d, d + 3, addr, off))
    def z64(r): A("v_mov_b64 v[%d:%d], 0" % (r, r + 1))

    def setup_part_bases():
        sadd64(A, sKV, sKV, 32 * 8192)
        sadd64(A, sKV + 2, sKV + 2, 32 * 8192)
        sadd64(A, sKM, sKM, 32 * 8192)
        sadd64(A, sFM, sFM, 4)
        A("s_and_b32 s40, s%d, 1" % sIT)
        A("s_lshl_b32 s40, s40, 18")
        A("s_add_u32 s41, s40, 0x%x" % OFF_CPART); sadd64(A, sP0, S_WS, "s41")
        sadd64(A, sP1, sP0, 32768)
        A("s_lshl_b32 s42, s%d, 13" % S_HEAD)
        sadd64(A, sR0, sP0, "s42")
        sadd64(A, sR1, sR0, 4096)
        A("s_xor_b32 s41, s41, 0x40000")
        A("s_add_u32 s41, s41, s42"); sadd64(A, sPR, S_WS, "s41")
    def prefetch_own():
        for p in range(1, 4): A("v_xor_b32 v%d, %d, v%d" % (VA + p - 1, p * 2048, VMLD))
        for n, (X, Tt, cc) in enumerate([(0, 0, 0), (1, 0, 0), (0, 1, 0), (1, 1, 0), (0, 0, 1), (1, 0, 1), (0, 1, 1), (1, 1, 1)]):
            f = (X * 2 + Tt) * 2 + cc
            for hB in range(2): rd128(FR[n] + 4 * hB, VWO, 16384 + f * 1024 + hB * 512)
    def kv_check(tmp, sreg):
        if nokv: return
        lp = A.newlabel("Lkvp"); ok = A.newlabel("Lkvo")
        A.label(ok)
        A("s_bitcmp0_b64 s[%d:%d], %s" % (sMASK, sMASK + 1, sreg))
        A("s_cbranch_scc1 %s" % lp)
        def blk(A):
            A.label(lp)
            A("global_load_dword v%d, v%d, s[%d:%d] sc1" % (tmp, VL4, sFKV, sFKV + 1))
            A("s_waitcnt vmcnt(0)")
            A("v_cmp_ne_u32 s[%d:%d], 0, v%d" % (sMASK, sMASK + 1, tmp))
            A("s_sleep 1")
            spin_guard(A)
            A("s_branch %s" % ok)
        cold.add(blk)
    def kv_ops():
        return [["s_mov_b32 m0, s%d" % sM0, "s_nop 0",
                 "global_load_lds_dwordx4 v%d, s[%d:%d] sc1" % (VMLD, sKV, sKV + 1)],
                ["global_load_lds_dwordx4 v%d, s[%d:%d] offset:1024 sc1" % (VMLD, sKV, sKV + 1), "s_mov_b32 m0, s%d" % sM1],
                ["global_load_lds_dwordx4 v%d, s[%d:%d] sc1" % (VMLD, sKV + 2, sKV + 3)],
                ["global_load_lds_dwordx4 v%d, s[%d:%d] offset:1024 sc1" % (VMLD, sKV + 2, sKV + 3)]]
    def exp_st():
        return "global_store_dwordx4 v%d, v[%d:%d], s[%d:%d] sc1" % (VMLD, EXP, EXP + 3, sKM, sKM + 1)
    def flag(tmp, off):
        A("v_mov_b32 v%d, 0" % tmp)
        A("global_store_dword v%d, v%d, s[%d:%d] offset:%d sc1" % (tmp, VSENT, sFM, sFM + 1, off))

    A.label("L_ch_layer")
    A("s_mov_b32 s%d, 0" % sSEG)
    A("s_mov_b64 s[%d:%d], 0" % (sMASK, sMASK + 1))
    A("s_lshl_b32 s40, s%d, 5" % sL)
    A("s_add_u32 s40, s40, s%d" % S_HEAD)
    A("s_lshl_b32 s40, s40, 8")
    A("s_add_u32 s41, s40, 0x%x" % F_KV)
    sadd64(A, sFKV, S_WS, "s41")
    A("s_add_u32 s41, s40, 0x%x" % (F_M - 12 + 4 * EE))
    sadd64(A, sFM, S_WS, "s41")
    A("s_lshl_b32 s40, s%d, 11" % sL)
    A("s_add_u32 s40, s40, s%d" % S_HEAD)
    A("s_lshl_b32 s40, s40, 13")
    A("s_add_u32 s41, s40, 0x%x" % OFF_KX); sadd64(A, sKV, S_WS, "s41")
    A("s_add_u32 s41, s40, 0x%x" % OFF_VX); sadd64(A, sKV + 2, S_WS, "s41")
    A("s_add_u32 s41, s40, 0x%x" % (OFF_KM - (2 - EE) * 32 * 8192)); sadd64(A, sKM, S_WS, "s41")
    A("v_bfe_u32 v27, v2, 4, 2")
    A("v_bfe_u32 v28, v2, 2, 1")
    A("v_lshl_add_u32 v27, v27, 1, v28")
    A("v_lshlrev_b32 v27, 10, v27")
    A("v_bfe_u32 v28, v2, 3, 1")
    A("v_lshl_add_u32 v27, v28, 2, v27")
    A("v_bfe_u32 v28, v2, 6, 2")
    A("v_lshl_add_u32 v27, v28, 5, v27")
    A("v_mov_b32 v%d, 0" % VFA)
    A("s_lshl_b32 s40, s%d, 8" % S_WAVE)
    A("v_add_u32 v27, s40, v27")
    for i in range(2):
        for p in range(4):
            A("global_load_dword v%d, v27, s[%d:%d] offset:%d" % (G0 + 4 * i + p, S_MEM0, S_MEM0 + 1, i * 128 + p * 8))
    kv_check(28, "s%d" % sSEG)
    for g_ in kv_ops():
        for t in g_: A(t)
        A("s_nop 0")
    if opt.get("rt") or opt.get("cyc"):
        A("s_add_u32 s47, s%d, 400" % sL)
        rt_stamp(A, dict(rt=opt.get("rt") or 2), "s47", 27, 28)
    for r in range(0, 24, 2): z64(Q0 + r)
    setup_part_bases()
    prefetch_own()
    A("s_waitcnt vmcnt(0)")
    A("ds_write_b128 v%d, v[%d:%d] offset:%d" % (VMLD, G0, G0 + 3, L_MEM))
    A("ds_write_b128 v%d, v[%d:%d] offset:%d" % (VMLD, G1, G1 + 3, L_MEM + 1024))
    A("s_waitcnt lgkmcnt(2)")
    A("s_branch L_ch_step")

    A.raw(".p2align 6")
    PA = opt.get("pa", 1)
    def ldA():
        A("global_load_dwordx4 v[%d:%d], v%d, s[%d:%d] sc1" % (G0, G0 + 3, VMLD, sMG, sMG + 1))
        A("global_load_dwordx4 v[%d:%d], v%d, s[%d:%d] offset:1024 sc1" % (G1, G1 + 3, VMLD, sMG, sMG + 1))
    A.label("L_ch_retryA")
    ldA()
    spin_guard(A)
    A.label("L_ch_pollA")
    A("s_waitcnt vmcnt(%d) lgkmcnt(0)" % (2 * (PA - 1)))
    A("v_max_u32 v%d, v%d, v%d" % (PT, G0, G1))
    A("v_cmp_eq_u32 vcc, -1, v%d" % PT)
    A("ds_write_b128 v%d, v[%d:%d] offset:%d" % (VMLD, G0, G0 + 3, L_MEM))
    A("ds_write_b128 v%d, v[%d:%d] offset:%d" % (VMLD, G1, G1 + 3, L_MEM + 1024))
    A("s_cbranch_vccnz L_ch_retryA")
    if tr_pos:
        tr(26)
        lt = A.newlabel("Ltr")
        A("s_cmp_eq_u32 s%d, %d" % (sIT, opt.get("trit", 100)))
        A("s_cbranch_scc1 %s" % lt)
        A.label(lt + "b")
        def blk(A):
            A.label(lt)
            A("s_waitcnt lgkmcnt(0)")
            A("s_lshl_b32 s40, s%d, 2" % S_HEAD)
            A("s_add_u32 s40, s40, s%d" % S_WAVE)
            A("s_lshl_b32 s40, s40, 7")
            A("s_add_u32 s40, s40, 0x%x" % (OFF_STAMP + 0x400000))
            sadd64(A, 42, S_WS, "s40")
            A("v_mov_b32 v27, 0")
            for n, k in enumerate(tr_used):
                A("v_mov_b32 v28, s%d" % (sST + 2 * n))
                A("global_store_dword v27, v28, s[42:43] offset:%d" % (4 * k))
            A("s_branch %s" % (lt + "b"))
        cold.add(blk)
    A.label("L_ch_step")
    tr(0)
    def smfr(acc, c, breg):
        A("v_smfmac_f32_16x16x64_bf16 v[%d:%d], v[%d:%d], %s, v%d" % (acc, acc + 3, AF + 4 * c, AF + 4 * c + 3, R(breg, 8), VIDX))
    def smf(acc, c, tile): smfr(acc, c, wq_base(tile, c))
    accs = [Q0, K0, Q1, K1]
    def mf(d, x, y, c, k32=True):
        n = 4 if k32 else 2
        A("v_mfma_f32_16x16x%d_bf16 v[%d:%d], v[%d:%d], v[%d:%d], %s" % (32 if k32 else 16, d, d + 3, x, x + n - 1, y, y + n - 1, c))
    acc = lambda r: "v[%d:%d]" % (r, r + 3)
    def trd(k):
        dc, Tt = k >> 1, k & 1
        A("ds_read_b64_tr_b16 v[%d:%d], v%d offset:%d" % (ZF + 2 * k, ZF + 2 * k + 1, VZR, L_Z + dc * 1024 + Tt * 512))
    for n in range(4): smfr(accs[n], 0, FR[n])
    A("s_waitcnt lgkmcnt(0)")
    A("s_barrier")
    tr(1)
    own = [lambda n=n: smfr(accs[n], 1, FR[4 + n]) for n in range(4)] + \
          [lambda a_=a_, c=c, t=t: smf(a_, c, t) for c in range(2) for a_, t in ((V0, 4), (V1, 5))]
    rd128(AF + 8, VA, L_MEM)
    for c in range(3, 8):
        rd128(AF + 4 * c, VA + c // 2 - 1, L_MEM + (c & 1) * 1024)
        own.pop(0)()
    own.pop(0)(); own.pop(0)()
    if PA > 1: A("s_waitcnt vmcnt(0)")
    if not opt.get("norearm"):
        store_mixed(A, cold, ["global_store_dword v%d, v%d, s[%d:%d]" % (VMLD, VSENT, sPR, sPR + 1),
                              "global_store_dword v%d, v%d, s[%d:%d] offset:1024" % (VMLD, VSENT, sPR, sPR + 1)])
    A("s_cmp_lt_u32 s%d, s%d" % (sSEG, sFW))
    A("s_cbranch_scc0 L_ch_flag")
    A.label("L_ch_noflag")
    own.pop(0)()
    A("s_cmp_eq_u32 s%d, 0" % sSEG)
    A("s_cselect_b32 s40, 4, s%d" % S_WAVE)
    EM = opt.get("em", 0)
    def exp_turn(k):
        if opt.get("noexp"): return
        l = A.newlabel("Lex")
        if EM == 0 and k == 0 and not EE:
            A("s_cbranch_scc1 %s" % l); A(exp_st()); A.label(l)
        if EM == 1 and k in (0, 2):
            A("s_cbranch_scc1 %s" % l)
            A("global_store_dwordx2 v%d, v[%d:%d], s[%d:%d] offset:%d sc1" % (VMLD, EXP + k, EXP + k + 1, sKM, sKM + 1, 4 * k))
            A.label(l)
        if EM == 2:
            A("s_cmp_lg_u32 s40, %d" % k); A("s_cbranch_scc1 %s" % l); A(exp_st()); A.label(l)
        if EM == 3 and k in (0, 2):
            A("s_cmp_lg_u32 s41, %d" % (k >> 1)); A("s_cbranch_scc1 %s" % l); A(exp_st()); A.label(l)
    if EM == 3: A("s_lshr_b32 s41, s40, 1")
    tr(2)
    kx = [(KX1 + 4 * d, VL16, L_KX + d * 1024) for d in range(4)] + [(KX2 + 4 * d, VL16, L_KX + 4096 + d * 1024) for d in range(4)]
    extra = 0
    for c in range(2, 8):
        A("s_waitcnt lgkmcnt(%d)" % (7 - c + extra))
        smf(Q0, c, 0)
        if c >= 4: rd128(*kx.pop(0)); extra += 1
        else: exp_turn(2 * (c - 2))
        smf(K0, c, 2)
        if c >= 4: rd128(*kx.pop(0)); extra += 1
        else: exp_turn(2 * (c - 2) + 1)
    assert not kx
    tr(3)
    seq = [(a_, c, t) for c in range(2, 8) for a_, t in ((Q1, 1), (K1, 3))]
    for i, x in enumerate(seq):
        smf(*x)
        if i == 0: A("s_add_u32 s41, s%d, 1" % sSEG); A.nop(2)
        if i == 1:
            if not nokv:
                A("v_cmp_ne_u32 vcc, 0, v%d" % VFA)
                A("s_or_b64 s[%d:%d], s[%d:%d], vcc" % (sMASK, sMASK + 1, sMASK, sMASK + 1))
            else: A.nop(2)
        if i == 2: add1(Q0, 0)
        if i == 3: add1(Q0, 1)
        if i == 4: add1(K0, 0)
        if i == 5: add1(K0, 1)
        if i == 6: cvt(K0 + 3, Q0, Q0 + 1)
        if i == 7: cvt(K0 + 2, K0, K0 + 1)
        if i == 8:
            A("ds_write_b64 v%d, v[%d:%d] offset:%d" % (VZW, K0 + 2, K0 + 3, L_Z)); A("v_mov_b32 v%d, v%d" % (EXP, K0 + 2))
        if i == 9: rd128(VXC, VMLD, L_VX)
        if i == 10: rd128(VXC + 4, VMLD, L_VX + 1024)
    tr(4)
    vq = [x for c in range(2, 8) for x in ((V0, c, 4), (V1, c, 5))]
    def vs(n=1):
        for _ in range(n):
            if vq: smf(*vq.pop(0))
    vs(); A.nop(3); vs(); A.nop(2)
    add1(Q1, 0); add1(Q1, 1); add1(K1, 0); add1(K1, 1)
    cvt(K1 + 3, Q1, Q1 + 1); cvt(K1 + 2, K1, K1 + 1)
    A("ds_write_b64 v%d, v[%d:%d] offset:%d" % (VZW, K1 + 2, K1 + 3, L_Z + 512))
    tr(5)
    vs()
    A("v_mov_b32 v%d, v%d" % (EXP + 1, K1 + 2))
    vs(opt.get("vpre", 4) - 1)
    A("s_waitcnt lgkmcnt(0)")
    A("s_barrier")
    tr(6)
    trd(0); trd(1)
    for k in range(2, 8):
        vs(); trd(k)
    assert not vq
    A("s_cmp_eq_u32 s%d, %d" % (sSEG, LAST))
    A("s_cbranch_scc1 L_ch_last")
    vq_last = []
    kv_check(52, "s41")
    kvo = kv_ops()
    if opt.get("nodma"): kvo = [["s_nop 0"]] * 4
    wrd = []
    for i in range(8):
        off = (i >> 1) * 2048 + (i & 1) * 1024
        wrd += [(SLOTS[i], VWO, off), (SLOTS[i] + 4, VWO, off + 512)]
    def w(): rd128(*wrd.pop(0))
    nw = 0
    for dc in range(4):
        A("s_waitcnt lgkmcnt(%d)" % (6 - 2 * dc + nw))
        z = ZF + 4 * dc
        mf(S1, KX1 + 4 * dc, z, "0" if dc == 0 else acc(S1))
        if dc < 3: w(); nw += 1
        if dc == 2: add1(V0, 1)
        if dc == 3: cvt(VMA, V0, V0 + 1)
        mf(S2, KX2 + 4 * dc, z, "0" if dc == 0 else acc(S2))
        if dc < 3: w(); nw += 1
        if dc == 2: add1(V1, 0)
        if dc == 3: cvt(VMA + 1, V1, V1 + 1)
        mf(S0, z, z, "0" if dc == 0 else acc(S0))
        for t in kvo.pop(0): A(t)
        if dc == 1: add1(V0, 0)
        if dc == 2: add1(V1, 1)
    tr(7)
    if not nokv: A("global_load_dword v%d, v%d, s[%d:%d] sc1" % (VFA, VL4, sFKV, sFKV + 1))
    else: A("s_nop 0")
    if EE: A(exp_st())
    A("v_mov_b32 v%d, 0x3f803f80" % ONES)
    A("v_mov_b32 v%d, 0x3f803f80" % (ONES + 1))
    A("v_max3_f32 v%d, v%d, v%d, v%d" % (M0_, S1, S1 + 1, S1 + 2))
    A("v_mov_b32 v%d, 0x3f803f80" % (ONES + 2))
    A("v_max3_f32 v%d, v%d, v%d, v%d" % (M1_, S1 + 3, S2, S2 + 1))
    A("v_max3_f32 v%d, v%d, v%d, v%d" % (M0_, M0_, S2 + 2, S2 + 3))
    A("v_max3_f32 v%d, v%d, v%d, v%d" % (M1_, M1_, S0, S0 + 1))
    A("v_max_f32 v%d, v%d, v%d" % (T0_, M0_, M1_))
    A("v_max_f32 v%d, v%d, v%d" % (T1_, M0_, M1_))
    A("v_mov_b32 v%d, 0x3f803f80" % (ONES + 3))
    A("s_add_u32 s40, s%d, 1" % sIT)
    A("v_permlane32_swap_b32 v%d, v%d" % (T0_, T1_))
    A("v_max_f32 v%d, v%d, v%d" % (M0_, T0_, T1_))
    A("v_max_f32 v%d, v%d, v%d" % (M1_, T0_, T1_))
    A("s_and_b32 s40, s40, 3")
    A("s_lshl_b32 s40, s40, 13")
    A("v_permlane16_swap_b32 v%d, v%d" % (M0_, M1_))
    A("v_max_f32 v%d, v%d, v%d" % (M0_, M0_, M1_))
    A("v_mul_f32 v%d, s%d, v%d" % (M0_, sC, M0_))
    tr(8)
    def pkf(r): A("v_pk_fma_f32 v[%d:%d], v[%d:%d], s[%d:%d], v[%d:%d] op_sel_hi:[1,0,0] neg_lo:[0,0,1] neg_hi:[0,0,1]" % (r, r + 1, r, r + 1, sC, sC + 1, M0_, M0_ + 1))
    def ex(r): A("v_exp_f32 v%d, v%d" % (r, r))
    pkf(S1); pkf(S1 + 2); ex(S1); ex(S1 + 1); pkf(S2); ex(S1 + 2); ex(S1 + 3); pkf(S2 + 2)
    cvt(PX, S1, S1 + 1); ex(S2); ex(S2 + 1); cvt(PX + 1, S1 + 2, S1 + 3); pkf(S0); ex(S2 + 2); ex(S2 + 3)
    cvt(PX + 2, S2, S2 + 1); ex(S0); cvt(PX + 3, S2 + 2, S2 + 3); ex(S0 + 1)
    tr(9)
    A("s_add_u32 s40, s40, 0x%x" % OFF_CMEM)
    mf(LA, ONES, PX, "0")
    cvt(PM, S0, S0 + 1)
    mf(O1, VXC + 4, PX, "0")
    w(); cvt(PMB + 1, S0, S0 + 1)
    mf(O0, VXC, PX, "0")
    w(); sadd64(A, sMG, S_WS, "s40")
    A("v_mov_b32 v%d, 0" % S1)
    mf(LA, ONES, PM, acc(LA), k32=False)
    w(); A("v_mov_b32 v%d, 0" % (S1 + 1)); A.nop(1)
    mf(O1, VMA, PMB, acc(O1), k32=False)
    w(); A("v_mov_b32 v%d, 0" % (S1 + 2))
    mf(O0, VMA, PM, acc(O0), k32=False)
    A("v_mov_b32 v%d, 0" % (S1 + 3))
    z64(WACC[1]); z64(WACC[1] + 2)
    A("v_rcp_f32 v%d, v%d" % (LA, LA))
    z64(WACC[2])
    for r in (O1, O1 + 2, O0, O0 + 2):
        if r == O0: z64(WACC[2] + 2)
        A("v_pk_mul_f32 v[%d:%d], v[%d:%d], v[%d:%d] op_sel_hi:[1,0]" % (r, r + 1, r, r + 1, LA, LA + 1))
    cvt(OP + 2, O1, O1 + 1); cvt(OP + 3, O1 + 2, O1 + 3); cvt(OP, O0, O0 + 1); cvt(OP + 1, O0 + 2, O0 + 3)
    A("ds_write_b128 v%d, v[%d:%d]" % (VOW, OP, OP + 3))
    tr(10)
    for t in (4, 5, 6, 7): z64(WACC[t]); z64(WACC[t] + 2)
    for _ in range(opt.get("wfill", 4)): A("v_mov_b32 v%d, 0" % CP)
    A("s_waitcnt vmcnt(%d) lgkmcnt(0)" % ((0 if opt.get("nodma") else 4 if nokv else 5) + EE))
    tr(11)
    A("s_barrier")
    tr(12)
    rd128(OA, VL16, L_O); rd128(OA + 4, VL16, L_O + 1024)
    z64(WACC[3]); z64(WACC[3] + 2)
    A("s_and_b32 s40, s%d, 3" % sIT); A("s_lshl_b32 s40, s40, 13"); A("s_add_u32 s40, s40, 0x%x" % OFF_CMEM)
    def tile_ops(d): return ["v_add_f32 v%d, v%d, v%d" % (d + e, d + e, d + 2 + e) for e in range(2)]
    def cv(d, x, y): return "v_cvt_pk_bf16_f32 v%d, v%d, v%d" % (d, x, y)
    t0, t1 = WACC[:4], WACC[4:]
    order = [(j, ch) for j in range(8) for ch in range(2)]
    a0, a1, a2, a3 = [tile_ops(x) for x in t0]
    b0, b1, b2, b3 = [tile_ops(x) for x in t1]
    mn = lambda r: "v_min_u32 v%d, -2, v%d" % (r, r)
    fill = {3: ["s_nop 0"], 4: [a0[0]], 5: [a0[1]], 6: [a1[0]], 7: [a1[1]], 8: [cv(t0[0] + 2, t0[0], t0[1]), a2[0]],
            9: [cv(t0[0] + 3, t0[0] + 1, t0[1] + 1), a2[1]], 10: ["s_nop 0", a3[0]], 11: [a3[1], cv(t0[0], t0[2], t0[3])],
            12: [cv(t0[0] + 1, t0[2] + 1, t0[3] + 1), mn(t0[0])], 13: [b0[0]], 14: [b0[1], b1[0]], 15: [b1[1]]}
    nlate = len(wrd)
    issued = 0
    for i, (Tt, ch) in enumerate(order):
        if i == 0: A("s_waitcnt lgkmcnt(1)")
        if i == 1: A("s_waitcnt lgkmcnt(%d)" % issued)
        if i >= 8:
            need = 2 * (i - 8) + 2 - (16 - nlate)
            if need > 0: A("s_waitcnt lgkmcnt(%d)" % (issued - need))
        b = wo_base(Tt, ch) if i < 8 else SLOTS[i - 8]
        a_ = WACC[Tt]
        A("v_smfmac_f32_16x16x64_bf16 v[%d:%d], v[%d:%d], %s, v%d" % (a_, a_ + 3, OA + 4 * ch, OA + 4 * ch + 3, R(b, 8), VIDX))
        if i == 0: tr(13)
        if i == 7: tr(14)
        if i == 15: tr(15)
        if wrd: rd128(*wrd.pop(0)); issued += 1
        for t in fill.get(i, []): A(t)
        if i == 12:
            store_mixed(A, cold, ["global_store_dwordx4 v%d, v[%d:%d], s[%d:%d]" % (VPST, t0[0], t0[0] + 3, sP0, sP0 + 1)])
    assert not wrd
    for t in [cv(t1[0] + 2, t1[0], t1[1]), cv(t1[0] + 3, t1[0] + 1, t1[1] + 1)] + b2 + ["s_nop 2"] + b3 + \
             [cv(t1[0], t1[2], t1[3]), cv(t1[0] + 1, t1[2] + 1, t1[3] + 1), mn(t1[0])]: A(t)
    store_mixed(A, cold, ["global_store_dwordx4 v%d, v[%d:%d], s[%d:%d]" % (VPST, t1[0], t1[0] + 3, sP1, sP1 + 1)])
    tr(20)
    sadd64(A, sMR, S_WS, "s40")
    A("s_add_u32 s%d, s%d, 1" % (sSEG, sSEG))
    A("s_add_u32 s%d, s%d, 1" % (sIT, sIT))
    for r in (4, 6, 16, 18, 20, 22): z64(Q0 + r)
    A("s_cmp_lg_u32 s%d, 0" % S_WAVE)
    A("s_cbranch_scc1 L_ch_nored")
    for rr in range(4): A("v_cndmask_b32 v%d, 0, v%d, s[%d:%d]" % (SEL + rr, SELV, sSM + 2 * rr, sSM + 2 * rr + 1))
    if opt.get("d1", 0): A.nop(opt["d1"])
    def ldB(i):
        b = sR0 if i < 4 else sR1
        A("global_load_dwordx4 v[%d:%d], v%d, s[%d:%d] offset:%d sc1" % (RB + 4 * i, RB + 4 * i + 3, VL16, b, b + 1, (i & 3) * 1024))
    tr(21)
    A.label("L_ch_rB")
    for i in range(8): ldB(i)
    spin_guard(A)
    A("s_waitcnt vmcnt(7)")
    A("v_cmp_eq_u32 vcc, -1, v%d" % RB)
    mf(RD, SEL, RB, "0")
    A("s_cbranch_vccnz L_ch_rB")
    tr(22)
    for i in range(1, 8):
        A("s_waitcnt vmcnt(%d)" % (7 - i))
        mf(RD, SEL, RB + 4 * i, acc(RD))
        if i == 2: A("v_max_u32 v%d, v%d, v%d" % (RT, RB + 4, RB + 8))
        if i in (4, 6): A("v_max3_u32 v%d, v%d, v%d, v%d" % (RT, RT, RB + 4 * i - 4, RB + 4 * i))
    tr(23)
    A("v_max_u32 v%d, v%d, v%d" % (RT, RT, RB + 28))
    A("v_cmp_eq_u32 vcc, -1, v%d" % RT)
    A.nop(5)
    A("s_cbranch_vccnz L_ch_rB")
    cvt(RT, RD, RD + 1)
    A("v_min_u32 v%d, -2, v%d" % (RT, RT))
    store_mixed(A, cold, ["global_store_dword v%d, v%d, s[%d:%d]" % (VMST, RT, sMG, sMG + 1),
                          "global_store_dword v%d, v%d, s[%d:%d]" % (VMST, VSENT, sMR, sMR + 1)])
    tr(24)
    A("s_barrier")
    setup_part_bases()
    if opt.get("d6", 0): A.nop(opt["d6"])
    tr(25)
    ldA()
    prefetch_own()
    for k in range(1, PA): ldA()
    for r in (0, 2, 8, 10, 12, 14): z64(Q0 + r)
    A("s_branch L_ch_pollA")
    A.label("L_ch_firstA")
    for k in range(PA):
        ldA()
        if k < PA - 1: A.nop(opt.get("d5", 24))
    A("s_branch L_ch_pollA")
    A.label("L_ch_nored")
    rt_stamp(A, opt, "s%d" % sIT, RT, RT + 1)
    setup_part_bases()
    prefetch_own()
    for r in (0, 2, 8, 10, 12, 14): z64(Q0 + r)
    A("s_barrier")
    if opt.get("d3", 0): A.nop(opt["d3"])
    A("s_branch L_ch_firstA")

    A.label("L_ch_flag")
    A("s_mov_b64 exec, 1")
    A("global_store_dword v%d, v%d, s[%d:%d] sc1" % (PM + 1, VSENT, sFM, sFM + 1))
    A("s_mov_b64 exec, -1")
    A("s_branch L_ch_noflag")
    A.label("L_ch_last")
    for x in vq_last: smf(*x)
    if not EE: sadd64(A, sKM, sKM, 32 * 8192)
    A.nop(8)
    pkadd(V0); pkadd(V1)
    cvt(VMA, V0, V0 + 1); cvt(VMA + 1, V1, V1 + 1)
    A(exp_st())
    A("s_waitcnt vmcnt(0) lgkmcnt(0)")
    A("s_barrier")
    A("s_mov_b64 exec, 1")
    A("global_store_dword v%d, v%d, s[%d:%d] offset:4 sc1" % (PM + 1, VSENT, sFM, sFM + 1))
    if not EE: A("global_store_dword v%d, v%d, s[%d:%d] offset:8 sc1" % (PM + 1, VSENT, sFM, sFM + 1))
    A("s_mov_b64 exec, -1")
    if opt.get("rt") or opt.get("cyc"):
        A("s_add_u32 s47, s%d, 410" % sL)
        rt_stamp(A, dict(rt=opt.get("rt") or 2), "s47", 27, 28)
    A("s_add_u32 s%d, s%d, 1" % (sL, sL))
    A("s_cmp_lt_u32 s%d, %d" % (sL, opt.get("layers", 2)))
    A("s_cbranch_scc1 L_ch_layer")
    A("s_branch L_end")
    cold.emit(A)
```

```python
from asmlib import *
NAME = "interleave_layers__linear_attn_block__memory_aug_recurrent_mem_tr__prompt"
KNAME = NAME + "_kernel"

F_X1  = 0x0000
F_Y2  = 0x4000
F_PB  = 0x8000
F_PA  = 0xC000
F_KV  = 0x10000
F_Q   = 0x1C000
F_M   = 0x14000
F_AKV = 0x18000
OFF_CPART = 0x100000
OFF_CMEM  = 0x180000
OFF_Y0 = 0x200000
OFF_X1 = 0x400000
OFF_Y1 = 0x800000
OFF_X2 = 0xC00000
OFF_Y2 = 0xE00000
OFF_AKV = 0x1000000
OFF_WP = 0x1800000
OFF_PW = 0x2000000
OFF_KX = 0x4000000
OFF_VX = 0x6000000
OFF_QX = 0x8000000
OFF_KM = 0xA000000
OFF_STAMP = 0xC000000

S_WS = 4
S_AX = 8
S_WQKV = 10
S_AWO = 12
S_MEM0 = 16
S_WQ = 18
S_WK = 20
S_WV = 22
S_WO = 24
S_OUT = 28
S_DBG = 30
S_GRP = 32
S_HEAD = 33
S_WAVE = 34
S_MIXED = 35
S_T0 = 36

KM_POLL = 60
LDS_BYTES = 163840
L_WO = 32768

def sadd64(A, d, b, imm_or_s):
    x = imm_or_s if isinstance(imm_or_s, str) else "0x%x" % imm_or_s
    A("s_add_u32 s%d, s%d, %s" % (d, b, x))
    A("s_addc_u32 s%d, s%d, 0" % (d + 1, b + 1))

def load_head_weights(A, vt, wq_base, chain, vwo=None, wo_base=None):
    VW0, VW1, VT0, VT1, VOFFO, VTRO, VWB, VX = range(vt, vt + 8)
    TMP = vt + 8
    A("v_and_b32 %s, 63, v0" % v(VX))
    A("v_lshrrev_b32 %s, 4, %s" % (v(TMP), v(VX)))
    A("v_bfe_u32 %s, %s, 2, 2" % (v(TMP + 1), v(VX)))
    A("v_and_b32 %s, 3, %s" % (v(TMP + 2), v(VX)))
    A("v_and_b32 %s, 15, %s" % (v(TMP + 4), v(VX)))
    A("s_lshl_b32 s40, s%d, 8" % S_HEAD)
    A("s_lshl_b32 s41, s%d, 17" % S_WAVE)
    A("s_add_u32 s40, s40, s41")
    for k, dst in enumerate((VW0, VW1)):
        A("v_lshlrev_b32 %s, 1, %s" % (v(TMP + 5), v(TMP)))
        if k: A("v_or_b32 %s, 8, %s" % (v(TMP + 5), v(TMP + 5)))
        A("v_xor_b32 %s, %s, %s" % (v(TMP + 5), v(TMP + 5), v(TMP + 4)))
        A("v_lshlrev_b32 %s, 4, %s" % (v(TMP + 5), v(TMP + 5)))
        A("v_lshl_add_u32 %s, %s, 13, %s" % (v(dst), v(TMP), v(TMP + 5)))
        A("v_add_u32 %s, s40, %s" % (v(dst), v(dst)))
    A("s_lshl_b32 s41, s%d, 2" % S_WAVE)
    A("v_lshrrev_b32 %s, 1, %s" % (v(TMP + 5), v(TMP + 2)))
    A("v_add_u32 %s, s41, %s" % (v(TMP + 5), v(TMP + 5)))
    A("v_and_b32 %s, 1, %s" % (v(TMP + 6), v(TMP)))
    A("v_lshlrev_b32 %s, 3, %s" % (v(TMP + 6), v(TMP + 6)))
    A("v_lshl_add_u32 %s, %s, 1, %s" % (v(TMP + 6), v(TMP + 1), v(TMP + 6)))
    A("v_xor_b32 %s, %s, %s" % (v(TMP + 5), v(TMP + 5), v(TMP + 6)))
    A("v_lshlrev_b32 %s, 4, %s" % (v(TMP + 5), v(TMP + 5)))
    A("v_and_b32 %s, 1, %s" % (v(TMP + 6), v(TMP + 2)))
    A("v_lshl_add_u32 %s, %s, 3, %s" % (v(TMP + 5), v(TMP + 6), v(TMP + 5)))
    A("v_lshl_add_u32 %s, %s, 3, %s" % (v(TMP + 6), v(TMP), v(TMP + 1)))
    A("v_lshl_add_u32 %s, %s, 8, %s" % (v(VT0), v(TMP + 6), v(TMP + 5)))
    A("v_xor_b32 %s, 32, %s" % (v(VT1), v(VT0)))
    A("s_lshl_b32 s47, s%d, 12" % S_WAVE)
    slots = [0, 16384] + [L_WO + w * 32768 + 16384 for w in range(4)]
    NS = len(slots)
    pieces = [(X, ch) for X in range(3) for ch in range(8)]
    def issue(p):
        X, ch = pieces[p]
        sadd64(A, 42, (S_WQ, S_WK, S_WV)[X], ch * 64 * 8192)
        A("s_add_u32 s44, s47, %d" % slots[p % NS])
        for i in range(4):
            A("s_mov_b32 m0, s44")
            A("s_add_u32 s44, s44, 1024")
            A("global_load_lds_dwordx4 %s, s[42:43]" % v(VW0 if i < 2 else VW1))
            if i < 3: sadd64(A, 42, 42, 4 * 8192)
    issued = 0
    if chain:
        A("s_lshl_b32 s46, s%d, 15" % S_WAVE)
        A("s_add_u32 s46, s46, %d" % L_WO)
        A("v_lshrrev_b32 %s, 2, %s" % (v(VOFFO), v(VX)))
        A("v_lshlrev_b32 %s, 10, %s" % (v(VOFFO), v(VOFFO)))
        A("v_lshl_add_u32 %s, %s, 4, %s" % (v(VOFFO), v(TMP + 2), v(VOFFO)))
        A("s_lshl_b32 s40, s%d, 17" % S_HEAD)
        A("s_lshl_b32 s41, s%d, 8" % S_WAVE)
        A("s_add_u32 s40, s40, s41")
        A("v_add_u32 %s, s40, %s" % (v(VOFFO), v(VOFFO)))
        for b in range(4):
            sadd64(A, 42, S_WO, b * 64)
            A("s_add_u32 s44, s46, %d" % (((b + 2) & 3) * 8192))
            for i in range(8):
                A("s_mov_b32 m0, s44")
                A("s_add_u32 s44, s44, 1024")
                A("global_load_lds_dwordx4 %s, s[42:43]" % v(VOFFO))
                if i < 7: sadd64(A, 42, 42, 16 * 1024)
        issue(0); issue(1); issued = 2
        A("v_lshrrev_b32 %s, 1, %s" % (v(TMP + 3), v(TMP + 1)))
        A("v_lshlrev_b32 %s, 5, %s" % (v(TMP + 3), v(TMP + 3)))
        A("v_and_b32 %s, 1, %s" % (v(TMP + 5), v(TMP)))
        A("v_lshl_add_u32 %s, %s, 4, %s" % (v(TMP + 3), v(TMP + 5), v(TMP + 3)))
        A("v_lshrrev_b32 %s, 1, %s" % (v(TMP + 5), v(TMP)))
        A("v_lshl_add_u32 %s, %s, 2, %s" % (v(TMP + 3), v(TMP + 5), v(TMP + 3)))
        A("v_and_b32 %s, 1, %s" % (v(TMP + 5), v(TMP + 1)))
        A("v_add_u32 %s, %s, %s" % (v(TMP + 3), v(TMP + 3), v(TMP + 5)))
        A("v_lshlrev_b32 %s, 6, %s" % (v(VTRO), v(TMP + 3)))
        A("v_lshl_add_u32 %s, %s, 3, %s" % (v(VTRO), v(TMP + 2), v(VTRO)))
        A("v_add_u32 %s, s46, %s" % (v(VTRO), v(VTRO)))
        A("v_and_b32 %s, 3, %s" % (v(TMP + 5), v(TMP + 4)))
        A("v_lshlrev_b32 %s, 11, %s" % (v(VWB), v(TMP + 5)))
        A("v_lshrrev_b32 %s, 2, %s" % (v(TMP + 5), v(TMP + 4)))
        A("v_lshl_add_u32 %s, %s, 3, %s" % (v(TMP + 5), v(TMP), v(TMP + 5)))
        A("v_lshl_add_u32 %s, %s, 4, %s" % (v(VWB), v(TMP + 5), v(VWB)))
        A("v_add_u32 %s, s46, %s" % (v(VWB), v(VWB)))
        for b in range(4):
            slot = (b + 2) & 3
            A("s_waitcnt vmcnt(%d)" % (8 * (3 - b) + (8 if b < 2 else 24)))
            for ch in range(2):
                for hB in range(2):
                    for Tn in range(2):
                        for hh in range(2):
                            dst = TMP + ((ch * 2 + hB) * 2 + Tn) * 4 + hh * 2
                            A("ds_read_b64_tr_b16 %s, %s offset:%d" % (v(dst, 2), v(VTRO), slot * 8192 + (64 * ch + 8 * hB + 2 * hh) * 64 + Tn * 32))
            A("s_waitcnt lgkmcnt(0)")
            for ch in range(2):
                for hB in range(2):
                    for Tn in range(2):
                        A("ds_write_b128 %s, %s offset:%d" % (v(VWB), v(TMP + ((ch * 2 + hB) * 2 + Tn) * 4, 4), slot * 8192 + ch * 1024 + hB * 512 + Tn * 64))
            A("s_waitcnt lgkmcnt(0)")
            if b == 1:
                for ch in range(2):
                    for jj in range(4):
                        for hB in range(2):
                            A("ds_read_b128 %s, %s offset:%d" % (R(wo_base(jj, ch) + hB * 4, 4), v(vwo), 16384 + jj * 2048 + ch * 1024 + hB * 512))
                A("s_waitcnt lgkmcnt(0)")
                A("s_barrier")
                for p in range(2, 6): issue(p)
                issued = 6
    else:
        for p in range(NS): issue(p)
        issued = NS
    def reads(p, w):
        X, ch = pieces[p]
        for T in range(2):
            if chain:
                cs = 2 * ((ch >> 1) ^ w) + (ch & 1)
                base = TMP + 32 * X + (T * 2 + cs) * 8 if (X < 2 and cs < 2) else wq_base(2 * X + T, cs)
            else:
                base = wq_base(2 * X + T, ch)
            for hB in range(2):
                for hh in range(2):
                    A("ds_read_b64_tr_b16 %s, %s offset:%d" % (R(base + hB * 4 + hh * 2, 2), v((VX, VOFFO)[T]), (32 * hB + 4 * hh) * 256))
    for p in range(24):
        A("s_waitcnt vmcnt(%d) lgkmcnt(0)" % (4 * (issued - 1 - p)))
        A("s_barrier")
        if p >= 1 and issued < 24:
            issue(issued); issued += 1
        A("v_add_u32 %s, %d, %s" % (v(VX), slots[p % NS], v(VT0)))
        A("v_add_u32 %s, %d, %s" % (v(VOFFO), slots[p % NS], v(VT1)))
        if chain:
            done = A.newlabel("Lwd")
            lab = [A.newlabel("Lwv") for _ in range(3)]
            for w in range(4):
                if w < 3:
                    A("s_cmp_lg_u32 s%d, %d" % (S_WAVE, w))
                    A("s_cbranch_scc1 %s" % lab[w])
                reads(p, w)
                if w < 3:
                    A("s_branch %s" % done)
                    A.label(lab[w])
            A.label(done)
        else:
            reads(p, 0)
    A("s_waitcnt lgkmcnt(0)")
    A("s_barrier")
    if chain:
        for f in range(8):
            for hB in range(2):
                A("ds_write_b128 %s, %s offset:%d" % (v(vwo), v(TMP + f * 8 + hB * 4, 4), 16384 + f * 1024 + hB * 512))
        A("s_waitcnt lgkmcnt(0)")


class Cold:
    def __init__(self): self.blocks = []
    def add(self, fn): self.blocks.append(fn)
    def emit(self, A):
        for fn in self.blocks: fn(A)
        self.blocks = []

def store_mixed(A, cold, text):
    l1 = A.newlabel("Lmx"); l2 = A.newlabel("Lmy")
    A("s_cbranch_scc1 %s" % l1) if False else None
    A("s_cmp_lg_u32 s%d, 0" % S_MIXED)
    A("s_cbranch_scc1 %s" % l1)
    for t in text: A(t)
    A.label(l2)
    def blk(A):
        A.label(l1)
        for t in text: A(t + " sc1")
        A("s_branch %s" % l2)
    cold.add(blk)


S_SPIN = 101
def spin_guard(A):
    A("s_add_u32 s%d, s%d, 1" % (S_SPIN, S_SPIN))
    A("s_cmp_gt_u32 s%d, 0x40000" % S_SPIN)
    A("s_cbranch_scc1 L_end")


def rt_stamp(A, opt, idx, va, vb):
    if not opt.get("rt"): return
    A("s_memtime s[98:99]" if opt.get("rt") == 2 else "s_memrealtime s[98:99]")
    A("s_lshl_b32 s100, s%d, 5" % S_GRP)
    A("s_add_u32 s100, s100, s%d" % S_HEAD)
    A("s_lshl_b32 s100, s100, 2")
    A("s_add_u32 s100, s100, s%d" % S_WAVE)
    A("s_lshl_b32 s100, s100, 9")
    A("s_add_u32 s100, s100, %s" % idx)
    A("s_lshl_b32 s100, s100, 2")
    A("s_add_u32 s100, s100, 0x%x" % OFF_STAMP)
    A("v_mov_b32 v%d, s100" % va)
    A("s_waitcnt lgkmcnt(0)")
    A("v_mov_b32 v%d, s98" % vb)
    A("global_store_dword v%d, v%d, s[%d:%d]" % (va, vb, S_WS, S_WS + 1))
```

```python
from common import *
import math, struct
def f32bits(x): return struct.unpack("<I", struct.pack("<f", x))[0]
LOG2E = math.log2(math.e)
ZZ = [1]
_RT0 = {}

def mfma(A, d, x, y, c, k32=True):
    n = 4 if k32 else 2
    A("v_mfma_f32_16x16x%d_bf16 %s, %s, %s, %s" % (32 if k32 else 16, v(d, 4), R(x, n), R(y, n), c if isinstance(c, str) else v(c, 4)))
def cvt(A, d, x, y): A("v_cvt_pk_bf16_f32 v%d, v%d, v%d" % (d, x, y))
def rd128(A, d, addr, off): A("ds_read_b128 v[%d:%d], v%d offset:%d" % (d, d + 3, addr, off))

def wait_flags(A, vtmp, voff, sbase, sleep=2):
    lp = A.newlabel("Lwf"); ok = A.newlabel("Lwo")
    A.label(lp)
    A("global_load_dword v%d, v%d, s[%d:%d] sc1" % (vtmp, voff, sbase, sbase + 1))
    A("s_waitcnt vmcnt(0)")
    A("v_cmp_eq_u32 vcc, 0, v%d" % vtmp)
    A("s_cbranch_vccz %s" % ok)
    A("s_sleep %d" % (sleep * ZZ[0]))
    spin_guard(A)
    A("s_branch %s" % lp)
    A.label(ok)

def row_allsum16(A, regs, tmp):
    src, dst = list(regs), list(tmp)
    for sh in (8, 4, 2, 1):
        if len(regs) < 3: A.nop(3 - len(regs))
        for a_, b_ in zip(src, dst):
            A("v_add_f32_dpp v%d, v%d, v%d row_ror:%d row_mask:0xf bank_mask:0xf" % (b_, a_, a_, sh))
        src, dst = dst, src

def swap_sum(A, r, t, which):
    A("v_mov_b32 v%d, v%d" % (t, r))
    A.nop(2)
    A("v_permlane%d_swap_b32 v%d, v%d" % (which, r, t))
    A("v_add_f32 v%d, v%d, v%d" % (r, r, t))

def sel_const(A, SEL, T):
    A("v_and_b32 v%d, 1, v0" % T)
    A("v_lshlrev_b32 v%d, 4, v%d" % (T, T))
    A("v_mov_b32 v%d, 0x3f80" % (T + 1))
    A("v_lshlrev_b32 v%d, v%d, v%d" % (T + 1, T, T + 1))
    A("v_bfe_u32 v%d, v0, 1, 2" % T)
    for rr in range(4):
        A("v_cmp_eq_u32 vcc, %d, v%d" % (rr, T))
        A.nop(2)
        A("v_cndmask_b32 v%d, 0, v%d, vcc" % (SEL + rr, T + 1))

def reduce_consts(A, VRLD, VROW, VFL, T):
    A("v_and_b32 v%d, 15, v0" % T)
    A("v_bfe_u32 v%d, v0, 4, 2" % (T + 1))
    A("s_lshl_b32 s40, s%d, 8" % S_WAVE)
    A("v_lshlrev_b32 v%d, 10, v%d" % (VRLD, T + 1))
    A("v_lshl_add_u32 v%d, v%d, 4, v%d" % (VRLD, T, VRLD))
    A("v_add_u32 v%d, s40, v%d" % (VRLD, VRLD))
    A("v_and_b32 v%d, 1, v%d" % (T + 1, T + 1))
    A("v_lshlrev_b32 v%d, 3, v%d" % (VROW, T + 1))
    A("v_lshl_add_u32 v%d, v%d, 4, v%d" % (VROW, T, VROW))
    A("v_add_u32 v%d, s40, v%d" % (VROW, VROW))
    A("v_and_b32 v%d, 31, v0" % VFL)
    A("v_lshlrev_b32 v%d, 2, v%d" % (VFL, VFL))

def one_lane(A, text):
    A("s_mov_b64 exec, 1")
    A(text)
    A("s_mov_b64 exec, -1")

def reduce_row(A, cold, W, SEL, VRLD, VROW, VFL, VL16, sPART, sPF, sRES, sX, sY, sOF, lds_off, final_cond, defer=None):
    RB, RD, XR, T = W, W + 32, W + 36, W + 40
    rtp(A, 10)
    wait_flags(A, T, VFL, sPF, sleep=1)
    rtp(A, 11)
    for i in range(8):
        if i > 0: sadd64(A, sPART, sPART, 4096)
        A("global_load_dwordx4 v[%d:%d], v%d, s[%d:%d] sc1" % (RB + 4 * i, RB + 4 * i + 3, VRLD, sPART, sPART + 1))
    A("v_lshlrev_b32 v%d, 16, v%d" % (T, XR))
    A("v_and_b32 v%d, 0xffff0000, v%d" % (T + 1, XR))
    A("v_lshlrev_b32 v%d, 16, v%d" % (T + 2, XR + 1))
    A("v_and_b32 v%d, 0xffff0000, v%d" % (T + 3, XR + 1))
    A("v_add_u32 v%d, %d, v%d" % (T + 4, lds_off + 32, VROW))
    A("s_lshl_b32 s40, s%d, 3" % S_WAVE)
    A("s_add_u32 s40, s40, %d" % lds_off)
    A("v_mov_b32 v%d, s40" % (T + 5))
    for i in range(8):
        A("s_waitcnt vmcnt(%d)" % (7 - i))
        mfma(A, RD, SEL, RB + 4 * i, "0" if i == 0 else RD)
    A.nop(8)
    rtp(A, 12)
    cvt(A, XR, RD, RD + 1); cvt(A, XR + 1, RD + 2, RD + 3)
    A("v_lshlrev_b32 v%d, 16, v%d" % (RD, XR))
    A("v_and_b32 v%d, 0xffff0000, v%d" % (RD + 1, XR))
    A("v_lshlrev_b32 v%d, 16, v%d" % (RD + 2, XR + 1))
    A("v_and_b32 v%d, 0xffff0000, v%d" % (RD + 3, XR + 1))
    for r in range(4): A("v_add_f32 v%d, v%d, v%d" % (RD + r, RD + r, T + r))
    cvt(A, XR, RD, RD + 1); cvt(A, XR + 1, RD + 2, RD + 3)
    A("ds_write_b64 v%d, v[%d:%d]" % (T + 4, XR, XR + 1))
    A("v_lshlrev_b32 v%d, 16, v%d" % (RD, XR))
    A("v_and_b32 v%d, 0xffff0000, v%d" % (RD + 1, XR))
    A("v_lshlrev_b32 v%d, 16, v%d" % (RD + 2, XR + 1))
    A("v_and_b32 v%d, 0xffff0000, v%d" % (RD + 3, XR + 1))
    S, Q = T, T + 1
    A("v_add_f32 v%d, v%d, v%d" % (S, RD, RD + 1))
    A("v_mul_f32 v%d, v%d, v%d" % (Q, RD, RD))
    A("v_add_f32 v%d, v%d, v%d" % (S, S, RD + 2))
    A("v_fmac_f32 v%d, v%d, v%d" % (Q, RD + 1, RD + 1))
    A("v_add_f32 v%d, v%d, v%d" % (S, S, RD + 3))
    A("v_fmac_f32 v%d, v%d, v%d" % (Q, RD + 2, RD + 2))
    A("v_fmac_f32 v%d, v%d, v%d" % (Q, RD + 3, RD + 3))
    A.nop(1)
    row_allsum16(A, [S, Q], [T + 2, T + 3])
    A("v_mov_b64 v[%d:%d], v[%d:%d]" % (T + 2, T + 3, S, Q))
    A.nop(2)
    A("v_permlane16_swap_b32 v%d, v%d" % (S, T + 2))
    A("v_permlane16_swap_b32 v%d, v%d" % (Q, T + 3))
    A("v_pk_add_f32 v[%d:%d], v[%d:%d], v[%d:%d]" % (S, Q, S, Q, T + 2, T + 3))
    A("ds_write_b64 v%d, v[%d:%d]" % (T + 5, S, Q))
    A("s_waitcnt lgkmcnt(0)")
    A("s_barrier")
    rtp(A, 13)
    ldone = A.newlabel("Lrdone"); lfin = A.newlabel("Lfin")
    A("s_cmp_lg_u32 s%d, 0" % S_WAVE)
    A("s_cbranch_scc1 %s" % ldone)
    A("v_mov_b32 v%d, %d" % (T + 3, lds_off))
    rd128(A, RB + 8, VL16, lds_off + 32)
    rd128(A, RB, T + 3, 0); rd128(A, RB + 4, T + 3, 16)
    final_cond(A)
    A("s_waitcnt lgkmcnt(2)")
    A("s_cbranch_scc1 %s" % lfin)
    A("global_store_dwordx4 v%d, v[%d:%d], s[%d:%d] sc1" % (VL16, RB + 8, RB + 11, sX, sX + 1))
    U = RB + 16
    for r in range(4):
        A("v_lshlrev_b32 v%d, 16, v%d" % (U + 2 * r, RB + 8 + r))
        A("v_and_b32 v%d, 0xffff0000, v%d" % (U + 2 * r + 1, RB + 8 + r))
    A("s_waitcnt lgkmcnt(0)")
    A("v_pk_add_f32 v[%d:%d], v[%d:%d], v[%d:%d]" % (RB, RB + 1, RB, RB + 1, RB + 2, RB + 3))
    A("v_pk_add_f32 v[%d:%d], v[%d:%d], v[%d:%d]" % (RB + 4, RB + 5, RB + 4, RB + 5, RB + 6, RB + 7))
    A("v_pk_add_f32 v[%d:%d], v[%d:%d], v[%d:%d]" % (RB, RB + 1, RB, RB + 1, RB + 4, RB + 5))
    ln_finish(A, RB, RB + 1, T)
    for r in range(8):
        A("v_sub_f32 v%d, v%d, v%d" % (U + r, U + r, T))
        A("v_mul_f32 v%d, v%d, v%d" % (U + r, U + r, T + 1))
    for r in range(4): cvt(A, RB + 12 + r, U + 2 * r, U + 2 * r + 1)
    A("s_and_b32 s40, s%d, 15" % S_HEAD)
    A("s_lshl_b32 s40, s40, 4")
    A("v_xor_b32 v%d, s40, v%d" % (T + 2, VL16))
    A("global_store_dwordx4 v%d, v[%d:%d], s[%d:%d] sc1" % (T + 2, RB + 12, RB + 15, sY, sY + 1))
    if defer is None:
        A("v_mov_b32 v%d, 1" % (T + 1))
        A("s_waitcnt vmcnt(0)")
        one_lane(A, "global_store_dword v%d, v%d, s[%d:%d] sc1" % (VL16, T + 1, sOF, sOF + 1))
    else:
        A("s_mov_b64 s[%d:%d], s[%d:%d]" % (defer + 1, defer + 2, sOF, sOF + 1))
        A("s_mov_b32 s%d, 1" % defer)
    A.label(ldone)
    def blk(A):
        A.label(lfin)
        A("global_store_dwordx4 v%d, v[%d:%d], s[%d:%d]" % (VL16, RB + 8, RB + 11, sX, sX + 1))
        A("s_waitcnt lgkmcnt(0)")
        A("s_branch %s" % ldone)
    cold.add(blk)

def flush_deferred(A, defer, VL16, ONE):
    l = A.newlabel("Lfd")
    A("s_cmp_eq_u32 s%d, 0" % defer)
    A("s_cbranch_scc1 %s" % l)
    one_lane(A, "global_store_dword v%d, v%d, s[%d:%d] sc1" % (VL16, ONE, defer + 1, defer + 2))
    A("s_mov_b32 s%d, 0" % defer)
    A.label(l)

def ln_finish(A, S, Q, T):
    A("v_mul_f32 v%d, 0x%x, v%d" % (T, f32bits(1 / 512), S))
    A("v_mul_f32 v%d, 0x%x, v%d" % (T + 1, f32bits(1 / 512), Q))
    A("v_fma_f32 v%d, -v%d, v%d, v%d" % (T + 1, T, T, T + 1))
    A("v_max_f32 v%d, 0, v%d" % (T + 1, T + 1))
    A("v_add_f32 v%d, 0x%x, v%d" % (T + 1, f32bits(1e-5), T + 1))
    A("v_rsq_f32 v%d, v%d" % (T + 1, T + 1))
    A.nop(1)

def zero_flags(A, NP1):
    A("s_lshl_b32 s37, s%d, 5" % S_GRP)
    A("s_add_u32 s37, s37, s%d" % S_HEAD)
    A("s_sub_u32 s37, s37, 32")
    A("s_mul_i32 s37, s37, %d" % (0x20000 // (32 * NP1)))
    A("v_lshl_add_u32 v52, v0, 4, s37")
    A("v_mov_b64 v[68:69], 0"); A("v_mov_b64 v[70:71], 0")
    per = 0x20000 // (32 * NP1)
    assert per in (2048, 4096)
    if per == 2048:
        l = A.newlabel("Lz")
        A("s_cmp_ge_u32 s%d, 2" % S_WAVE)
        A("s_cbranch_scc1 %s" % l)
    A("global_store_dwordx4 v52, v[68:71], s[%d:%d] sc1" % (S_WS, S_WS + 1))
    if per == 2048: A.label(l)

def pack_wqkv(A):
    A("s_lshl_b32 s37, s%d, 5" % S_GRP)
    A("s_add_u32 s37, s37, s%d" % S_HEAD)
    A("s_sub_u32 s37, s37, 32")
    A("s_mul_i32 s38, s37, %d" % (8 * 3072))
    A("s_mul_i32 s39, s%d, 6144" % S_WAVE)
    A("s_add_u32 s38, s38, s39")
    sadd64(A, 42, S_WQKV, "s38")
    sadd64(A, 44, 42, 3072)
    A("v_and_b32 v53, 63, v0")
    A("v_lshlrev_b32 v54, 4, v53")
    A("s_mov_b32 m0, s39")
    A("s_add_u32 s39, s39, 3072")
    for i in range(3): A("global_load_lds_dwordx4 v54, s[42:43] offset:%d" % (i * 1024))
    A("s_mov_b32 m0, s39")
    A("s_nop 0")
    for i in range(3): A("global_load_lds_dwordx4 v54, s[44:45] offset:%d" % (i * 1024))
    A("v_bfe_u32 v55, v53, 1, 3")
    A("v_lshrrev_b32 v56, 4, v53")
    A("v_and_b32 v57, 1, v53")
    A("v_lshlrev_b32 v57, 4, v57")
    A("v_mul_u32_u24 v58, 3072, v55")
    A("v_lshl_add_u32 v58, v56, 5, v58")
    A("v_add_u32 v58, v58, v57")
    A("s_lshl_b32 s39, s%d, 8" % S_WAVE)
    A("v_add_u32 v58, s39, v58")
    A("v_mul_u32_u24 v59, 49152, v56")
    A("v_lshl_add_u32 v59, v55, 5, v59")
    A("v_add_u32 v59, v59, v57")
    A("s_mul_i32 s38, s37, 768")
    A("s_mul_i32 s39, s%d, %d" % (S_WAVE, 8 * 49152))
    A("s_add_u32 s38, s38, s39")
    A("s_add_u32 s38, s38, 0x%x" % OFF_WP)
    sadd64(A, 42, S_WS, "s38")
    sadd64(A, 44, 42, 4 * 49152)
    A("s_waitcnt vmcnt(0)")
    A("s_barrier")
    for k in range(2):
        for t in range(3): rd128(A, 72 + 4 * (3 * k + t), 58, t * 1024 + k * 128)
    for k in range(2):
        for t in range(3):
            A("s_waitcnt lgkmcnt(%d)" % (5 - 3 * k - t))
            A("global_store_dwordx4 v59, v[%d:%d], s[%d:%d] offset:%d sc1" % (72 + 4 * (3 * k + t), 75 + 4 * (3 * k + t), 42 + 2 * k, 43 + 2 * k, t * 256))

NROW = 4
def prepass0(A, sAG, NA0):
    A("s_lshl_b32 s38, s%d, 2" % S_HEAD)
    A("s_add_u32 s38, s38, s%d" % S_WAVE)
    A("v_and_b32 v52, 63, v0")
    A("v_lshlrev_b32 v52, 4, v52")
    A("s_lshr_b32 s39, s38, 5")
    A("s_and_b32 s38, s38, 31")
    assert 4 * NROW * NA0 >= 64
    for k in range(NROW):
        A("s_add_u32 s40, s39, %d" % (4 * k))
        A("s_mul_i32 s40, s40, %d" % NA0)
        A("s_add_u32 s40, s40, s%d" % sAG)
        if k == 0: A("s_mov_b32 s41, s40")
        A("s_cmp_lt_u32 s40, 64")
        A("s_cselect_b32 s40, s40, s41")
        A("s_lshl_b32 s40, s40, 5")
        A("s_add_u32 s40, s40, s38")
        A("s_lshl_b32 s40, s40, 10")
        A("v_add_u32 v%d, s40, v52" % (112 + k))
        A("global_load_dwordx4 v[%d:%d], v%d, s[%d:%d]" % (56 + 4 * k, 59 + 4 * k, 112 + k, S_AX, S_AX + 1))
    A("s_and_b32 s38, s38, 15")
    A("s_lshl_b32 s38, s38, 4")

def prepass1(A, behind_dma):
    sadd64(A, 42, S_WS, OFF_Y0)
    A("s_waitcnt vmcnt(%d)" % (4 if behind_dma else 0))
    rt_stamp(A, _RT0, 490, 118, 119)
    ST = 160
    for k in range(NROW):
        X = 56 + 4 * k; U = 72 + 8 * k; S, Q = ST + 2 * k, ST + 1 + 2 * k
        for r in range(4):
            A("v_lshlrev_b32 v%d, 16, v%d" % (U + 2 * r, X + r))
            A("v_and_b32 v%d, 0xffff0000, v%d" % (U + 2 * r + 1, X + r))
        A("v_add_f32 v%d, v%d, v%d" % (S, U, U + 1))
        A("v_mul_f32 v%d, v%d, v%d" % (Q, U, U))
        A("v_fmac_f32 v%d, v%d, v%d" % (Q, U + 1, U + 1))
        for r in range(2, 8):
            A("v_add_f32 v%d, v%d, v%d" % (S, S, U + r))
            A("v_fmac_f32 v%d, v%d, v%d" % (Q, U + r, U + r))
    A.nop(1)
    rg = [ST + r for r in range(2 * NROW)]; tm = [ST + 2 * NROW + r for r in range(2 * NROW)]
    row_allsum16(A, rg, tm)
    for which in (16, 32):
        for r in range(2 * NROW): A("v_mov_b32 v%d, v%d" % (tm[r], rg[r]))
        for r in range(2 * NROW): A("v_permlane%d_swap_b32 v%d, v%d" % (which, rg[r], tm[r]))
        for r in range(2 * NROW): A("v_add_f32 v%d, v%d, v%d" % (rg[r], rg[r], tm[r]))
    for k in range(NROW):
        X = 56 + 4 * k; U = 72 + 8 * k
        ln_finish(A, ST + 2 * k, ST + 1 + 2 * k, 116)
        for r in range(8):
            A("v_sub_f32 v%d, v%d, v116" % (U + r, U + r))
            A("v_mul_f32 v%d, v%d, v117" % (U + r, U + r))
        for r in range(4): cvt(A, X + r, U + 2 * r, U + 2 * r + 1)
        A("v_xor_b32 v%d, s38, v%d" % (112 + k, 112 + k))
        A("global_store_dwordx4 v%d, v[%d:%d], s[42:43] sc1" % (112 + k, X, X + 3))

def publish_partials(A, cold, T, sPF):
    A("s_lshl_b32 s40, s%d, 2" % S_HEAD)
    A("v_mov_b32 v%d, s40" % T)
    A("v_mov_b32 v%d, 1" % (T + 1))
    rtp(A, 8)
    A("s_waitcnt vmcnt(0)")
    rtp(A, 9)
    A("s_barrier")
    l = A.newlabel("Lpp")
    A("s_cmp_lg_u32 s%d, 1" % S_WAVE)
    A("s_cbranch_scc1 %s" % l)
    A("s_mov_b64 exec, 1")
    store_mixed(A, cold, ["global_store_dword v%d, v%d, s[%d:%d]" % (T, T + 1, sPF, sPF + 1)])
    A("s_mov_b64 exec, -1")
    A.label(l)

def wqw(t, c):
    return 256 + 64 * t + 8 * c if t < 4 else 128 + 64 * (t - 4) + 8 * c

def frag_addrs(A, VA4, T):
    A("v_and_b32 v%d, 15, v0" % T)
    A("v_bfe_u32 v%d, v0, 4, 2" % (T + 1))
    for q in range(4):
        A("v_add_u32 v%d, %d, v%d" % (T + 2, 4 * q, T + 1))
        A("v_xor_b32 v%d, v%d, v%d" % (T + 2, T + 2, T))
        A("v_lshlrev_b32 v%d, 4, v%d" % (T + 2, T + 2))
        A("v_lshl_add_u32 v%d, v%d, 10, v%d" % (VA4 + q, T, T + 2))

def signal_last(A, T, lds_off, text):
    l = A.newlabel("Lsg")
    A("v_mov_b32 v%d, %d" % (T, lds_off))
    A("v_mov_b32 v%d, 1" % (T + 1))
    A("s_mov_b64 exec, 1")
    A("ds_add_rtn_u32 v%d, v%d, v%d" % (T, T, T + 1))
    A("s_waitcnt lgkmcnt(0)")
    A("v_readfirstlane_b32 s40, v%d" % T)
    A("s_and_b32 s40, s40, 3")
    A("s_cmp_lg_u32 s40, 3")
    A("s_cbranch_scc1 %s" % l)
    A(text)
    A.label(l)
    A("s_mov_b64 exec, -1")

def rts(A, opt, sL, sSEG, base, W):
    if opt.get("rt"):
        A("s_lshl_b32 s97, s%d, 6" % sL)
        A("s_add_u32 s97, s97, s%d" % sSEG)
        A("s_add_u32 s97, s97, %d" % base)
        rt_stamp(A, opt, "s97", W, W + 1)

_RTP = {"opt": None, "it": 50}
def rtp(A, k, va=230):
    opt = _RTP["opt"]
    if not opt or not opt.get("rt2"): return
    l = A.newlabel("Lrtp")
    A("s_cmp_lg_u32 s%d, 20" % _RTP["it"])
    A("s_cbranch_scc1 %s" % l)
    rt_stamp(A, dict(rt=1), 460 + k, va, va + 1)
    A.label(l)

def pack(A, dst, a0, a1):
    cvt(A, dst, a0, a0 + 1); cvt(A, dst + 1, a0 + 2, a0 + 3); cvt(A, dst + 2, a1, a1 + 1); cvt(A, dst + 3, a1 + 2, a1 + 3)

def tile_off(A, dst, sL, sSEG):
    A("s_lshl_b32 s40, s%d, 6" % sL)
    A("s_add_u32 s40, s40, s%d" % sSEG)
    A("s_lshl_b32 s%d, s40, 5" % dst)
    A("s_add_u32 s%d, s%d, s%d" % (dst, dst, S_HEAD))
    A("s_lshl_b32 s%d, s%d, 13" % (dst, dst))
def head_flag(A, dst, base, sL, sSEG, shift):
    A("s_lshl_b32 s41, s%d, 5" % sL)
    A("s_add_u32 s41, s41, s%d" % S_HEAD)
    A("s_lshl_b32 s41, s41, 6")
    A("s_add_u32 s41, s41, s%d" % sSEG)
    A("s_lshl_b32 s41, s41, %d" % shift)
    A("s_add_u32 s41, s41, 0x%x" % base)
    sadd64(A, dst, S_WS, "s41")

def gen_p1(A, opt):
    cold = Cold()
    NP1 = opt["NP1"]
    VY, VW2K, VL16, VKST, VFL, ZERO, ONE, VF = range(1, 9)
    VA4 = 10
    L_CNT = 65536
    W = 16
    sL, sSEG, sNX, sPRE, sSLOT, sT = 48, 49, 50, 51, 66, 67
    sA, sB, sCc, sD, sE, sF, sG, sGP = 52, 54, 56, 58, 60, 62, 64, 68
    A.label("L_p1")
    T = 40
    A("v_and_b32 v%d, 63, v0" % T)
    A("v_and_b32 v%d, 15, v0" % (T + 1))
    A("v_bfe_u32 v%d, v0, 4, 2" % (T + 2))
    A("v_lshlrev_b32 v%d, 4, v%d" % (VY, T))
    A("s_lshl_b32 s40, s%d, 11" % S_WAVE)
    A("v_add_u32 v%d, s40, v%d" % (VW2K, VY))
    A("v_mov_b32 v%d, v%d" % (VL16, VY))
    frag_addrs(A, VA4, T + 3)
    A("s_lshl_b32 s40, s%d, 10" % S_WAVE)
    A("v_add_u32 v%d, s40, v%d" % (VKST, VY))
    A("v_and_b32 v%d, 31, v0" % VFL)
    A("v_lshlrev_b32 v%d, 2, v%d" % (VFL, VFL))
    A("v_mov_b32 v%d, 0" % ZERO)
    A("v_mov_b32 v%d, 1" % ONE)
    assert NP1 == 2
    pack_wqkv(A)
    zero_flags(A, NP1)
    opt["arrive"](A, "flags")
    rt_stamp(A, opt, 492, 110, 111)
    for _ in range(opt.get("p1z", 0) // 50): A("s_sleep 50")
    load_head_weights(A, 40, wqw, False)
    rt_stamp(A, opt, 501, 40, 41)
    opt["init_wait"](A)
    A("v_mov_b32 v%d, %d" % (W, L_CNT))
    A("v_mov_b64 v[%d:%d], 0" % (W + 2, W + 3))
    A("ds_write_b64 v%d, v[%d:%d]" % (W, W + 2, W + 3))
    A("s_waitcnt lgkmcnt(0)")
    A("s_barrier")
    A("s_mov_b32 s%d, 0" % sL)
    A("s_lshl_b32 s%d, s%d, 13" % (sSLOT, S_WAVE))

    def xflag(dst, sseg):
        A("s_lshl_b32 s40, s%d, 6" % sL)
        A("s_add_u32 s40, s40, s%d" % sseg)
        A("s_lshl_b32 s41, s40, 7")
        A("s_add_u32 s41, s41, 0x%x" % F_X1); sadd64(A, dst, S_WS, "s41")
    def dma(sseg):
        A("s_lshl_b32 s40, s%d, 6" % sL)
        A("s_add_u32 s40, s40, s%d" % sseg)
        A("s_lshl_b32 s41, s40, 15")
        A("s_lshl_b32 s42, s%d, 13" % S_WAVE)
        A("s_add_u32 s41, s41, s42")
        A("s_add_u32 s41, s41, 0x%x" % OFF_Y1); sadd64(A, sB, S_WS, "s41")
        sadd64(A, sCc, sB, 4096)
        for hf in range(2):
            A("s_add_u32 s43, s%d, %d" % (sSLOT, hf * 4096))
            A("s_mov_b32 m0, s43")
            A("s_nop 0")
            b = sB if hf == 0 else sCc
            for i in range(4): A("global_load_lds_dwordx4 v%d, s[%d:%d] offset:%d sc1" % (VL16, b, b + 1, i * 1024))
        A("s_xor_b32 s%d, s%d, 32768" % (sSLOT, sSLOT))

    def qflag():
        sadd64(A, sGP, sGP, F_Q - F_KV)
        signal_last(A, W, L_CNT + 4, "global_store_dword v%d, v%d, s[%d:%d] sc1" % (ZERO, ONE, sGP, sGP + 1))
    def yrd(dst, ks):
        rd128(A, dst, VA4 + (ks & 3), (ks >> 2) * 256); rd128(A, dst + 4, VA4 + (ks & 3), (ks >> 2) * 256 + 16384)
    A.label("L_p1_layer")
    A("s_sub_u32 s%d, s%d, 1" % (sSEG, S_GRP))
    xflag(sA, sSEG)
    wait_flags(A, W, VFL, sA, sleep=1)
    dma(sSEG)
    head_flag(A, sGP, F_KV, sL, sSEG, 2)
    A("s_mov_b32 s%d, 0" % sPRE)
    A.label("L_p1_loop")
    _RTP["opt"] = opt; _RTP["it"] = sSEG
    rtp(A, 0, 20)
    A("s_add_u32 s%d, s%d, %d" % (sNX, sSEG, NP1))
    A("s_min_u32 s44, s%d, 63" % sNX)
    xflag(sA, 44)
    A("global_load_dword v%d, v%d, s[%d:%d] sc1" % (VF, VFL, sA, sA + 1))
    tile_off(A, sT, sL, sSEG)
    A("s_add_u32 s41, s%d, 0x%x" % (sT, OFF_KX)); sadd64(A, sD, S_WS, "s41")
    A("s_add_u32 s41, s%d, 0x%x" % (sT, OFF_VX)); sadd64(A, sE, S_WS, "s41")
    A("s_add_u32 s41, s%d, 0x%x" % (sT, OFF_QX)); sadd64(A, sF, S_WS, "s41")
    head_flag(A, sG, F_KV, sL, sSEG, 2)
    A("s_waitcnt vmcnt(0)")
    rtp(A, 1, 20)
    A("s_cmp_eq_u32 s%d, 0" % sPRE)
    A("s_cbranch_scc1 L_p1_noq")
    qflag()
    A.label("L_p1_noq")
    if opt.get("ahead"):
        A("s_cmp_lt_u32 s%d, %d" % (sSEG, opt["ahead"]))
        A("s_cbranch_scc1 L_p1_go")
        A("s_sub_u32 s44, s%d, %d" % (sSEG, opt["ahead"]))
        head_flag(A, 46, F_M, sL, 44, 2)
        wait_flags(A, W, ZERO, 46, sleep=4)
        A("global_load_dword v%d, v%d, s[%d:%d] sc1" % (VF, VFL, sA, sA + 1))
        A("s_waitcnt vmcnt(0)")
        A.label("L_p1_go")
    A("s_barrier")
    ACC, YF = 32, 80
    rtp(A, 2, 20)
    yrd(YF, 0)
    A("v_cmp_eq_u32 vcc, 0, v%d" % VF)
    A("s_mov_b32 s%d, 1" % sPRE)
    A("s_cmp_ge_u32 s%d, 64" % sNX)
    A("s_cbranch_scc1 L_p1_nopre")
    A("s_cbranch_vccnz L_p1_nopre")
    dma(sNX)
    A("s_mov_b32 s%d, 2" % sPRE)
    A.label("L_p1_nopre")
    acc = lambda t, mt: ACC + (t * 2 + mt) * 4
    rtp(A, 3, 20)
    O = 96
    for tiles in ((2, 3, 4, 5), (0, 1)):
        for ks in range(16):
            y = YF + 8 * (ks & 1)
            last = ks == 15 and tiles == (0, 1)
            if not last:
                kn = (ks + 1) & 15
                yn = YF + 8 * (kn & 1)
                yrd(yn, kn)
            A("s_waitcnt lgkmcnt(%d)" % (0 if last else 2))
            for t in tiles:
                wf = wqw(t, 0) + 4 * ks
                for mt in range(2):
                    c = "0" if ks == 0 else acc(t, mt)
                    if t < 4: mfma(A, acc(t, mt), wf, y + 4 * mt, c)
                    else: mfma(A, acc(t, mt), y + 4 * mt, wf, c)
            if ks == 15: rtp(A, 4 if tiles != (0, 1) else 5, 20)
            if tiles == (0, 1):
                if ks in (1, 2):
                    mt = ks - 1
                    pack(A, O + 4 * mt, acc(2, mt), acc(3, mt))
                    if mt == 1: sadd64(A, sD, sD, 4096)
                    A("global_store_dwordx4 v%d, v[%d:%d], s[%d:%d] sc1" % (VKST, O + 4 * mt, O + 4 * mt + 3, sD, sD + 1))
                if ks in (3, 4):
                    Tt = ks - 3
                    pack(A, O + 8 + 4 * Tt, acc(4 + Tt, 0), acc(4 + Tt, 1))
                    A("global_store_dwordx4 v%d, v[%d:%d], s[%d:%d] offset:%d sc1" % (VW2K, O + 8 + 4 * Tt, O + 11 + 4 * Tt, sE, sE + 1, 1024 * Tt))
    for q in range(4): A("v_xor_b32 v%d, 32768, v%d" % (VA4 + q, VA4 + q))
    A("s_waitcnt vmcnt(0)")
    rtp(A, 6, 20)
    signal_last(A, W, L_CNT, "global_store_dword v%d, v%d, s[%d:%d] sc1" % (ZERO, ONE, sG, sG + 1))
    rtp(A, 7, 20)
    for mt in range(2):
        pack(A, O + 16 + 4 * mt, acc(0, mt), acc(1, mt))
        if mt == 1: sadd64(A, sF, sF, 4096)
        A("global_store_dwordx4 v%d, v[%d:%d], s[%d:%d] sc1" % (VKST, O + 16 + 4 * mt, O + 19 + 4 * mt, sF, sF + 1))
    rtp(A, 8, 20)
    rts(A, opt, sL, sSEG, 0, W)
    A("s_mov_b64 s[%d:%d], s[%d:%d]" % (sGP, sGP + 1, sG, sG + 1))
    A("s_mov_b32 s%d, s%d" % (sSEG, sNX))
    A("s_cmp_eq_u32 s%d, 2" % sPRE)
    A("s_cbranch_scc1 L_p1_loop")
    A("s_waitcnt vmcnt(0)")
    qflag()
    A("s_mov_b32 s%d, 0" % sPRE)
    A("s_cmp_ge_u32 s%d, 64" % sSEG)
    A("s_cbranch_scc1 L_p1_next")
    wait_flags(A, W, VFL, sA, sleep=1)
    dma(sSEG)
    A("s_branch L_p1_loop")
    A.label("L_p1_next")
    A("s_add_u32 s%d, s%d, 1" % (sL, sL))
    A("s_cmp_lt_u32 s%d, %d" % (sL, opt.get("layers", 2)))
    A("s_cbranch_scc1 L_p1_layer")
    A("s_branch L_end")
    cold.emit(A)

def gen_p2(A, opt):
    cold = Cold()
    NP1, NP2 = opt["NP1"], opt["NP2"]
    VL16, VW2K, VS, VF8, VZR, VZW, VF, VPST, VRLD, VROW, VFL = range(1, 12)
    SEL, BIAS = 12, 16
    VQF, VVF, VOW, VKM, ZERO, PMA, PMB = 24, 25, 26, 27, 29, 28, 30
    W = 32
    RW = 160
    VTW, VTR = 208, 212
    L_TP = 65536
    WO = 256
    SLOT = 24576
    L_Q, L_K, L_V, L_Z, L_O, L_ST = 0, 8192, 16384, 49152, 53248, 61440
    sL, sSEG, sIT, sC = 48, 49, 50, 51
    sA, sB, sCc, sD, sE, sF, sG, sH, sX, sY = 52, 54, 56, 58, 60, 62, 64, 68, 70, 72
    sT, sNX, sPRE, sSLOT = 66, 67, 74, 75
    sDEF, sMM, sKP, sKN = 77, 80, 76, 82
    VFM, VL4, ONE, KE2 = 216, 217, 218, 220
    A.label("L_p2")
    A("s_barrier")
    T = 40
    A("v_and_b32 v%d, 63, v0" % T)
    A("v_and_b32 v%d, 15, v0" % (T + 1))
    A("v_bfe_u32 v%d, v0, 4, 2" % (T + 2))
    A("v_lshlrev_b32 v%d, 4, v%d" % (VL16, T))
    A("v_mov_b32 v%d, v%d" % (VS, VL16))
    A("s_lshl_b32 s40, s%d, 11" % S_WAVE)
    A("v_add_u32 v%d, s40, v%d" % (VW2K, VL16))
    A("s_mov_b32 s%d, s40" % sSLOT)
    A("s_lshl_b32 s41, s%d, 8" % S_WAVE)
    A("v_lshlrev_b32 v%d, 15, v%d" % (VPST, T + 2))
    A("v_lshl_add_u32 v%d, v%d, 4, v%d" % (VPST, T + 1, VPST))
    A("v_add_u32 v%d, s41, v%d" % (VPST, VPST))
    A("s_lshl_b32 s41, s%d, 13" % S_WAVE)
    A("s_add_u32 s41, s41, %d" % L_TP)
    for b in range(4):
        A("v_add_u32 v%d, %d, v%d" % (T + 3, 4 * b, T + 2))
        A("v_xor_b32 v%d, v%d, v%d" % (T + 3, T + 3, T + 1))
        A("v_lshlrev_b32 v%d, 4, v%d" % (T + 3, T + 3))
        A("v_lshl_add_u32 v%d, v%d, 8, v%d" % (T + 3, T + 1, T + 3))
        A("v_add_u32 v%d, s41, v%d" % (VTW + b, T + 3))
        A("v_lshlrev_b32 v%d, 8, v%d" % (T + 4, T + 2))
        A("v_lshl_add_u32 v%d, v%d, 0, v%d" % (T + 3, T + 3, T + 4))
        A("v_lshlrev_b32 v%d, 8, v%d" % (T + 4, T + 1))
        A("v_sub_u32 v%d, v%d, v%d" % (T + 3, T + 3, T + 4))
        A("v_add_u32 v%d, s41, v%d" % (VTR + b, T + 3))
    A("s_lshl_b32 s40, s%d, 10" % S_WAVE)
    A("v_lshlrev_b32 v%d, 3, v%d" % (VZR, T))
    A("v_lshlrev_b32 v%d, 5, v%d" % (VZW, T + 1))
    A("v_lshl_add_u32 v%d, v%d, 3, v%d" % (VZW, T + 2, VZW))
    A("v_add_u32 v%d, s40, v%d" % (VZW, VZW))
    A("v_and_b32 v%d, 1, v0" % VF8)
    A("v_mul_u32_u24 v%d, 0x%x, v%d" % (VF8, F_Q - F_KV, VF8))
    A("s_and_b32 s42, s%d, 1" % S_WAVE)
    A("s_lshr_b32 s43, s%d, 1" % S_WAVE)
    A("s_lshl_b32 s40, s42, 12")
    A("v_add_u32 v%d, s40, v%d" % (VQF, VL16))
    A("s_lshl_b32 s41, s43, 11")
    A("v_add_u32 v%d, s41, v%d" % (VOW, VQF))
    A("s_lshl_b32 s41, s43, 12")
    A("v_add_u32 v%d, s41, v%d" % (VVF, VL16))
    A("v_add_u32 v%d, 8, v%d" % (VKM, VVF))
    A("s_lshl_b32 s40, s42, 4")
    A("v_add_u32 v%d, s40, v%d" % (T + 3, T + 1))
    A("v_lshlrev_b32 v%d, 2, v%d" % (T + 4, T + 2))
    A("v_mov_b32 v%d, 0x%x" % (T + 6, f32bits(-1e30)))
    for kt in range(2):
        for r in range(4):
            A("v_add_u32 v%d, %d, v%d" % (T + 5, 16 * kt + r, T + 4))
            A("v_cmp_gt_u32 vcc, v%d, v%d" % (T + 5, T + 3))
            A.nop(2)
            A("v_cndmask_b32 v%d, 0, v%d, vcc" % (BIAS + 4 * kt + r, T + 6))
    A("v_mov_b64 v[28:29], 0"); A("v_mov_b64 v[30:31], 0")
    sel_const(A, SEL, T + 5)
    reduce_consts(A, VRLD, VROW, VFL, T + 5)
    A("s_mov_b32 s%d, 0x%x" % (sC, f32bits(128 ** -0.5 * LOG2E)))
    A("v_lshrrev_b32 v%d, 2, v%d" % (T + 5, T))
    A("v_lshlrev_b32 v%d, 10, v%d" % (T + 5, T + 5))
    A("v_and_b32 v%d, 3, v%d" % (T + 6, T))
    A("v_lshl_add_u32 v%d, v%d, 4, v%d" % (T + 5, T + 6, T + 5))
    A("s_lshl_b32 s40, s%d, 17" % S_HEAD)
    A("s_lshl_b32 s41, s%d, 8" % S_WAVE)
    A("s_add_u32 s40, s40, s41")
    A("v_add_u32 v%d, s40, v%d" % (T + 5, T + 5))
    A("s_lshl_b32 s46, s%d, 15" % S_WAVE)
    for b in range(4):
        for i in range(8):
            sadd64(A, sA, S_WO, b * 64 + i * 16384)
            A("s_add_u32 s44, s46, %d" % (b * 8192 + i * 1024))
            A("s_mov_b32 m0, s44")
            A("s_nop 0")
            A("global_load_lds_dwordx4 v%d, s[%d:%d]" % (T + 5, sA, sA + 1))
    A("v_bfe_u32 v%d, v0, 2, 2" % (T + 7))
    A("v_add_u32 v%d, v%d, v%d" % (T + 7, T + 7, T + 4))
    A("v_lshlrev_b32 v%d, 6, v%d" % (T + 7, T + 7))
    A("v_lshl_add_u32 v%d, v%d, 4, v%d" % (T + 7, T + 6, T + 7))
    A("v_add_u32 v%d, s46, v%d" % (T + 7, T + 7))
    for b in range(4):
        A("s_waitcnt vmcnt(%d)" % (8 * (3 - b)))
        for P in range(2):
            for f in range(4):
                for hh in range(2):
                    A("ds_read_b64_tr_b16 %s, v%d offset:%d" % (R(WO + ((b * 2 + P) * 4 + f) * 4 + 2 * hh, 2), T + 7, b * 8192 + (32 * f + 16 * hh) * 64 + P * 8))
        A("s_waitcnt lgkmcnt(0)")
    rt_stamp(A, opt, 501, 40, 41)
    A("s_barrier")
    A("s_mov_b32 s%d, 0" % sL)
    A("s_mov_b32 s%d, 0" % sDEF)
    A("s_mov_b64 s[%d:%d], s[%d:%d]" % (sDEF + 1, sDEF + 2, S_WS, S_WS + 1))
    A("v_lshrrev_b32 v%d, 2, v%d" % (VL4, VL16))
    A("v_mov_b32 v%d, 1" % ONE)

    def dma(sseg):
        tile_off(A, 45, sL, sseg)
        for k, off in enumerate((OFF_QX, OFF_KX, OFF_VX)):
            A("s_add_u32 s41, s45, 0x%x" % off); sadd64(A, 42, S_WS, "s41")
            A("s_add_u32 s44, s%d, %d" % (sSLOT, k * 8192))
            A("s_mov_b32 m0, s44")
            A("s_nop 0")
            A("global_load_lds_dwordx4 v%d, s[42:43] sc1" % VW2K)
            A("global_load_lds_dwordx4 v%d, s[42:43] offset:1024 sc1" % VW2K)
        A("s_cmp_ge_u32 s%d, %d" % (sSLOT, SLOT))
        A("s_cselect_b32 s44, %d, %d" % (-SLOT, SLOT)) if False else None
        A("s_mov_b32 s44, %d" % SLOT)
        A("s_cselect_b32 s44, %d, s44" % -SLOT)
        A("s_add_u32 s%d, s%d, s44" % (sSLOT, sSLOT))

    A.label("L_p2_layer")
    A("s_sub_u32 s%d, s%d, %d" % (sSEG, S_GRP, NP1 + 1))
    head_flag(A, sH, F_KV, sL, sSEG, 2)
    A("s_mov_b64 s[%d:%d], 0" % (sMM, sMM + 1))
    A("s_mov_b32 s%d, 0" % sKP)
    A("s_mov_b32 s44, 0")
    head_flag(A, sG, F_M, sL, 44, 2)
    wait_flags(A, W, VF8, sH)
    dma(sSEG)
    A("s_waitcnt vmcnt(0)")
    A.label("L_p2_loop")
    _RTP["opt"] = opt; _RTP["it"] = 50
    rtp(A, 0)
    tile_off(A, sT, sL, sSEG)
    A("s_mov_b32 s47, s40")
    A("s_add_u32 s%d, s%d, %d" % (sNX, sSEG, NP2))
    A("s_min_u32 s44, s%d, 63" % sNX)
    head_flag(A, sH, F_KV, sL, 44, 2)
    A("s_add_u32 s41, s%d, 0x%x" % (sT, OFF_KM)); sadd64(A, sA, S_WS, "s41")
    sadd64(A, sKN, sA, NP2 * 32 * 8192)
    A("s_and_b32 s41, s%d, 1" % sIT)
    A("s_lshl_b32 s43, s%d, 1" % S_GRP)
    A("s_add_u32 s41, s41, s43")
    A("s_lshl_b32 s41, s41, 21")
    A("s_add_u32 s41, s41, 0x%x" % OFF_PW); sadd64(A, sB, S_WS, "s41")
    A("s_lshl_b32 s41, s%d, 10" % S_HEAD); sadd64(A, sCc, sB, "s41")
    A("s_lshl_b32 s41, s%d, 15" % S_HEAD); sadd64(A, sB, sB, "s41")
    A("s_lshl_b32 s41, s47, 7")
    A("s_add_u32 s41, s41, 0x%x" % F_PB); sadd64(A, sE, S_WS, "s41")
    A("s_lshl_b32 s41, s%d, 5" % sSEG)
    A("s_add_u32 s41, s41, s%d" % S_HEAD)
    A("s_lshl_b32 s42, s41, 10")
    A("s_lshl_b32 s43, s%d, 21" % sL)
    A("s_add_u32 s43, s43, s42")
    A("s_add_u32 s43, s43, 0x%x" % OFF_X1); sadd64(A, 44, S_WS, "s43")
    A("global_load_dwordx2 v[%d:%d], v%d, s[44:45] sc1" % (RW + 36, RW + 37, VROW))
    A("s_add_u32 s43, s42, 0x%x" % OFF_Y2); sadd64(A, sY, S_WS, "s43")
    A("s_lshl_b32 s41, s41, 2")
    A("s_add_u32 s41, s41, 0x%x" % F_Y2); sadd64(A, sF, S_WS, "s41")
    A("s_add_u32 s43, s42, 0x%x" % OFF_X2); sadd64(A, sX, S_WS, "s43")
    A("s_cmp_eq_u32 s%d, 0" % sL)
    A("s_cbranch_scc1 L_p2_x2")
    sadd64(A, sX, S_OUT, "s42")
    A.label("L_p2_x2")
    A("global_load_dword v%d, v%d, s[%d:%d] sc1" % (VF, VF8, sH, sH + 1))
    KE, VM = 96, 100
    def km_loads(k, m, sp):
        A("global_load_dwordx2 v[%d:%d], v%d, s[%d:%d] sc1" % (k, k + 1, VW2K, sp, sp + 1))
        A("global_load_dwordx2 v[%d:%d], v%d, s[%d:%d] sc1" % (m, m + 1, VKM, sp, sp + 1))
        A("global_load_dwordx2 v[%d:%d], v%d, s[%d:%d] offset:2048 sc1" % (m + 2, m + 3, VKM, sp, sp + 1))
    A("s_cmp_eq_u32 s%d, 0" % sKP)
    A("s_cbranch_scc1 L_p2_kmwait")
    A("v_mov_b64 v[%d:%d], v[%d:%d]" % (KE, KE + 1, KE2, KE2 + 1))
    A("v_mov_b64 v[%d:%d], v[%d:%d]" % (VM, VM + 1, KE2 + 2, KE2 + 3))
    A("v_mov_b64 v[%d:%d], v[%d:%d]" % (VM + 2, VM + 3, KE2 + 4, KE2 + 5))
    A("global_load_dword v%d, v%d, s[%d:%d] sc1" % (VFM, VL4, sG, sG + 1))
    A.label("L_p2_kmok")
    def blk(A):
        A.label("L_p2_kmwait")
        A("global_load_dword v%d, v%d, s[%d:%d] sc1" % (VFM, VL4, sG, sG + 1))
        A("s_waitcnt vmcnt(0)")
        flush_deferred(A, sDEF, VL16, ONE)
        A("v_cmp_ne_u32 s[%d:%d], 0, v%d" % (sMM, sMM + 1, VFM))
        A("s_bitcmp1_b64 s[%d:%d], s%d" % (sMM, sMM + 1, sSEG))
        A("s_cbranch_scc1 L_p2_kmgo")
        A("s_sleep %d" % ZZ[0])
        spin_guard(A)
        A("s_branch L_p2_kmwait")
        A.label("L_p2_kmgo")
        km_loads(KE, VM, sA)
        A("s_branch L_p2_kmok")
    cold.add(blk)
    rts(A, opt, sL, sSEG, 128, W)
    rtp(A, 1)
    A("s_barrier")
    QF, ZF, KF, VFR = 32, 48, 64, 128
    S0, S1, S2 = 104, 108, 112
    A("v_add_u32 v%d, v%d, v%d" % (116, VS, VQF))
    A("v_sub_u32 v%d, v%d, v%d" % (116, 116, VL16))
    A("v_add_u32 v%d, v%d, v%d" % (117, VS, VVF))
    A("v_sub_u32 v%d, v%d, v%d" % (117, 117, VL16))
    for dc in range(4): rd128(A, QF + 4 * dc, 116, L_Q + dc * 1024)
    for i in range(8): rd128(A, KF + 4 * i, VS, L_K + i * 1024)
    A("v_mov_b32 v%d, 0" % (KE + 3))
    A("s_waitcnt lgkmcnt(4)")
    for dc in range(4): mfma(A, S1, KF + 4 * dc, QF + 4 * dc, BIAS if dc == 0 else S1)
    A("s_waitcnt lgkmcnt(0)")
    for i in range(4): rd128(A, VFR + 4 * i, 117, L_V + i * 1024)
    for dc in range(4): mfma(A, S2, KF + 16 + 4 * dc, QF + 4 * dc, BIAS + 4 if dc == 0 else S2)
    A("s_cmp_lg_u32 s%d, 0" % sKP)
    A("s_cbranch_scc1 L_p2_kmin")
    A("s_waitcnt vmcnt(0)")
    A.label("L_p2_kmin")
    rtp(A, 2)
    A("v_mov_b32 v%d, v%d" % (KE + 2, KE + 1))
    A("v_mov_b32 v%d, 0" % (KE + 1))
    A("ds_write_b64 v%d, v[%d:%d] offset:%d" % (VZW, KE, KE + 1, L_Z))
    A("ds_write_b64 v%d, v[%d:%d] offset:%d" % (VZW, KE + 2, KE + 3, L_Z + 512))
    A("s_waitcnt lgkmcnt(0)")
    A("s_barrier")
    for dc in range(4):
        for Tt in range(2):
            A("ds_read_b64_tr_b16 v[%d:%d], v%d offset:%d" % (ZF + 4 * dc + 2 * Tt, ZF + 4 * dc + 2 * Tt + 1, VZR, L_Z + dc * 1024 + Tt * 512))
    A("s_waitcnt lgkmcnt(0)")
    for dc in range(4): mfma(A, S0, ZF + 4 * dc, QF + 4 * dc, "0" if dc == 0 else S0)
    rtp(A, 3)
    M0_, M1_, T0_, T1_, LS, LT, PX = 116, 117, 118, 119, 120, 121, 124
    A("v_max3_f32 v%d, v%d, v%d, v%d" % (M0_, S1, S1 + 1, S1 + 2))
    A("v_max3_f32 v%d, v%d, v%d, v%d" % (M1_, S1 + 3, S2, S2 + 1))
    A("v_max3_f32 v%d, v%d, v%d, v%d" % (M0_, M0_, S2 + 2, S2 + 3))
    A("v_xor_b32 v%d, %d, v%d" % (VS, SLOT, VS))
    A.nop(4)
    A("v_max3_f32 v%d, v%d, v%d, v%d" % (M1_, M1_, S0, S0 + 1))
    A("v_max_f32 v%d, v%d, v%d" % (T0_, M0_, M1_))
    A("v_max_f32 v%d, v%d, v%d" % (T1_, M0_, M1_))
    A.nop(2)
    A("v_permlane32_swap_b32 v%d, v%d" % (T0_, T1_))
    A("v_max_f32 v%d, v%d, v%d" % (M0_, T0_, T1_))
    A("v_max_f32 v%d, v%d, v%d" % (M1_, T0_, T1_))
    A.nop(2)
    A("v_permlane16_swap_b32 v%d, v%d" % (M0_, M1_))
    A("v_max_f32 v%d, v%d, v%d" % (M0_, M0_, M1_))
    A("v_mul_f32 v%d, s%d, v%d" % (M0_, sC, M0_))
    sregs = [S1 + r for r in range(4)] + [S2 + r for r in range(4)] + [S0, S0 + 1]
    for r in sregs: A("v_fma_f32 v%d, v%d, s%d, -v%d" % (r, r, sC, M0_))
    for r in sregs: A("v_exp_f32 v%d, v%d" % (r, r))
    cvt(A, PX, S1, S1 + 1); cvt(A, PX + 1, S1 + 2, S1 + 3); cvt(A, PX + 2, S2, S2 + 1); cvt(A, PX + 3, S2 + 2, S2 + 3)
    cvt(A, PMA, S0, S0 + 1); cvt(A, PMB + 1, S0, S0 + 1)
    OC = 64
    for i in range(4): mfma(A, OC + 4 * i, VFR + 4 * i, PX, "0")
    A("v_add_f32 v%d, v%d, v%d" % (LS, S1, S1 + 1))
    A("v_add_f32 v%d, v%d, v%d" % (LT, S1 + 2, S1 + 3))
    for a_, b_ in ((S2, S2 + 1), (S2 + 2, S2 + 3), (S0, S0 + 1)):
        A("v_add_f32 v%d, v%d, v%d" % (LS, LS, a_)); A("v_add_f32 v%d, v%d, v%d" % (LT, LT, b_))
    for i in range(4): mfma(A, OC + 4 * i, VM + 2 * (i >> 1), PMA if (i & 1) == 0 else PMB, OC + 4 * i, k32=False)
    A("v_add_f32 v%d, v%d, v%d" % (LS, LS, LT))
    swap_sum(A, LS, LT, 32); swap_sum(A, LS, LT, 16)
    A("v_rcp_f32 v%d, v%d" % (LS, LS))
    A.nop(1)
    for r in range(0, 16, 2):
        A("v_pk_mul_f32 v[%d:%d], v[%d:%d], v[%d:%d] op_sel_hi:[1,0]" % (OC + r, OC + r + 1, OC + r, OC + r + 1, LS, LS + 1))
    for f in range(2):
        pack(A, 32 + 4 * f, OC + 8 * f, OC + 8 * f + 4)
        A("ds_write_b128 v%d, v[%d:%d] offset:%d" % (VOW, 32 + 4 * f, 35 + 4 * f, L_O + f * 1024))
    rtp(A, 4)
    A("s_mov_b32 s%d, 0" % sPRE)
    A("s_mov_b32 s%d, 0" % sKP)
    A("s_waitcnt vmcnt(0)")
    A("v_cmp_eq_u32 vcc, 0, v%d" % VF)
    flush_deferred(A, sDEF, VL16, ONE)
    A("v_cmp_ne_u32 s[%d:%d], 0, v%d" % (sMM, sMM + 1, VFM))
    A("s_cmp_ge_u32 s%d, 64" % sNX)
    A("s_cbranch_scc1 L_p2_nopre")
    A("s_cbranch_vccnz L_p2_nopre")
    dma(sNX)
    A("s_mov_b32 s%d, 1" % sPRE)
    A("s_bitcmp0_b64 s[%d:%d], s%d" % (sMM, sMM + 1, sNX))
    A("s_cbranch_scc1 L_p2_nopre")
    km_loads(KE2, KE2 + 2, sKN)
    A("s_mov_b32 s%d, 1" % sKP)
    A.label("L_p2_nopre")
    A("s_waitcnt lgkmcnt(0)")
    A("s_barrier")
    OF, PA = 32, 64
    rtp(A, 5)
    for f in range(4):
        for qt in range(2): rd128(A, OF + (qt * 4 + f) * 4, VL16, L_O + (qt * 4 + f) * 1024)
    def out_ops(b):
        ops = []
        for qt in range(2):
            a0 = PA + b * 16 + qt * 8
            ops += [lambda a0=a0: cvt(A, a0, a0, a0 + 1), lambda a0=a0: cvt(A, a0 + 1, a0 + 2, a0 + 3),
                    lambda a0=a0: cvt(A, a0 + 2, a0 + 4, a0 + 5), lambda a0=a0: cvt(A, a0 + 3, a0 + 6, a0 + 7)]
            ops.append(lambda a0=a0, qt=qt: A("ds_write_b128 v%d, v[%d:%d] offset:%d" % (VTW + b, a0, a0 + 3, qt * 4096)))
        return ops
    pend = []
    for b in range(4):
        n = 0
        for f in range(4):
            if b == 0: A("s_waitcnt lgkmcnt(%d)" % (6 - 2 * f))
            for P in range(2):
                for qt in range(2):
                    d = PA + b * 16 + qt * 8 + P * 4
                    mfma(A, d, WO + ((b * 2 + P) * 4 + f) * 4, OF + (qt * 4 + f) * 4, "0" if f == 0 else d)
                    n += 1
                    if n > 5 and pend: pend.pop(0)()
        assert not pend
        pend = out_ops(b)
    A.nop(8)
    for o in pend: o()
    rtp(A, 6)
    for i in range(8): rd128(A, 32 + 4 * i, VTR + (i & 3), i * 1024)
    for i in range(8):
        A("s_waitcnt lgkmcnt(%d)" % (7 - i))
        store_mixed(A, cold, ["global_store_dwordx4 v%d, v[%d:%d], s[%d:%d]" % (VPST, 32 + 4 * i, 35 + 4 * i, sCc, sCc + 1)])
        if i < 7: sadd64(A, sCc, sCc, 4 * 32768)
    publish_partials(A, cold, 64, sE)
    reduce_row(A, cold, RW, SEL, VRLD, VROW, VFL, VL16, sB, sE, None, sX, sY, sF, L_ST,
               lambda A: A("s_cmp_eq_u32 s%d, 1" % sL), defer=sDEF)
    rtp(A, 14)
    rts(A, opt, sL, sSEG, 256, W)
    A("s_add_u32 s%d, s%d, 1" % (sIT, sIT))
    A("s_mov_b32 s%d, s%d" % (sSEG, sNX))
    A("s_cmp_eq_u32 s%d, 1" % sPRE)
    A("s_cbranch_scc1 L_p2_loop")
    A("s_waitcnt vmcnt(0)")
    flush_deferred(A, sDEF, VL16, ONE)
    A("s_cmp_ge_u32 s%d, 64" % sSEG)
    A("s_cbranch_scc1 L_p2_next")
    wait_flags(A, W, VF8, sH)
    dma(sSEG)
    A("s_waitcnt vmcnt(0)")
    A("s_branch L_p2_loop")
    A.label("L_p2_next")
    A("s_add_u32 s%d, s%d, 1" % (sL, sL))
    A("s_cmp_lt_u32 s%d, %d" % (sL, opt.get("layers", 2)))
    A("s_cbranch_scc1 L_p2_layer")
    A("s_branch L_end")
    cold.emit(A)

def gen_aworker(A, opt):
    cold = Cold()
    NP1, NP2, NA = opt["NP1"], opt["NP2"], opt["NA"]
    NA0 = NA + NP2
    VL16, VL8, VYA, VPST, VRLD, VROW, VFL, VAF, ZERO, VPQ = range(1, 11)
    SEL, ONES = 12, 16
    KVA, ZA = 18, 20
    KV, ZS = 24, 28
    W = 32
    WO = 128
    RW = 160
    WQ = 256
    L_W, L_WOI, L_PQ, L_ST = 0, 49152, 131072, 32768
    VA4, VTW, VTR = 208, 212, 220
    sL, sSEG, sIT, sI, sAG = 48, 49, 50, 51, 66
    sA, sB, sCc, sD, sE, sF, sG = 52, 54, 56, 58, 60, 62, 64
    sLE, sNA = 67, 68
    A.label("L_aworker")
    A("s_sub_u32 s%d, 7, s%d" % (sAG, S_GRP))
    A("s_mov_b32 s%d, %d" % (sNA, NA0))
    prepass0(A, sAG, NA0)
    T = 40
    A("v_and_b32 v%d, 63, v0" % T)
    A("v_and_b32 v%d, 15, v0" % (T + 1))
    A("v_bfe_u32 v%d, v0, 4, 2" % (T + 2))
    A("v_lshlrev_b32 v%d, 4, v%d" % (VL16, T))
    A("v_lshlrev_b32 v%d, 3, v%d" % (VL8, T))
    A("s_and_b32 s42, s%d, 1" % S_WAVE)
    A("s_lshr_b32 s43, s%d, 1" % S_WAVE)
    frag_addrs(A, VA4, T + 3)
    A("s_lshl_b32 s40, s%d, 15" % S_WAVE)
    for q in range(4): A("v_add_u32 v%d, s40, v%d" % (VA4 + q, VA4 + q))
    A("v_lshrrev_b32 v%d, 5, v%d" % (T + 3, T))
    A("v_and_b32 v%d, 31, v%d" % (T + 4, T))
    A("s_lshl_b32 s40, s42, 19")
    A("s_lshl_b32 s41, s43, 9")
    A("s_add_u32 s40, s40, s41")
    A("v_lshlrev_b32 v%d, 15, v%d" % (VPST, T + 3))
    A("v_lshl_add_u32 v%d, v%d, 4, v%d" % (VPST, T + 4, VPST))
    A("v_add_u32 v%d, s40, v%d" % (VPST, VPST))
    A("s_lshl_b32 s41, s%d, 13" % S_WAVE)
    for b in range(8):
        A("v_add_u32 v%d, %d, v%d" % (T + 5, 4 * b, T + 2))
        A("v_xor_b32 v%d, v%d, v%d" % (T + 5, T + 5, T + 1))
        A("v_lshlrev_b32 v%d, 4, v%d" % (T + 5, T + 5))
        A("v_lshl_add_u32 v%d, v%d, 9, v%d" % (T + 5, T + 1, T + 5))
        A("v_add_u32 v%d, s41, v%d" % (VTW + b, T + 5))
    for i in range(8):
        A("v_add_u32 v%d, %d, v%d" % (T + 5, 2 * i, T + 3))
        A("v_xor_b32 v%d, v%d, v%d" % (T + 6, T + 5, T + 4))
        A("v_lshlrev_b32 v%d, 4, v%d" % (T + 6, T + 6))
        A("v_lshl_add_u32 v%d, v%d, 9, v%d" % (T + 6, T + 5, T + 6))
        A("v_add_u32 v%d, s41, v%d" % (VTR + i, T + 6))
    A("s_lshl_b32 s40, s42, 9")
    A("s_add_u32 s40, s40, %d" % L_PQ)
    A("v_add_u32 v%d, s40, v%d" % (VPQ, VL8))
    A("v_mov_b32 v%d, 0" % ZERO)
    A("v_mov_b32 v%d, 0x3f803f80" % ONES)
    A("v_mov_b32 v%d, 0x3f803f80" % (ONES + 1))
    A("s_mov_b32 s%d, 0x%x" % (sLE, f32bits(LOG2E)))
    sel_const(A, SEL, T + 3)
    reduce_consts(A, VRLD, VROW, VFL, T + 3)
    A("s_lshl_b32 s44, s%d, 12" % S_WAVE)
    A("s_lshl_b32 s40, s%d, 14" % S_HEAD)
    A("s_add_u32 s40, s40, s44")
    sadd64(A, sA, S_AWO, "s40")
    A("s_add_u32 s45, s44, %d" % L_WOI)
    A("s_mov_b32 m0, s45")
    A("s_nop 0")
    for i in range(4): A("global_load_lds_dwordx4 v%d, s[%d:%d] offset:%d" % (VL16, sA, sA + 1, i * 1024))
    A("v_bfe_u32 v%d, v0, 2, 2" % (T + 4))
    A("v_and_b32 v%d, 3, v0" % (T + 5))
    A("v_mul_u32_u24 v%d, 768, v%d" % (T + 6, T + 2))
    A("v_lshl_add_u32 v%d, v%d, 5, v%d" % (T + 6, T + 4, T + 6))
    A("v_lshl_add_u32 v%d, v%d, 3, v%d" % (T + 6, T + 5, T + 6))
    A("v_lshl_add_u32 v%d, v%d, 2, v%d" % (T + 7, T + 2, T + 4))
    A("v_lshlrev_b32 v%d, 10, v%d" % (T + 7, T + 7))
    A("v_lshl_add_u32 v%d, v%d, 4, v%d" % (T + 7, T + 5, T + 7))
    A("s_lshl_b32 s41, s43, 9")
    A("s_add_u32 s41, s41, %d" % L_WOI)
    A("v_add_u32 v%d, s41, v%d" % (T + 7, T + 7))
    prepass1(A, True)
    rt_stamp(A, opt, 491, 110, 111)
    opt["arrive"](A, "own")
    rt_stamp(A, opt, 492, 110, 111)
    opt["init_wait"](A)
    rt_stamp(A, opt, 493, 110, 111)
    A("s_mul_i32 s40, s%d, 49152" % S_HEAD)
    A("s_mul_i32 s44, s%d, 12288" % S_WAVE)
    A("s_add_u32 s40, s40, s44")
    A("s_add_u32 s40, s40, 0x%x" % OFF_WP)
    sadd64(A, sA, S_WS, "s40")
    for qd in range(3):
        A("s_mov_b32 m0, s44")
        A("s_add_u32 s44, s44, 4096")
        for i in range(4): A("global_load_lds_dwordx4 v%d, s[%d:%d] offset:%d sc1" % (VL16, sA, sA + 1, i * 1024))
        if qd < 2: sadd64(A, sA, sA, 4096)
    A("s_waitcnt vmcnt(0)")
    rt_stamp(A, opt, 494, 110, 111)
    A("s_barrier")
    for t in range(3):
        for ks in range(16):
            for hh in range(2):
                A("ds_read_b64_tr_b16 %s, v%d offset:%d" % (R(WQ + (t * 16 + ks) * 4 + 2 * hh, 2), T + 6, L_W + ks * 3072 + t * 256 + hh * 128))
            if ks % 4 == 3: A("s_waitcnt lgkmcnt(0)")
    for b in range(8):
        for P in range(2):
            A("ds_read_b64_tr_b16 %s, v%d offset:%d" % (v(WO + (b * 2 + P) * 2, 2), T + 7, b * 64 + P * 8))
    A("s_waitcnt lgkmcnt(0)")
    rt_stamp(A, opt, 501, 40, 41)
    opt["init_wait"](A, kind="own")
    rt_stamp(A, opt, 502, 40, 41)
    A("s_mov_b32 s%d, 0" % sL)
    A("s_mov_b32 s%d, 0" % sIT)

    A.label("L_aw_layer")
    A("s_barrier")
    for r in range(0, 8, 2): A("v_mov_b64 v[%d:%d], 0" % (KV + r, KV + r + 1))
    A("s_lshr_b32 s%d, s%d, 1" % (sI, S_WAVE))
    YB = [0, 16384]
    YF = 32
    Q, K, V, E = 96, 100, 104, 112
    def seg_of(dst, add):
        A("s_add_u32 s%d, s%d, %d" % (dst, sI, add))
        A("s_mul_i32 s%d, s%d, s%d" % (dst, dst, sNA))
        A("s_add_u32 s%d, s%d, s%d" % (dst, dst, sAG))
    def y_loads(buf, sseg, flags):
        A("s_lshl_b32 s41, s%d, 15" % sseg)
        A("s_and_b32 s42, s%d, 1" % S_WAVE)
        A("s_lshl_b32 s42, s42, 14")
        A("s_add_u32 s41, s41, s42")
        A("s_add_u32 s41, s41, 0x%x" % (OFF_Y2 if flags else OFF_Y0)); sadd64(A, sA, S_WS, "s41")
        A("s_lshl_b32 s43, s%d, 15" % S_WAVE)
        for qd in range(4):
            A("s_add_u32 s42, s43, %d" % (buf + qd * 4096))
            A("s_mov_b32 m0, s42")
            if qd: sadd64(A, sA, sA, 4096)
            else: A("s_nop 0")
            for i in range(4): A("global_load_lds_dwordx4 v%d, s[%d:%d] offset:%d sc1" % (VL16, sA, sA + 1, i * 1024))
    def phi(X):
        for r in range(4):
            A("v_mul_f32 v%d, s%d, v%d" % (E + r, sLE, X + r))
            A("v_min_f32 v%d, 0, v%d" % (E + r, E + r))
        for r in range(4): A("v_exp_f32 v%d, v%d" % (E + r, E + r))
        for r in range(4): A("v_max_f32 v%d, 0, v%d" % (X + r, X + r))
        for r in range(4): A("v_add_f32 v%d, 0x%x, v%d" % (E + r, f32bits(1e-6), E + r))
        for r in range(4): A("v_add_f32 v%d, v%d, v%d" % (X + r, X + r, E + r))
    def unit(buf, younger):
        A("s_waitcnt vmcnt(%d)" % younger)
        for ks in range(16):
            rd128(A, YF + 4 * ks, VA4 + (ks & 3), buf + (ks >> 2) * 256)
            if ks == 7: break
        for ks in range(16):
            if ks + 8 < 16: rd128(A, YF + 4 * (ks + 8), VA4 + (ks & 3), buf + ((ks + 8) >> 2) * 256)
            A("s_waitcnt lgkmcnt(%d)" % min(8, 15 - ks))
            mfma(A, K, YF + 4 * ks, WQ + (16 + ks) * 4, "0" if ks == 0 else K)
            mfma(A, Q, WQ + ks * 4, YF + 4 * ks, "0" if ks == 0 else Q)
            mfma(A, V, YF + 4 * ks, WQ + (32 + ks) * 4, "0" if ks == 0 else V)
        A("s_lshl_b32 s41, s%d, 10" % sI)
        A("v_add_u32 v108, s41, v%d" % VPQ)
        A.nop(5)
        phi(K)
        cvt(A, 116, K, K + 1); cvt(A, 117, K + 2, K + 3)
        cvt(A, 118, V, V + 1); cvt(A, 119, V + 2, V + 3)
        phi(Q)
        mfma(A, KV, 116, 118, KV, k32=False)
        mfma(A, ZS, 116, ONES, ZS, k32=False)
        cvt(A, 120, Q, Q + 1); cvt(A, 121, Q + 2, Q + 3)
        A("ds_write_b64 v108, v[120:121]")
        rts(A, dict(opt, rt=opt.get("rt") and younger == 0), sL, sSEG, 0, 122)
        A("s_add_u32 s%d, s%d, 2" % (sI, sI))
    A("s_cmp_lg_u32 s%d, 0" % sL)
    A("s_cbranch_scc1 L_aw_s1f")
    seg_of(sSEG, 0)
    y_loads(YB[0], sSEG, False)
    A.label("L_aw_s1")
    for par in range(2):
        seg_of(44, 2)
        A("s_cmp_ge_u32 s44, 64")
        A("s_cbranch_scc1 L_aw_s1t%d" % par)
        y_loads(YB[1 - par], 44, False)
        unit(YB[par], 16)
    A("s_branch L_aw_s1")
    for par in range(2):
        A.label("L_aw_s1t%d" % par)
        seg_of(sSEG, 0)
        unit(YB[par], 0)
        A("s_branch L_aw_s1done")
    A.label("L_aw_s1f")
    seg_of(sSEG, 0)
    A("s_cmp_ge_u32 s%d, 64" % sSEG)
    A("s_cbranch_scc1 L_aw_s1done")
    A("s_lshl_b32 s42, s%d, 7" % sSEG)
    A("s_add_u32 s42, s42, 0x%x" % F_Y2); sadd64(A, sA, S_WS, "s42")
    wait_flags(A, W, VFL, sA, sleep=1)
    y_loads(YB[0], sSEG, True)
    unit(YB[0], 0)
    A("s_branch L_aw_s1f")
    A.label("L_aw_s1done")
    A("s_lshl_b32 s41, s%d, 5" % sL)
    A("s_add_u32 s41, s41, s%d" % S_HEAD)
    A("s_lshl_b32 s42, s41, 5")
    A("s_add_u32 s42, s42, 0x%x" % F_AKV); sadd64(A, sB, S_WS, "s42")
    A("s_sub_u32 s44, s%d, 1" % sNA)
    A("v_lshrrev_b32 v%d, 4, v%d" % (VAF, VL16))
    A("v_min_u32 v%d, s44, v%d" % (VAF, VAF))
    A("v_lshlrev_b32 v%d, 2, v%d" % (VAF, VAF))
    A("s_lshl_b32 s41, s41, 14")
    A("s_add_u32 s41, s41, 0x%x" % OFF_AKV); sadd64(A, sA, S_WS, "s41")
    A("s_lshl_b32 s43, s%d, 11" % sAG); sadd64(A, sCc, sA, "s43")
    A("s_lshl_b32 s42, s%d, 15" % S_WAVE)
    A("v_add_u32 v%d, s42, v%d" % (W, VL16))
    A.nop(3)
    A("ds_write_b128 v%d, v[%d:%d]" % (W, KV, KV + 3))
    A("ds_write_b128 v%d, v[%d:%d] offset:1024" % (W, ZS, ZS + 3))
    A("s_waitcnt lgkmcnt(0)")
    A("s_barrier")
    A("s_cmp_lg_u32 s%d, 0" % S_WAVE)
    A("s_cbranch_scc1 L_aw_nopub")
    A("v_add_u32 v%d, 0x10000, v%d" % (W, VL16))
    for k, (ad, off) in enumerate(((VL16, 32768), (W, 0), (W, 32768))):
        rd128(A, W + 8 + 8 * k, ad, off); rd128(A, W + 12 + 8 * k, ad, off + 1024)
    A("s_lshl_b32 s42, s%d, 2" % sAG)
    A("v_mov_b32 v%d, s42" % (W + 2))
    A("v_mov_b32 v%d, 1" % (W + 3))
    A("s_waitcnt lgkmcnt(0)")
    for k in range(3):
        for r in range(0, 8, 2):
            A("v_pk_add_f32 v[%d:%d], v[%d:%d], v[%d:%d]" % (KV + r, KV + r + 1, KV + r, KV + r + 1, W + 8 + 8 * k + r, W + 9 + 8 * k + r))
    A("global_store_dwordx4 v%d, v[%d:%d], s[%d:%d] sc1" % (VL16, KV, KV + 3, sCc, sCc + 1))
    A("global_store_dwordx4 v%d, v[%d:%d], s[%d:%d] offset:1024 sc1" % (VL16, ZS, ZS + 3, sCc, sCc + 1))
    A("s_waitcnt vmcnt(0)")
    one_lane(A, "global_store_dword v%d, v%d, s[%d:%d] sc1" % (W + 2, W + 3, sB, sB + 1))
    A.label("L_aw_nopub")
    wait_flags(A, W, VAF, sB, sleep=1)
    def gather(first, n):
        for p in range(first, first + n):
            if p and p % 2 == 0: sadd64(A, sA, sA, 4096)
            for k in range(2):
                A("global_load_dwordx4 v[%d:%d], v%d, s[%d:%d] offset:%d sc1" % (W + 8 * p + 4 * k, W + 8 * p + 4 * k + 3, VL16, sA, sA + 1, (p & 1) * 2048 + k * 1024))
    def accum(ps):
        for p in ps:
            for r in range(0, 8, 2):
                A("v_pk_add_f32 v[%d:%d], v[%d:%d], v[%d:%d]" % (W + r, W + r + 1, W + r, W + r + 1, W + 8 * p + r, W + 8 * p + r + 1))
    gather(0, NA)
    A("s_cmp_lg_u32 s%d, 0" % sL)
    A("s_cbranch_scc1 L_aw_g1")
    gather(NA, NA0 - NA)
    A("s_waitcnt vmcnt(0)")
    accum(range(NA, NA0))
    A.label("L_aw_g1")
    A("s_waitcnt vmcnt(0)")
    accum(range(1, NA))
    A("s_barrier")
    cvt(A, KVA, W, W + 1); cvt(A, KVA + 1, W + 2, W + 3); cvt(A, ZA, W + 4, W + 5); cvt(A, ZA + 1, W + 6, W + 7)
    if opt.get("rt"):
        A("s_add_u32 s97, s%d, 400" % sL)
        rt_stamp(A, opt, "s97", W + 2, W + 3)
    A("s_mov_b32 s%d, 0" % sI)
    A("s_mov_b32 s%d, s%d" % (sSEG, sAG))
    A.label("L_aw_s2")
    rtp(A, 0, 230)
    A("s_lshl_b32 s41, s%d, 10" % sI)
    A("v_add_u32 v%d, s41, v%d" % (W, VPQ))
    A("ds_read_b64 v[%d:%d], v%d" % (W + 2, W + 3, W))
    A("s_and_b32 s41, s%d, 1" % sIT)
    A("s_lshl_b32 s43, s%d, 1" % S_GRP)
    A("s_add_u32 s41, s41, s43")
    A("s_lshl_b32 s41, s41, 21")
    A("s_add_u32 s41, s41, 0x%x" % OFF_PW); sadd64(A, sB, S_WS, "s41")
    A("s_lshl_b32 s41, s%d, 10" % S_HEAD); sadd64(A, sCc, sB, "s41")
    A("s_lshl_b32 s41, s%d, 15" % S_HEAD); sadd64(A, sB, sB, "s41")
    A("s_lshl_b32 s47, s%d, 6" % sL)
    A("s_add_u32 s47, s47, s%d" % sSEG)
    A("s_lshl_b32 s41, s47, 7")
    A("s_add_u32 s41, s41, 0x%x" % F_PA); sadd64(A, sE, S_WS, "s41")
    A("s_lshl_b32 s41, s%d, 5" % sSEG)
    A("s_add_u32 s41, s41, s%d" % S_HEAD)
    A("s_lshl_b32 s42, s41, 10")
    A("s_lshl_b32 s43, s%d, 21" % sL)
    A("s_add_u32 s43, s43, s42")
    A("s_add_u32 s44, s43, 0x%x" % OFF_X1); sadd64(A, sG, S_WS, "s44")
    A("s_add_u32 s44, s43, 0x%x" % OFF_Y1); sadd64(A, sD, S_WS, "s44")
    A("s_lshl_b32 s44, s47, 5")
    A("s_add_u32 s44, s44, s%d" % S_HEAD)
    A("s_lshl_b32 s44, s44, 2")
    A("s_add_u32 s44, s44, 0x%x" % F_X1); sadd64(A, sF, S_WS, "s44")
    A("s_add_u32 s44, s42, 0x%x" % OFF_X2); sadd64(A, sA, S_WS, "s44")
    A("s_cmp_lg_u32 s%d, 0" % sL)
    A("s_cbranch_scc1 L_aw_res")
    sadd64(A, sA, S_AX, "s42")
    A.label("L_aw_res")
    A("global_load_dwordx2 v[%d:%d], v%d, s[%d:%d] sc1" % (RW + 36, RW + 37, VROW, sA, sA + 1))
    A("s_waitcnt lgkmcnt(0)")
    NU, DE = W + 4, W + 8
    mfma(A, DE, ZA, W + 2, "0", k32=False)
    mfma(A, NU, KVA, W + 2, "0", k32=False)
    A.nop(7)
    A("v_add_f32 v%d, 0x%x, v%d" % (DE, f32bits(1e-6), DE))
    A("v_rcp_f32 v%d, v%d" % (DE, DE))
    A.nop(1)
    for r in (0, 2):
        A("v_pk_mul_f32 v[%d:%d], v[%d:%d], v[%d:%d] op_sel_hi:[1,0]" % (NU + r, NU + r + 1, NU + r, NU + r + 1, DE, DE + 1))
    cvt(A, W + 2, NU, NU + 1); cvt(A, W + 3, NU + 2, NU + 3)
    A.nop(2)
    PA = W + 16
    rtp(A, 5, 230)
    for i in range(16): mfma(A, PA + 4 * i, WO + 2 * i, W + 2, "0", k32=False)
    for b in range(8):
        a0 = PA + 8 * b
        if b == 6: A.nop(2)
        cvt(A, a0, a0, a0 + 1); cvt(A, a0 + 1, a0 + 2, a0 + 3); cvt(A, a0 + 2, a0 + 4, a0 + 5); cvt(A, a0 + 3, a0 + 6, a0 + 7)
        A("ds_write_b128 v%d, v[%d:%d]" % (VTW + b, a0, a0 + 3))
    for i in range(8): rd128(A, PA + 4 * i, VTR + i, 0)
    for i in range(8):
        A("s_waitcnt lgkmcnt(%d)" % (7 - i))
        store_mixed(A, cold, ["global_store_dwordx4 v%d, v[%d:%d], s[%d:%d]" % (VPST, PA + 4 * i, PA + 4 * i + 3, sCc, sCc + 1)])
        if i < 7: sadd64(A, sCc, sCc, 2 * 32768)
    publish_partials(A, cold, W, sE)
    reduce_row(A, cold, RW, SEL, VRLD, VROW, VFL, VL16, sB, sE, None, sG, sD, sF, L_ST,
               lambda A: A("s_cmp_eq_u32 s%d, 2" % sL))
    rtp(A, 14, 230)
    rts(A, opt, sL, sSEG, 256, W)
    A("s_add_u32 s%d, s%d, 1" % (sIT, sIT))
    A("s_add_u32 s%d, s%d, 1" % (sI, sI))
    A("s_add_u32 s%d, s%d, s%d" % (sSEG, sSEG, sNA))
    A("s_cmp_lt_u32 s%d, 64" % sSEG)
    A("s_cbranch_scc1 L_aw_s2")
    A("s_cmp_ge_u32 s%d, %d" % (sAG, NA))
    A("s_cbranch_scc1 L_p2")
    A("s_mov_b32 s%d, %d" % (sNA, NA))
    A("s_add_u32 s%d, s%d, 1" % (sL, sL))
    A("s_cmp_lt_u32 s%d, %d" % (sL, opt.get("layers", 2)))
    A("s_cbranch_scc1 L_aw_layer")
    A("s_branch L_end")
    cold.emit(A)
```

```python
import sys
from common import *
import chain, workers

HEADER = open('cdna_kernels/%s.s.ref' % NAME).read().split('; Override launch')[0]

def prologue(A, opt):
    A("s_cmp_ge_u32 s2, 256")
    A("s_cbranch_scc1 L_end")
    A("s_mov_b32 s%d, 0" % S_SPIN)
    A("s_load_dwordx4 s[8:11], s[0:1], 0")
    A("s_load_dwordx2 s[12:13], s[0:1], 16")
    A("s_load_dwordx4 s[16:19], s[0:1], 32")
    A("s_load_dwordx4 s[20:23], s[0:1], 48")
    A("s_load_dwordx2 s[24:25], s[0:1], 64")
    A("s_load_dwordx4 s[28:31], s[0:1], 80")
    A("s_load_dwordx2 s[4:5], s[0:1], 96")
    if opt.get("rt"): A("s_memrealtime s[90:91]")
    A("s_getreg_b32 s36, hwreg(HW_REG_XCC_ID)")
    A("s_and_b32 s36, s36, 15")
    A("s_mov_b32 s%d, s36" % S_GRP)
    A("v_lshrrev_b32 v1, 6, v0")
    A("s_nop 0")
    A("v_readfirstlane_b32 s%d, v1" % S_WAVE)
    A("s_waitcnt lgkmcnt(0)")
    A("s_cmp_lg_u32 s%d, 0" % S_WAVE)
    A("s_cbranch_scc1 L_noticket")
    ticket_word(A)
    A("v_mov_b32 v1, s37")
    A("v_mov_b32 v2, 1")
    A("s_mov_b64 exec, 1")
    A("global_atomic_add v3, v1, v2, s[%d:%d] sc0" % (S_DBG, S_DBG + 1))
    A("s_mov_b64 exec, -1")
    A.label("L_noticket")
    A("v_mov_b32 v6, 0")
    A("s_cmp_lg_u32 s%d, 0" % S_WAVE)
    A("s_cbranch_scc1 L_nowr")
    A("s_waitcnt vmcnt(0)")
    A("s_mov_b64 exec, 1")
    A("ds_write_b32 v6, v3")
    A("s_mov_b64 exec, -1")
    A.label("L_nowr")
    A("s_waitcnt lgkmcnt(0)")
    A("s_barrier")
    A("ds_read_b32 v3, v6")
    A("s_waitcnt lgkmcnt(0)")
    A("v_readfirstlane_b32 s%d, v3" % S_HEAD)
    A("s_barrier")
    A("s_cmp_ge_u32 s%d, 8" % S_GRP)
    A("s_cbranch_scc1 L_overflow")
    A("s_cmp_ge_u32 s%d, 32" % S_HEAD)
    A("s_cbranch_scc1 L_overflow")
    A.label("L_roles")
    if opt.get("rt"):
        rt_stamp(A, opt, 498, 40, 41)
        A("v_mov_b32 v41, s90")
        A("global_store_dword v40, v41, s[%d:%d] offset:4" % (S_WS, S_WS + 1))

def tword(x): return 32 * ((x >> 2) & 1) + (x & 3) + 4 * (x >> 3)
def ticket_word(A):
    A("s_and_b32 s37, s%d, 4" % S_GRP)
    A("s_lshl_b32 s37, s37, 5")
    A("s_and_b32 s36, s%d, 3" % S_GRP)
    A("s_lshl_b32 s36, s36, 2")
    A("s_add_u32 s37, s37, s36")
    A("s_and_b32 s36, s%d, 8" % S_GRP)
    A("s_lshl_b32 s36, s36, 1")
    A("s_add_u32 s37, s37, s36")

def arrive(A, kind):
    l = A.newlabel("Larr")
    A("s_waitcnt vmcnt(0)")
    A("s_barrier")
    A("s_cmp_lg_u32 s%d, 0" % S_WAVE)
    A("s_cbranch_scc1 %s" % l)
    if kind == "flags": A("s_mov_b32 s37, %d" % (4 * 24))
    else:
        A("s_lshl_b32 s37, s%d, 2" % S_GRP); A("s_add_u32 s37, s37, 64")
    A("v_mov_b32 v40, s37")
    A("v_mov_b32 v41, 1")
    A("s_mov_b64 exec, 1")
    A("global_atomic_add v42, v40, v41, s[%d:%d] sc0" % (S_DBG, S_DBG + 1))
    A("s_waitcnt vmcnt(0)")
    A("v_readfirstlane_b32 s36, v42")
    A("s_cmp_lg_u32 s36, %d" % ((32 * NZ[0] if kind == "flags" else 32) - 1))
    l2 = A.newlabel("Larn")
    A("s_cbranch_scc1 %s" % l2)
    A("global_store_dword v40, v41, s[%d:%d] offset:128 sc1" % (S_DBG, S_DBG + 1))
    A.label(l2)
    A("s_mov_b64 exec, -1")
    A.label(l)

def init_wait(A, vt=40, kind="flags"):
    lp = A.newlabel("Liw"); l2 = A.newlabel("Liwd")
    if kind == "tickets":
        A("v_and_b32 v%d, 63, v0" % (vt + 1))
        A("v_lshlrev_b32 v%d, 2, v%d" % (vt + 1, vt + 1))
    elif kind == "flags": A("v_mov_b32 v%d, %d" % (vt + 1, 4 * 56))
    else:
        A("s_lshl_b32 s37, s%d, 2" % S_GRP); A("s_add_u32 s37, s37, 192"); A("v_mov_b32 v%d, s37" % (vt + 1))
    if kind != "tickets":
        A("s_cmp_lg_u32 s%d, 0" % S_WAVE)
        A("s_cbranch_scc1 %s" % l2)
    A.label(lp)
    A("global_load_dword v%d, v%d, s[%d:%d] sc1" % (vt, vt + 1, S_DBG, S_DBG + 1))
    A("s_waitcnt vmcnt(0)")
    if kind == "tickets":
        A("s_mov_b32 s36, 0")
        for x in range(16):
            A("v_readlane_b32 s37, v%d, %d" % (vt, tword(x)))
            A("s_add_u32 s36, s36, s37")
        A("s_cmp_ge_u32 s36, 256")
    else:
        A("v_readfirstlane_b32 s36, v%d" % vt)
        A("s_cmp_lg_u32 s36, 0")
    A("s_cbranch_scc1 %s" % l2)
    A("s_sleep 2")
    spin_guard(A)
    A("s_branch %s" % lp)
    A.label(l2)
    if kind == "own":
        ticket_word(A)
        A("v_mov_b32 v%d, s37" % (vt + 1))
    A("s_barrier")
    if kind == "own":
        A("global_load_dword v%d, v%d, s[%d:%d] sc1" % (vt, vt + 1, S_DBG, S_DBG + 1))
        A("s_waitcnt vmcnt(0)")
        A("v_readfirstlane_b32 s37, v%d" % vt)
        A("s_cmp_lt_u32 s37, 32")
        A("s_cselect_b32 s%d, 1, 0" % S_MIXED)
NZ = [2]

def overflow(A):
    A.label("L_overflow")
    A("s_cmp_lg_u32 s%d, 0" % S_WAVE)
    A("s_cbranch_scc1 L_of1")
    A("v_mov_b32 v1, 100")
    A("v_mov_b32 v2, 1")
    A("s_mov_b64 exec, 1")
    A("global_atomic_add v3, v1, v2, s[%d:%d] sc0" % (S_DBG, S_DBG + 1))
    A("s_waitcnt vmcnt(0)")
    A("ds_write_b32 v6, v3")
    A("s_mov_b64 exec, -1")
    A.label("L_of1")
    A("s_waitcnt lgkmcnt(0)")
    A("s_barrier")
    A("ds_read_b32 v3, v6")
    A("s_waitcnt lgkmcnt(0)")
    A("v_readfirstlane_b32 s38, v3")
    A("s_barrier")
    A("s_mov_b32 s%d, 0" % S_GRP)
    init_wait(A, kind="tickets")
    A("s_mov_b32 s%d, 0" % S_GRP)
    A.label("L_of2")
    ticket_word(A)
    A("s_lshr_b32 s37, s37, 2")
    A("v_readlane_b32 s37, v40, s37")
    A("s_min_u32 s37, s37, 32")
    A("s_sub_u32 s39, 32, s37")
    A("s_cmp_lt_u32 s38, s39")
    A("s_cbranch_scc1 L_of3")
    A("s_sub_u32 s38, s38, s39")
    A("s_add_u32 s%d, s%d, 1" % (S_GRP, S_GRP))
    A("s_cmp_lt_u32 s%d, 8" % S_GRP)
    A("s_cbranch_scc1 L_of2")
    A("s_branch L_end")
    A.label("L_of3")
    A("s_add_u32 s%d, s37, s38" % S_HEAD)
    A("s_and_b32 s%d, s%d, 31" % (S_HEAD, S_HEAD))
    A("s_branch L_roles")

def build(opt, roles):
    A = Asm()
    A.raw(HEADER.rstrip())
    A.raw("; @launch grid=(256,1,1) block=(256,1,1) lds=%d" % LDS_BYTES)
    A.raw('.amdgcn_target "amdgcn-amd-amdhsa--gfx950"')
    A.raw(".text\n.globl %s\n.p2align 8\n.type %s,@function" % (KNAME, KNAME))
    A.label(KNAME)
    opt["init_wait"] = init_wait
    opt["arrive"] = arrive
    prologue(A, opt)
    roles(A, opt)
    overflow(A)
    A.label("L_end")
    A("s_endpgm")
    A.raw('''.section .rodata,"a"
.p2align 6
.amdhsa_kernel %s
  .amdhsa_next_free_vgpr 512
  .amdhsa_next_free_sgpr 102
  .amdhsa_accum_offset 256
  .amdhsa_group_segment_fixed_size 0
  .amdhsa_kernarg_size 104
  .amdhsa_user_sgpr_count 2
  .amdhsa_user_sgpr_kernarg_segment_ptr 1
  .amdhsa_system_sgpr_workgroup_id_x 1
.end_amdhsa_kernel''' % KNAME)
    errs = A.check()
    for e in errs: print(e, file=sys.stderr)
    return A.text(), errs

def roles_chain_only(A, opt):
    A("s_cmp_eq_u32 s%d, 0" % S_GRP)
    A("s_cbranch_scc1 L_chain")
    A("s_cmp_gt_u32 s%d, 2" % S_GRP)
    A("s_cbranch_scc1 L_end")
    workers.zero_flags(A, 2)
    opt["arrive"](A, "flags")
    A("s_branch L_end")
    chain.gen_chain(A, opt)

def roles_full(A, opt):
    A("s_cmp_gt_u32 s%d, %d" % (S_GRP, opt["NP1"]))
    A("s_cbranch_scc1 L_aworker")
    A("s_cmp_lg_u32 s%d, 0" % S_GRP)
    A("s_cbranch_scc1 L_p1")
    chain.gen_chain(A, opt)
    workers.gen_p1(A, opt)
    workers.gen_p2(A, opt)
    workers.gen_aworker(A, opt)

if __name__ == "__main__":
    mode = sys.argv[1]; out = sys.argv[2]
    opt = {}
    for kv in sys.argv[3:]:
        k, x = kv.split("="); opt[k] = int(x)
    if mode == "chain":
        opt["nokv"] = True
        opt.setdefault("cyc", 1)
        t, errs = build(opt, roles_chain_only)
    if mode == "full":
        opt.setdefault("NP1", 2); opt.setdefault("NP2", 3); opt["NA"] = 7 - opt["NP1"] - opt["NP2"]
        for k, x in (("pa", 2), ("d1", 60), ("d3", 28), ("d5", 20)): opt.setdefault(k, x)
        NZ[0] = opt["NP1"]
        workers.ZZ[0] = opt.get("zz", 1)
        workers._RT0["rt"] = opt.get("rt")
        t, errs = build(opt, roles_full)
    open(out, "w").write(t)
    print("wrote", out, len(t), "bytes;", len(errs), "hazards")
```

```python
from common import *
import math, struct

L_KX = 0
L_VX = 8192
L_MEM = 16384
L_Z = 24576
L_O = 28672
L_VM = 30720

def f32bits(x): return struct.unpack("<I", struct.pack("<f", x))[0]

def wq_base(t, c):
    if t < 4:
        assert c >= 2
        return 256 + 8 * (t * 6 + c - 2)
    return 128 + 64 * (t - 4) + 8 * c
def wo_base(j, ch):
    return 256 + 192 + 8 * (ch * 4 + j)

def gen_chain(A, opt):
    cold = Cold()
    nokv = opt.get("nokv", False)
    LAST = opt.get("last", 63)
    EE = 0
    VL16, VSENT, VMLD, VZR, VZW, VOW, VWO, VPST, VMST, VIDX = 1, 11, 3, 4, 5, 6, 7, 8, 9, 10
    SELV, EXP, VMA, PM, PMB = 12, 16, 18, 20, 22
    CP = 14
    PT, VL4, VFA = 27, 2, 0
    VA = 24
    AF = 40
    FR = [48, 56, 64, 96, 104, 112, 120, 32]
    Q0, K0, Q1, K1, V0, V1 = 72, 76, 80, 84, 88, 92
    ZF, KX1, KX2 = 96, 112, 24
    S1, S2, S0 = 40, 44, 48
    M0_, M1_, T0_, T1_ = 52, 53, 54, 55
    VXC = 72
    PX, O0, O1, LA, ONES = 88, 92, 104, 108, 100
    OP, OA = 52, 104
    WACC = [40, 44, 48, 52, 72, 76, 88, 92]
    SLOTS = [80, 56, 64, 112, 120, 24, 32, 96]
    RB, RD, RT, SEL = 96, 80, 84, 60
    G0, G1 = 40, 44
    sSM = 88
    sL, sSEG, sIT = 48, 49, 50
    sMASK, sP0, sP1, sMG, sMR, sPR, sKV, sKM, sFM, sFKV, sR0, sR1 = 52, 54, 56, 58, 60, 62, 64, 68, 70, 72, 74, 78
    sC, sM0, sM1, sFW = 96, 77, 51, 76
    sST = 80
    NTR = 4

    tr_pos = opt.get("trace", 0)
    tr_used = []
    def tr(k):
        if not (tr_pos >> k) & 1: return
        if len(tr_used) >= NTR: raise ValueError("too many trace points")
        A("%s s[%d:%d]" % ("s_memrealtime" if opt.get("rtclk") else "s_memtime", sST + 2 * len(tr_used), sST + 1 + 2 * len(tr_used)))
        tr_used.append(k)

    A.label("L_chain")
    T = 40
    A("v_and_b32 v%d, 63, v0" % T)
    A("v_and_b32 v%d, 15, v0" % (T + 1))
    A("v_bfe_u32 v%d, v0, 4, 2" % (T + 2))
    A("v_lshlrev_b32 v%d, 4, v%d" % (VL16, T))
    A("v_mov_b32 v%d, -1" % VSENT)
    A("v_lshlrev_b32 v%d, 2, v%d" % (VL4, T))
    A("v_lshlrev_b32 v%d, 3, v%d" % (VZR, T))
    A("s_lshl_b32 s40, s%d, 10" % S_WAVE)
    A("v_lshlrev_b32 v%d, 5, v%d" % (VZW, T + 1))
    A("v_lshl_add_u32 v%d, v%d, 3, v%d" % (VZW, T + 2, VZW))
    A("v_add_u32 v%d, s40, v%d" % (VZW, VZW))
    A("s_lshr_b32 s41, s%d, 1" % S_WAVE)
    A("s_lshl_b32 s41, s41, 10")
    A("s_and_b32 s42, s%d, 1" % S_WAVE)
    A("s_lshl_b32 s42, s42, 5")
    A("s_add_u32 s41, s41, s42")
    A("s_add_u32 s41, s41, %d" % (L_O - 32))
    A("v_add_u32 v%d, s41, v%d" % (VOW, VL16))
    A("v_add_u32 v%d, 0x%x, v%d" % (T + 5, L_MEM, VL16))
    A("v_and_b32 v%d, 2, v%d" % (T + 3, T))
    A("v_cmp_ne_u32 vcc, 0, v%d" % (T + 3))
    A("v_mov_b32 v%d, 0xeeee" % (T + 6))
    A("v_mov_b32 v%d, 0x4444" % (T + 7))
    A("v_cndmask_b32 v%d, v%d, v%d, vcc" % (VOW, T + 5, VOW))
    A("v_cndmask_b32 v%d, v%d, v%d, vcc" % (VIDX, T + 7, T + 6))
    A("v_lshrrev_b32 v%d, 3, v%d" % (T + 5, T + 1))
    A("v_lshlrev_b32 v%d, 13, v%d" % (VWO, T + 5))
    A("v_and_b32 v%d, 7, v%d" % (T + 5, T + 1))
    A("v_lshl_add_u32 v%d, v%d, 3, v%d" % (T + 5, T + 2, T + 5))
    A("v_lshl_add_u32 v%d, v%d, 4, v%d" % (VWO, T + 5, VWO))
    A("s_lshl_b32 s41, s%d, 15" % S_WAVE)
    A("s_add_u32 s41, s41, %d" % L_WO)
    A("v_add_u32 v%d, s41, v%d" % (VWO, VWO))
    A("s_lshl_b32 s41, s%d, 11" % S_WAVE)
    A("v_add_u32 v%d, s41, v%d" % (VMLD, VL16))
    A("s_mov_b32 s%d, s41" % sM0)
    A("s_add_u32 s%d, s41, %d" % (sM1, L_VX))
    A("v_lshrrev_b32 v%d, 2, v%d" % (T + 5, T + 1))
    A("v_lshlrev_b32 v%d, 13, v%d" % (VPST, T + 5))
    A("v_and_b32 v%d, 3, v%d" % (T + 5, T + 1))
    A("v_lshl_add_u32 v%d, v%d, 2, v%d" % (T + 6, T + 2, T + 5))
    A("v_lshl_add_u32 v%d, v%d, 4, v%d" % (VPST, T + 6, VPST))
    A("s_lshl_b32 s41, s%d, 16" % S_WAVE)
    A("s_lshl_b32 s42, s%d, 8" % S_HEAD)
    A("s_add_u32 s41, s41, s42")
    A("v_add_u32 v%d, s41, v%d" % (VPST, VPST))
    A("v_and_b32 v%d, 12, v%d" % (T + 6, T + 1))
    A("v_add_u32 v%d, v%d, v%d" % (T + 6, T + 6, T + 2))
    A("v_lshlrev_b32 v%d, 4, v%d" % (VMST, T + 6))
    A("v_lshl_add_u32 v%d, v%d, 2, v%d" % (VMST, T + 5, VMST))
    A("v_add_u32 v%d, s42, v%d" % (VMST, VMST))
    A("v_and_b32 v%d, 1, v%d" % (T + 5, T))
    A("v_lshlrev_b32 v%d, 4, v%d" % (T + 5, T + 5))
    A("v_mov_b32 v%d, 0x3f80" % (T + 7))
    A("v_lshlrev_b32 v%d, v%d, v%d" % (T + 7, T + 5, T + 7))
    A("v_cndmask_b32_e64 v%d, v%d, 0, vcc" % (SELV, T + 7))
    A("v_lshrrev_b32 v%d, 2, v%d" % (T + 6, T + 1))
    for rr in range(4): A("v_cmp_eq_u32 s[%d:%d], %d, v%d" % (sSM + 2 * rr, sSM + 2 * rr + 1, rr ^ 2, T + 6))
    for r in (EXP, VMA, PM, PMB): A("v_mov_b64 v[%d:%d], 0" % (r, r + 1))
    A("s_mov_b32 s%d, 0x%x" % (sC, f32bits(128 ** -0.5 * math.log2(math.e))))
    A("s_mov_b32 s%d, s%d" % (sC + 1, sC))
    A("s_cmp_eq_u32 s%d, 3" % S_WAVE)
    A("s_cselect_b32 s%d, %d, 64" % (sFW, 2 - EE))
    A("s_mov_b32 s%d, 0" % sIT)
    if opt.get("cnt"):
        for r in (85, 86, 87): A("s_mov_b32 s%d, 0" % r)
    A("s_mov_b32 s%d, 0" % sL)
    rt_stamp(A, opt, 500, 40, 41)
    A("v_mov_b64 v[44:45], -1"); A("v_mov_b64 v[46:47], -1")
    A("s_lshl_b32 s40, s%d, 13" % S_HEAD)
    for k in range(2):
        A("s_add_u32 s41, s40, 0x%x" % (OFF_CPART + k * 0x40000)); sadd64(A, 42, S_WS, "s41")
        for i in range(2): A("global_store_dwordx4 v%d, v[44:47], s[42:43] offset:%d sc1" % (VMLD, i * 1024))
    A("s_lshl_b32 s41, s%d, 13" % S_WAVE)
    A("s_add_u32 s41, s41, 0x%x" % OFF_CMEM); sadd64(A, 42, S_WS, "s41")
    A("global_store_dword v%d, v44, s[42:43] sc1" % VMST)
    for k in range(2 * (64 - KM_POLL)):
        A("s_add_u32 s41, s40, 0x%x" % (OFF_KM + (64 * (k & 1) + KM_POLL + (k >> 1)) * 32 * 8192)); sadd64(A, 42, S_WS, "s41")
        A("global_store_dwordx4 v%d, v[44:47], s[42:43] sc1" % VMLD)
    A.nop(2)
    load_head_weights(A, 40, wq_base, True, vwo=VWO, wo_base=wo_base)
    rt_stamp(A, opt, 501, 40, 41)
    opt["arrive"](A, "own")
    opt["init_wait"](A, kind="own")
    opt["init_wait"](A)
    rt_stamp(A, opt, 502, 40, 41)

    def pkadd(d): A("v_pk_add_f32 v[%d:%d], v[%d:%d], v[%d:%d]" % (d, d + 1, d, d + 1, d + 2, d + 3))
    def add1(d, e): A("v_add_f32 v%d, v%d, v%d" % (d + e, d + e, d + 2 + e))
    def cvt(d, x, y): A("v_cvt_pk_bf16_f32 v%d, v%d, v%d" % (d, x, y))
    def rd128(d, addr, off): A("ds_read_b128 v[%d:%d], v%d offset:%d" % (d, d + 3, addr, off))
    def z64(r): A("v_mov_b64 v[%d:%d], 0" % (r, r + 1))

    def setup_part_bases():
        sadd64(A, sKV, sKV, 32 * 8192)
        sadd64(A, sKV + 2, sKV + 2, 32 * 8192)
        sadd64(A, sKM, sKM, 32 * 8192)
        sadd64(A, sFM, sFM, 4)
        A("s_and_b32 s40, s%d, 1" % sIT)
        A("s_lshl_b32 s40, s40, 18")
        A("s_add_u32 s41, s40, 0x%x" % OFF_CPART); sadd64(A, sP0, S_WS, "s41")
        sadd64(A, sP1, sP0, 32768)
        A("s_lshl_b32 s42, s%d, 13" % S_HEAD)
        sadd64(A, sR0, sP0, "s42")
        sadd64(A, sR1, sR0, 4096)
        A("s_xor_b32 s41, s41, 0x40000")
        A("s_add_u32 s41, s41, s42"); sadd64(A, sPR, S_WS, "s41")
    def prefetch_own():
        for p in range(1, 4): A("v_xor_b32 v%d, %d, v%d" % (VA + p - 1, p * 2048, VMLD))
        for n, (X, Tt, cc) in enumerate([(0, 0, 0), (1, 0, 0), (0, 1, 0), (1, 1, 0), (0, 0, 1), (1, 0, 1), (0, 1, 1), (1, 1, 1)]):
            f = (X * 2 + Tt) * 2 + cc
            for hB in range(2): rd128(FR[n] + 4 * hB, VWO, 16384 + f * 1024 + hB * 512)
    def kv_check(tmp, sreg):
        if nokv: return
        lp = A.newlabel("Lkvp"); ok = A.newlabel("Lkvo")
        A.label(ok)
        A("s_bitcmp0_b64 s[%d:%d], %s" % (sMASK, sMASK + 1, sreg))
        A("s_cbranch_scc1 %s" % lp)
        def blk(A):
            A.label(lp)
            A("global_load_dword v%d, v%d, s[%d:%d] sc1" % (tmp, VL4, sFKV, sFKV + 1))
            A("s_waitcnt vmcnt(0)")
            A("v_cmp_ne_u32 s[%d:%d], 0, v%d" % (sMASK, sMASK + 1, tmp))
            A("s_sleep 1")
            spin_guard(A)
            A("s_branch %s" % ok)
        cold.add(blk)
    def kv_ops():
        return [["s_mov_b32 m0, s%d" % sM0, "s_nop 0",
                 "global_load_lds_dwordx4 v%d, s[%d:%d] sc1" % (VMLD, sKV, sKV + 1)],
                ["global_load_lds_dwordx4 v%d, s[%d:%d] offset:1024 sc1" % (VMLD, sKV, sKV + 1), "s_mov_b32 m0, s%d" % sM1],
                ["global_load_lds_dwordx4 v%d, s[%d:%d] sc1" % (VMLD, sKV + 2, sKV + 3)],
                ["global_load_lds_dwordx4 v%d, s[%d:%d] offset:1024 sc1" % (VMLD, sKV + 2, sKV + 3)]]
    def exp_st():
        return "global_store_dwordx4 v%d, v[%d:%d], s[%d:%d] sc1" % (VMLD, EXP, EXP + 3, sKM, sKM + 1)
    def flag(tmp, off):
        A("v_mov_b32 v%d, 0" % tmp)
        A("global_store_dword v%d, v%d, s[%d:%d] offset:%d sc1" % (tmp, VSENT, sFM, sFM + 1, off))

    A.label("L_ch_layer")
    A("s_mov_b32 s%d, 0" % sSEG)
    A("s_mov_b64 s[%d:%d], 0" % (sMASK, sMASK + 1))
    A("s_lshl_b32 s40, s%d, 5" % sL)
    A("s_add_u32 s40, s40, s%d" % S_HEAD)
    A("s_lshl_b32 s40, s40, 8")
    A("s_add_u32 s41, s40, 0x%x" % F_KV)
    sadd64(A, sFKV, S_WS, "s41")
    A("s_add_u32 s41, s40, 0x%x" % (F_M - 12 + 4 * EE))
    sadd64(A, sFM, S_WS, "s41")
    A("s_lshl_b32 s40, s%d, 11" % sL)
    A("s_add_u32 s40, s40, s%d" % S_HEAD)
    A("s_lshl_b32 s40, s40, 13")
    A("s_add_u32 s41, s40, 0x%x" % OFF_KX); sadd64(A, sKV, S_WS, "s41")
    A("s_add_u32 s41, s40, 0x%x" % OFF_VX); sadd64(A, sKV + 2, S_WS, "s41")
    A("s_add_u32 s41, s40, 0x%x" % (OFF_KM - (2 - EE) * 32 * 8192)); sadd64(A, sKM, S_WS, "s41")
    A("v_bfe_u32 v27, v2, 4, 2")
    A("v_bfe_u32 v28, v2, 2, 1")
    A("v_lshl_add_u32 v27, v27, 1, v28")
    A("v_lshlrev_b32 v27, 10, v27")
    A("v_bfe_u32 v28, v2, 3, 1")
    A("v_lshl_add_u32 v27, v28, 2, v27")
    A("v_bfe_u32 v28, v2, 6, 2")
    A("v_lshl_add_u32 v27, v28, 5, v27")
    A("v_mov_b32 v%d, 0" % VFA)
    A("s_lshl_b32 s40, s%d, 8" % S_WAVE)
    A("v_add_u32 v27, s40, v27")
    for i in range(2):
        for p in range(4):
            A("global_load_dword v%d, v27, s[%d:%d] offset:%d" % (G0 + 4 * i + p, S_MEM0, S_MEM0 + 1, i * 128 + p * 8))
    kv_check(28, "s%d" % sSEG)
    for g_ in kv_ops():
        for t in g_: A(t)
        A("s_nop 0")
    if opt.get("rt") or opt.get("cyc"):
        A("s_add_u32 s47, s%d, 400" % sL)
        rt_stamp(A, dict(rt=opt.get("rt") or 2), "s47", 27, 28)
    for r in range(0, 24, 2): z64(Q0 + r)
    setup_part_bases()
    prefetch_own()
    A("s_waitcnt vmcnt(0)")
    A("ds_write_b128 v%d, v[%d:%d] offset:%d" % (VMLD, G0, G0 + 3, L_MEM))
    A("ds_write_b128 v%d, v[%d:%d] offset:%d" % (VMLD, G1, G1 + 3, L_MEM + 1024))
    A("s_waitcnt lgkmcnt(2)")
    A("s_branch L_ch_step")

    A.raw(".p2align 6")
    PA = opt.get("pa", 1)
    def ldA():
        A("global_load_dwordx4 v[%d:%d], v%d, s[%d:%d] sc1" % (G0, G0 + 3, VMLD, sMG, sMG + 1))
        A("global_load_dwordx4 v[%d:%d], v%d, s[%d:%d] offset:1024 sc1" % (G1, G1 + 3, VMLD, sMG, sMG + 1))
    A.label("L_ch_retryA")
    ldA()
    if opt.get("cnt"): A("s_add_u32 s87, s87, 1")
    spin_guard(A)
    A.label("L_ch_pollA")
    A("s_waitcnt vmcnt(%d) lgkmcnt(0)" % (2 * (PA - 1)))
    A("v_max_u32 v%d, v%d, v%d" % (PT, G0, G1))
    A("v_cmp_eq_u32 vcc, -1, v%d" % PT)
    A("ds_write_b128 v%d, v[%d:%d] offset:%d" % (VMLD, G0, G0 + 3, L_MEM))
    A("ds_write_b128 v%d, v[%d:%d] offset:%d" % (VMLD, G1, G1 + 3, L_MEM + 1024))
    A("s_cbranch_vccnz L_ch_retryA")
    if tr_pos:
        tr(26)
        lt = A.newlabel("Ltr")
        A("s_cmp_eq_u32 s%d, %d" % (sIT, opt.get("trit", 100)))
        A("s_cbranch_scc1 %s" % lt)
        A.label(lt + "b")
        def blk(A):
            A.label(lt)
            A("s_waitcnt lgkmcnt(0)")
            A("s_lshl_b32 s40, s%d, 2" % S_HEAD)
            A("s_add_u32 s40, s40, s%d" % S_WAVE)
            A("s_lshl_b32 s40, s40, 7")
            A("s_add_u32 s40, s40, 0x%x" % (OFF_STAMP + 0x400000))
            sadd64(A, 42, S_WS, "s40")
            A("v_mov_b32 v27, 0")
            for n, k in enumerate(tr_used):
                A("v_mov_b32 v28, s%d" % (sST + 2 * n))
                A("global_store_dword v27, v28, s[42:43] offset:%d" % (4 * k))
            A("s_branch %s" % (lt + "b"))
        cold.add(blk)
    A.label("L_ch_step")
    tr(0)
    def smfr(acc, c, breg):
        A("v_smfmac_f32_16x16x64_bf16 v[%d:%d], v[%d:%d], %s, v%d" % (acc, acc + 3, AF + 4 * c, AF + 4 * c + 3, R(breg, 8), VIDX))
    def smf(acc, c, tile): smfr(acc, c, wq_base(tile, c))
    accs = [Q0, K0, Q1, K1]
    def mf(d, x, y, c, k32=True):
        n = 4 if k32 else 2
        A("v_mfma_f32_16x16x%d_bf16 v[%d:%d], v[%d:%d], v[%d:%d], %s" % (32 if k32 else 16, d, d + 3, x, x + n - 1, y, y + n - 1, c))
    acc = lambda r: "v[%d:%d]" % (r, r + 3)
    def trd(k):
        dc, Tt = k >> 1, k & 1
        A("ds_read_b64_tr_b16 v[%d:%d], v%d offset:%d" % (ZF + 2 * k, ZF + 2 * k + 1, VZR, L_Z + dc * 1024 + Tt * 512))
    for n in range(4): smfr(accs[n], 0, FR[n])
    A("s_waitcnt lgkmcnt(0)")
    A("s_barrier")
    tr(1)
    own = [lambda n=n: smfr(accs[n], 1, FR[4 + n]) for n in range(4)] + \
          [lambda a_=a_, c=c, t=t: smf(a_, c, t) for c in range(2) for a_, t in ((V0, 4), (V1, 5))]
    rd128(AF + 8, VA, L_MEM)
    for c in range(3, 8):
        rd128(AF + 4 * c, VA + c // 2 - 1, L_MEM + (c & 1) * 1024)
        own.pop(0)()
    own.pop(0)(); own.pop(0)()
    if PA > 1: A("s_waitcnt vmcnt(0)")
    if not opt.get("norearm"):
        store_mixed(A, cold, ["global_store_dword v%d, v%d, s[%d:%d]" % (VMLD, VSENT, sPR, sPR + 1),
                              "global_store_dword v%d, v%d, s[%d:%d] offset:1024" % (VMLD, VSENT, sPR, sPR + 1)])
    A("s_cmp_lt_u32 s%d, s%d" % (sSEG, sFW))
    A("s_cbranch_scc0 L_ch_flag")
    A.label("L_ch_noflag")
    own.pop(0)()
    A("s_cmp_eq_u32 s%d, 0" % sSEG)
    A("s_cselect_b32 s40, 4, s%d" % S_WAVE)
    EM = opt.get("em", 0)
    def exp_turn(k):
        if opt.get("noexp"): return
        l = A.newlabel("Lex")
        if EM == 0 and k == 0 and not EE:
            A("s_cbranch_scc1 %s" % l); A(exp_st()); A.label(l)
        if EM == 1 and k in (0, 2):
            A("s_cbranch_scc1 %s" % l)
            A("global_store_dwordx2 v%d, v[%d:%d], s[%d:%d] offset:%d sc1" % (VMLD, EXP + k, EXP + k + 1, sKM, sKM + 1, 4 * k))
            A.label(l)
        if EM == 2:
            A("s_cmp_lg_u32 s40, %d" % k); A("s_cbranch_scc1 %s" % l); A(exp_st()); A.label(l)
        if EM == 3 and k in (0, 2):
            A("s_cmp_lg_u32 s41, %d" % (k >> 1)); A("s_cbranch_scc1 %s" % l); A(exp_st()); A.label(l)
    if EM == 3: A("s_lshr_b32 s41, s40, 1")
    tr(2)
    kx = [(KX1 + 4 * d, VL16, L_KX + d * 1024) for d in range(4)] + [(KX2 + 4 * d, VL16, L_KX + 4096 + d * 1024) for d in range(4)]
    extra = 0
    for c in range(2, 8):
        A("s_waitcnt lgkmcnt(%d)" % (7 - c + extra))
        smf(Q0, c, 0)
        if c >= 4: rd128(*kx.pop(0)); extra += 1
        else: exp_turn(2 * (c - 2))
        smf(K0, c, 2)
        if c >= 4: rd128(*kx.pop(0)); extra += 1
        else: exp_turn(2 * (c - 2) + 1)
    assert not kx
    tr(3)
    seq = [(a_, c, t) for c in range(2, 8) for a_, t in ((Q1, 1), (K1, 3))]
    for i, x in enumerate(seq):
        smf(*x)
        if i == 0: A("s_add_u32 s41, s%d, 1" % sSEG); A.nop(2)
        if i == 1:
            if not nokv:
                A("v_cmp_ne_u32 vcc, 0, v%d" % VFA)
                A("s_or_b64 s[%d:%d], s[%d:%d], vcc" % (sMASK, sMASK + 1, sMASK, sMASK + 1))
            else: A.nop(2)
        if i == 2: add1(Q0, 0)
        if i == 3: add1(Q0, 1)
        if i == 4: add1(K0, 0)
        if i == 5: add1(K0, 1)
        if i == 6: cvt(K0 + 3, Q0, Q0 + 1)
        if i == 7: cvt(K0 + 2, K0, K0 + 1)
        if i == 8:
            A("ds_write_b64 v%d, v[%d:%d] offset:%d" % (VZW, K0 + 2, K0 + 3, L_Z)); A("v_min_u32 v%d, -2, v%d" % (EXP, K0 + 2))
        if i == 9: rd128(VXC, VMLD, L_VX)
        if i == 10: rd128(VXC + 4, VMLD, L_VX + 1024)
    tr(4)
    vq = [x for c in range(2, 8) for x in ((V0, c, 4), (V1, c, 5))]
    def vs(n=1):
        for _ in range(n):
            if vq: smf(*vq.pop(0))
    vs(); A.nop(3); vs(); A.nop(2)
    add1(Q1, 0); add1(Q1, 1); add1(K1, 0); add1(K1, 1)
    cvt(K1 + 3, Q1, Q1 + 1); cvt(K1 + 2, K1, K1 + 1)
    A("ds_write_b64 v%d, v[%d:%d] offset:%d" % (VZW, K1 + 2, K1 + 3, L_Z + 512))
    tr(5)
    vs()
    A("v_mov_b32 v%d, v%d" % (EXP + 1, K1 + 2))
    vs(opt.get("vpre", 4) - 1)
    A("s_waitcnt lgkmcnt(0)")
    A("s_barrier")
    tr(6)
    trd(0); trd(1)
    for k in range(2, 8):
        vs(); trd(k)
    assert not vq
    A("s_cmp_eq_u32 s%d, %d" % (sSEG, LAST))
    A("s_cbranch_scc1 L_ch_last")
    vq_last = []
    kv_check(52, "s41")
    kvo = kv_ops()
    if opt.get("nodma"): kvo = [["s_nop 0"]] * 4
    wrd = []
    for i in range(8):
        off = (i >> 1) * 2048 + (i & 1) * 1024
        wrd += [(SLOTS[i], VWO, off), (SLOTS[i] + 4, VWO, off + 512)]
    def w(): rd128(*wrd.pop(0))
    nw = 0
    for dc in range(4):
        A("s_waitcnt lgkmcnt(%d)" % (6 - 2 * dc + nw))
        z = ZF + 4 * dc
        mf(S1, KX1 + 4 * dc, z, "0" if dc == 0 else acc(S1))
        if dc < 3: w(); nw += 1
        if dc == 2: add1(V0, 1)
        if dc == 3: cvt(VMA, V0, V0 + 1)
        mf(S2, KX2 + 4 * dc, z, "0" if dc == 0 else acc(S2))
        if dc < 3: w(); nw += 1
        if dc == 2: add1(V1, 0)
        if dc == 3: cvt(VMA + 1, V1, V1 + 1); A("v_min_u32 v%d, -2, v%d" % (VMA, VMA))
        mf(S0, z, z, "0" if dc == 0 else acc(S0))
        for t in kvo.pop(0): A(t)
        if dc == 1: add1(V0, 0)
        if dc == 2: add1(V1, 1)
    tr(7)
    if not nokv: A("global_load_dword v%d, v%d, s[%d:%d] sc1" % (VFA, VL4, sFKV, sFKV + 1))
    else: A("s_nop 0")
    if EE: A(exp_st())
    A("v_mov_b32 v%d, 0x3f803f80" % ONES)
    A("v_mov_b32 v%d, 0x3f803f80" % (ONES + 1))
    A("v_max3_f32 v%d, v%d, v%d, v%d" % (M0_, S1, S1 + 1, S1 + 2))
    A("v_mov_b32 v%d, 0x3f803f80" % (ONES + 2))
    A("v_max3_f32 v%d, v%d, v%d, v%d" % (M1_, S1 + 3, S2, S2 + 1))
    A("v_max3_f32 v%d, v%d, v%d, v%d" % (M0_, M0_, S2 + 2, S2 + 3))
    A("v_max3_f32 v%d, v%d, v%d, v%d" % (M1_, M1_, S0, S0 + 1))
    A("v_max_f32 v%d, v%d, v%d" % (T0_, M0_, M1_))
    A("v_max_f32 v%d, v%d, v%d" % (T1_, M0_, M1_))
    A("v_mov_b32 v%d, 0x3f803f80" % (ONES + 3))
    A("s_add_u32 s40, s%d, 1" % sIT)
    A("v_permlane32_swap_b32 v%d, v%d" % (T0_, T1_))
    A("v_max_f32 v%d, v%d, v%d" % (M0_, T0_, T1_))
    A("v_max_f32 v%d, v%d, v%d" % (M1_, T0_, T1_))
    A("s_and_b32 s40, s40, 3")
    A("s_lshl_b32 s40, s40, 13")
    A("v_permlane16_swap_b32 v%d, v%d" % (M0_, M1_))
    A("v_max_f32 v%d, v%d, v%d" % (M0_, M0_, M1_))
    A("v_mul_f32 v%d, s%d, v%d" % (M0_, sC, M0_))
    tr(8)
    def pkf(r): A("v_pk_fma_f32 v[%d:%d], v[%d:%d], s[%d:%d], v[%d:%d] op_sel_hi:[1,0,0] neg_lo:[0,0,1] neg_hi:[0,0,1]" % (r, r + 1, r, r + 1, sC, sC + 1, M0_, M0_ + 1))
    def ex(r): A("v_exp_f32 v%d, v%d" % (r, r))
    pkf(S1); pkf(S1 + 2); ex(S1); ex(S1 + 1); pkf(S2); ex(S1 + 2); ex(S1 + 3); pkf(S2 + 2)
    cvt(PX, S1, S1 + 1); ex(S2); ex(S2 + 1); cvt(PX + 1, S1 + 2, S1 + 3); pkf(S0); ex(S2 + 2); ex(S2 + 3)
    cvt(PX + 2, S2, S2 + 1); ex(S0); cvt(PX + 3, S2 + 2, S2 + 3); ex(S0 + 1)
    tr(9)
    A("s_add_u32 s40, s40, 0x%x" % OFF_CMEM)
    mf(LA, ONES, PX, "0")
    cvt(PM, S0, S0 + 1)
    mf(O1, VXC + 4, PX, "0")
    w(); cvt(PMB + 1, S0, S0 + 1)
    mf(O0, VXC, PX, "0")
    w(); sadd64(A, sMG, S_WS, "s40")
    A("v_mov_b32 v%d, 0" % S1)
    mf(LA, ONES, PM, acc(LA), k32=False)
    w(); A("v_mov_b32 v%d, 0" % (S1 + 1)); A.nop(1)
    mf(O1, VMA, PMB, acc(O1), k32=False)
    w(); A("v_mov_b32 v%d, 0" % (S1 + 2))
    mf(O0, VMA, PM, acc(O0), k32=False)
    A("v_mov_b32 v%d, 0" % (S1 + 3))
    z64(WACC[1]); z64(WACC[1] + 2)
    A("v_rcp_f32 v%d, v%d" % (LA, LA))
    z64(WACC[2])
    for r in (O1, O1 + 2, O0, O0 + 2):
        if r == O0: z64(WACC[2] + 2)
        A("v_pk_mul_f32 v[%d:%d], v[%d:%d], v[%d:%d] op_sel_hi:[1,0]" % (r, r + 1, r, r + 1, LA, LA + 1))
    cvt(OP + 2, O1, O1 + 1); cvt(OP + 3, O1 + 2, O1 + 3); cvt(OP, O0, O0 + 1); cvt(OP + 1, O0 + 2, O0 + 3)
    A("ds_write_b128 v%d, v[%d:%d]" % (VOW, OP, OP + 3))
    tr(10)
    for t in (4, 5, 6, 7): z64(WACC[t]); z64(WACC[t] + 2)
    for _ in range(opt.get("wfill", 4)): A("v_mov_b32 v%d, 0" % CP)
    A("s_waitcnt vmcnt(%d) lgkmcnt(0)" % ((0 if opt.get("nodma") else 4 if nokv else 5) + EE))
    tr(11)
    A("s_barrier")
    tr(12)
    rd128(OA, VL16, L_O); rd128(OA + 4, VL16, L_O + 1024)
    z64(WACC[3]); z64(WACC[3] + 2)
    A("s_and_b32 s40, s%d, 3" % sIT); A("s_lshl_b32 s40, s40, 13"); A("s_add_u32 s40, s40, 0x%x" % OFF_CMEM)
    def tile_ops(d): return ["v_add_f32 v%d, v%d, v%d" % (d + e, d + e, d + 2 + e) for e in range(2)]
    def cv(d, x, y): return "v_cvt_pk_bf16_f32 v%d, v%d, v%d" % (d, x, y)
    t0, t1 = WACC[:4], WACC[4:]
    order = [(j, ch) for j in range(8) for ch in range(2)]
    a0, a1, a2, a3 = [tile_ops(x) for x in t0]
    b0, b1, b2, b3 = [tile_ops(x) for x in t1]
    mn = lambda r: "v_min_u32 v%d, -2, v%d" % (r, r)
    fill = {3: ["s_nop 0"], 4: [a0[0]], 5: [a0[1]], 6: [a1[0]], 7: [a1[1]], 8: [cv(t0[0] + 2, t0[0], t0[1]), a2[0]],
            9: [cv(t0[0] + 3, t0[0] + 1, t0[1] + 1), a2[1]], 10: ["s_nop 0", a3[0]], 11: [a3[1], cv(t0[0], t0[2], t0[3])],
            12: [cv(t0[0] + 1, t0[2] + 1, t0[3] + 1), mn(t0[0])], 13: [b0[0]], 14: [b0[1], b1[0]], 15: [b1[1]]}
    nlate = len(wrd)
    issued = 0
    for i, (Tt, ch) in enumerate(order):
        if i == 0: A("s_waitcnt lgkmcnt(1)")
        if i == 1: A("s_waitcnt lgkmcnt(%d)" % issued)
        if i >= 8:
            need = 2 * (i - 8) + 2 - (16 - nlate)
            if need > 0: A("s_waitcnt lgkmcnt(%d)" % (issued - need))
        b = wo_base(Tt, ch) if i < 8 else SLOTS[i - 8]
        a_ = WACC[Tt]
        A("v_smfmac_f32_16x16x64_bf16 v[%d:%d], v[%d:%d], %s, v%d" % (a_, a_ + 3, OA + 4 * ch, OA + 4 * ch + 3, R(b, 8), VIDX))
        if i == 0: tr(13)
        if i == 7: tr(14)
        if i == 15: tr(15)
        if wrd: rd128(*wrd.pop(0)); issued += 1
        for t in fill.get(i, []): A(t)
        if i == 12:
            store_mixed(A, cold, ["global_store_dwordx4 v%d, v[%d:%d], s[%d:%d]" % (VPST, t0[0], t0[0] + 3, sP0, sP0 + 1)])
    assert not wrd
    for t in [cv(t1[0] + 2, t1[0], t1[1]), cv(t1[0] + 3, t1[0] + 1, t1[1] + 1)] + b2 + ["s_nop 2"] + b3 + \
             [cv(t1[0], t1[2], t1[3]), cv(t1[0] + 1, t1[2] + 1, t1[3] + 1), mn(t1[0])]: A(t)
    store_mixed(A, cold, ["global_store_dwordx4 v%d, v[%d:%d], s[%d:%d]" % (VPST, t1[0], t1[0] + 3, sP1, sP1 + 1)])
    tr(20)
    sadd64(A, sMR, S_WS, "s40")
    A("s_add_u32 s%d, s%d, 1" % (sSEG, sSEG))
    A("s_add_u32 s%d, s%d, 1" % (sIT, sIT))
    for r in (4, 6, 16, 18, 20, 22): z64(Q0 + r)
    A("s_cmp_lg_u32 s%d, 0" % S_WAVE)
    A("s_cbranch_scc1 L_ch_nored")
    for rr in range(4): A("v_cndmask_b32 v%d, 0, v%d, s[%d:%d]" % (SEL + rr, SELV, sSM + 2 * rr, sSM + 2 * rr + 1))
    if opt.get("d1", 0): A.nop(opt["d1"])
    def ldB(i):
        b = sR0 if i < 4 else sR1
        A("global_load_dwordx4 v[%d:%d], v%d, s[%d:%d] offset:%d sc1" % (RB + 4 * i, RB + 4 * i + 3, VL16, b, b + 1, (i & 3) * 1024))
    tr(21)
    A.label("L_ch_rB")
    for i in range(8): ldB(i)
    if opt.get("cnt"): A("s_add_u32 s86, s86, 1")
    spin_guard(A)
    A("s_waitcnt vmcnt(7)")
    A("v_cmp_eq_u32 vcc, -1, v%d" % RB)
    mf(RD, SEL, RB, "0")
    A("s_cbranch_vccnz L_ch_rB")
    if opt.get("cnt"): A("s_add_u32 s85, s85, 1")
    tr(22)
    for i in range(1, 8):
        A("s_waitcnt vmcnt(%d)" % (7 - i))
        mf(RD, SEL, RB + 4 * i, acc(RD))
        if i == 2: A("v_max_u32 v%d, v%d, v%d" % (RT, RB + 4, RB + 8))
        if i in (4, 6): A("v_max3_u32 v%d, v%d, v%d, v%d" % (RT, RT, RB + 4 * i - 4, RB + 4 * i))
    tr(23)
    A("v_max_u32 v%d, v%d, v%d" % (RT, RT, RB + 28))
    A("v_cmp_eq_u32 vcc, -1, v%d" % RT)
    A.nop(5)
    A("s_cbranch_vccnz L_ch_rB")
    cvt(RT, RD, RD + 1)
    A("v_min_u32 v%d, -2, v%d" % (RT, RT))
    store_mixed(A, cold, ["global_store_dword v%d, v%d, s[%d:%d]" % (VMST, RT, sMG, sMG + 1),
                          "global_store_dword v%d, v%d, s[%d:%d]" % (VMST, VSENT, sMR, sMR + 1)])
    tr(24)
    A("s_barrier")
    setup_part_bases()
    if opt.get("d6", 0): A.nop(opt["d6"])
    tr(25)
    ldA()
    prefetch_own()
    for k in range(1, PA): ldA()
    for r in (0, 2, 8, 10, 12, 14): z64(Q0 + r)
    A("s_branch L_ch_pollA")
    A.label("L_ch_firstA")
    for k in range(PA):
        ldA()
        if k < PA - 1: A.nop(opt.get("d5", 24))
    A("s_branch L_ch_pollA")
    A.label("L_ch_nored")
    rt_stamp(A, opt, "s%d" % sIT, RT, RT + 1)
    setup_part_bases()
    prefetch_own()
    for r in (0, 2, 8, 10, 12, 14): z64(Q0 + r)
    A("s_barrier")
    if opt.get("d3", 0): A.nop(opt["d3"])
    A("s_branch L_ch_firstA")

    A.label("L_ch_flag")
    A("s_mov_b64 exec, 1")
    A("global_store_dword v%d, v%d, s[%d:%d] sc1" % (PM + 1, VSENT, sFM, sFM + 1))
    A("s_mov_b64 exec, -1")
    A("s_branch L_ch_noflag")
    A.label("L_ch_last")
    for x in vq_last: smf(*x)
    if not EE: sadd64(A, sKM, sKM, 32 * 8192)
    A.nop(8)
    pkadd(V0); pkadd(V1)
    cvt(VMA, V0, V0 + 1); cvt(VMA + 1, V1, V1 + 1)
    A("v_min_u32 v%d, -2, v%d" % (VMA, VMA))
    A(exp_st())
    A("s_waitcnt lgkmcnt(0)")
    A("s_barrier")
    if opt.get("rt") or opt.get("cyc"):
        A("s_add_u32 s47, s%d, 410" % sL)
        rt_stamp(A, dict(rt=opt.get("rt") or 2), "s47", 27, 28)
    A("s_add_u32 s%d, s%d, 1" % (sL, sL))
    A("s_cmp_lt_u32 s%d, %d" % (sL, opt.get("layers", 2)))
    A("s_cbranch_scc1 L_ch_layer")
    if opt.get("cnt"):
        rt_stamp(A, dict(rt=2), 420, 27, 28)
        for k, r in enumerate((85, 86, 87)):
            A("v_mov_b32 v28, s%d" % r)
            A("global_store_dword v27, v28, s[%d:%d] offset:%d" % (S_WS, S_WS + 1, 4 + 4 * k))
    A("s_branch L_end")
    cold.emit(A)
```

```python
from common import *
import math, struct
def f32bits(x): return struct.unpack("<I", struct.pack("<f", x))[0]
LOG2E = math.log2(math.e)
ZZ = [1]
_RT0 = {}

def mfma(A, d, x, y, c, k32=True):
    n = 4 if k32 else 2
    A("v_mfma_f32_16x16x%d_bf16 %s, %s, %s, %s" % (32 if k32 else 16, v(d, 4), R(x, n), R(y, n), c if isinstance(c, str) else v(c, 4)))
def cvt(A, d, x, y): A("v_cvt_pk_bf16_f32 v%d, v%d, v%d" % (d, x, y))
def rd128(A, d, addr, off): A("ds_read_b128 v[%d:%d], v%d offset:%d" % (d, d + 3, addr, off))

def wait_flags(A, vtmp, voff, sbase, sleep=2):
    lp = A.newlabel("Lwf"); ok = A.newlabel("Lwo")
    A.label(lp)
    A("global_load_dword v%d, v%d, s[%d:%d] sc1" % (vtmp, voff, sbase, sbase + 1))
    A("s_waitcnt vmcnt(0)")
    A("v_cmp_eq_u32 vcc, 0, v%d" % vtmp)
    A("s_cbranch_vccz %s" % ok)
    if sleep: A("s_sleep %d" % (sleep * ZZ[0]))
    spin_guard(A)
    A("s_branch %s" % lp)
    A.label(ok)

def row_allsum16(A, regs, tmp):
    src, dst = list(regs), list(tmp)
    for sh in (8, 4, 2, 1):
        if len(regs) < 3: A.nop(3 - len(regs))
        for a_, b_ in zip(src, dst):
            A("v_add_f32_dpp v%d, v%d, v%d row_ror:%d row_mask:0xf bank_mask:0xf" % (b_, a_, a_, sh))
        src, dst = dst, src

def swap_sum(A, r, t, which):
    A("v_mov_b32 v%d, v%d" % (t, r))
    A.nop(2)
    A("v_permlane%d_swap_b32 v%d, v%d" % (which, r, t))
    A("v_add_f32 v%d, v%d, v%d" % (r, r, t))

def sel_const(A, SEL, T):
    A("v_and_b32 v%d, 1, v0" % T)
    A("v_lshlrev_b32 v%d, 4, v%d" % (T, T))
    A("v_mov_b32 v%d, 0x3f80" % (T + 1))
    A("v_lshlrev_b32 v%d, v%d, v%d" % (T + 1, T, T + 1))
    A("v_bfe_u32 v%d, v0, 1, 2" % T)
    for rr in range(4):
        A("v_cmp_eq_u32 vcc, %d, v%d" % (rr, T))
        A.nop(2)
        A("v_cndmask_b32 v%d, 0, v%d, vcc" % (SEL + rr, T + 1))

def reduce_consts(A, VRLD, VROW, VFL, T):
    A("v_and_b32 v%d, 15, v0" % T)
    A("v_bfe_u32 v%d, v0, 4, 2" % (T + 1))
    A("s_lshl_b32 s40, s%d, 8" % S_WAVE)
    A("v_lshlrev_b32 v%d, 10, v%d" % (VRLD, T + 1))
    A("v_lshl_add_u32 v%d, v%d, 4, v%d" % (VRLD, T, VRLD))
    A("v_add_u32 v%d, s40, v%d" % (VRLD, VRLD))
    A("v_and_b32 v%d, 1, v%d" % (T + 1, T + 1))
    A("v_lshlrev_b32 v%d, 3, v%d" % (VROW, T + 1))
    A("v_lshl_add_u32 v%d, v%d, 4, v%d" % (VROW, T, VROW))
    A("v_add_u32 v%d, s40, v%d" % (VROW, VROW))
    A("v_and_b32 v%d, 31, v0" % VFL)
    A("v_lshlrev_b32 v%d, 2, v%d" % (VFL, VFL))

def one_lane(A, text):
    A("s_mov_b64 exec, 1")
    A(text)
    A("s_mov_b64 exec, -1")

def ring_next(A, sRING):
    A("s_add_u32 s%d, s%d, 0x100000" % (sRING, sRING))
    A("s_cmp_eq_u32 s%d, 0x200000" % sRING)
    A("s_cselect_b32 s%d, 0, s%d" % (sRING, sRING))

def arm_partials(A, cold, VRLD, T):
    A("s_lshl_b32 s41, s%d, 22" % S_GRP)
    A("s_lshl_b32 s42, s%d, 15" % S_HEAD)
    A("s_add_u32 s41, s41, s42")
    A("s_add_u32 s41, s41, 0x%x" % OFF_PW)
    A("v_add_u32 v%d, s41, v%d" % (T, VRLD))
    A("v_mov_b32 v%d, -1" % (T + 1))
    st = []
    for k in range(1, 24): A("v_add_u32 v%d, 0x%x, v%d" % (T + 1 + k, (k >> 3) * 0x100000 + (k & 7) * 4096, T))
    store_mixed(A, cold, ["global_store_dword v%d, v%d, s[%d:%d]" % (T + 1 + k if k else T, T + 1, S_WS, S_WS + 1) for k in range(24)])

def reduce_row(A, cold, W, SEL, VRLD, VROW, VFL, VL16, sPART, sPF, sIT, sX, sY, sOF, lds_off, final_cond, defer=None):
    RB, RD, XR, T, AD = W, W + 32, W + 36, W + 40, W + 48
    rtp(A, 10)
    for i in range(1, 8): A("v_add_u32 v%d, %d, v%d" % (AD + i, i * 4096, VRLD))
    A("s_and_b32 s41, s%d, 1" % sIT)
    A("s_lshl_b32 s41, s41, 11")
    A("s_add_u32 s41, s41, %d" % lds_off)
    wait_flags(A, T, VFL, sPF, sleep=0)
    rtp(A, 11)
    for i in range(8):
        A("global_load_dwordx4 v[%d:%d], v%d, s[%d:%d] sc1" % (RB + 4 * i, RB + 4 * i + 3, AD + i if i else VRLD, sPART, sPART + 1))
    A("v_lshlrev_b32 v%d, 16, v%d" % (T, XR))
    A("v_and_b32 v%d, 0xffff0000, v%d" % (T + 1, XR))
    A("v_lshlrev_b32 v%d, 16, v%d" % (T + 2, XR + 1))
    A("v_and_b32 v%d, 0xffff0000, v%d" % (T + 3, XR + 1))
    A("s_add_u32 s42, s41, 32")
    A("v_add_u32 v%d, s42, v%d" % (T + 4, VROW))
    A("v_add_u32 v%d, s42, v%d" % (T + 6, VL16))
    A("s_lshl_b32 s40, s%d, 3" % S_WAVE)
    A("s_add_u32 s40, s40, s41")
    A("v_mov_b32 v%d, s40" % (T + 5))
    A("v_mov_b32 v%d, s41" % (T + 7))
    for i in range(8):
        A("s_waitcnt vmcnt(%d)" % (7 - i))
        mfma(A, RD, SEL, RB + 4 * i, "0" if i == 0 else RD)
    A.nop(8)
    rtp(A, 12)
    cvt(A, XR, RD, RD + 1); cvt(A, XR + 1, RD + 2, RD + 3)
    A("v_lshlrev_b32 v%d, 16, v%d" % (RD, XR))
    A("v_and_b32 v%d, 0xffff0000, v%d" % (RD + 1, XR))
    A("v_lshlrev_b32 v%d, 16, v%d" % (RD + 2, XR + 1))
    A("v_and_b32 v%d, 0xffff0000, v%d" % (RD + 3, XR + 1))
    for r in range(4): A("v_add_f32 v%d, v%d, v%d" % (RD + r, RD + r, T + r))
    cvt(A, XR, RD, RD + 1); cvt(A, XR + 1, RD + 2, RD + 3)
    A("ds_write_b64 v%d, v[%d:%d]" % (T + 4, XR, XR + 1))
    A("v_lshlrev_b32 v%d, 16, v%d" % (RD, XR))
    A("v_and_b32 v%d, 0xffff0000, v%d" % (RD + 1, XR))
    A("v_lshlrev_b32 v%d, 16, v%d" % (RD + 2, XR + 1))
    A("v_and_b32 v%d, 0xffff0000, v%d" % (RD + 3, XR + 1))
    S, Q = T, T + 1
    A("v_add_f32 v%d, v%d, v%d" % (S, RD, RD + 1))
    A("v_mul_f32 v%d, v%d, v%d" % (Q, RD, RD))
    A("v_add_f32 v%d, v%d, v%d" % (S, S, RD + 2))
    A("v_fmac_f32 v%d, v%d, v%d" % (Q, RD + 1, RD + 1))
    A("v_add_f32 v%d, v%d, v%d" % (S, S, RD + 3))
    A("v_fmac_f32 v%d, v%d, v%d" % (Q, RD + 2, RD + 2))
    A("v_fmac_f32 v%d, v%d, v%d" % (Q, RD + 3, RD + 3))
    A.nop(1)
    row_allsum16(A, [S, Q], [T + 2, T + 3])
    A("v_mov_b64 v[%d:%d], v[%d:%d]" % (T + 2, T + 3, S, Q))
    A.nop(2)
    A("v_permlane16_swap_b32 v%d, v%d" % (S, T + 2))
    A("v_permlane16_swap_b32 v%d, v%d" % (Q, T + 3))
    A("v_pk_add_f32 v[%d:%d], v[%d:%d], v[%d:%d]" % (S, Q, S, Q, T + 2, T + 3))
    A("ds_write_b64 v%d, v[%d:%d]" % (T + 5, S, Q))
    A("s_waitcnt lgkmcnt(0)")
    A("s_barrier")
    rtp(A, 13)
    ldone = A.newlabel("Lrdone"); lfin = A.newlabel("Lfin")
    A("s_cmp_lg_u32 s%d, 0" % S_WAVE)
    A("s_cbranch_scc1 %s" % ldone)
    rd128(A, RB + 8, T + 6, 0)
    rd128(A, RB, T + 7, 0); rd128(A, RB + 4, T + 7, 16)
    final_cond(A)
    A("s_waitcnt lgkmcnt(2)")
    A("s_cbranch_scc1 %s" % lfin)
    A("global_store_dwordx4 v%d, v[%d:%d], s[%d:%d] sc1" % (VL16, RB + 8, RB + 11, sX, sX + 1))
    U = RB + 16
    for r in range(4):
        A("v_lshlrev_b32 v%d, 16, v%d" % (U + 2 * r, RB + 8 + r))
        A("v_and_b32 v%d, 0xffff0000, v%d" % (U + 2 * r + 1, RB + 8 + r))
    A("s_waitcnt lgkmcnt(0)")
    A("v_pk_add_f32 v[%d:%d], v[%d:%d], v[%d:%d]" % (RB, RB + 1, RB, RB + 1, RB + 2, RB + 3))
    A("v_pk_add_f32 v[%d:%d], v[%d:%d], v[%d:%d]" % (RB + 4, RB + 5, RB + 4, RB + 5, RB + 6, RB + 7))
    A("v_pk_add_f32 v[%d:%d], v[%d:%d], v[%d:%d]" % (RB, RB + 1, RB, RB + 1, RB + 4, RB + 5))
    ln_finish(A, RB, RB + 1, T)
    for r in range(8):
        A("v_sub_f32 v%d, v%d, v%d" % (U + r, U + r, T))
        A("v_mul_f32 v%d, v%d, v%d" % (U + r, U + r, T + 1))
    for r in range(4): cvt(A, RB + 12 + r, U + 2 * r, U + 2 * r + 1)
    A("s_and_b32 s40, s%d, 15" % S_HEAD)
    A("s_lshl_b32 s40, s40, 4")
    A("v_xor_b32 v%d, s40, v%d" % (T + 2, VL16))
    A("global_store_dwordx4 v%d, v[%d:%d], s[%d:%d] sc1" % (T + 2, RB + 12, RB + 15, sY, sY + 1))
    if defer is None:
        A("v_mov_b32 v%d, 1" % (T + 1))
        A("s_waitcnt vmcnt(0)")
        one_lane(A, "global_store_dword v%d, v%d, s[%d:%d] sc1" % (VL16, T + 1, sOF, sOF + 1))
    else:
        A("s_mov_b64 s[%d:%d], s[%d:%d]" % (defer + 1, defer + 2, sOF, sOF + 1))
        A("s_mov_b32 s%d, 1" % defer)
    A.label(ldone)
    def blk(A):
        A.label(lfin)
        A("global_store_dwordx4 v%d, v[%d:%d], s[%d:%d]" % (VL16, RB + 8, RB + 11, sX, sX + 1))
        A("s_waitcnt lgkmcnt(0)")
        A("s_branch %s" % ldone)
    cold.add(blk)

def flush_deferred(A, defer, VL16, ONE):
    l = A.newlabel("Lfd")
    A("s_cmp_eq_u32 s%d, 0" % defer)
    A("s_cbranch_scc1 %s" % l)
    one_lane(A, "global_store_dword v%d, v%d, s[%d:%d] sc1" % (VL16, ONE, defer + 1, defer + 2))
    A("s_mov_b32 s%d, 0" % defer)
    A.label(l)

def ln_finish(A, S, Q, T):
    A("v_mul_f32 v%d, 0x%x, v%d" % (T, f32bits(1 / 512), S))
    A("v_mul_f32 v%d, 0x%x, v%d" % (T + 1, f32bits(1 / 512), Q))
    A("v_fma_f32 v%d, -v%d, v%d, v%d" % (T + 1, T, T, T + 1))
    A("v_max_f32 v%d, 0, v%d" % (T + 1, T + 1))
    A("v_add_f32 v%d, 0x%x, v%d" % (T + 1, f32bits(1e-5), T + 1))
    A("v_rsq_f32 v%d, v%d" % (T + 1, T + 1))
    A.nop(1)

def zero_flags(A, NP1):
    A("s_lshl_b32 s37, s%d, 5" % S_GRP)
    A("s_add_u32 s37, s37, s%d" % S_HEAD)
    A("s_sub_u32 s37, s37, 32")
    A("s_mul_i32 s37, s37, %d" % (0x20000 // (32 * NP1)))
    A("v_lshl_add_u32 v52, v0, 4, s37")
    A("v_mov_b64 v[68:69], 0"); A("v_mov_b64 v[70:71], 0")
    per = 0x20000 // (32 * NP1)
    assert per in (2048, 4096)
    if per == 2048:
        l = A.newlabel("Lz")
        A("s_cmp_ge_u32 s%d, 2" % S_WAVE)
        A("s_cbranch_scc1 %s" % l)
    A("global_store_dwordx4 v52, v[68:71], s[%d:%d] sc1" % (S_WS, S_WS + 1))
    if per == 2048: A.label(l)

def pack_wqkv(A):
    A("s_lshl_b32 s37, s%d, 5" % S_GRP)
    A("s_add_u32 s37, s37, s%d" % S_HEAD)
    A("s_sub_u32 s37, s37, 32")
    A("s_mul_i32 s38, s37, %d" % (8 * 3072))
    A("s_mul_i32 s39, s%d, 6144" % S_WAVE)
    A("s_add_u32 s38, s38, s39")
    sadd64(A, 42, S_WQKV, "s38")
    sadd64(A, 44, 42, 3072)
    A("v_and_b32 v53, 63, v0")
    A("v_lshlrev_b32 v54, 4, v53")
    A("s_mov_b32 m0, s39")
    A("s_add_u32 s39, s39, 3072")
    for i in range(3): A("global_load_lds_dwordx4 v54, s[42:43] offset:%d" % (i * 1024))
    A("s_mov_b32 m0, s39")
    A("s_nop 0")
    for i in range(3): A("global_load_lds_dwordx4 v54, s[44:45] offset:%d" % (i * 1024))
    A("v_bfe_u32 v55, v53, 1, 3")
    A("v_lshrrev_b32 v56, 4, v53")
    A("v_and_b32 v57, 1, v53")
    A("v_lshlrev_b32 v57, 4, v57")
    A("v_mul_u32_u24 v58, 3072, v55")
    A("v_lshl_add_u32 v58, v56, 5, v58")
    A("v_add_u32 v58, v58, v57")
    A("s_lshl_b32 s39, s%d, 8" % S_WAVE)
    A("v_add_u32 v58, s39, v58")
    A("v_mul_u32_u24 v59, 49152, v56")
    A("v_lshl_add_u32 v59, v55, 5, v59")
    A("v_add_u32 v59, v59, v57")
    A("s_mul_i32 s38, s37, 768")
    A("s_mul_i32 s39, s%d, %d" % (S_WAVE, 8 * 49152))
    A("s_add_u32 s38, s38, s39")
    A("s_add_u32 s38, s38, 0x%x" % OFF_WP)
    sadd64(A, 42, S_WS, "s38")
    sadd64(A, 44, 42, 4 * 49152)
    A("s_waitcnt vmcnt(0)")
    A("s_barrier")
    for k in range(2):
        for t in range(3): rd128(A, 72 + 4 * (3 * k + t), 58, t * 1024 + k * 128)
    for k in range(2):
        for t in range(3):
            A("s_waitcnt lgkmcnt(%d)" % (5 - 3 * k - t))
            A("global_store_dwordx4 v59, v[%d:%d], s[%d:%d] offset:%d sc1" % (72 + 4 * (3 * k + t), 75 + 4 * (3 * k + t), 42 + 2 * k, 43 + 2 * k, t * 256))

def arm_akv(A, NA0, NA):
    A("s_lshl_b32 s37, s%d, 5" % S_GRP)
    A("s_add_u32 s37, s37, s%d" % S_HEAD)
    A("s_sub_u32 s37, s37, 32")
    A("s_and_b32 s38, s37, 1")
    A("s_lshl_b32 s38, s38, 2")
    A("s_add_u32 s38, s38, s%d" % S_WAVE)
    A("s_min_u32 s38, s38, %d" % (NA0 + NA - 1))
    A("s_lshr_b32 s37, s37, 1")
    A("s_lshl_b32 s37, s37, 14")
    A("s_cmp_ge_u32 s38, %d" % NA0)
    A("s_cselect_b32 s39, %d, 0" % (32 * 16384 - NA0 * 2048))
    A("s_lshl_b32 s38, s38, 11")
    A("s_add_u32 s37, s37, s38")
    A("s_add_u32 s37, s37, s39")
    A("s_add_u32 s37, s37, 0x%x" % OFF_AKV)
    A("v_and_b32 v60, 63, v0")
    A("v_lshl_add_u32 v60, v60, 4, s37")
    A("v_mov_b64 v[64:65], -1"); A("v_mov_b64 v[66:67], -1")
    for k in range(2): A("global_store_dwordx4 v60, v[64:67], s[%d:%d] offset:%d sc1" % (S_WS, S_WS + 1, 1024 * k))

NROW = 4
def prepass0(A, sAG, NA0):
    A("s_lshl_b32 s38, s%d, 2" % S_HEAD)
    A("s_add_u32 s38, s38, s%d" % S_WAVE)
    A("v_and_b32 v52, 63, v0")
    A("v_lshlrev_b32 v52, 4, v52")
    A("s_lshr_b32 s39, s38, 5")
    A("s_and_b32 s38, s38, 31")
    assert 4 * NROW * NA0 >= 64
    for k in range(NROW):
        A("s_add_u32 s40, s39, %d" % (4 * k))
        A("s_mul_i32 s40, s40, %d" % NA0)
        A("s_add_u32 s40, s40, s%d" % sAG)
        if k == 0: A("s_mov_b32 s41, s40")
        A("s_cmp_lt_u32 s40, 64")
        A("s_cselect_b32 s40, s40, s41")
        A("s_lshl_b32 s40, s40, 5")
        A("s_add_u32 s40, s40, s38")
        A("s_lshl_b32 s40, s40, 10")
        A("v_add_u32 v%d, s40, v52" % (112 + k))
        A("global_load_dwordx4 v[%d:%d], v%d, s[%d:%d]" % (56 + 4 * k, 59 + 4 * k, 112 + k, S_AX, S_AX + 1))
    A("s_and_b32 s38, s38, 15")
    A("s_lshl_b32 s38, s38, 4")

def prepass1(A, behind_dma):
    sadd64(A, 42, S_WS, OFF_Y0)
    A("s_waitcnt vmcnt(%d)" % (4 if behind_dma else 0))
    rt_stamp(A, _RT0, 490, 118, 119)
    ST = 160
    for k in range(NROW):
        X = 56 + 4 * k; U = 72 + 8 * k; S, Q = ST + 2 * k, ST + 1 + 2 * k
        for r in range(4):
            A("v_lshlrev_b32 v%d, 16, v%d" % (U + 2 * r, X + r))
            A("v_and_b32 v%d, 0xffff0000, v%d" % (U + 2 * r + 1, X + r))
        A("v_add_f32 v%d, v%d, v%d" % (S, U, U + 1))
        A("v_mul_f32 v%d, v%d, v%d" % (Q, U, U))
        A("v_fmac_f32 v%d, v%d, v%d" % (Q, U + 1, U + 1))
        for r in range(2, 8):
            A("v_add_f32 v%d, v%d, v%d" % (S, S, U + r))
            A("v_fmac_f32 v%d, v%d, v%d" % (Q, U + r, U + r))
    A.nop(1)
    rg = [ST + r for r in range(2 * NROW)]; tm = [ST + 2 * NROW + r for r in range(2 * NROW)]
    row_allsum16(A, rg, tm)
    for which in (16, 32):
        for r in range(2 * NROW): A("v_mov_b32 v%d, v%d" % (tm[r], rg[r]))
        for r in range(2 * NROW): A("v_permlane%d_swap_b32 v%d, v%d" % (which, rg[r], tm[r]))
        for r in range(2 * NROW): A("v_add_f32 v%d, v%d, v%d" % (rg[r], rg[r], tm[r]))
    for k in range(NROW):
        X = 56 + 4 * k; U = 72 + 8 * k
        ln_finish(A, ST + 2 * k, ST + 1 + 2 * k, 116)
        for r in range(8):
            A("v_sub_f32 v%d, v%d, v116" % (U + r, U + r))
            A("v_mul_f32 v%d, v%d, v117" % (U + r, U + r))
        for r in range(4): cvt(A, X + r, U + 2 * r, U + 2 * r + 1)
        A("v_xor_b32 v%d, s38, v%d" % (112 + k, 112 + k))
        A("global_store_dwordx4 v%d, v[%d:%d], s[42:43] sc1" % (112 + k, X, X + 3))

def publish_partials(A, cold, T, sPF):
    A("s_lshl_b32 s40, s%d, 2" % S_HEAD)
    A("v_mov_b32 v%d, s40" % T)
    A("v_mov_b32 v%d, 1" % (T + 1))
    rtp(A, 8)
    A("s_waitcnt vmcnt(0)")
    rtp(A, 9)
    A("s_barrier")
    l = A.newlabel("Lpp")
    A("s_cmp_lg_u32 s%d, 1" % S_WAVE)
    A("s_cbranch_scc1 %s" % l)
    A("s_mov_b64 exec, 1")
    store_mixed(A, cold, ["global_store_dword v%d, v%d, s[%d:%d]" % (T, T + 1, sPF, sPF + 1)])
    A("s_mov_b64 exec, -1")
    A.label(l)

def wqw(t, c):
    return 256 + 64 * t + 8 * c if t < 4 else 128 + 64 * (t - 4) + 8 * c

def frag_addrs(A, VA4, T):
    A("v_and_b32 v%d, 15, v0" % T)
    A("v_bfe_u32 v%d, v0, 4, 2" % (T + 1))
    for q in range(4):
        A("v_add_u32 v%d, %d, v%d" % (T + 2, 4 * q, T + 1))
        A("v_xor_b32 v%d, v%d, v%d" % (T + 2, T + 2, T))
        A("v_lshlrev_b32 v%d, 4, v%d" % (T + 2, T + 2))
        A("v_lshl_add_u32 v%d, v%d, 10, v%d" % (VA4 + q, T, T + 2))

def signal_last(A, T, lds_off, text):
    l = A.newlabel("Lsg")
    A("v_mov_b32 v%d, %d" % (T, lds_off))
    A("v_mov_b32 v%d, 1" % (T + 1))
    A("s_mov_b64 exec, 1")
    A("ds_add_rtn_u32 v%d, v%d, v%d" % (T, T, T + 1))
    A("s_waitcnt lgkmcnt(0)")
    A("v_readfirstlane_b32 s40, v%d" % T)
    A("s_and_b32 s40, s40, 3")
    A("s_cmp_lg_u32 s40, 3")
    A("s_cbranch_scc1 %s" % l)
    A(text)
    A.label(l)
    A("s_mov_b64 exec, -1")

def rts(A, opt, sL, sSEG, base, W):
    if opt.get("rt"):
        A("s_lshl_b32 s97, s%d, 6" % sL)
        A("s_add_u32 s97, s97, s%d" % sSEG)
        A("s_add_u32 s97, s97, %d" % base)
        rt_stamp(A, opt, "s97", W, W + 1)

_RTP = {"opt": None, "it": 50}
def rtp(A, k, va=240):
    opt = _RTP["opt"]
    if not opt or not opt.get("rt2"): return
    l = A.newlabel("Lrtp")
    A("s_cmp_lg_u32 s%d, 20" % _RTP["it"])
    A("s_cbranch_scc1 %s" % l)
    rt_stamp(A, dict(rt=1), 460 + k, va, va + 1)
    A.label(l)

def pack(A, dst, a0, a1):
    cvt(A, dst, a0, a0 + 1); cvt(A, dst + 1, a0 + 2, a0 + 3); cvt(A, dst + 2, a1, a1 + 1); cvt(A, dst + 3, a1 + 2, a1 + 3)

def tile_off(A, dst, sL, sSEG):
    A("s_lshl_b32 s40, s%d, 6" % sL)
    A("s_add_u32 s40, s40, s%d" % sSEG)
    A("s_lshl_b32 s%d, s40, 5" % dst)
    A("s_add_u32 s%d, s%d, s%d" % (dst, dst, S_HEAD))
    A("s_lshl_b32 s%d, s%d, 13" % (dst, dst))
def head_flag(A, dst, base, sL, sSEG, shift):
    A("s_lshl_b32 s41, s%d, 5" % sL)
    A("s_add_u32 s41, s41, s%d" % S_HEAD)
    A("s_lshl_b32 s41, s41, 6")
    A("s_add_u32 s41, s41, s%d" % sSEG)
    A("s_lshl_b32 s41, s41, %d" % shift)
    A("s_add_u32 s41, s41, 0x%x" % base)
    sadd64(A, dst, S_WS, "s41")

def gen_p1(A, opt):
    cold = Cold()
    NP1 = opt["NP1"]
    VY, VW2K, VL16, VKST, VFL, ZERO, ONE, VF = range(1, 9)
    VA4 = 10
    L_CNT = 65536
    W = 16
    sL, sSEG, sNX, sPRE, sSLOT, sT = 48, 49, 50, 51, 66, 67
    sA, sB, sCc, sD, sE, sF, sG, sGP = 52, 54, 56, 58, 60, 62, 64, 68
    A.label("L_p1")
    T = 40
    A("v_and_b32 v%d, 63, v0" % T)
    A("v_and_b32 v%d, 15, v0" % (T + 1))
    A("v_bfe_u32 v%d, v0, 4, 2" % (T + 2))
    A("v_lshlrev_b32 v%d, 4, v%d" % (VY, T))
    A("s_lshl_b32 s40, s%d, 11" % S_WAVE)
    A("v_add_u32 v%d, s40, v%d" % (VW2K, VY))
    A("v_mov_b32 v%d, v%d" % (VL16, VY))
    frag_addrs(A, VA4, T + 3)
    A("s_lshl_b32 s40, s%d, 10" % S_WAVE)
    A("v_add_u32 v%d, s40, v%d" % (VKST, VY))
    A("v_and_b32 v%d, 31, v0" % VFL)
    A("v_lshlrev_b32 v%d, 2, v%d" % (VFL, VFL))
    A("v_mov_b32 v%d, 0" % ZERO)
    A("v_mov_b32 v%d, 1" % ONE)
    assert NP1 == 2
    zero_flags(A, NP1)
    arm_akv(A, opt["NA"] + opt["NP2"], opt["NA"])
    pack_wqkv(A)
    opt["arrive"](A, "flags")
    rt_stamp(A, opt, 492, 110, 111)
    for _ in range(opt.get("p1z", 0) // 50): A("s_sleep 50")
    load_head_weights(A, 40, wqw, False)
    rt_stamp(A, opt, 501, 40, 41)
    opt["init_wait"](A)
    A("v_mov_b32 v%d, %d" % (W, L_CNT))
    A("v_mov_b64 v[%d:%d], 0" % (W + 2, W + 3))
    A("ds_write_b64 v%d, v[%d:%d]" % (W, W + 2, W + 3))
    A("s_waitcnt lgkmcnt(0)")
    A("s_barrier")
    A("s_mov_b32 s%d, 0" % sL)
    A("s_lshl_b32 s%d, s%d, 13" % (sSLOT, S_WAVE))

    def xflag(dst, sseg):
        A("s_lshl_b32 s40, s%d, 6" % sL)
        A("s_add_u32 s40, s40, s%d" % sseg)
        A("s_lshl_b32 s41, s40, 7")
        A("s_add_u32 s41, s41, 0x%x" % F_X1); sadd64(A, dst, S_WS, "s41")
    def dma(sseg):
        A("s_lshl_b32 s40, s%d, 6" % sL)
        A("s_add_u32 s40, s40, s%d" % sseg)
        A("s_lshl_b32 s41, s40, 15")
        A("s_lshl_b32 s42, s%d, 13" % S_WAVE)
        A("s_add_u32 s41, s41, s42")
        A("s_add_u32 s41, s41, 0x%x" % OFF_Y1); sadd64(A, sB, S_WS, "s41")
        sadd64(A, sCc, sB, 4096)
        for hf in range(2):
            A("s_add_u32 s43, s%d, %d" % (sSLOT, hf * 4096))
            A("s_mov_b32 m0, s43")
            A("s_nop 0")
            b = sB if hf == 0 else sCc
            for i in range(4): A("global_load_lds_dwordx4 v%d, s[%d:%d] offset:%d sc1" % (VL16, b, b + 1, i * 1024))
        A("s_xor_b32 s%d, s%d, 32768" % (sSLOT, sSLOT))

    def qflag():
        sadd64(A, sGP, sGP, F_Q - F_KV)
        signal_last(A, W, L_CNT + 4, "global_store_dword v%d, v%d, s[%d:%d] sc1" % (ZERO, ONE, sGP, sGP + 1))
    def yrd(dst, ks):
        rd128(A, dst, VA4 + (ks & 3), (ks >> 2) * 256); rd128(A, dst + 4, VA4 + (ks & 3), (ks >> 2) * 256 + 16384)
    A.label("L_p1_layer")
    A("s_sub_u32 s%d, s%d, 1" % (sSEG, S_GRP))
    xflag(sA, sSEG)
    wait_flags(A, W, VFL, sA, sleep=1)
    dma(sSEG)
    head_flag(A, sGP, F_KV, sL, sSEG, 2)
    A("s_mov_b32 s%d, 0" % sPRE)
    A.label("L_p1_loop")
    _RTP["opt"] = opt; _RTP["it"] = sSEG
    rtp(A, 0, 20)
    A("s_add_u32 s%d, s%d, %d" % (sNX, sSEG, NP1))
    A("s_min_u32 s44, s%d, 63" % sNX)
    xflag(sA, 44)
    A("global_load_dword v%d, v%d, s[%d:%d] sc1" % (VF, VFL, sA, sA + 1))
    tile_off(A, sT, sL, sSEG)
    A("s_add_u32 s41, s%d, 0x%x" % (sT, OFF_KX)); sadd64(A, sD, S_WS, "s41")
    A("s_add_u32 s41, s%d, 0x%x" % (sT, OFF_VX)); sadd64(A, sE, S_WS, "s41")
    A("s_add_u32 s41, s%d, 0x%x" % (sT, OFF_QX)); sadd64(A, sF, S_WS, "s41")
    head_flag(A, sG, F_KV, sL, sSEG, 2)
    A("s_waitcnt vmcnt(0)")
    rtp(A, 1, 20)
    A("s_cmp_eq_u32 s%d, 0" % sPRE)
    A("s_cbranch_scc1 L_p1_noq")
    qflag()
    A.label("L_p1_noq")
    if opt.get("ahead"):
        A("s_cmp_lt_u32 s%d, %d" % (sSEG, opt["ahead"]))
        A("s_cbranch_scc1 L_p1_go")
        A("s_sub_u32 s44, s%d, %d" % (sSEG, opt["ahead"]))
        head_flag(A, 46, F_M, sL, 44, 2)
        wait_flags(A, W, ZERO, 46, sleep=4)
        A("global_load_dword v%d, v%d, s[%d:%d] sc1" % (VF, VFL, sA, sA + 1))
        A("s_waitcnt vmcnt(0)")
        A.label("L_p1_go")
    A("s_barrier")
    ACC, YF = 32, 80
    rtp(A, 2, 20)
    yrd(YF, 0)
    A("v_cmp_eq_u32 vcc, 0, v%d" % VF)
    A("s_mov_b32 s%d, 1" % sPRE)
    A("s_cmp_ge_u32 s%d, 64" % sNX)
    A("s_cbranch_scc1 L_p1_nopre")
    A("s_cbranch_vccnz L_p1_nopre")
    dma(sNX)
    A("s_mov_b32 s%d, 2" % sPRE)
    A.label("L_p1_nopre")
    acc = lambda t, mt: ACC + (t * 2 + mt) * 4
    rtp(A, 3, 20)
    O = 96
    for tiles in ((2, 3, 4, 5), (0, 1)):
        for ks in range(16):
            y = YF + 8 * (ks & 1)
            last = ks == 15 and tiles == (0, 1)
            if not last:
                kn = (ks + 1) & 15
                yn = YF + 8 * (kn & 1)
                yrd(yn, kn)
            A("s_waitcnt lgkmcnt(%d)" % (0 if last else 2))
            for t in tiles:
                wf = wqw(t, 0) + 4 * ks
                for mt in range(2):
                    c = "0" if ks == 0 else acc(t, mt)
                    if t < 4: mfma(A, acc(t, mt), wf, y + 4 * mt, c)
                    else: mfma(A, acc(t, mt), y + 4 * mt, wf, c)
            if ks == 15: rtp(A, 4 if tiles != (0, 1) else 5, 20)
            if tiles == (0, 1):
                if ks in (1, 2):
                    mt = ks - 1
                    pack(A, O + 4 * mt, acc(2, mt), acc(3, mt))
                    if mt == 1: sadd64(A, sD, sD, 4096)
                    A("global_store_dwordx4 v%d, v[%d:%d], s[%d:%d] sc1" % (VKST, O + 4 * mt, O + 4 * mt + 3, sD, sD + 1))
                if ks in (3, 4):
                    Tt = ks - 3
                    pack(A, O + 8 + 4 * Tt, acc(4 + Tt, 0), acc(4 + Tt, 1))
                    A("global_store_dwordx4 v%d, v[%d:%d], s[%d:%d] offset:%d sc1" % (VW2K, O + 8 + 4 * Tt, O + 11 + 4 * Tt, sE, sE + 1, 1024 * Tt))
    for q in range(4): A("v_xor_b32 v%d, 32768, v%d" % (VA4 + q, VA4 + q))
    A("s_waitcnt vmcnt(0)")
    rtp(A, 6, 20)
    signal_last(A, W, L_CNT, "global_store_dword v%d, v%d, s[%d:%d] sc1" % (ZERO, ONE, sG, sG + 1))
    rtp(A, 7, 20)
    for mt in range(2):
        pack(A, O + 16 + 4 * mt, acc(0, mt), acc(1, mt))
        if mt == 1: sadd64(A, sF, sF, 4096)
        A("global_store_dwordx4 v%d, v[%d:%d], s[%d:%d] sc1" % (VKST, O + 16 + 4 * mt, O + 19 + 4 * mt, sF, sF + 1))
    rtp(A, 8, 20)
    rts(A, opt, sL, sSEG, 0, W)
    A("s_mov_b64 s[%d:%d], s[%d:%d]" % (sGP, sGP + 1, sG, sG + 1))
    A("s_mov_b32 s%d, s%d" % (sSEG, sNX))
    A("s_cmp_eq_u32 s%d, 2" % sPRE)
    A("s_cbranch_scc1 L_p1_loop")
    A("s_waitcnt vmcnt(0)")
    qflag()
    A("s_mov_b32 s%d, 0" % sPRE)
    A("s_cmp_ge_u32 s%d, 64" % sSEG)
    A("s_cbranch_scc1 L_p1_next")
    wait_flags(A, W, VFL, sA, sleep=1)
    dma(sSEG)
    A("s_branch L_p1_loop")
    A.label("L_p1_next")
    A("s_add_u32 s%d, s%d, 1" % (sL, sL))
    A("s_cmp_lt_u32 s%d, %d" % (sL, opt.get("layers", 2)))
    A("s_cbranch_scc1 L_p1_layer")
    A("s_branch L_end")
    cold.emit(A)

def gen_p2(A, opt):
    cold = Cold()
    NP1, NP2 = opt["NP1"], opt["NP2"]
    VL16, VW2K, VS, VF8, VZR, VZW, VF, VPST, VRLD, VROW, VFL = range(1, 12)
    SEL, BIAS = 12, 16
    VQF, VVF, VOW, VKM, ZERO, PMA, PMB = 24, 25, 26, 27, 29, 28, 30
    W = 32
    RW = 144
    VTW, VTR = 208, 212
    sRING = 84
    L_TP = 65536
    WO = 256
    SLOT = 24576
    L_Q, L_K, L_V, L_Z, L_O, L_ST = 0, 8192, 16384, 49152, 53248, 61440
    sL, sSEG, sIT, sC = 48, 49, 50, 51
    sA, sB, sCc, sD, sE, sF, sG, sH, sX, sY = 52, 54, 56, 58, 60, 62, 64, 68, 70, 72
    sT, sNX, sPRE, sSLOT = 66, 67, 74, 75
    sDEF, sMM, sKP, sKN = 77, 80, 76, 82
    VFM, VL4, ONE, KE2 = 216, 217, 218, 220
    A.label("L_p2")
    A("s_barrier")
    T = 40
    A("v_and_b32 v%d, 63, v0" % T)
    A("v_and_b32 v%d, 15, v0" % (T + 1))
    A("v_bfe_u32 v%d, v0, 4, 2" % (T + 2))
    A("v_lshlrev_b32 v%d, 4, v%d" % (VL16, T))
    A("v_mov_b32 v%d, v%d" % (VS, VL16))
    A("s_lshl_b32 s40, s%d, 11" % S_WAVE)
    A("v_add_u32 v%d, s40, v%d" % (VW2K, VL16))
    A("s_mov_b32 s%d, s40" % sSLOT)
    A("s_lshl_b32 s41, s%d, 8" % S_WAVE)
    A("v_lshlrev_b32 v%d, 15, v%d" % (VPST, T + 2))
    A("v_lshl_add_u32 v%d, v%d, 4, v%d" % (VPST, T + 1, VPST))
    A("v_add_u32 v%d, s41, v%d" % (VPST, VPST))
    A("s_lshl_b32 s41, s%d, 13" % S_WAVE)
    A("s_add_u32 s41, s41, %d" % L_TP)
    for b in range(4):
        A("v_add_u32 v%d, %d, v%d" % (T + 3, 4 * b, T + 2))
        A("v_xor_b32 v%d, v%d, v%d" % (T + 3, T + 3, T + 1))
        A("v_lshlrev_b32 v%d, 4, v%d" % (T + 3, T + 3))
        A("v_lshl_add_u32 v%d, v%d, 8, v%d" % (T + 3, T + 1, T + 3))
        A("v_add_u32 v%d, s41, v%d" % (VTW + b, T + 3))
        A("v_lshlrev_b32 v%d, 8, v%d" % (T + 4, T + 2))
        A("v_lshl_add_u32 v%d, v%d, 0, v%d" % (T + 3, T + 3, T + 4))
        A("v_lshlrev_b32 v%d, 8, v%d" % (T + 4, T + 1))
        A("v_sub_u32 v%d, v%d, v%d" % (T + 3, T + 3, T + 4))
        A("v_add_u32 v%d, s41, v%d" % (VTR + b, T + 3))
    A("s_lshl_b32 s40, s%d, 10" % S_WAVE)
    A("v_lshlrev_b32 v%d, 3, v%d" % (VZR, T))
    A("v_lshlrev_b32 v%d, 5, v%d" % (VZW, T + 1))
    A("v_lshl_add_u32 v%d, v%d, 3, v%d" % (VZW, T + 2, VZW))
    A("v_add_u32 v%d, s40, v%d" % (VZW, VZW))
    A("v_and_b32 v%d, 1, v0" % VF8)
    A("v_mul_u32_u24 v%d, 0x%x, v%d" % (VF8, F_Q - F_KV, VF8))
    A("s_and_b32 s42, s%d, 1" % S_WAVE)
    A("s_lshr_b32 s43, s%d, 1" % S_WAVE)
    A("s_lshl_b32 s40, s42, 12")
    A("v_add_u32 v%d, s40, v%d" % (VQF, VL16))
    A("s_lshl_b32 s41, s43, 11")
    A("v_add_u32 v%d, s41, v%d" % (VOW, VQF))
    A("s_lshl_b32 s41, s43, 12")
    A("v_add_u32 v%d, s41, v%d" % (VVF, VL16))
    A("v_add_u32 v%d, 8, v%d" % (VKM, VVF))
    A("s_lshl_b32 s40, s42, 4")
    A("v_add_u32 v%d, s40, v%d" % (T + 3, T + 1))
    A("v_lshlrev_b32 v%d, 2, v%d" % (T + 4, T + 2))
    A("v_mov_b32 v%d, 0x%x" % (T + 6, f32bits(-1e30)))
    for kt in range(2):
        for r in range(4):
            A("v_add_u32 v%d, %d, v%d" % (T + 5, 16 * kt + r, T + 4))
            A("v_cmp_gt_u32 vcc, v%d, v%d" % (T + 5, T + 3))
            A.nop(2)
            A("v_cndmask_b32 v%d, 0, v%d, vcc" % (BIAS + 4 * kt + r, T + 6))
    A("v_mov_b64 v[28:29], 0"); A("v_mov_b64 v[30:31], 0")
    sel_const(A, SEL, T + 5)
    reduce_consts(A, VRLD, VROW, VFL, T + 5)
    A("s_mov_b32 s%d, 0x%x" % (sC, f32bits(128 ** -0.5 * LOG2E)))
    A("v_lshrrev_b32 v%d, 2, v%d" % (T + 5, T))
    A("v_lshlrev_b32 v%d, 10, v%d" % (T + 5, T + 5))
    A("v_and_b32 v%d, 3, v%d" % (T + 6, T))
    A("v_lshl_add_u32 v%d, v%d, 4, v%d" % (T + 5, T + 6, T + 5))
    A("s_lshl_b32 s40, s%d, 17" % S_HEAD)
    A("s_lshl_b32 s41, s%d, 8" % S_WAVE)
    A("s_add_u32 s40, s40, s41")
    A("v_add_u32 v%d, s40, v%d" % (T + 5, T + 5))
    A("s_lshl_b32 s46, s%d, 15" % S_WAVE)
    for b in range(4):
        for i in range(8):
            sadd64(A, sA, S_WO, b * 64 + i * 16384)
            A("s_add_u32 s44, s46, %d" % (b * 8192 + i * 1024))
            A("s_mov_b32 m0, s44")
            A("s_nop 0")
            A("global_load_lds_dwordx4 v%d, s[%d:%d]" % (T + 5, sA, sA + 1))
    A("v_bfe_u32 v%d, v0, 2, 2" % (T + 7))
    A("v_add_u32 v%d, v%d, v%d" % (T + 7, T + 7, T + 4))
    A("v_lshlrev_b32 v%d, 6, v%d" % (T + 7, T + 7))
    A("v_lshl_add_u32 v%d, v%d, 4, v%d" % (T + 7, T + 6, T + 7))
    A("v_add_u32 v%d, s46, v%d" % (T + 7, T + 7))
    for b in range(4):
        A("s_waitcnt vmcnt(%d)" % (8 * (3 - b)))
        for P in range(2):
            for f in range(4):
                for hh in range(2):
                    A("ds_read_b64_tr_b16 %s, v%d offset:%d" % (R(WO + ((b * 2 + P) * 4 + f) * 4 + 2 * hh, 2), T + 7, b * 8192 + (32 * f + 16 * hh) * 64 + P * 8))
        A("s_waitcnt lgkmcnt(0)")
    rt_stamp(A, opt, 501, 40, 41)
    A("s_barrier")
    A("s_mov_b32 s%d, 0" % sL)
    A("s_mov_b32 s%d, 0" % sDEF)
    A("s_mov_b64 s[%d:%d], s[%d:%d]" % (sDEF + 1, sDEF + 2, S_WS, S_WS + 1))
    A("v_lshrrev_b32 v%d, 2, v%d" % (VL4, VL16))
    A("v_mov_b32 v%d, 1" % ONE)

    def dma(sseg):
        tile_off(A, 45, sL, sseg)
        for k, off in enumerate((OFF_QX, OFF_KX, OFF_VX)):
            A("s_add_u32 s41, s45, 0x%x" % off); sadd64(A, 42, S_WS, "s41")
            A("s_add_u32 s44, s%d, %d" % (sSLOT, k * 8192))
            A("s_mov_b32 m0, s44")
            A("s_nop 0")
            A("global_load_lds_dwordx4 v%d, s[42:43] sc1" % VW2K)
            A("global_load_lds_dwordx4 v%d, s[42:43] offset:1024 sc1" % VW2K)
        A("s_cmp_ge_u32 s%d, %d" % (sSLOT, SLOT))
        A("s_cselect_b32 s44, %d, %d" % (-SLOT, SLOT)) if False else None
        A("s_mov_b32 s44, %d" % SLOT)
        A("s_cselect_b32 s44, %d, s44" % -SLOT)
        A("s_add_u32 s%d, s%d, s44" % (sSLOT, sSLOT))

    A.label("L_p2_layer")
    A("s_sub_u32 s%d, s%d, %d" % (sSEG, S_GRP, NP1 + 1))
    head_flag(A, sH, F_KV, sL, sSEG, 2)
    A("s_mov_b64 s[%d:%d], 0" % (sMM, sMM + 1))
    A("s_mov_b32 s%d, 0" % sKP)
    A("s_mov_b32 s44, 0")
    head_flag(A, sG, F_M, sL, 44, 2)
    wait_flags(A, W, VF8, sH)
    dma(sSEG)
    A("s_waitcnt vmcnt(0)")
    A.label("L_p2_loop")
    _RTP["opt"] = opt; _RTP["it"] = 50
    rtp(A, 0)
    tile_off(A, sT, sL, sSEG)
    A("s_mov_b32 s47, s40")
    A("s_add_u32 s%d, s%d, %d" % (sNX, sSEG, NP2))
    A("s_min_u32 s44, s%d, 63" % sNX)
    head_flag(A, sH, F_KV, sL, 44, 2)
    A("s_add_u32 s41, s%d, 0x%x" % (sT, OFF_KM)); sadd64(A, sA, S_WS, "s41")
    sadd64(A, sKN, sA, NP2 * 32 * 8192)
    A("s_lshl_b32 s41, s%d, 22" % S_GRP)
    A("s_add_u32 s41, s41, s%d" % sRING)
    A("s_add_u32 s41, s41, 0x%x" % OFF_PW); sadd64(A, sB, S_WS, "s41")
    ring_next(A, sRING)
    A("s_lshl_b32 s41, s%d, 10" % S_HEAD); sadd64(A, sCc, sB, "s41")
    A("s_lshl_b32 s41, s%d, 15" % S_HEAD); sadd64(A, sB, sB, "s41")
    A("s_lshl_b32 s41, s47, 7")
    A("s_add_u32 s41, s41, 0x%x" % F_PB); sadd64(A, sE, S_WS, "s41")
    A("s_lshl_b32 s41, s%d, 5" % sSEG)
    A("s_add_u32 s41, s41, s%d" % S_HEAD)
    A("s_lshl_b32 s42, s41, 10")
    A("s_lshl_b32 s43, s%d, 21" % sL)
    A("s_add_u32 s43, s43, s42")
    A("s_add_u32 s43, s43, 0x%x" % OFF_X1); sadd64(A, 44, S_WS, "s43")
    A("global_load_dwordx2 v[%d:%d], v%d, s[44:45] sc1" % (RW + 36, RW + 37, VROW))
    A("s_add_u32 s43, s42, 0x%x" % OFF_Y2); sadd64(A, sY, S_WS, "s43")
    A("s_lshl_b32 s41, s41, 2")
    A("s_add_u32 s41, s41, 0x%x" % F_Y2); sadd64(A, sF, S_WS, "s41")
    A("s_add_u32 s43, s42, 0x%x" % OFF_X2); sadd64(A, sX, S_WS, "s43")
    A("s_cmp_eq_u32 s%d, 0" % sL)
    A("s_cbranch_scc1 L_p2_x2")
    sadd64(A, sX, S_OUT, "s42")
    A.label("L_p2_x2")
    A("global_load_dword v%d, v%d, s[%d:%d] sc1" % (VF, VF8, sH, sH + 1))
    KE, VM = 96, 100
    def km_loads(k, m, sp):
        A("global_load_dwordx2 v[%d:%d], v%d, s[%d:%d] sc1" % (k, k + 1, VW2K, sp, sp + 1))
        A("global_load_dwordx2 v[%d:%d], v%d, s[%d:%d] sc1" % (m, m + 1, VKM, sp, sp + 1))
        A("global_load_dwordx2 v[%d:%d], v%d, s[%d:%d] offset:2048 sc1" % (m + 2, m + 3, VKM, sp, sp + 1))
    A("s_cmp_eq_u32 s%d, 0" % sKP)
    A("s_cbranch_scc1 L_p2_kmwait")
    A("v_mov_b64 v[%d:%d], v[%d:%d]" % (KE, KE + 1, KE2, KE2 + 1))
    A("v_mov_b64 v[%d:%d], v[%d:%d]" % (VM, VM + 1, KE2 + 2, KE2 + 3))
    A("v_mov_b64 v[%d:%d], v[%d:%d]" % (VM + 2, VM + 3, KE2 + 4, KE2 + 5))
    A("global_load_dword v%d, v%d, s[%d:%d] sc1" % (VFM, VL4, sG, sG + 1))
    A.label("L_p2_kmok")
    def blk(A):
        A.label("L_p2_kmlast")
        km_loads(KE, VM, sA)
        A("s_waitcnt vmcnt(0)")
        flush_deferred(A, sDEF, VL16, ONE)
        A("v_max3_u32 v%d, v%d, v%d, v%d" % (W, KE, VM, VM + 2))
        A("v_cmp_eq_u32 vcc, -1, v%d" % W)
        A("s_cbranch_vccz L_p2_kmok")
        A("s_sleep 1")
        spin_guard(A)
        A("s_branch L_p2_kmlast")
        A.label("L_p2_kmwait")
        A("s_cmp_ge_u32 s%d, %d" % (sSEG, KM_POLL))
        A("s_cbranch_scc1 L_p2_kmlast")
        A("global_load_dword v%d, v%d, s[%d:%d] sc1" % (VFM, VL4, sG, sG + 1))
        A("s_waitcnt vmcnt(0)")
        flush_deferred(A, sDEF, VL16, ONE)
        A("v_cmp_ne_u32 s[%d:%d], 0, v%d" % (sMM, sMM + 1, VFM))
        A("s_bitcmp1_b64 s[%d:%d], s%d" % (sMM, sMM + 1, sSEG))
        A("s_cbranch_scc1 L_p2_kmgo")
        A("s_sleep %d" % ZZ[0])
        spin_guard(A)
        A("s_branch L_p2_kmwait")
        A.label("L_p2_kmgo")
        km_loads(KE, VM, sA)
        A("s_branch L_p2_kmok")
    cold.add(blk)
    rts(A, opt, sL, sSEG, 128, W)
    rtp(A, 1)
    A("s_barrier")
    QF, ZF, KF, VFR = 32, 48, 64, 128
    S0, S1, S2 = 104, 108, 112
    A("v_add_u32 v%d, v%d, v%d" % (116, VS, VQF))
    A("v_sub_u32 v%d, v%d, v%d" % (116, 116, VL16))
    A("v_add_u32 v%d, v%d, v%d" % (117, VS, VVF))
    A("v_sub_u32 v%d, v%d, v%d" % (117, 117, VL16))
    for dc in range(4): rd128(A, QF + 4 * dc, 116, L_Q + dc * 1024)
    for i in range(8): rd128(A, KF + 4 * i, VS, L_K + i * 1024)
    A("v_mov_b32 v%d, 0" % (KE + 3))
    A("s_waitcnt lgkmcnt(4)")
    for dc in range(4): mfma(A, S1, KF + 4 * dc, QF + 4 * dc, BIAS if dc == 0 else S1)
    A("s_waitcnt lgkmcnt(0)")
    for i in range(4): rd128(A, VFR + 4 * i, 117, L_V + i * 1024)
    for dc in range(4): mfma(A, S2, KF + 16 + 4 * dc, QF + 4 * dc, BIAS + 4 if dc == 0 else S2)
    A("s_cmp_lg_u32 s%d, 0" % sKP)
    A("s_cbranch_scc1 L_p2_kmin")
    A("s_waitcnt vmcnt(0)")
    A.label("L_p2_kmin")
    rtp(A, 2)
    A("v_mov_b32 v%d, v%d" % (KE + 2, KE + 1))
    A("v_mov_b32 v%d, 0" % (KE + 1))
    A("ds_write_b64 v%d, v[%d:%d] offset:%d" % (VZW, KE, KE + 1, L_Z))
    A("ds_write_b64 v%d, v[%d:%d] offset:%d" % (VZW, KE + 2, KE + 3, L_Z + 512))
    A("s_waitcnt lgkmcnt(0)")
    A("s_barrier")
    for dc in range(4):
        for Tt in range(2):
            A("ds_read_b64_tr_b16 v[%d:%d], v%d offset:%d" % (ZF + 4 * dc + 2 * Tt, ZF + 4 * dc + 2 * Tt + 1, VZR, L_Z + dc * 1024 + Tt * 512))
    A("s_waitcnt lgkmcnt(0)")
    for dc in range(4): mfma(A, S0, ZF + 4 * dc, QF + 4 * dc, "0" if dc == 0 else S0)
    rtp(A, 3)
    M0_, M1_, T0_, T1_, LS, LT, PX = 116, 117, 118, 119, 120, 121, 124
    A("v_max3_f32 v%d, v%d, v%d, v%d" % (M0_, S1, S1 + 1, S1 + 2))
    A("v_max3_f32 v%d, v%d, v%d, v%d" % (M1_, S1 + 3, S2, S2 + 1))
    A("v_max3_f32 v%d, v%d, v%d, v%d" % (M0_, M0_, S2 + 2, S2 + 3))
    A("v_xor_b32 v%d, %d, v%d" % (VS, SLOT, VS))
    A.nop(4)
    A("v_max3_f32 v%d, v%d, v%d, v%d" % (M1_, M1_, S0, S0 + 1))
    A("v_max_f32 v%d, v%d, v%d" % (T0_, M0_, M1_))
    A("v_max_f32 v%d, v%d, v%d" % (T1_, M0_, M1_))
    A.nop(2)
    A("v_permlane32_swap_b32 v%d, v%d" % (T0_, T1_))
    A("v_max_f32 v%d, v%d, v%d" % (M0_, T0_, T1_))
    A("v_max_f32 v%d, v%d, v%d" % (M1_, T0_, T1_))
    A.nop(2)
    A("v_permlane16_swap_b32 v%d, v%d" % (M0_, M1_))
    A("v_max_f32 v%d, v%d, v%d" % (M0_, M0_, M1_))
    A("v_mul_f32 v%d, s%d, v%d" % (M0_, sC, M0_))
    sregs = [S1 + r for r in range(4)] + [S2 + r for r in range(4)] + [S0, S0 + 1]
    for r in sregs: A("v_fma_f32 v%d, v%d, s%d, -v%d" % (r, r, sC, M0_))
    for r in sregs: A("v_exp_f32 v%d, v%d" % (r, r))
    cvt(A, PX, S1, S1 + 1); cvt(A, PX + 1, S1 + 2, S1 + 3); cvt(A, PX + 2, S2, S2 + 1); cvt(A, PX + 3, S2 + 2, S2 + 3)
    cvt(A, PMA, S0, S0 + 1); cvt(A, PMB + 1, S0, S0 + 1)
    OC = 64
    for i in range(4): mfma(A, OC + 4 * i, VFR + 4 * i, PX, "0")
    A("v_add_f32 v%d, v%d, v%d" % (LS, S1, S1 + 1))
    A("v_add_f32 v%d, v%d, v%d" % (LT, S1 + 2, S1 + 3))
    for a_, b_ in ((S2, S2 + 1), (S2 + 2, S2 + 3), (S0, S0 + 1)):
        A("v_add_f32 v%d, v%d, v%d" % (LS, LS, a_)); A("v_add_f32 v%d, v%d, v%d" % (LT, LT, b_))
    for i in range(4): mfma(A, OC + 4 * i, VM + 2 * (i >> 1), PMA if (i & 1) == 0 else PMB, OC + 4 * i, k32=False)
    A("v_add_f32 v%d, v%d, v%d" % (LS, LS, LT))
    swap_sum(A, LS, LT, 32); swap_sum(A, LS, LT, 16)
    A("v_rcp_f32 v%d, v%d" % (LS, LS))
    A.nop(1)
    for r in range(0, 16, 2):
        A("v_pk_mul_f32 v[%d:%d], v[%d:%d], v[%d:%d] op_sel_hi:[1,0]" % (OC + r, OC + r + 1, OC + r, OC + r + 1, LS, LS + 1))
    for f in range(2):
        pack(A, 32 + 4 * f, OC + 8 * f, OC + 8 * f + 4)
        A("ds_write_b128 v%d, v[%d:%d] offset:%d" % (VOW, 32 + 4 * f, 35 + 4 * f, L_O + f * 1024))
    rtp(A, 4)
    A("s_mov_b32 s%d, 0" % sPRE)
    A("s_mov_b32 s%d, 0" % sKP)
    A("s_waitcnt vmcnt(0)")
    A("v_cmp_eq_u32 vcc, 0, v%d" % VF)
    flush_deferred(A, sDEF, VL16, ONE)
    A("v_cmp_ne_u32 s[%d:%d], 0, v%d" % (sMM, sMM + 1, VFM))
    A("s_cmp_ge_u32 s%d, 64" % sNX)
    A("s_cbranch_scc1 L_p2_nopre")
    A("s_cbranch_vccnz L_p2_nopre")
    dma(sNX)
    A("s_mov_b32 s%d, 1" % sPRE)
    A("s_bitcmp0_b64 s[%d:%d], s%d" % (sMM, sMM + 1, sNX))
    A("s_cbranch_scc1 L_p2_nopre")
    km_loads(KE2, KE2 + 2, sKN)
    A("s_mov_b32 s%d, 1" % sKP)
    A.label("L_p2_nopre")
    A("s_waitcnt lgkmcnt(0)")
    A("s_barrier")
    OF, PA = 32, 64
    rtp(A, 5)
    for f in range(4):
        for qt in range(2): rd128(A, OF + (qt * 4 + f) * 4, VL16, L_O + (qt * 4 + f) * 1024)
    def out_ops(b):
        ops = []
        for qt in range(2):
            a0 = PA + b * 16 + qt * 8
            ops += [lambda a0=a0: cvt(A, a0, a0, a0 + 1), lambda a0=a0: cvt(A, a0 + 1, a0 + 2, a0 + 3),
                    lambda a0=a0: cvt(A, a0 + 2, a0 + 4, a0 + 5), lambda a0=a0: cvt(A, a0 + 3, a0 + 6, a0 + 7)]
            ops.append(lambda a0=a0, qt=qt: A("ds_write_b128 v%d, v[%d:%d] offset:%d" % (VTW + b, a0, a0 + 3, qt * 4096)))
        return ops
    pend = []
    for b in range(4):
        n = 0
        for f in range(4):
            if b == 0: A("s_waitcnt lgkmcnt(%d)" % (6 - 2 * f))
            for P in range(2):
                for qt in range(2):
                    d = PA + b * 16 + qt * 8 + P * 4
                    mfma(A, d, WO + ((b * 2 + P) * 4 + f) * 4, OF + (qt * 4 + f) * 4, "0" if f == 0 else d)
                    n += 1
                    if n > 5 and pend: pend.pop(0)()
        assert not pend
        pend = out_ops(b)
    A.nop(8)
    for o in pend: o()
    rtp(A, 6)
    for i in range(8): rd128(A, 32 + 4 * i, VTR + (i & 3), i * 1024)
    for i in range(8):
        A("s_waitcnt lgkmcnt(%d)" % (7 - i))
        store_mixed(A, cold, ["global_store_dwordx4 v%d, v[%d:%d], s[%d:%d]" % (VPST, 32 + 4 * i, 35 + 4 * i, sCc, sCc + 1)])
        if i < 7: sadd64(A, sCc, sCc, 4 * 32768)
    publish_partials(A, cold, 64, sE)
    reduce_row(A, cold, RW, SEL, VRLD, VROW, VFL, VL16, sB, sE, sIT, sX, sY, sF, L_ST,
               lambda A: A("s_cmp_eq_u32 s%d, 1" % sL), defer=sDEF)
    rtp(A, 14)
    rts(A, opt, sL, sSEG, 256, W)
    A("s_add_u32 s%d, s%d, 1" % (sIT, sIT))
    A("s_mov_b32 s%d, s%d" % (sSEG, sNX))
    A("s_cmp_eq_u32 s%d, 1" % sPRE)
    A("s_cbranch_scc1 L_p2_loop")
    A("s_waitcnt vmcnt(0)")
    flush_deferred(A, sDEF, VL16, ONE)
    A("s_cmp_ge_u32 s%d, 64" % sSEG)
    A("s_cbranch_scc1 L_p2_next")
    wait_flags(A, W, VF8, sH)
    dma(sSEG)
    A("s_waitcnt vmcnt(0)")
    A("s_branch L_p2_loop")
    A.label("L_p2_next")
    A("s_add_u32 s%d, s%d, 1" % (sL, sL))
    A("s_cmp_lt_u32 s%d, %d" % (sL, opt.get("layers", 2)))
    A("s_cbranch_scc1 L_p2_layer")
    A("s_branch L_end")
    cold.emit(A)

def gen_aworker(A, opt):
    cold = Cold()
    NP1, NP2, NA = opt["NP1"], opt["NP2"], opt["NA"]
    NA0 = NA + NP2
    VL16, VL8, VYA, VPST, VRLD, VROW, VFL, VAF, ZERO, VPQ = range(1, 11)
    SEL, ONES = 12, 16
    KVA, ZA = 18, 20
    KV, ZS = 24, 28
    W = 32
    WO = 128
    RW = 160
    sRING = 84
    WQ = 256
    L_W, L_WOI, L_PQ, L_ST = 0, 49152, 131072, 32768
    VA4, VTW, VTR = 216, 220, 228
    sL, sSEG, sIT, sI, sAG = 48, 49, 50, 51, 66
    sA, sB, sCc, sD, sE, sF, sG = 52, 54, 56, 58, 60, 62, 64
    sLE, sNA, sMT, sWB = 67, 68, 69, 70
    A.label("L_aworker")
    A("s_sub_u32 s%d, 7, s%d" % (sAG, S_GRP))
    A("s_mov_b32 s%d, %d" % (sNA, NA0))
    prepass0(A, sAG, NA0)
    T = 40
    A("v_and_b32 v%d, 63, v0" % T)
    A("v_and_b32 v%d, 15, v0" % (T + 1))
    A("v_bfe_u32 v%d, v0, 4, 2" % (T + 2))
    A("v_lshlrev_b32 v%d, 4, v%d" % (VL16, T))
    A("v_lshlrev_b32 v%d, 3, v%d" % (VL8, T))
    A("s_and_b32 s42, s%d, 1" % S_WAVE)
    A("s_lshr_b32 s43, s%d, 1" % S_WAVE)
    frag_addrs(A, VA4, T + 3)
    A("s_lshl_b32 s%d, s42, 14" % sMT)
    A("s_lshl_b32 s%d, s%d, 15" % (sWB, S_WAVE))
    A("s_lshl_b32 s40, s%d, 15" % S_WAVE)
    for q in range(4): A("v_add_u32 v%d, s40, v%d" % (VA4 + q, VA4 + q))
    A("v_lshrrev_b32 v%d, 5, v%d" % (T + 3, T))
    A("v_and_b32 v%d, 31, v%d" % (T + 4, T))
    A("s_lshl_b32 s40, s42, 19")
    A("s_lshl_b32 s41, s43, 9")
    A("s_add_u32 s40, s40, s41")
    A("v_lshlrev_b32 v%d, 15, v%d" % (VPST, T + 3))
    A("v_lshl_add_u32 v%d, v%d, 4, v%d" % (VPST, T + 4, VPST))
    A("v_add_u32 v%d, s40, v%d" % (VPST, VPST))
    A("s_lshl_b32 s41, s%d, 13" % S_WAVE)
    for b in range(8):
        A("v_add_u32 v%d, %d, v%d" % (T + 5, 4 * b, T + 2))
        A("v_xor_b32 v%d, v%d, v%d" % (T + 5, T + 5, T + 1))
        A("v_lshlrev_b32 v%d, 4, v%d" % (T + 5, T + 5))
        A("v_lshl_add_u32 v%d, v%d, 9, v%d" % (T + 5, T + 1, T + 5))
        A("v_add_u32 v%d, s41, v%d" % (VTW + b, T + 5))
    for i in range(8):
        A("v_add_u32 v%d, %d, v%d" % (T + 5, 2 * i, T + 3))
        A("v_xor_b32 v%d, v%d, v%d" % (T + 6, T + 5, T + 4))
        A("v_lshlrev_b32 v%d, 4, v%d" % (T + 6, T + 6))
        A("v_lshl_add_u32 v%d, v%d, 9, v%d" % (T + 6, T + 5, T + 6))
        A("v_add_u32 v%d, s41, v%d" % (VTR + i, T + 6))
    A("s_lshl_b32 s40, s42, 9")
    A("s_add_u32 s40, s40, %d" % L_PQ)
    A("v_add_u32 v%d, s40, v%d" % (VPQ, VL8))
    A("v_mov_b32 v%d, 0" % ZERO)
    A("v_mov_b32 v%d, 0x3f803f80" % ONES)
    A("v_mov_b32 v%d, 0x3f803f80" % (ONES + 1))
    A("s_mov_b32 s%d, 0x%x" % (sLE, f32bits(LOG2E)))
    sel_const(A, SEL, T + 3)
    reduce_consts(A, VRLD, VROW, VFL, T + 3)
    A("s_lshl_b32 s44, s%d, 12" % S_WAVE)
    A("s_lshl_b32 s40, s%d, 14" % S_HEAD)
    A("s_add_u32 s40, s40, s44")
    sadd64(A, sA, S_AWO, "s40")
    A("s_add_u32 s45, s44, %d" % L_WOI)
    A("s_mov_b32 m0, s45")
    A("s_nop 0")
    for i in range(4): A("global_load_lds_dwordx4 v%d, s[%d:%d] offset:%d" % (VL16, sA, sA + 1, i * 1024))
    A("v_bfe_u32 v%d, v0, 2, 2" % (T + 4))
    A("v_and_b32 v%d, 3, v0" % (T + 5))
    A("v_mul_u32_u24 v%d, 768, v%d" % (T + 6, T + 2))
    A("v_lshl_add_u32 v%d, v%d, 5, v%d" % (T + 6, T + 4, T + 6))
    A("v_lshl_add_u32 v%d, v%d, 3, v%d" % (T + 6, T + 5, T + 6))
    A("v_lshl_add_u32 v%d, v%d, 2, v%d" % (T + 7, T + 2, T + 4))
    A("v_lshlrev_b32 v%d, 10, v%d" % (T + 7, T + 7))
    A("v_lshl_add_u32 v%d, v%d, 4, v%d" % (T + 7, T + 5, T + 7))
    A("s_lshl_b32 s41, s43, 9")
    A("s_add_u32 s41, s41, %d" % L_WOI)
    A("v_add_u32 v%d, s41, v%d" % (T + 7, T + 7))
    prepass1(A, True)
    rt_stamp(A, opt, 491, 110, 111)
    opt["arrive"](A, "own")
    rt_stamp(A, opt, 492, 110, 111)
    opt["init_wait"](A)
    rt_stamp(A, opt, 493, 110, 111)
    A("s_mul_i32 s40, s%d, 49152" % S_HEAD)
    A("s_mul_i32 s44, s%d, 12288" % S_WAVE)
    A("s_add_u32 s40, s40, s44")
    A("s_add_u32 s40, s40, 0x%x" % OFF_WP)
    sadd64(A, sA, S_WS, "s40")
    for qd in range(3):
        A("s_mov_b32 m0, s44")
        A("s_add_u32 s44, s44, 4096")
        for i in range(4): A("global_load_lds_dwordx4 v%d, s[%d:%d] offset:%d sc1" % (VL16, sA, sA + 1, i * 1024))
        if qd < 2: sadd64(A, sA, sA, 4096)
    A("s_waitcnt vmcnt(0)")
    rt_stamp(A, opt, 494, 110, 111)
    A("s_barrier")
    for t in range(3):
        for ks in range(16):
            for hh in range(2):
                A("ds_read_b64_tr_b16 %s, v%d offset:%d" % (R(WQ + (t * 16 + ks) * 4 + 2 * hh, 2), T + 6, L_W + ks * 3072 + t * 256 + hh * 128))
            if ks % 4 == 3: A("s_waitcnt lgkmcnt(0)")
    for b in range(8):
        for P in range(2):
            A("ds_read_b64_tr_b16 %s, v%d offset:%d" % (v(WO + (b * 2 + P) * 2, 2), T + 7, b * 64 + P * 8))
    A("s_waitcnt lgkmcnt(0)")
    rt_stamp(A, opt, 501, 40, 41)
    opt["init_wait"](A, kind="own")
    rt_stamp(A, opt, 502, 40, 41)
    A("s_mov_b32 s%d, 0" % sL)
    A("s_mov_b32 s%d, 0" % sIT)
    A("s_mov_b32 s%d, 0" % sRING)

    A.label("L_aw_layer")
    A("s_barrier")
    for r in range(0, 8, 2): A("v_mov_b64 v[%d:%d], 0" % (KV + r, KV + r + 1))
    A("s_lshr_b32 s%d, s%d, 1" % (sI, S_WAVE))
    YB = [0, 16384]
    YF = 32
    Q, K, V, E = 96, 100, 104, 112
    def seg_of(dst, add):
        A("s_add_u32 s%d, s%d, %d" % (dst, sI, add))
        A("s_mul_i32 s%d, s%d, s%d" % (dst, dst, sNA))
        A("s_add_u32 s%d, s%d, s%d" % (dst, dst, sAG))
    def y_ops(buf, sseg, flags):
        ops = ["s_lshl_b32 s41, s%d, 15" % sseg, "s_add_u32 s41, s41, s%d" % sMT,
               "s_add_u32 s41, s41, 0x%x" % (OFF_Y2 if flags else OFF_Y0),
               "s_add_u32 s%d, s%d, s41" % (sA, S_WS), "s_addc_u32 s%d, s%d, 0" % (sA + 1, S_WS + 1)]
        for qd in range(4):
            ops += ["s_add_u32 s42, s%d, %d" % (sWB, buf + qd * 4096), "s_mov_b32 m0, s42"]
            ops += ["s_add_u32 s%d, s%d, 4096" % (sA, sA), "s_addc_u32 s%d, s%d, 0" % (sA + 1, sA + 1)] if qd else ["s_nop 0"]
            ops += ["global_load_lds_dwordx4 v%d, s[%d:%d] offset:%d sc1" % (VL16, sA, sA + 1, i * 1024) for i in range(4)]
        return ops
    def y_loads(buf, sseg, flags):
        for t in y_ops(buf, sseg, flags): A(t)
    def phi(X):
        for r in range(4):
            A("v_mul_f32 v%d, s%d, v%d" % (E + r, sLE, X + r))
            A("v_min_f32 v%d, 0, v%d" % (E + r, E + r))
        for r in range(4): A("v_exp_f32 v%d, v%d" % (E + r, E + r))
        for r in range(4): A("v_max_f32 v%d, 0, v%d" % (X + r, X + r))
        for r in range(4): A("v_add_f32 v%d, 0x%x, v%d" % (E + r, f32bits(1e-6), E + r))
        for r in range(4): A("v_add_f32 v%d, v%d, v%d" % (X + r, X + r, E + r))
    def unit(buf, younger, refill=False, stamp=False):
        A("s_waitcnt vmcnt(%d)" % younger)
        for ks in range(8): rd128(A, YF + 4 * ks, VA4 + (ks & 3), buf + (ks >> 2) * 256)
        ops = []
        if refill:
            ops = y_ops(buf, 44, False)
        def some():
            while ops:
                t = ops.pop(0); A(t)
                if t.startswith("global"): break
        for ks in range(16):
            if ks + 8 < 16: rd128(A, YF + 4 * (ks + 8), VA4 + (ks & 3), buf + ((ks + 8) >> 2) * 256)
            A("s_waitcnt lgkmcnt(%d)" % (min(8, 15 - ks) if ks != 9 or not refill else 0))
            mfma(A, K, YF + 4 * ks, WQ + (16 + ks) * 4, "0" if ks == 0 else K)
            if ks >= 9: some()
            mfma(A, Q, WQ + ks * 4, YF + 4 * ks, "0" if ks == 0 else Q)
            if ks >= 9: some()
            mfma(A, V, YF + 4 * ks, WQ + (32 + ks) * 4, "0" if ks == 0 else V)
            if 9 <= ks < 15: some()
        assert not ops
        A("s_lshl_b32 s41, s%d, 10" % sI)
        A("v_add_u32 v108, s41, v%d" % VPQ)
        A.nop(5)
        phi(K)
        cvt(A, 116, K, K + 1); cvt(A, 117, K + 2, K + 3)
        cvt(A, 118, V, V + 1); cvt(A, 119, V + 2, V + 3)
        phi(Q)
        mfma(A, KV, 116, 118, KV, k32=False)
        mfma(A, ZS, 116, ONES, ZS, k32=False)
        cvt(A, 120, Q, Q + 1); cvt(A, 121, Q + 2, Q + 3)
        A("ds_write_b64 v108, v[120:121]")
        rts(A, dict(opt, rt=opt.get("rt") and stamp), sL, sSEG, 0, 122)
        A("s_add_u32 s%d, s%d, 2" % (sI, sI))
    A("s_cmp_lg_u32 s%d, 0" % sL)
    A("s_cbranch_scc1 L_aw_s1f")
    seg_of(sSEG, 0)
    y_loads(YB[0], sSEG, False)
    seg_of(44, 2)
    y_loads(YB[1], 44, False)
    A.label("L_aw_s1")
    for par in range(2):
        seg_of(44, 4)
        A("s_cmp_ge_u32 s44, 64")
        A("s_cbranch_scc1 L_aw_s1e%d" % par)
        unit(YB[par], 16, refill=True)
    A("s_branch L_aw_s1")
    for par in range(2):
        A.label("L_aw_s1e%d" % par)
        unit(YB[par], 16)
        unit(YB[1 - par], 0)
        if par == 0: A("s_branch L_aw_s1t")
    A.label("L_aw_s1t")
    A("s_waitcnt vmcnt(0)")
    if opt.get("rt"): rt_stamp(A, opt, 63, 122, 123)
    A("s_branch L_aw_s1done")
    A.label("L_aw_s1f")
    seg_of(sSEG, 0)
    A("s_cmp_ge_u32 s%d, 64" % sSEG)
    A("s_cbranch_scc1 L_aw_s1done")
    A("s_lshl_b32 s42, s%d, 7" % sSEG)
    A("s_add_u32 s42, s42, 0x%x" % F_Y2); sadd64(A, sA, S_WS, "s42")
    wait_flags(A, W, VFL, sA, sleep=1)
    y_loads(YB[0], sSEG, True)
    unit(YB[0], 0, stamp=True)
    A("s_branch L_aw_s1f")
    A.label("L_aw_s1done")
    A("s_lshl_b32 s41, s%d, 5" % sL)
    A("s_add_u32 s41, s41, s%d" % S_HEAD)
    A("s_lshl_b32 s41, s41, 14")
    A("s_add_u32 s41, s41, 0x%x" % OFF_AKV); sadd64(A, sA, S_WS, "s41")
    A("s_lshl_b32 s43, s%d, 11" % sAG); sadd64(A, sCc, sA, "s43")
    A("s_lshl_b32 s42, s%d, 15" % S_WAVE)
    A("v_add_u32 v%d, s42, v%d" % (W, VL16))
    A.nop(3)
    A("ds_write_b128 v%d, v[%d:%d]" % (W, KV, KV + 3))
    A("ds_write_b128 v%d, v[%d:%d] offset:1024" % (W, ZS, ZS + 3))
    A("s_waitcnt lgkmcnt(0)")
    A("s_barrier")
    A("s_cmp_lg_u32 s%d, 0" % S_WAVE)
    A("s_cbranch_scc1 L_aw_nopub")
    A("v_add_u32 v%d, 0x10000, v%d" % (W, VL16))
    for k, (ad, off) in enumerate(((VL16, 32768), (W, 0), (W, 32768))):
        rd128(A, W + 8 + 8 * k, ad, off); rd128(A, W + 12 + 8 * k, ad, off + 1024)
    A("s_waitcnt lgkmcnt(0)")
    for k in range(3):
        for r in range(0, 8, 2):
            A("v_pk_add_f32 v[%d:%d], v[%d:%d], v[%d:%d]" % (KV + r, KV + r + 1, KV + r, KV + r + 1, W + 8 + 8 * k + r, W + 9 + 8 * k + r))
    A("v_min_u32 v%d, -2, v%d" % (KV, KV))
    A("v_min_u32 v%d, -2, v%d" % (ZS, ZS))
    A("global_store_dwordx4 v%d, v[%d:%d], s[%d:%d] sc1" % (VL16, KV, KV + 3, sCc, sCc + 1))
    A("global_store_dwordx4 v%d, v[%d:%d], s[%d:%d] offset:1024 sc1" % (VL16, ZS, ZS + 3, sCc, sCc + 1))
    A.label("L_aw_nopub")
    for k in range(1, 3): sadd64(A, sA + 2 * k, sA, 4096 * k)
    def gather(n, lp):
        A.label(lp)
        for p in range(n):
            for k in range(2):
                b = sA + 2 * (p >> 1)
                A("global_load_dwordx4 v[%d:%d], v%d, s[%d:%d] offset:%d sc1" % (W + 8 * p + 4 * k, W + 8 * p + 4 * k + 3, VL16, b, b + 1, (p & 1) * 2048 + k * 1024))
        spin_guard(A)
        A("s_waitcnt vmcnt(0)")
        A("v_max_u32 v%d, v%d, v%d" % (VAF, W, W + 4))
        for p in range(1, n): A("v_max3_u32 v%d, v%d, v%d, v%d" % (VAF, VAF, W + 8 * p, W + 8 * p + 4))
        A("v_cmp_eq_u32 vcc, -1, v%d" % VAF)
        A("s_cbranch_vccnz %s" % lp)
        for p in range(1, n):
            for r in range(0, 8, 2):
                A("v_pk_add_f32 v[%d:%d], v[%d:%d], v[%d:%d]" % (W + r, W + r + 1, W + r, W + r + 1, W + 8 * p + r, W + 8 * p + r + 1))
    assert NA0 <= 6 and NA0 + NA <= 8
    A("s_cmp_lg_u32 s%d, 0" % sL)
    A("s_cbranch_scc1 L_aw_g1")
    gather(NA0, "L_aw_g0")
    A("s_branch L_aw_g2")
    gather(NA, "L_aw_g1")
    A.label("L_aw_g2")
    A("s_barrier")
    cvt(A, KVA, W, W + 1); cvt(A, KVA + 1, W + 2, W + 3); cvt(A, ZA, W + 4, W + 5); cvt(A, ZA + 1, W + 6, W + 7)
    if opt.get("rt"):
        A("s_add_u32 s97, s%d, 400" % sL)
        rt_stamp(A, opt, "s97", W + 2, W + 3)
    A("s_mov_b32 s%d, 0" % sI)
    A("s_mov_b32 s%d, s%d" % (sSEG, sAG))
    A.label("L_aw_s2")
    rtp(A, 0, 240)
    A("s_lshl_b32 s41, s%d, 10" % sI)
    A("v_add_u32 v%d, s41, v%d" % (W, VPQ))
    A("ds_read_b64 v[%d:%d], v%d" % (W + 2, W + 3, W))
    A("s_lshl_b32 s41, s%d, 22" % S_GRP)
    A("s_add_u32 s41, s41, s%d" % sRING)
    A("s_add_u32 s41, s41, 0x%x" % OFF_PW); sadd64(A, sB, S_WS, "s41")
    ring_next(A, sRING)
    A("s_lshl_b32 s41, s%d, 10" % S_HEAD); sadd64(A, sCc, sB, "s41")
    A("s_lshl_b32 s41, s%d, 15" % S_HEAD); sadd64(A, sB, sB, "s41")
    A("s_lshl_b32 s47, s%d, 6" % sL)
    A("s_add_u32 s47, s47, s%d" % sSEG)
    A("s_lshl_b32 s41, s47, 7")
    A("s_add_u32 s41, s41, 0x%x" % F_PA); sadd64(A, sE, S_WS, "s41")
    A("s_lshl_b32 s41, s%d, 5" % sSEG)
    A("s_add_u32 s41, s41, s%d" % S_HEAD)
    A("s_lshl_b32 s42, s41, 10")
    A("s_lshl_b32 s43, s%d, 21" % sL)
    A("s_add_u32 s43, s43, s42")
    A("s_add_u32 s44, s43, 0x%x" % OFF_X1); sadd64(A, sG, S_WS, "s44")
    A("s_add_u32 s44, s43, 0x%x" % OFF_Y1); sadd64(A, sD, S_WS, "s44")
    A("s_lshl_b32 s44, s47, 5")
    A("s_add_u32 s44, s44, s%d" % S_HEAD)
    A("s_lshl_b32 s44, s44, 2")
    A("s_add_u32 s44, s44, 0x%x" % F_X1); sadd64(A, sF, S_WS, "s44")
    A("s_add_u32 s44, s42, 0x%x" % OFF_X2); sadd64(A, sA, S_WS, "s44")
    A("s_cmp_lg_u32 s%d, 0" % sL)
    A("s_cbranch_scc1 L_aw_res")
    sadd64(A, sA, S_AX, "s42")
    A.label("L_aw_res")
    A("global_load_dwordx2 v[%d:%d], v%d, s[%d:%d] sc1" % (RW + 36, RW + 37, VROW, sA, sA + 1))
    A("s_waitcnt lgkmcnt(0)")
    NU, DE = W + 4, W + 8
    mfma(A, DE, ZA, W + 2, "0", k32=False)
    mfma(A, NU, KVA, W + 2, "0", k32=False)
    A.nop(7)
    A("v_add_f32 v%d, 0x%x, v%d" % (DE, f32bits(1e-6), DE))
    A("v_rcp_f32 v%d, v%d" % (DE, DE))
    A.nop(1)
    for r in (0, 2):
        A("v_pk_mul_f32 v[%d:%d], v[%d:%d], v[%d:%d] op_sel_hi:[1,0]" % (NU + r, NU + r + 1, NU + r, NU + r + 1, DE, DE + 1))
    cvt(A, W + 2, NU, NU + 1); cvt(A, W + 3, NU + 2, NU + 3)
    A.nop(2)
    PA = W + 16
    rtp(A, 5, 240)
    for i in range(16): mfma(A, PA + 4 * i, WO + 2 * i, W + 2, "0", k32=False)
    for b in range(8):
        a0 = PA + 8 * b
        if b == 6: A.nop(2)
        cvt(A, a0, a0, a0 + 1); cvt(A, a0 + 1, a0 + 2, a0 + 3); cvt(A, a0 + 2, a0 + 4, a0 + 5); cvt(A, a0 + 3, a0 + 6, a0 + 7)
        A("ds_write_b128 v%d, v[%d:%d]" % (VTW + b, a0, a0 + 3))
    for i in range(8): rd128(A, PA + 4 * i, VTR + i, 0)
    for i in range(8):
        A("s_waitcnt lgkmcnt(%d)" % (7 - i))
        store_mixed(A, cold, ["global_store_dwordx4 v%d, v[%d:%d], s[%d:%d]" % (VPST, PA + 4 * i, PA + 4 * i + 3, sCc, sCc + 1)])
        if i < 7: sadd64(A, sCc, sCc, 2 * 32768)
    publish_partials(A, cold, W, sE)
    reduce_row(A, cold, RW, SEL, VRLD, VROW, VFL, VL16, sB, sE, sIT, sG, sD, sF, L_ST,
               lambda A: A("s_cmp_eq_u32 s%d, 2" % sL))
    rtp(A, 14, 240)
    rts(A, opt, sL, sSEG, 256, W)
    A("s_add_u32 s%d, s%d, 1" % (sIT, sIT))
    A("s_add_u32 s%d, s%d, 1" % (sI, sI))
    A("s_add_u32 s%d, s%d, s%d" % (sSEG, sSEG, sNA))
    A("s_cmp_lt_u32 s%d, 64" % sSEG)
    A("s_cbranch_scc1 L_aw_s2")
    A("s_cmp_ge_u32 s%d, %d" % (sAG, NA))
    A("s_cbranch_scc1 L_p2")
    A("s_mov_b32 s%d, %d" % (sNA, NA))
    A("s_add_u32 s%d, s%d, 1" % (sL, sL))
    A("s_cmp_lt_u32 s%d, %d" % (sL, opt.get("layers", 2)))
    A("s_cbranch_scc1 L_aw_layer")
    A("s_branch L_end")
    cold.emit(A)
```

```python
import sys
from common import *
import chain, workers

HEADER = open('cdna_kernels/%s.s.ref' % NAME).read().split('; Override launch')[0]

def prologue(A, opt):
    A("s_cmp_ge_u32 s2, 256")
    A("s_cbranch_scc1 L_end")
    A("s_mov_b32 s%d, 0" % S_SPIN)
    A("s_load_dwordx4 s[8:11], s[0:1], 0")
    A("s_load_dwordx2 s[12:13], s[0:1], 16")
    A("s_load_dwordx4 s[16:19], s[0:1], 32")
    A("s_load_dwordx4 s[20:23], s[0:1], 48")
    A("s_load_dwordx2 s[24:25], s[0:1], 64")
    A("s_load_dwordx4 s[28:31], s[0:1], 80")
    A("s_load_dwordx2 s[4:5], s[0:1], 96")
    if opt.get("rt"): A("s_memrealtime s[90:91]")
    if opt.get("dbgt"):
        A("s_memrealtime s[98:99]"); A("s_memtime s[14:15]"); A("s_waitcnt lgkmcnt(0)"); A("s_mov_b32 s6, s98"); A("s_mov_b32 s7, s14")
    A("s_getreg_b32 s36, hwreg(HW_REG_XCC_ID)")
    A("s_and_b32 s36, s36, 15")
    if opt.get("fake") == 1: A("s_lshr_b32 s36, s2, 5")
    if opt.get("fake") == 2: A("s_and_b32 s36, s36, 6")
    if opt.get("fake") == 3: A("s_add_u32 s36, s36, 5")
    A("s_mov_b32 s%d, s36" % S_GRP)
    A("v_lshrrev_b32 v1, 6, v0")
    A("s_nop 0")
    A("v_readfirstlane_b32 s%d, v1" % S_WAVE)
    A("s_waitcnt lgkmcnt(0)")
    A("s_cmp_lg_u32 s%d, 0" % S_WAVE)
    A("s_cbranch_scc1 L_noticket")
    ticket_word(A)
    A("v_mov_b32 v1, s37")
    A("v_mov_b32 v2, 1")
    A("s_mov_b64 exec, 1")
    A("global_atomic_add v3, v1, v2, s[%d:%d] sc0" % (S_DBG, S_DBG + 1))
    A("s_mov_b64 exec, -1")
    A.label("L_noticket")
    A("v_mov_b32 v6, 0")
    A("s_cmp_lg_u32 s%d, 0" % S_WAVE)
    A("s_cbranch_scc1 L_nowr")
    A("s_waitcnt vmcnt(0)")
    A("s_mov_b64 exec, 1")
    A("ds_write_b32 v6, v3")
    A("s_mov_b64 exec, -1")
    A.label("L_nowr")
    A("s_waitcnt lgkmcnt(0)")
    A("s_barrier")
    A("ds_read_b32 v3, v6")
    A("s_waitcnt lgkmcnt(0)")
    A("v_readfirstlane_b32 s%d, v3" % S_HEAD)
    A("s_barrier")
    A("s_cmp_ge_u32 s%d, 8" % S_GRP)
    A("s_cbranch_scc1 L_overflow")
    A("s_cmp_ge_u32 s%d, 32" % S_HEAD)
    A("s_cbranch_scc1 L_overflow")
    A.label("L_roles")
    if opt.get("rt"):
        rt_stamp(A, opt, 498, 40, 41)
        A("v_mov_b32 v41, s90")
        A("global_store_dword v40, v41, s[%d:%d] offset:4" % (S_WS, S_WS + 1))

def tword(x): return 32 * ((x >> 2) & 1) + (x & 3) + 4 * (x >> 3)
def ticket_word(A):
    A("s_and_b32 s37, s%d, 4" % S_GRP)
    A("s_lshl_b32 s37, s37, 5")
    A("s_and_b32 s36, s%d, 3" % S_GRP)
    A("s_lshl_b32 s36, s36, 2")
    A("s_add_u32 s37, s37, s36")
    A("s_and_b32 s36, s%d, 8" % S_GRP)
    A("s_lshl_b32 s36, s36, 1")
    A("s_add_u32 s37, s37, s36")

def arrive(A, kind):
    l = A.newlabel("Larr")
    A("s_waitcnt vmcnt(0)")
    A("s_barrier")
    A("s_cmp_lg_u32 s%d, 0" % S_WAVE)
    A("s_cbranch_scc1 %s" % l)
    if kind == "flags": A("s_mov_b32 s37, %d" % (4 * 24))
    else:
        A("s_lshl_b32 s37, s%d, 2" % S_GRP); A("s_add_u32 s37, s37, %d" % (64 if kind == "own" else 32))
    A("v_mov_b32 v40, s37")
    A("v_mov_b32 v41, 1")
    A("s_mov_b64 exec, 1")
    A("global_atomic_add v42, v40, v41, s[%d:%d] sc0" % (S_DBG, S_DBG + 1))
    A("s_waitcnt vmcnt(0)")
    A("v_readfirstlane_b32 s36, v42")
    A("s_cmp_lg_u32 s36, %d" % ((32 * NZ[0] if kind == "flags" else 32) - 1))
    l2 = A.newlabel("Larn")
    A("s_cbranch_scc1 %s" % l2)
    A("global_store_dword v40, v41, s[%d:%d] offset:128 sc1" % (S_DBG, S_DBG + 1))
    A.label(l2)
    A("s_mov_b64 exec, -1")
    A.label(l)

def init_wait(A, vt=40, kind="flags"):
    lp = A.newlabel("Liw"); l2 = A.newlabel("Liwd")
    if kind == "tickets":
        A("v_and_b32 v%d, 63, v0" % (vt + 1))
        A("v_lshlrev_b32 v%d, 2, v%d" % (vt + 1, vt + 1))
    elif kind == "flags": A("v_mov_b32 v%d, %d" % (vt + 1, 4 * 56))
    else:
        A("s_lshl_b32 s37, s%d, 2" % S_GRP); A("s_add_u32 s37, s37, %d" % (192 if kind == "own" else 160)); A("v_mov_b32 v%d, s37" % (vt + 1))
    if kind != "tickets":
        A("s_cmp_lg_u32 s%d, 0" % S_WAVE)
        A("s_cbranch_scc1 %s" % l2)
    A.label(lp)
    A("global_load_dword v%d, v%d, s[%d:%d] sc1" % (vt, vt + 1, S_DBG, S_DBG + 1))
    A("s_waitcnt vmcnt(0)")
    if kind == "tickets":
        A("s_mov_b32 s36, 0")
        for x in range(16):
            A("v_readlane_b32 s37, v%d, %d" % (vt, tword(x)))
            A("s_add_u32 s36, s36, s37")
        A("s_cmp_ge_u32 s36, 256")
    else:
        A("v_readfirstlane_b32 s36, v%d" % vt)
        A("s_cmp_lg_u32 s36, 0")
    A("s_cbranch_scc1 %s" % l2)
    A("s_sleep 2")
    spin_guard(A)
    A("s_branch %s" % lp)
    A.label(l2)
    if kind == "own":
        ticket_word(A)
        A("v_mov_b32 v%d, s37" % (vt + 1))
    A("s_barrier")
    if kind == "own":
        A("global_load_dword v%d, v%d, s[%d:%d] sc1" % (vt, vt + 1, S_DBG, S_DBG + 1))
        A("s_waitcnt vmcnt(0)")
        A("v_readfirstlane_b32 s37, v%d" % vt)
        A("s_cmp_lt_u32 s37, 32")
        A("s_cselect_b32 s%d, 1, %d" % (S_MIXED, FORCE[0]))
NZ = [2]
FORCE = [0]

def overflow(A):
    A.label("L_overflow")
    A("s_cmp_lg_u32 s%d, 0" % S_WAVE)
    A("s_cbranch_scc1 L_of1")
    A("v_mov_b32 v1, 100")
    A("v_mov_b32 v2, 1")
    A("s_mov_b64 exec, 1")
    A("global_atomic_add v3, v1, v2, s[%d:%d] sc0" % (S_DBG, S_DBG + 1))
    A("s_waitcnt vmcnt(0)")
    A("ds_write_b32 v6, v3")
    A("s_mov_b64 exec, -1")
    A.label("L_of1")
    A("s_waitcnt lgkmcnt(0)")
    A("s_barrier")
    A("ds_read_b32 v3, v6")
    A("s_waitcnt lgkmcnt(0)")
    A("v_readfirstlane_b32 s38, v3")
    A("s_barrier")
    A("s_mov_b32 s%d, 0" % S_GRP)
    init_wait(A, kind="tickets")
    A("s_mov_b32 s%d, 0" % S_GRP)
    A.label("L_of2")
    ticket_word(A)
    A("s_lshr_b32 s37, s37, 2")
    A("v_readlane_b32 s37, v40, s37")
    A("s_min_u32 s37, s37, 32")
    A("s_sub_u32 s39, 32, s37")
    A("s_cmp_lt_u32 s38, s39")
    A("s_cbranch_scc1 L_of3")
    A("s_sub_u32 s38, s38, s39")
    A("s_add_u32 s%d, s%d, 1" % (S_GRP, S_GRP))
    A("s_cmp_lt_u32 s%d, 8" % S_GRP)
    A("s_cbranch_scc1 L_of2")
    A("s_branch L_end")
    A.label("L_of3")
    A("s_add_u32 s%d, s37, s38" % S_HEAD)
    A("s_and_b32 s%d, s%d, 31" % (S_HEAD, S_HEAD))
    A("s_branch L_roles")

def build(opt, roles):
    A = Asm()
    A.raw(HEADER.rstrip())
    A.raw("; @launch grid=(256,1,1) block=(256,1,1) lds=%d" % LDS_BYTES)
    A.raw('.amdgcn_target "amdgcn-amd-amdhsa--gfx950"')
    A.raw(".text\n.globl %s\n.p2align 8\n.type %s,@function" % (KNAME, KNAME))
    A.label(KNAME)
    opt["init_wait"] = init_wait
    opt["arrive"] = arrive
    prologue(A, opt)
    roles(A, opt)
    overflow(A)
    A.label("L_end")
    A("s_endpgm")
    A.raw('''.section .rodata,"a"
.p2align 6
.amdhsa_kernel %s
  .amdhsa_next_free_vgpr 512
  .amdhsa_next_free_sgpr 102
  .amdhsa_accum_offset 256
  .amdhsa_group_segment_fixed_size 0
  .amdhsa_kernarg_size 104
  .amdhsa_user_sgpr_count 2
  .amdhsa_user_sgpr_kernarg_segment_ptr 1
  .amdhsa_system_sgpr_workgroup_id_x 1
.end_amdhsa_kernel''' % KNAME)
    errs = A.check()
    for e in errs: print(e, file=sys.stderr)
    return A.text(), errs

def roles_chain_only(A, opt):
    A("s_cmp_eq_u32 s%d, 0" % S_GRP)
    A("s_cbranch_scc1 L_chain")
    A("s_cmp_gt_u32 s%d, 2" % S_GRP)
    A("s_cbranch_scc1 L_end")
    workers.zero_flags(A, 2)
    opt["arrive"](A, "flags")
    A("s_branch L_end")
    chain.gen_chain(A, opt)

def roles_full(A, opt):
    if opt.get("tlb"):
        l = A.newlabel("Ltlb")
        A("s_cmp_lg_u32 s%d, 3" % S_WAVE)
        A("s_cbranch_scc1 %s" % l)
        A("s_cmp_gt_u32 s%d, 1" % S_HEAD)
        A("s_cbranch_scc1 %s" % l)
        A("v_and_b32 v4, 63, v0")
        A("s_lshl_b32 s37, s%d, 6" % S_HEAD)
        A("v_add_u32 v4, s37, v4")
        A("v_min_u32 v4, 95, v4")
        A("v_lshlrev_b32 v4, 21, v4")
        A("v_add_u32 v4, 0x1ff000, v4")
        A("v_mov_b32 v5, 0")
        A("global_atomic_or v4, v5, s[%d:%d]" % (S_WS, S_WS + 1))
        A.label(l)
    A("s_cmp_gt_u32 s%d, %d" % (S_GRP, opt["NP1"]))
    A("s_cbranch_scc1 L_aworker")
    A("s_cmp_lg_u32 s%d, 0" % S_GRP)
    A("s_cbranch_scc1 L_p1")
    chain.gen_chain(A, opt)
    workers.gen_p1(A, opt)
    workers.gen_p2(A, opt)
    workers.gen_aworker(A, opt)

if __name__ == "__main__":
    mode = sys.argv[1]; out = sys.argv[2]
    opt = {}
    for kv in sys.argv[3:]:
        k, x = kv.split("="); opt[k] = int(x)
    if mode == "chain":
        opt["nokv"] = True
        opt.setdefault("cyc", 1)
        t, errs = build(opt, roles_chain_only)
    if mode == "full":
        opt.setdefault("NP1", 2); opt.setdefault("NP2", 3); opt["NA"] = 7 - opt["NP1"] - opt["NP2"]
        for k, x in (("pa", 2), ("d1", 66), ("d3", 35), ("d5", 20), ("p1z", 150)): opt.setdefault(k, x)
        NZ[0] = opt["NP1"]
        FORCE[0] = 1 if opt.get("fake") == 1 else 0
        workers.ZZ[0] = opt.get("zz", 1)
        workers._RT0["rt"] = opt.get("rt")
        t, errs = build(opt, roles_full)
    open(out, "w").write(t)
    print("wrote", out, len(t), "bytes;", len(errs), "hazards")
```

```python
from common import *
import math, struct

L_KX = 0
L_VX = 8192
L_MEM = 16384
L_Z = 24576
L_O = 28672
L_VM = 30720

def f32bits(x): return struct.unpack("<I", struct.pack("<f", x))[0]

def wq_base(t, c):
    if t < 4:
        assert c >= 2
        return 256 + 8 * (t * 6 + c - 2)
    return 128 + 64 * (t - 4) + 8 * c
def wo_base(j, ch):
    return 256 + 192 + 8 * (ch * 4 + j)

def gen_chain(A, opt):
    cold = Cold()
    nokv = opt.get("nokv", False)
    LAST = opt.get("last", 63)
    EE = 0
    VL16, VSENT, VMLD, VZR, VZW, VOW, VWO, VPST, VMST, VIDX = 1, 11, 3, 4, 5, 6, 7, 8, 9, 10
    SELV, EXP, VMA, PM, PMB = 12, 16, 18, 20, 22
    CP = 14
    PT, VL4, VFA = 27, 2, 0
    VA = 24
    AF = 40
    FR = [48, 56, 64, 96, 104, 112, 120, 32]
    Q0, K0, Q1, K1, V0, V1 = 72, 76, 80, 84, 88, 92
    ZF, KX1, KX2 = 96, 112, 24
    S1, S2, S0 = 40, 44, 48
    M0_, M1_, T0_, T1_ = 52, 53, 54, 55
    VXC = 72
    PX, O0, O1, LA, ONES = 88, 92, 104, 108, 100
    OP, OA = 52, 104
    WACC = [40, 44, 48, 52, 72, 76, 88, 92]
    SLOTS = [80, 56, 64, 112, 120, 24, 32, 96]
    RB, RD, RT, SEL = 96, 80, 84, 60
    G0, G1 = 40, 44
    sSM = 88
    sL, sSEG, sIT = 48, 49, 50
    sMASK, sP0, sP1, sMG, sMR, sPR, sKV, sKM, sFM, sFKV, sR0, sR1 = 52, 54, 56, 58, 60, 62, 64, 68, 70, 72, 74, 78
    sC, sM0, sM1, sFW = 96, 77, 51, 76
    sST = 80
    NTR = 4

    tr_pos = opt.get("trace", 0)
    tr_used = []
    def tr(k):
        if not (tr_pos >> k) & 1: return
        if len(tr_used) >= NTR: raise ValueError("too many trace points")
        A("%s s[%d:%d]" % ("s_memrealtime" if opt.get("rtclk") else "s_memtime", sST + 2 * len(tr_used), sST + 1 + 2 * len(tr_used)))
        tr_used.append(k)

    A.label("L_chain")
    T = 40
    A("v_and_b32 v%d, 63, v0" % T)
    A("v_and_b32 v%d, 15, v0" % (T + 1))
    A("v_bfe_u32 v%d, v0, 4, 2" % (T + 2))
    A("v_lshlrev_b32 v%d, 4, v%d" % (VL16, T))
    A("v_mov_b32 v%d, -1" % VSENT)
    A("v_lshlrev_b32 v%d, 2, v%d" % (VL4, T))
    A("v_lshlrev_b32 v%d, 3, v%d" % (VZR, T))
    A("s_lshl_b32 s40, s%d, 10" % S_WAVE)
    A("v_lshlrev_b32 v%d, 5, v%d" % (VZW, T + 1))
    A("v_lshl_add_u32 v%d, v%d, 3, v%d" % (VZW, T + 2, VZW))
    A("v_add_u32 v%d, s40, v%d" % (VZW, VZW))
    A("s_lshr_b32 s41, s%d, 1" % S_WAVE)
    A("s_lshl_b32 s41, s41, 10")
    A("s_and_b32 s42, s%d, 1" % S_WAVE)
    A("s_lshl_b32 s42, s42, 5")
    A("s_add_u32 s41, s41, s42")
    A("s_add_u32 s41, s41, %d" % (L_O - 32))
    A("v_add_u32 v%d, s41, v%d" % (VOW, VL16))
    A("v_add_u32 v%d, 0x%x, v%d" % (T + 5, L_MEM, VL16))
    A("v_and_b32 v%d, 2, v%d" % (T + 3, T))
    A("v_cmp_ne_u32 vcc, 0, v%d" % (T + 3))
    A("v_mov_b32 v%d, 0xeeee" % (T + 6))
    A("v_mov_b32 v%d, 0x4444" % (T + 7))
    A("v_cndmask_b32 v%d, v%d, v%d, vcc" % (VOW, T + 5, VOW))
    A("v_cndmask_b32 v%d, v%d, v%d, vcc" % (VIDX, T + 7, T + 6))
    A("v_lshrrev_b32 v%d, 3, v%d" % (T + 5, T + 1))
    A("v_lshlrev_b32 v%d, 13, v%d" % (VWO, T + 5))
    A("v_and_b32 v%d, 7, v%d" % (T + 5, T + 1))
    A("v_lshl_add_u32 v%d, v%d, 3, v%d" % (T + 5, T + 2, T + 5))
    A("v_lshl_add_u32 v%d, v%d, 4, v%d" % (VWO, T + 5, VWO))
    A("s_lshl_b32 s41, s%d, 15" % S_WAVE)
    A("s_add_u32 s41, s41, %d" % L_WO)
    A("v_add_u32 v%d, s41, v%d" % (VWO, VWO))
    A("s_lshl_b32 s41, s%d, 11" % S_WAVE)
    A("v_add_u32 v%d, s41, v%d" % (VMLD, VL16))
    A("s_mov_b32 s%d, s41" % sM0)
    A("s_add_u32 s%d, s41, %d" % (sM1, L_VX))
    A("v_lshrrev_b32 v%d, 2, v%d" % (T + 5, T + 1))
    A("v_lshlrev_b32 v%d, 13, v%d" % (VPST, T + 5))
    A("v_and_b32 v%d, 3, v%d" % (T + 5, T + 1))
    A("v_lshl_add_u32 v%d, v%d, 2, v%d" % (T + 6, T + 2, T + 5))
    A("v_lshl_add_u32 v%d, v%d, 4, v%d" % (VPST, T + 6, VPST))
    A("s_lshl_b32 s41, s%d, 16" % S_WAVE)
    A("s_lshl_b32 s42, s%d, 8" % S_HEAD)
    A("s_add_u32 s41, s41, s42")
    A("v_add_u32 v%d, s41, v%d" % (VPST, VPST))
    A("v_and_b32 v%d, 12, v%d" % (T + 6, T + 1))
    A("v_add_u32 v%d, v%d, v%d" % (T + 6, T + 6, T + 2))
    A("v_lshlrev_b32 v%d, 4, v%d" % (VMST, T + 6))
    A("v_lshl_add_u32 v%d, v%d, 2, v%d" % (VMST, T + 5, VMST))
    A("v_add_u32 v%d, s42, v%d" % (VMST, VMST))
    A("v_and_b32 v%d, 1, v%d" % (T + 5, T))
    A("v_lshlrev_b32 v%d, 4, v%d" % (T + 5, T + 5))
    A("v_mov_b32 v%d, 0x3f80" % (T + 7))
    A("v_lshlrev_b32 v%d, v%d, v%d" % (T + 7, T + 5, T + 7))
    A("v_cndmask_b32_e64 v%d, v%d, 0, vcc" % (SELV, T + 7))
    A("v_lshrrev_b32 v%d, 2, v%d" % (T + 6, T + 1))
    for rr in range(4): A("v_cmp_eq_u32 s[%d:%d], %d, v%d" % (sSM + 2 * rr, sSM + 2 * rr + 1, rr ^ 2, T + 6))
    for r in (EXP, VMA, PM, PMB): A("v_mov_b64 v[%d:%d], 0" % (r, r + 1))
    A("s_mov_b32 s%d, 0x%x" % (sC, f32bits(128 ** -0.5 * math.log2(math.e))))
    A("s_mov_b32 s%d, s%d" % (sC + 1, sC))
    A("s_cmp_eq_u32 s%d, 3" % S_WAVE)
    A("s_cselect_b32 s%d, %d, 64" % (sFW, 2 - EE))
    A("s_mov_b32 s%d, 0" % sIT)
    if opt.get("cnt"):
        for r in (85, 86, 87): A("s_mov_b32 s%d, 0" % r)
    A("s_mov_b32 s%d, 0" % sL)
    rt_stamp(A, opt, 500, 40, 41)
    A("v_mov_b64 v[44:45], -1"); A("v_mov_b64 v[46:47], -1")
    A("s_lshl_b32 s40, s%d, 13" % S_HEAD)
    for k in range(2):
        A("s_add_u32 s41, s40, 0x%x" % (OFF_CPART + k * 0x40000)); sadd64(A, 42, S_WS, "s41")
        for i in range(2): A("global_store_dwordx4 v%d, v[44:47], s[42:43] offset:%d sc1" % (VMLD, i * 1024))
    A("s_lshl_b32 s41, s%d, 13" % S_WAVE)
    A("s_add_u32 s41, s41, 0x%x" % OFF_CMEM); sadd64(A, 42, S_WS, "s41")
    A("global_store_dword v%d, v44, s[42:43] sc1" % VMST)
    for k in range(2 * (64 - KM_POLL)):
        A("s_add_u32 s41, s40, 0x%x" % (OFF_KM + (64 * (k & 1) + KM_POLL + (k >> 1)) * 32 * 8192)); sadd64(A, 42, S_WS, "s41")
        A("global_store_dwordx4 v%d, v[44:47], s[42:43] sc1" % VMLD)
    A.nop(2)
    load_head_weights(A, 40, wq_base, True, vwo=VWO, wo_base=wo_base)
    rt_stamp(A, opt, 501, 40, 41)
    dbg_time(A, opt, "8", 40, 41)
    opt["arrive"](A, "own")
    opt["init_wait"](A, kind="own")
    opt["init_wait"](A)
    rt_stamp(A, opt, 502, 40, 41)

    def pkadd(d): A("v_pk_add_f32 v[%d:%d], v[%d:%d], v[%d:%d]" % (d, d + 1, d, d + 1, d + 2, d + 3))
    def add1(d, e): A("v_add_f32 v%d, v%d, v%d" % (d + e, d + e, d + 2 + e))
    def cvt(d, x, y): A("v_cvt_pk_bf16_f32 v%d, v%d, v%d" % (d, x, y))
    def rd128(d, addr, off): A("ds_read_b128 v[%d:%d], v%d offset:%d" % (d, d + 3, addr, off))
    def z64(r): A("v_mov_b64 v[%d:%d], 0" % (r, r + 1))

    def setup_part_bases():
        sadd64(A, sKV, sKV, 32 * 8192)
        sadd64(A, sKV + 2, sKV + 2, 32 * 8192)
        sadd64(A, sKM, sKM, 32 * 8192)
        sadd64(A, sFM, sFM, 4)
        A("s_and_b32 s40, s%d, 1" % sIT)
        A("s_lshl_b32 s40, s40, 18")
        A("s_add_u32 s41, s40, 0x%x" % OFF_CPART); sadd64(A, sP0, S_WS, "s41")
        sadd64(A, sP1, sP0, 32768)
        A("s_lshl_b32 s42, s%d, 13" % S_HEAD)
        sadd64(A, sR0, sP0, "s42")
        sadd64(A, sR1, sR0, 4096)
        A("s_xor_b32 s41, s41, 0x40000")
        A("s_add_u32 s41, s41, s42"); sadd64(A, sPR, S_WS, "s41")
    def prefetch_own():
        for p in range(1, 4): A("v_xor_b32 v%d, %d, v%d" % (VA + p - 1, p * 2048, VMLD))
        for n, (X, Tt, cc) in enumerate([(0, 0, 0), (1, 0, 0), (0, 1, 0), (1, 1, 0), (0, 0, 1), (1, 0, 1), (0, 1, 1), (1, 1, 1)]):
            f = (X * 2 + Tt) * 2 + cc
            for hB in range(2): rd128(FR[n] + 4 * hB, VWO, 16384 + f * 1024 + hB * 512)
    def kv_check(tmp, sreg):
        if nokv: return
        lp = A.newlabel("Lkvp"); ok = A.newlabel("Lkvo")
        A.label(ok)
        A("s_bitcmp0_b64 s[%d:%d], %s" % (sMASK, sMASK + 1, sreg))
        A("s_cbranch_scc1 %s" % lp)
        def blk(A):
            A.label(lp)
            A("global_load_dword v%d, v%d, s[%d:%d] sc1" % (tmp, VL4, sFKV, sFKV + 1))
            A("s_waitcnt vmcnt(0)")
            A("v_cmp_ne_u32 s[%d:%d], 0, v%d" % (sMASK, sMASK + 1, tmp))
            A("s_sleep 1")
            spin_guard(A)
            A("s_branch %s" % ok)
        cold.add(blk)
    def kv_ops():
        return [["s_mov_b32 m0, s%d" % sM0, "s_nop 0",
                 "global_load_lds_dwordx4 v%d, s[%d:%d] sc1" % (VMLD, sKV, sKV + 1)],
                ["global_load_lds_dwordx4 v%d, s[%d:%d] offset:1024 sc1" % (VMLD, sKV, sKV + 1), "s_mov_b32 m0, s%d" % sM1],
                ["global_load_lds_dwordx4 v%d, s[%d:%d] sc1" % (VMLD, sKV + 2, sKV + 3)],
                ["global_load_lds_dwordx4 v%d, s[%d:%d] offset:1024 sc1" % (VMLD, sKV + 2, sKV + 3)]]
    def exp_st():
        return "global_store_dwordx4 v%d, v[%d:%d], s[%d:%d] sc1" % (VMLD, EXP, EXP + 3, sKM, sKM + 1)
    def flag(tmp, off):
        A("v_mov_b32 v%d, 0" % tmp)
        A("global_store_dword v%d, v%d, s[%d:%d] offset:%d sc1" % (tmp, VSENT, sFM, sFM + 1, off))

    A.label("L_ch_layer")
    A("s_mov_b32 s%d, 0" % sSEG)
    A("s_mov_b64 s[%d:%d], 0" % (sMASK, sMASK + 1))
    A("s_lshl_b32 s40, s%d, 5" % sL)
    A("s_add_u32 s40, s40, s%d" % S_HEAD)
    A("s_lshl_b32 s40, s40, 8")
    A("s_add_u32 s41, s40, 0x%x" % F_KV)
    sadd64(A, sFKV, S_WS, "s41")
    A("s_add_u32 s41, s40, 0x%x" % (F_M - 12 + 4 * EE))
    sadd64(A, sFM, S_WS, "s41")
    A("s_lshl_b32 s40, s%d, 11" % sL)
    A("s_add_u32 s40, s40, s%d" % S_HEAD)
    A("s_lshl_b32 s40, s40, 13")
    A("s_add_u32 s41, s40, 0x%x" % OFF_KX); sadd64(A, sKV, S_WS, "s41")
    A("s_add_u32 s41, s40, 0x%x" % OFF_VX); sadd64(A, sKV + 2, S_WS, "s41")
    A("s_add_u32 s41, s40, 0x%x" % (OFF_KM - (2 - EE) * 32 * 8192)); sadd64(A, sKM, S_WS, "s41")
    A("v_bfe_u32 v27, v2, 4, 2")
    A("v_bfe_u32 v28, v2, 2, 1")
    A("v_lshl_add_u32 v27, v27, 1, v28")
    A("v_lshlrev_b32 v27, 10, v27")
    A("v_bfe_u32 v28, v2, 3, 1")
    A("v_lshl_add_u32 v27, v28, 2, v27")
    A("v_bfe_u32 v28, v2, 6, 2")
    A("v_lshl_add_u32 v27, v28, 5, v27")
    A("v_mov_b32 v%d, 0" % VFA)
    A("s_lshl_b32 s40, s%d, 8" % S_WAVE)
    A("v_add_u32 v27, s40, v27")
    for i in range(2):
        for p in range(4):
            A("global_load_dword v%d, v27, s[%d:%d] offset:%d" % (G0 + 4 * i + p, S_MEM0, S_MEM0 + 1, i * 128 + p * 8))
    kv_check(28, "s%d" % sSEG)
    for g_ in kv_ops():
        for t in g_: A(t)
        A("s_nop 0")
    if opt.get("rt") or opt.get("cyc"):
        A("s_add_u32 s47, s%d, 400" % sL)
        rt_stamp(A, dict(rt=opt.get("rt") or 2), "s47", 27, 28)
    if opt.get("dbgt"):
        A("s_lshl_b32 s47, s%d, 1" % sL); A("s_add_u32 s47, s47, 9")
        dbg_time(A, opt, "s47", 27, 28)
        A("s_add_u32 s47, s47, 4")
        dbg_time(A, opt, "s47", 27, 28, cyc=True)
    for r in range(0, 24, 2): z64(Q0 + r)
    setup_part_bases()
    prefetch_own()
    A("s_waitcnt vmcnt(0)")
    A("ds_write_b128 v%d, v[%d:%d] offset:%d" % (VMLD, G0, G0 + 3, L_MEM))
    A("ds_write_b128 v%d, v[%d:%d] offset:%d" % (VMLD, G1, G1 + 3, L_MEM + 1024))
    A("s_waitcnt lgkmcnt(2)")
    A("s_branch L_ch_step")

    A.raw(".p2align 6")
    PA = opt.get("pa", 1)
    def ldA():
        A("global_load_dwordx4 v[%d:%d], v%d, s[%d:%d] sc1" % (G0, G0 + 3, VMLD, sMG, sMG + 1))
        A("global_load_dwordx4 v[%d:%d], v%d, s[%d:%d] offset:1024 sc1" % (G1, G1 + 3, VMLD, sMG, sMG + 1))
    A.label("L_ch_retryA")
    ldA()
    if opt.get("cnt"): A("s_add_u32 s87, s87, 1")
    spin_guard(A)
    A.label("L_ch_pollA")
    A("s_waitcnt vmcnt(%d) lgkmcnt(0)" % (2 * (PA - 1)))
    A("v_max_u32 v%d, v%d, v%d" % (PT, G0, G1))
    A("v_cmp_eq_u32 vcc, -1, v%d" % PT)
    A("ds_write_b128 v%d, v[%d:%d] offset:%d" % (VMLD, G0, G0 + 3, L_MEM))
    A("ds_write_b128 v%d, v[%d:%d] offset:%d" % (VMLD, G1, G1 + 3, L_MEM + 1024))
    A("s_cbranch_vccnz L_ch_retryA")
    if tr_pos:
        tr(26)
        lt = A.newlabel("Ltr")
        A("s_cmp_eq_u32 s%d, %d" % (sIT, opt.get("trit", 100)))
        A("s_cbranch_scc1 %s" % lt)
        A.label(lt + "b")
        def blk(A):
            A.label(lt)
            A("s_waitcnt lgkmcnt(0)")
            A("s_lshl_b32 s40, s%d, 2" % S_HEAD)
            A("s_add_u32 s40, s40, s%d" % S_WAVE)
            A("s_lshl_b32 s40, s40, 7")
            A("s_add_u32 s40, s40, 0x%x" % (OFF_STAMP + 0x400000))
            sadd64(A, 42, S_WS, "s40")
            A("v_mov_b32 v27, 0")
            for n, k in enumerate(tr_used):
                A("v_mov_b32 v28, s%d" % (sST + 2 * n))
                A("global_store_dword v27, v28, s[42:43] offset:%d" % (4 * k))
            A("s_branch %s" % (lt + "b"))
        cold.add(blk)
    A.label("L_ch_step")
    tr(0)
    def smfr(acc, c, breg):
        A("v_smfmac_f32_16x16x64_bf16 v[%d:%d], v[%d:%d], %s, v%d" % (acc, acc + 3, AF + 4 * c, AF + 4 * c + 3, R(breg, 8), VIDX))
    def smf(acc, c, tile): smfr(acc, c, wq_base(tile, c))
    accs = [Q0, K0, Q1, K1]
    def mf(d, x, y, c, k32=True):
        n = 4 if k32 else 2
        A("v_mfma_f32_16x16x%d_bf16 v[%d:%d], v[%d:%d], v[%d:%d], %s" % (32 if k32 else 16, d, d + 3, x, x + n - 1, y, y + n - 1, c))
    acc = lambda r: "v[%d:%d]" % (r, r + 3)
    def trd(k):
        dc, Tt = k >> 1, k & 1
        A("ds_read_b64_tr_b16 v[%d:%d], v%d offset:%d" % (ZF + 2 * k, ZF + 2 * k + 1, VZR, L_Z + dc * 1024 + Tt * 512))
    for n in range(4): smfr(accs[n], 0, FR[n])
    A("s_waitcnt lgkmcnt(0)")
    A("s_barrier")
    tr(1)
    own = [lambda n=n: smfr(accs[n], 1, FR[4 + n]) for n in range(4)] + \
          [lambda a_=a_, c=c, t=t: smf(a_, c, t) for c in range(2) for a_, t in ((V0, 4), (V1, 5))]
    rd128(AF + 8, VA, L_MEM)
    for c in range(3, 8):
        rd128(AF + 4 * c, VA + c // 2 - 1, L_MEM + (c & 1) * 1024)
        own.pop(0)()
    own.pop(0)(); own.pop(0)()
    if PA > 1: A("s_waitcnt vmcnt(0)")
    if not opt.get("norearm"):
        store_mixed(A, cold, ["global_store_dword v%d, v%d, s[%d:%d]" % (VMLD, VSENT, sPR, sPR + 1),
                              "global_store_dword v%d, v%d, s[%d:%d] offset:1024" % (VMLD, VSENT, sPR, sPR + 1)])
    A("s_cmp_lt_u32 s%d, s%d" % (sSEG, sFW))
    A("s_cbranch_scc0 L_ch_flag")
    A.label("L_ch_noflag")
    own.pop(0)()
    A("s_cmp_eq_u32 s%d, 0" % sSEG)
    A("s_cselect_b32 s40, 4, s%d" % S_WAVE)
    EM = opt.get("em", 0)
    def exp_turn(k):
        if opt.get("noexp"): return
        l = A.newlabel("Lex")
        if EM == 0 and k == 0 and not EE:
            A("s_cbranch_scc1 %s" % l); A(exp_st()); A.label(l)
        if EM == 1 and k in (0, 2):
            A("s_cbranch_scc1 %s" % l)
            A("global_store_dwordx2 v%d, v[%d:%d], s[%d:%d] offset:%d sc1" % (VMLD, EXP + k, EXP + k + 1, sKM, sKM + 1, 4 * k))
            A.label(l)
        if EM == 2:
            A("s_cmp_lg_u32 s40, %d" % k); A("s_cbranch_scc1 %s" % l); A(exp_st()); A.label(l)
        if EM == 3 and k in (0, 2):
            A("s_cmp_lg_u32 s41, %d" % (k >> 1)); A("s_cbranch_scc1 %s" % l); A(exp_st()); A.label(l)
    if EM == 3: A("s_lshr_b32 s41, s40, 1")
    tr(2)
    kx = [(KX1 + 4 * d, VL16, L_KX + d * 1024) for d in range(4)] + [(KX2 + 4 * d, VL16, L_KX + 4096 + d * 1024) for d in range(4)]
    extra = 0
    for c in range(2, 8):
        A("s_waitcnt lgkmcnt(%d)" % (7 - c + extra))
        smf(Q0, c, 0)
        if c >= 4: rd128(*kx.pop(0)); extra += 1
        else: exp_turn(2 * (c - 2))
        smf(K0, c, 2)
        if c >= 4: rd128(*kx.pop(0)); extra += 1
        else: exp_turn(2 * (c - 2) + 1)
    assert not kx
    tr(3)
    seq = [(a_, c, t) for c in range(2, 8) for a_, t in ((Q1, 1), (K1, 3))]
    for i, x in enumerate(seq):
        smf(*x)
        if i == 0: A("s_add_u32 s41, s%d, 1" % sSEG); A.nop(2)
        if i == 1:
            if not nokv:
                A("v_cmp_ne_u32 vcc, 0, v%d" % VFA)
                A("s_or_b64 s[%d:%d], s[%d:%d], vcc" % (sMASK, sMASK + 1, sMASK, sMASK + 1))
            else: A.nop(2)
        if i == 2: add1(Q0, 0)
        if i == 3: add1(Q0, 1)
        if i == 4: add1(K0, 0)
        if i == 5: add1(K0, 1)
        if i == 6: cvt(K0 + 3, Q0, Q0 + 1)
        if i == 7: cvt(K0 + 2, K0, K0 + 1)
        if i == 8:
            A("ds_write_b64 v%d, v[%d:%d] offset:%d" % (VZW, K0 + 2, K0 + 3, L_Z)); A("v_min_u32 v%d, -2, v%d" % (EXP, K0 + 2))
        if i == 9: rd128(VXC, VMLD, L_VX)
        if i == 10: rd128(VXC + 4, VMLD, L_VX + 1024)
    tr(4)
    vq = [x for c in range(2, 8) for x in ((V0, c, 4), (V1, c, 5))]
    def vs(n=1):
        for _ in range(n):
            if vq: smf(*vq.pop(0))
    vs(); A.nop(3); vs(); A.nop(2)
    add1(Q1, 0); add1(Q1, 1); add1(K1, 0); add1(K1, 1)
    cvt(K1 + 3, Q1, Q1 + 1); cvt(K1 + 2, K1, K1 + 1)
    A("ds_write_b64 v%d, v[%d:%d] offset:%d" % (VZW, K1 + 2, K1 + 3, L_Z + 512))
    tr(5)
    vs()
    A("v_mov_b32 v%d, v%d" % (EXP + 1, K1 + 2))
    vs(opt.get("vpre", 4) - 1)
    A("s_waitcnt lgkmcnt(0)")
    A("s_barrier")
    tr(6)
    trd(0); trd(1)
    for k in range(2, 8):
        vs(); trd(k)
    assert not vq
    A("s_cmp_eq_u32 s%d, %d" % (sSEG, LAST))
    A("s_cbranch_scc1 L_ch_last")
    vq_last = []
    kv_check(52, "s41")
    kvo = kv_ops()
    if opt.get("nodma"): kvo = [["s_nop 0"]] * 4
    wrd = []
    for i in range(8):
        off = (i >> 1) * 2048 + (i & 1) * 1024
        wrd += [(SLOTS[i], VWO, off), (SLOTS[i] + 4, VWO, off + 512)]
    def w(): rd128(*wrd.pop(0))
    nw = 0
    for dc in range(4):
        A("s_waitcnt lgkmcnt(%d)" % (6 - 2 * dc + nw))
        z = ZF + 4 * dc
        mf(S1, KX1 + 4 * dc, z, "0" if dc == 0 else acc(S1))
        if dc < 3: w(); nw += 1
        if dc == 2: add1(V0, 1)
        if dc == 3: cvt(VMA, V0, V0 + 1)
        mf(S2, KX2 + 4 * dc, z, "0" if dc == 0 else acc(S2))
        if dc < 3: w(); nw += 1
        if dc == 2: add1(V1, 0)
        if dc == 3: cvt(VMA + 1, V1, V1 + 1); A("v_min_u32 v%d, -2, v%d" % (VMA, VMA))
        mf(S0, z, z, "0" if dc == 0 else acc(S0))
        for t in kvo.pop(0): A(t)
        if dc == 1: add1(V0, 0)
        if dc == 2: add1(V1, 1)
    tr(7)
    if not nokv: A("global_load_dword v%d, v%d, s[%d:%d] sc1" % (VFA, VL4, sFKV, sFKV + 1))
    else: A("s_nop 0")
    if EE: A(exp_st())
    A("v_mov_b32 v%d, 0x3f803f80" % ONES)
    A("v_mov_b32 v%d, 0x3f803f80" % (ONES + 1))
    A("v_max3_f32 v%d, v%d, v%d, v%d" % (M0_, S1, S1 + 1, S1 + 2))
    A("v_mov_b32 v%d, 0x3f803f80" % (ONES + 2))
    A("v_max3_f32 v%d, v%d, v%d, v%d" % (M1_, S1 + 3, S2, S2 + 1))
    A("v_max3_f32 v%d, v%d, v%d, v%d" % (M0_, M0_, S2 + 2, S2 + 3))
    A("v_max3_f32 v%d, v%d, v%d, v%d" % (M1_, M1_, S0, S0 + 1))
    A("v_max_f32 v%d, v%d, v%d" % (T0_, M0_, M1_))
    A("v_max_f32 v%d, v%d, v%d" % (T1_, M0_, M1_))
    A("v_mov_b32 v%d, 0x3f803f80" % (ONES + 3))
    A("s_add_u32 s40, s%d, 1" % sIT)
    A("v_permlane32_swap_b32 v%d, v%d" % (T0_, T1_))
    A("v_max_f32 v%d, v%d, v%d" % (M0_, T0_, T1_))
    A("v_max_f32 v%d, v%d, v%d" % (M1_, T0_, T1_))
    A("s_and_b32 s40, s40, 3")
    A("s_lshl_b32 s40, s40, 13")
    A("v_permlane16_swap_b32 v%d, v%d" % (M0_, M1_))
    A("v_max_f32 v%d, v%d, v%d" % (M0_, M0_, M1_))
    A("v_mul_f32 v%d, s%d, v%d" % (M0_, sC, M0_))
    tr(8)
    def pkf(r): A("v_pk_fma_f32 v[%d:%d], v[%d:%d], s[%d:%d], v[%d:%d] op_sel_hi:[1,0,0] neg_lo:[0,0,1] neg_hi:[0,0,1]" % (r, r + 1, r, r + 1, sC, sC + 1, M0_, M0_ + 1))
    def ex(r): A("v_exp_f32 v%d, v%d" % (r, r))
    pkf(S1); pkf(S1 + 2); ex(S1); ex(S1 + 1); pkf(S2); ex(S1 + 2); ex(S1 + 3); pkf(S2 + 2)
    cvt(PX, S1, S1 + 1); ex(S2); ex(S2 + 1); cvt(PX + 1, S1 + 2, S1 + 3); pkf(S0); ex(S2 + 2); ex(S2 + 3)
    cvt(PX + 2, S2, S2 + 1); ex(S0); cvt(PX + 3, S2 + 2, S2 + 3); ex(S0 + 1)
    tr(9)
    A("s_add_u32 s40, s40, 0x%x" % OFF_CMEM)
    mf(LA, ONES, PX, "0")
    cvt(PM, S0, S0 + 1)
    mf(O1, VXC + 4, PX, "0")
    w(); cvt(PMB + 1, S0, S0 + 1)
    mf(O0, VXC, PX, "0")
    w(); sadd64(A, sMG, S_WS, "s40")
    A("v_mov_b32 v%d, 0" % S1)
    mf(LA, ONES, PM, acc(LA), k32=False)
    w(); A("v_mov_b32 v%d, 0" % (S1 + 1)); A.nop(1)
    mf(O1, VMA, PMB, acc(O1), k32=False)
    w(); A("v_mov_b32 v%d, 0" % (S1 + 2))
    mf(O0, VMA, PM, acc(O0), k32=False)
    A("v_mov_b32 v%d, 0" % (S1 + 3))
    z64(WACC[1]); z64(WACC[1] + 2)
    A("v_rcp_f32 v%d, v%d" % (LA, LA))
    z64(WACC[2])
    for r in (O1, O1 + 2, O0, O0 + 2):
        if r == O0: z64(WACC[2] + 2)
        A("v_pk_mul_f32 v[%d:%d], v[%d:%d], v[%d:%d] op_sel_hi:[1,0]" % (r, r + 1, r, r + 1, LA, LA + 1))
    cvt(OP + 2, O1, O1 + 1); cvt(OP + 3, O1 + 2, O1 + 3); cvt(OP, O0, O0 + 1); cvt(OP + 1, O0 + 2, O0 + 3)
    A("ds_write_b128 v%d, v[%d:%d]" % (VOW, OP, OP + 3))
    tr(10)
    for t in (4, 5, 6, 7): z64(WACC[t]); z64(WACC[t] + 2)
    for _ in range(opt.get("wfill", 4)): A("v_mov_b32 v%d, 0" % CP)
    A("s_waitcnt vmcnt(%d) lgkmcnt(0)" % ((0 if opt.get("nodma") else 4 if nokv else 5) + EE))
    tr(11)
    A("s_barrier")
    tr(12)
    rd128(OA, VL16, L_O); rd128(OA + 4, VL16, L_O + 1024)
    z64(WACC[3]); z64(WACC[3] + 2)
    A("s_and_b32 s40, s%d, 3" % sIT); A("s_lshl_b32 s40, s40, 13"); A("s_add_u32 s40, s40, 0x%x" % OFF_CMEM)
    def tile_ops(d): return ["v_add_f32 v%d, v%d, v%d" % (d + e, d + e, d + 2 + e) for e in range(2)]
    def cv(d, x, y): return "v_cvt_pk_bf16_f32 v%d, v%d, v%d" % (d, x, y)
    t0, t1 = WACC[:4], WACC[4:]
    order = [(j, ch) for j in range(8) for ch in range(2)]
    a0, a1, a2, a3 = [tile_ops(x) for x in t0]
    b0, b1, b2, b3 = [tile_ops(x) for x in t1]
    mn = lambda r: "v_min_u32 v%d, -2, v%d" % (r, r)
    fill = {3: ["s_nop 0"], 4: [a0[0]], 5: [a0[1]], 6: [a1[0]], 7: [a1[1]], 8: [cv(t0[0] + 2, t0[0], t0[1]), a2[0]],
            9: [cv(t0[0] + 3, t0[0] + 1, t0[1] + 1), a2[1]], 10: ["s_nop 0", a3[0]], 11: [a3[1], cv(t0[0], t0[2], t0[3])],
            12: [cv(t0[0] + 1, t0[2] + 1, t0[3] + 1), mn(t0[0])], 13: [b0[0]], 14: [b0[1], b1[0]], 15: [b1[1]]}
    nlate = len(wrd)
    issued = 0
    for i, (Tt, ch) in enumerate(order):
        if i == 0: A("s_waitcnt lgkmcnt(1)")
        if i == 1: A("s_waitcnt lgkmcnt(%d)" % issued)
        if i >= 8:
            need = 2 * (i - 8) + 2 - (16 - nlate)
            if need > 0: A("s_waitcnt lgkmcnt(%d)" % (issued - need))
        b = wo_base(Tt, ch) if i < 8 else SLOTS[i - 8]
        a_ = WACC[Tt]
        A("v_smfmac_f32_16x16x64_bf16 v[%d:%d], v[%d:%d], %s, v%d" % (a_, a_ + 3, OA + 4 * ch, OA + 4 * ch + 3, R(b, 8), VIDX))
        if i == 0: tr(13)
        if i == 7: tr(14)
        if i == 15: tr(15)
        if wrd: rd128(*wrd.pop(0)); issued += 1
        for t in fill.get(i, []): A(t)
        if i == 12:
            store_mixed(A, cold, ["global_store_dwordx4 v%d, v[%d:%d], s[%d:%d]" % (VPST, t0[0], t0[0] + 3, sP0, sP0 + 1)])
    assert not wrd
    for t in [cv(t1[0] + 2, t1[0], t1[1]), cv(t1[0] + 3, t1[0] + 1, t1[1] + 1)] + b2 + ["s_nop 2"] + b3 + \
             [cv(t1[0], t1[2], t1[3]), cv(t1[0] + 1, t1[2] + 1, t1[3] + 1), mn(t1[0])]: A(t)
    store_mixed(A, cold, ["global_store_dwordx4 v%d, v[%d:%d], s[%d:%d]" % (VPST, t1[0], t1[0] + 3, sP1, sP1 + 1)])
    tr(20)
    sadd64(A, sMR, S_WS, "s40")
    A("s_add_u32 s%d, s%d, 1" % (sSEG, sSEG))
    A("s_add_u32 s%d, s%d, 1" % (sIT, sIT))
    for r in (4, 6, 16, 18, 20, 22): z64(Q0 + r)
    A("s_cmp_lg_u32 s%d, 0" % S_WAVE)
    A("s_cbranch_scc1 L_ch_nored")
    for rr in range(4): A("v_cndmask_b32 v%d, 0, v%d, s[%d:%d]" % (SEL + rr, SELV, sSM + 2 * rr, sSM + 2 * rr + 1))
    if opt.get("d1", 0): A.nop(opt["d1"])
    def ldB(i):
        b = sR0 if i < 4 else sR1
        A("global_load_dwordx4 v[%d:%d], v%d, s[%d:%d] offset:%d sc1" % (RB + 4 * i, RB + 4 * i + 3, VL16, b, b + 1, (i & 3) * 1024))
    tr(21)
    A.label("L_ch_rB")
    for i in range(8): ldB(i)
    if opt.get("cnt"): A("s_add_u32 s86, s86, 1")
    spin_guard(A)
    A("s_waitcnt vmcnt(7)")
    A("v_cmp_eq_u32 vcc, -1, v%d" % RB)
    mf(RD, SEL, RB, "0")
    A("s_cbranch_vccnz L_ch_rB")
    if opt.get("cnt"): A("s_add_u32 s85, s85, 1")
    tr(22)
    for i in range(1, 8):
        A("s_waitcnt vmcnt(%d)" % (7 - i))
        mf(RD, SEL, RB + 4 * i, acc(RD))
        if i == 2: A("v_max_u32 v%d, v%d, v%d" % (RT, RB + 4, RB + 8))
        if i in (4, 6): A("v_max3_u32 v%d, v%d, v%d, v%d" % (RT, RT, RB + 4 * i - 4, RB + 4 * i))
    tr(23)
    A("v_max_u32 v%d, v%d, v%d" % (RT, RT, RB + 28))
    A("v_cmp_eq_u32 vcc, -1, v%d" % RT)
    A.nop(5)
    A("s_cbranch_vccnz L_ch_rB")
    cvt(RT, RD, RD + 1)
    A("v_min_u32 v%d, -2, v%d" % (RT, RT))
    store_mixed(A, cold, ["global_store_dword v%d, v%d, s[%d:%d]" % (VMST, RT, sMG, sMG + 1),
                          "global_store_dword v%d, v%d, s[%d:%d]" % (VMST, VSENT, sMR, sMR + 1)])
    tr(24)
    A("s_barrier")
    setup_part_bases()
    if opt.get("d6", 0): A.nop(opt["d6"])
    tr(25)
    ldA()
    prefetch_own()
    for k in range(1, PA): ldA()
    for r in (0, 2, 8, 10, 12, 14): z64(Q0 + r)
    A("s_branch L_ch_pollA")
    A.label("L_ch_firstA")
    for k in range(PA):
        ldA()
        if k < PA - 1: A.nop(opt.get("d5", 24))
    A("s_branch L_ch_pollA")
    A.label("L_ch_nored")
    rt_stamp(A, opt, "s%d" % sIT, RT, RT + 1)
    setup_part_bases()
    prefetch_own()
    for r in (0, 2, 8, 10, 12, 14): z64(Q0 + r)
    A("s_barrier")
    if opt.get("d3", 0): A.nop(opt["d3"])
    A("s_branch L_ch_firstA")

    A.label("L_ch_flag")
    A("s_mov_b64 exec, 1")
    A("global_store_dword v%d, v%d, s[%d:%d] sc1" % (PM + 1, VSENT, sFM, sFM + 1))
    A("s_mov_b64 exec, -1")
    A("s_branch L_ch_noflag")
    A.label("L_ch_last")
    for x in vq_last: smf(*x)
    if not EE: sadd64(A, sKM, sKM, 32 * 8192)
    A.nop(8)
    pkadd(V0); pkadd(V1)
    cvt(VMA, V0, V0 + 1); cvt(VMA + 1, V1, V1 + 1)
    A("v_min_u32 v%d, -2, v%d" % (VMA, VMA))
    A(exp_st())
    A("s_waitcnt lgkmcnt(0)")
    A("s_barrier")
    if opt.get("rt") or opt.get("cyc"):
        A("s_add_u32 s47, s%d, 410" % sL)
        rt_stamp(A, dict(rt=opt.get("rt") or 2), "s47", 27, 28)
    if opt.get("dbgt"):
        A("s_lshl_b32 s47, s%d, 1" % sL); A("s_add_u32 s47, s47, 10")
        dbg_time(A, opt, "s47", 27, 28)
        A("s_cmp_eq_u32 s%d, 0" % sL)
        A("s_cselect_b32 s47, 14, 7")
        dbg_time(A, opt, "s47", 27, 28, cyc=True)
    A("s_add_u32 s%d, s%d, 1" % (sL, sL))
    A("s_cmp_lt_u32 s%d, %d" % (sL, opt.get("layers", 2)))
    A("s_cbranch_scc1 L_ch_layer")
    if opt.get("cnt"):
        rt_stamp(A, dict(rt=2), 420, 27, 28)
        for k, r in enumerate((85, 86, 87)):
            A("v_mov_b32 v28, s%d" % r)
            A("global_store_dword v27, v28, s[%d:%d] offset:%d" % (S_WS, S_WS + 1, 4 + 4 * k))
    A("s_branch L_end")
    cold.emit(A)
```

```python
from asmlib import *
NAME = "interleave_layers__linear_attn_block__memory_aug_recurrent_mem_tr__prompt"
KNAME = NAME + "_kernel"

F_X1  = 0x0000
F_Y2  = 0x4000
F_PB  = 0x8000
F_PA  = 0xC000
F_KV  = 0x10000
F_Q   = 0x1C000
F_M   = 0x14000
F_AKV = 0x18000
OFF_CPART = 0x100000
OFF_CMEM  = 0x180000
OFF_Y0 = 0x200000
OFF_X1 = 0x400000
OFF_Y1 = 0x800000
OFF_X2 = 0xC00000
OFF_Y2 = 0xE00000
OFF_AKV = 0x1000000
OFF_WP = 0x1800000
OFF_PW = 0x2000000
OFF_KX = 0x4000000
OFF_VX = 0x6000000
OFF_QX = 0x8000000
OFF_KM = 0xA000000
OFF_STAMP = 0xC000000

S_WS = 4
S_AX = 8
S_WQKV = 10
S_AWO = 12
S_MEM0 = 16
S_WQ = 18
S_WK = 20
S_WV = 22
S_WO = 24
S_OUT = 28
S_DBG = 30
S_GRP = 32
S_HEAD = 33
S_WAVE = 34
S_MIXED = 35
S_T0 = 36

KM_POLL = 60
LDS_BYTES = 163840
L_WO = 32768

def sadd64(A, d, b, imm_or_s):
    x = imm_or_s if isinstance(imm_or_s, str) else "0x%x" % imm_or_s
    A("s_add_u32 s%d, s%d, %s" % (d, b, x))
    A("s_addc_u32 s%d, s%d, 0" % (d + 1, b + 1))

def load_head_weights(A, vt, wq_base, chain, vwo=None, wo_base=None):
    VW0, VW1, VT0, VT1, VOFFO, VTRO, VWB, VX = range(vt, vt + 8)
    TMP = vt + 8
    A("v_and_b32 %s, 63, v0" % v(VX))
    A("v_lshrrev_b32 %s, 4, %s" % (v(TMP), v(VX)))
    A("v_bfe_u32 %s, %s, 2, 2" % (v(TMP + 1), v(VX)))
    A("v_and_b32 %s, 3, %s" % (v(TMP + 2), v(VX)))
    A("v_and_b32 %s, 15, %s" % (v(TMP + 4), v(VX)))
    A("s_lshl_b32 s40, s%d, 8" % S_HEAD)
    A("s_lshl_b32 s41, s%d, 17" % S_WAVE)
    A("s_add_u32 s40, s40, s41")
    for k, dst in enumerate((VW0, VW1)):
        A("v_lshlrev_b32 %s, 1, %s" % (v(TMP + 5), v(TMP)))
        if k: A("v_or_b32 %s, 8, %s" % (v(TMP + 5), v(TMP + 5)))
        A("v_xor_b32 %s, %s, %s" % (v(TMP + 5), v(TMP + 5), v(TMP + 4)))
        A("v_lshlrev_b32 %s, 4, %s" % (v(TMP + 5), v(TMP + 5)))
        A("v_lshl_add_u32 %s, %s, 13, %s" % (v(dst), v(TMP), v(TMP + 5)))
        A("v_add_u32 %s, s40, %s" % (v(dst), v(dst)))
    A("s_lshl_b32 s41, s%d, 2" % S_WAVE)
    A("v_lshrrev_b32 %s, 1, %s" % (v(TMP + 5), v(TMP + 2)))
    A("v_add_u32 %s, s41, %s" % (v(TMP + 5), v(TMP + 5)))
    A("v_and_b32 %s, 1, %s" % (v(TMP + 6), v(TMP)))
    A("v_lshlrev_b32 %s, 3, %s" % (v(TMP + 6), v(TMP + 6)))
    A("v_lshl_add_u32 %s, %s, 1, %s" % (v(TMP + 6), v(TMP + 1), v(TMP + 6)))
    A("v_xor_b32 %s, %s, %s" % (v(TMP + 5), v(TMP + 5), v(TMP + 6)))
    A("v_lshlrev_b32 %s, 4, %s" % (v(TMP + 5), v(TMP + 5)))
    A("v_and_b32 %s, 1, %s" % (v(TMP + 6), v(TMP + 2)))
    A("v_lshl_add_u32 %s, %s, 3, %s" % (v(TMP + 5), v(TMP + 6), v(TMP + 5)))
    A("v_lshl_add_u32 %s, %s, 3, %s" % (v(TMP + 6), v(TMP), v(TMP + 1)))
    A("v_lshl_add_u32 %s, %s, 8, %s" % (v(VT0), v(TMP + 6), v(TMP + 5)))
    A("v_xor_b32 %s, 32, %s" % (v(VT1), v(VT0)))
    A("s_lshl_b32 s47, s%d, 12" % S_WAVE)
    slots = [0, 16384] + [L_WO + w * 32768 + 16384 for w in range(4)]
    NS = len(slots)
    pieces = [(X, ch) for X in range(3) for ch in range(8)]
    def issue(p):
        X, ch = pieces[p]
        sadd64(A, 42, (S_WQ, S_WK, S_WV)[X], ch * 64 * 8192)
        A("s_add_u32 s44, s47, %d" % slots[p % NS])
        for i in range(4):
            A("s_mov_b32 m0, s44")
            A("s_add_u32 s44, s44, 1024")
            A("global_load_lds_dwordx4 %s, s[42:43]" % v(VW0 if i < 2 else VW1))
            if i < 3: sadd64(A, 42, 42, 4 * 8192)
    issued = 0
    if chain:
        A("s_lshl_b32 s46, s%d, 15" % S_WAVE)
        A("s_add_u32 s46, s46, %d" % L_WO)
        A("v_lshrrev_b32 %s, 2, %s" % (v(VOFFO), v(VX)))
        A("v_lshlrev_b32 %s, 10, %s" % (v(VOFFO), v(VOFFO)))
        A("v_lshl_add_u32 %s, %s, 4, %s" % (v(VOFFO), v(TMP + 2), v(VOFFO)))
        A("s_lshl_b32 s40, s%d, 17" % S_HEAD)
        A("s_lshl_b32 s41, s%d, 8" % S_WAVE)
        A("s_add_u32 s40, s40, s41")
        A("v_add_u32 %s, s40, %s" % (v(VOFFO), v(VOFFO)))
        for b in range(4):
            sadd64(A, 42, S_WO, b * 64)
            A("s_add_u32 s44, s46, %d" % (((b + 2) & 3) * 8192))
            for i in range(8):
                A("s_mov_b32 m0, s44")
                A("s_add_u32 s44, s44, 1024")
                A("global_load_lds_dwordx4 %s, s[42:43]" % v(VOFFO))
                if i < 7: sadd64(A, 42, 42, 16 * 1024)
        issue(0); issue(1); issued = 2
        A("v_lshrrev_b32 %s, 1, %s" % (v(TMP + 3), v(TMP + 1)))
        A("v_lshlrev_b32 %s, 5, %s" % (v(TMP + 3), v(TMP + 3)))
        A("v_and_b32 %s, 1, %s" % (v(TMP + 5), v(TMP)))
        A("v_lshl_add_u32 %s, %s, 4, %s" % (v(TMP + 3), v(TMP + 5), v(TMP + 3)))
        A("v_lshrrev_b32 %s, 1, %s" % (v(TMP + 5), v(TMP)))
        A("v_lshl_add_u32 %s, %s, 2, %s" % (v(TMP + 3), v(TMP + 5), v(TMP + 3)))
        A("v_and_b32 %s, 1, %s" % (v(TMP + 5), v(TMP + 1)))
        A("v_add_u32 %s, %s, %s" % (v(TMP + 3), v(TMP + 3), v(TMP + 5)))
        A("v_lshlrev_b32 %s, 6, %s" % (v(VTRO), v(TMP + 3)))
        A("v_lshl_add_u32 %s, %s, 3, %s" % (v(VTRO), v(TMP + 2), v(VTRO)))
        A("v_add_u32 %s, s46, %s" % (v(VTRO), v(VTRO)))
        A("v_and_b32 %s, 3, %s" % (v(TMP + 5), v(TMP + 4)))
        A("v_lshlrev_b32 %s, 11, %s" % (v(VWB), v(TMP + 5)))
        A("v_lshrrev_b32 %s, 2, %s" % (v(TMP + 5), v(TMP + 4)))
        A("v_lshl_add_u32 %s, %s, 3, %s" % (v(TMP + 5), v(TMP), v(TMP + 5)))
        A("v_lshl_add_u32 %s, %s, 4, %s" % (v(VWB), v(TMP + 5), v(VWB)))
        A("v_add_u32 %s, s46, %s" % (v(VWB), v(VWB)))
        for b in range(4):
            slot = (b + 2) & 3
            A("s_waitcnt vmcnt(%d)" % (8 * (3 - b) + (8 if b < 2 else 24)))
            for ch in range(2):
                for hB in range(2):
                    for Tn in range(2):
                        for hh in range(2):
                            dst = TMP + ((ch * 2 + hB) * 2 + Tn) * 4 + hh * 2
                            A("ds_read_b64_tr_b16 %s, %s offset:%d" % (v(dst, 2), v(VTRO), slot * 8192 + (64 * ch + 8 * hB + 2 * hh) * 64 + Tn * 32))
            A("s_waitcnt lgkmcnt(0)")
            for ch in range(2):
                for hB in range(2):
                    for Tn in range(2):
                        A("ds_write_b128 %s, %s offset:%d" % (v(VWB), v(TMP + ((ch * 2 + hB) * 2 + Tn) * 4, 4), slot * 8192 + ch * 1024 + hB * 512 + Tn * 64))
            A("s_waitcnt lgkmcnt(0)")
            if b == 1:
                for ch in range(2):
                    for jj in range(4):
                        for hB in range(2):
                            A("ds_read_b128 %s, %s offset:%d" % (R(wo_base(jj, ch) + hB * 4, 4), v(vwo), 16384 + jj * 2048 + ch * 1024 + hB * 512))
                A("s_waitcnt lgkmcnt(0)")
                A("s_barrier")
                for p in range(2, 6): issue(p)
                issued = 6
    else:
        for p in range(NS): issue(p)
        issued = NS
    def reads(p, w):
        X, ch = pieces[p]
        for T in range(2):
            if chain:
                cs = 2 * ((ch >> 1) ^ w) + (ch & 1)
                base = TMP + 32 * X + (T * 2 + cs) * 8 if (X < 2 and cs < 2) else wq_base(2 * X + T, cs)
            else:
                base = wq_base(2 * X + T, ch)
            for hB in range(2):
                for hh in range(2):
                    A("ds_read_b64_tr_b16 %s, %s offset:%d" % (R(base + hB * 4 + hh * 2, 2), v((VX, VOFFO)[T]), (32 * hB + 4 * hh) * 256))
    for p in range(24):
        A("s_waitcnt vmcnt(%d) lgkmcnt(0)" % (4 * (issued - 1 - p)))
        A("s_barrier")
        if p >= 1 and issued < 24:
            issue(issued); issued += 1
        A("v_add_u32 %s, %d, %s" % (v(VX), slots[p % NS], v(VT0)))
        A("v_add_u32 %s, %d, %s" % (v(VOFFO), slots[p % NS], v(VT1)))
        if chain:
            done = A.newlabel("Lwd")
            lab = [A.newlabel("Lwv") for _ in range(3)]
            for w in range(4):
                if w < 3:
                    A("s_cmp_lg_u32 s%d, %d" % (S_WAVE, w))
                    A("s_cbranch_scc1 %s" % lab[w])
                reads(p, w)
                if w < 3:
                    A("s_branch %s" % done)
                    A.label(lab[w])
            A.label(done)
        else:
            reads(p, 0)
    A("s_waitcnt lgkmcnt(0)")
    A("s_barrier")
    if chain:
        for f in range(8):
            for hB in range(2):
                A("ds_write_b128 %s, %s offset:%d" % (v(vwo), v(TMP + f * 8 + hB * 4, 4), 16384 + f * 1024 + hB * 512))
        A("s_waitcnt lgkmcnt(0)")


class Cold:
    def __init__(self): self.blocks = []
    def add(self, fn): self.blocks.append(fn)
    def emit(self, A):
        for fn in self.blocks: fn(A)
        self.blocks = []

def store_mixed(A, cold, text):
    l1 = A.newlabel("Lmx"); l2 = A.newlabel("Lmy")
    A("s_cbranch_scc1 %s" % l1) if False else None
    A("s_cmp_lg_u32 s%d, 0" % S_MIXED)
    A("s_cbranch_scc1 %s" % l1)
    for t in text: A(t)
    A.label(l2)
    def blk(A):
        A.label(l1)
        for t in text: A(t + " sc1")
        A("s_branch %s" % l2)
    cold.add(blk)


S_SPIN = 101
def spin_guard(A):
    A("s_add_u32 s%d, s%d, 1" % (S_SPIN, S_SPIN))
    A("s_cmp_gt_u32 s%d, 0x40000" % S_SPIN)
    A("s_cbranch_scc1 L_end")


def rt_stamp(A, opt, idx, va, vb):
    if not opt.get("rt"): return
    A("s_memtime s[98:99]" if opt.get("rt") == 2 else "s_memrealtime s[98:99]")
    A("s_lshl_b32 s100, s%d, 5" % S_GRP)
    A("s_add_u32 s100, s100, s%d" % S_HEAD)
    A("s_lshl_b32 s100, s100, 2")
    A("s_add_u32 s100, s100, s%d" % S_WAVE)
    A("s_lshl_b32 s100, s100, 9")
    A("s_add_u32 s100, s100, %s" % idx)
    A("s_lshl_b32 s100, s100, 2")
    A("s_add_u32 s100, s100, 0x%x" % OFF_STAMP)
    A("v_mov_b32 v%d, s100" % va)
    A("s_waitcnt lgkmcnt(0)")
    A("v_mov_b32 v%d, s98" % vb)
    A("global_store_dword v%d, v%d, s[%d:%d]" % (va, vb, S_WS, S_WS + 1))


def dbg_time(A, opt, word, va, vb, cyc=False):
    if not opt.get("dbgt"): return
    l = A.newlabel("Ldt")
    A("s_cmp_lg_u32 s%d, 0" % S_HEAD)
    A("s_cbranch_scc1 %s" % l)
    A("s_cmp_lg_u32 s%d, 1" % S_WAVE)
    A("s_cbranch_scc1 %s" % l)
    A("s_memtime s[98:99]" if cyc else "s_memrealtime s[98:99]")
    A("s_lshl_b32 s100, %s, 2" % word)
    A("v_mov_b32 v%d, s100" % va)
    A("s_waitcnt lgkmcnt(0)")
    A("s_sub_u32 s98, s98, s%d" % (7 if cyc else 6))
    A("v_mov_b32 v%d, s98" % vb)
    A("global_store_dword v%d, v%d, s[%d:%d]" % (va, vb, S_DBG, S_DBG + 1))
    A.label(l)
```

```python
from common import *
import math, struct

L_KX = 0
L_VX = 8192
L_MEM = 16384
L_Z = 24576
L_O = 28672
L_VM = 30720

def f32bits(x): return struct.unpack("<I", struct.pack("<f", x))[0]

def wq_base(t, c):
    if t < 4:
        assert c >= 2
        return 256 + 8 * (t * 6 + c - 2)
    return 128 + 64 * (t - 4) + 8 * c
def wo_base(j, ch):
    return 256 + 192 + 8 * (ch * 4 + j)

def gen_chain(A, opt):
    cold = Cold()
    nokv = opt.get("nokv", False)
    LAST = opt.get("last", 63)
    opt["w0pos"] = {0: [], 1: [0, 4, 7], 2: [2, 5, 7], 3: [3, 7], 4: [1, 6]}[opt.get("w0p", 0)]
    EE = 0
    VL16, VSENT, VMLD, VZR, VZW, VOW, VWO, VPST, VMST, VIDX = 1, 11, 3, 4, 5, 6, 7, 8, 9, 10
    SELV, EXP, VMA, PM, PMB = 12, 16, 18, 20, 22
    CP = 14
    PT, VL4, VFA = 27, 2, 0
    VA = 24
    AF = 40
    FR = [48, 56, 64, 96, 104, 112, 120, 32]
    Q0, K0, Q1, K1, V0, V1 = 72, 76, 80, 84, 88, 92
    ZF, KX1, KX2 = 96, 112, 24
    S1, S2, S0 = 40, 44, 48
    M0_, M1_, T0_, T1_ = 52, 53, 54, 55
    VXC = 72
    PX, O0, O1, LA, ONES = 88, 92, 104, 108, 100
    OP, OA = 52, 104
    WACC = [40, 44, 48, 52, 72, 76, 88, 92]
    SLOTS = [80, 56, 64, 112, 120, 24, 32, 96]
    RB, RD, RT, SEL = 96, 80, 84, 60
    G0, G1 = 40, 44
    sSM = 88
    sL, sSEG, sIT = 48, 49, 50
    sMASK, sP0, sP1, sMG, sMR, sPR, sKV, sKM, sFM, sFKV, sR0, sR1 = 52, 54, 56, 58, 60, 62, 64, 68, 70, 72, 74, 78
    sC, sM0, sM1, sFW = 96, 77, 51, 76
    sST = 80
    NTR = 4

    tr_pos = opt.get("trace", 0)
    tr_used = []
    def tr(k):
        if not (tr_pos >> k) & 1: return
        if len(tr_used) >= NTR: raise ValueError("too many trace points")
        A("%s s[%d:%d]" % ("s_memrealtime" if opt.get("rtclk") else "s_memtime", sST + 2 * len(tr_used), sST + 1 + 2 * len(tr_used)))
        tr_used.append(k)

    A.label("L_chain")
    T = 40
    A("v_and_b32 v%d, 63, v0" % T)
    A("v_and_b32 v%d, 15, v0" % (T + 1))
    A("v_bfe_u32 v%d, v0, 4, 2" % (T + 2))
    A("v_lshlrev_b32 v%d, 4, v%d" % (VL16, T))
    A("v_mov_b32 v%d, -1" % VSENT)
    A("v_lshlrev_b32 v%d, 2, v%d" % (VL4, T))
    A("v_lshlrev_b32 v%d, 3, v%d" % (VZR, T))
    A("s_lshl_b32 s40, s%d, 10" % S_WAVE)
    A("v_lshlrev_b32 v%d, 5, v%d" % (VZW, T + 1))
    A("v_lshl_add_u32 v%d, v%d, 3, v%d" % (VZW, T + 2, VZW))
    A("v_add_u32 v%d, s40, v%d" % (VZW, VZW))
    A("s_lshr_b32 s41, s%d, 1" % S_WAVE)
    A("s_lshl_b32 s41, s41, 10")
    A("s_and_b32 s42, s%d, 1" % S_WAVE)
    A("s_lshl_b32 s42, s42, 5")
    A("s_add_u32 s41, s41, s42")
    A("s_add_u32 s41, s41, %d" % (L_O - 32))
    A("v_add_u32 v%d, s41, v%d" % (VOW, VL16))
    A("v_add_u32 v%d, 0x%x, v%d" % (T + 5, L_MEM, VL16))
    A("v_and_b32 v%d, 2, v%d" % (T + 3, T))
    A("v_cmp_ne_u32 vcc, 0, v%d" % (T + 3))
    A("v_mov_b32 v%d, 0xeeee" % (T + 6))
    A("v_mov_b32 v%d, 0x4444" % (T + 7))
    A("v_cndmask_b32 v%d, v%d, v%d, vcc" % (VOW, T + 5, VOW))
    A("v_cndmask_b32 v%d, v%d, v%d, vcc" % (VIDX, T + 7, T + 6))
    A("v_lshrrev_b32 v%d, 3, v%d" % (T + 5, T + 1))
    A("v_lshlrev_b32 v%d, 13, v%d" % (VWO, T + 5))
    A("v_and_b32 v%d, 7, v%d" % (T + 5, T + 1))
    A("v_lshl_add_u32 v%d, v%d, 3, v%d" % (T + 5, T + 2, T + 5))
    A("v_lshl_add_u32 v%d, v%d, 4, v%d" % (VWO, T + 5, VWO))
    A("s_lshl_b32 s41, s%d, 15" % S_WAVE)
    A("s_add_u32 s41, s41, %d" % L_WO)
    A("v_add_u32 v%d, s41, v%d" % (VWO, VWO))
    A("s_lshl_b32 s41, s%d, 11" % S_WAVE)
    A("v_add_u32 v%d, s41, v%d" % (VMLD, VL16))
    A("s_mov_b32 s%d, s41" % sM0)
    A("s_add_u32 s%d, s41, %d" % (sM1, L_VX))
    A("v_lshrrev_b32 v%d, 2, v%d" % (T + 5, T + 1))
    A("v_lshlrev_b32 v%d, 13, v%d" % (VPST, T + 5))
    A("v_and_b32 v%d, 3, v%d" % (T + 5, T + 1))
    A("v_lshl_add_u32 v%d, v%d, 2, v%d" % (T + 6, T + 2, T + 5))
    A("v_lshl_add_u32 v%d, v%d, 4, v%d" % (VPST, T + 6, VPST))
    A("s_lshl_b32 s41, s%d, 16" % S_WAVE)
    A("s_lshl_b32 s42, s%d, 8" % S_HEAD)
    A("s_add_u32 s41, s41, s42")
    A("v_add_u32 v%d, s41, v%d" % (VPST, VPST))
    A("v_and_b32 v%d, 12, v%d" % (T + 6, T + 1))
    A("v_add_u32 v%d, v%d, v%d" % (T + 6, T + 6, T + 2))
    A("v_lshlrev_b32 v%d, 4, v%d" % (VMST, T + 6))
    A("v_lshl_add_u32 v%d, v%d, 2, v%d" % (VMST, T + 5, VMST))
    A("v_add_u32 v%d, s42, v%d" % (VMST, VMST))
    A("v_and_b32 v%d, 1, v%d" % (T + 5, T))
    A("v_lshlrev_b32 v%d, 4, v%d" % (T + 5, T + 5))
    A("v_mov_b32 v%d, 0x3f80" % (T + 7))
    A("v_lshlrev_b32 v%d, v%d, v%d" % (T + 7, T + 5, T + 7))
    A("v_cndmask_b32_e64 v%d, v%d, 0, vcc" % (SELV, T + 7))
    A("v_lshrrev_b32 v%d, 2, v%d" % (T + 6, T + 1))
    for rr in range(4): A("v_cmp_eq_u32 s[%d:%d], %d, v%d" % (sSM + 2 * rr, sSM + 2 * rr + 1, rr ^ 2, T + 6))
    for r in (EXP, VMA, PM, PMB): A("v_mov_b64 v[%d:%d], 0" % (r, r + 1))
    A("s_mov_b32 s%d, 0x%x" % (sC, f32bits(128 ** -0.5 * math.log2(math.e))))
    A("s_mov_b32 s%d, s%d" % (sC + 1, sC))
    A("s_cmp_eq_u32 s%d, 3" % S_WAVE)
    A("s_cselect_b32 s%d, %d, 64" % (sFW, 2 - EE))
    A("s_mov_b32 s%d, 0" % sIT)
    if opt.get("cnt"):
        for r in (85, 86, 87): A("s_mov_b32 s%d, 0" % r)
    A("s_mov_b32 s%d, 0" % sL)
    rt_stamp(A, opt, 500, 40, 41)
    A("v_mov_b64 v[44:45], -1"); A("v_mov_b64 v[46:47], -1")
    A("s_lshl_b32 s40, s%d, 13" % S_HEAD)
    for k in range(2):
        A("s_add_u32 s41, s40, 0x%x" % (OFF_CPART + k * 0x40000)); sadd64(A, 42, S_WS, "s41")
        for i in range(2): A("global_store_dwordx4 v%d, v[44:47], s[42:43] offset:%d sc1" % (VMLD, i * 1024))
    A("s_lshl_b32 s41, s%d, 13" % S_WAVE)
    A("s_add_u32 s41, s41, 0x%x" % OFF_CMEM); sadd64(A, 42, S_WS, "s41")
    A("global_store_dword v%d, v44, s[42:43] sc1" % VMST)
    for k in range(2 * (64 - KM_POLL)):
        A("s_add_u32 s41, s40, 0x%x" % (OFF_KM + (64 * (k & 1) + KM_POLL + (k >> 1)) * 32 * 8192)); sadd64(A, 42, S_WS, "s41")
        A("global_store_dwordx4 v%d, v[44:47], s[42:43] sc1" % VMLD)
    for k in range(4):
        A("s_add_u32 s41, s40, 0x%x" % ((OFF_KX, OFF_VX)[k & 1] + 64 * (k >> 1) * 32 * 8192)); sadd64(A, 42, S_WS, "s41")
        for i in range(2): A("global_store_dwordx4 v%d, v[44:47], s[42:43] offset:%d sc1" % (VMLD, i * 1024))
    A.nop(2)
    def mid(A):
        l = A.newlabel("Lmid")
        A("s_cmp_lg_u32 s%d, 0" % S_WAVE)
        A("s_cbranch_scc1 %s" % l)
        A("v_mov_b32 v112, 32")
        A("v_mov_b32 v113, 1")
        A("s_mov_b64 exec, 1")
        A("global_atomic_add v112, v113, s[%d:%d]" % (S_DBG, S_DBG + 1))
        A("s_mov_b64 exec, -1")
        A.label(l)
    load_head_weights(A, 40, wq_base, True, vwo=VWO, wo_base=wo_base, mid=mid)
    rt_stamp(A, opt, 501, 40, 41)
    dbg_time(A, opt, "8", 40, 41)
    opt["init_wait"](A, kind="chainm")
    opt["init_wait"](A)
    rt_stamp(A, opt, 502, 40, 41)

    def pkadd(d): A("v_pk_add_f32 v[%d:%d], v[%d:%d], v[%d:%d]" % (d, d + 1, d, d + 1, d + 2, d + 3))
    def add1(d, e): A("v_add_f32 v%d, v%d, v%d" % (d + e, d + e, d + 2 + e))
    def cvt(d, x, y): A("v_cvt_pk_bf16_f32 v%d, v%d, v%d" % (d, x, y))
    def rd128(d, addr, off): A("ds_read_b128 v[%d:%d], v%d offset:%d" % (d, d + 3, addr, off))
    def z64(r): A("v_mov_b64 v[%d:%d], 0" % (r, r + 1))

    def setup_part_bases():
        sadd64(A, sKV, sKV, 32 * 8192)
        sadd64(A, sKV + 2, sKV + 2, 32 * 8192)
        sadd64(A, sKM, sKM, 32 * 8192)
        sadd64(A, sFM, sFM, 4)
        A("s_and_b32 s40, s%d, 1" % sIT)
        A("s_lshl_b32 s40, s40, 18")
        A("s_add_u32 s41, s40, 0x%x" % OFF_CPART); sadd64(A, sP0, S_WS, "s41")
        sadd64(A, sP1, sP0, 32768)
        A("s_lshl_b32 s42, s%d, 13" % S_HEAD)
        sadd64(A, sR0, sP0, "s42")
        sadd64(A, sR1, sR0, 4096)
        A("s_xor_b32 s41, s41, 0x40000")
        A("s_add_u32 s41, s41, s42"); sadd64(A, sPR, S_WS, "s41")
    def prefetch_own(hook=None):
        for p in range(1, 4): A("v_xor_b32 v%d, %d, v%d" % (VA + p - 1, p * 2048, VMLD))
        for n, (X, Tt, cc) in enumerate([(0, 0, 0), (1, 0, 0), (0, 1, 0), (1, 1, 0), (0, 0, 1), (1, 0, 1), (0, 1, 1), (1, 1, 1)]):
            f = (X * 2 + Tt) * 2 + cc
            if hook: hook(n)
            for hB in range(2): rd128(FR[n] + 4 * hB, VWO, 16384 + f * 1024 + hB * 512)
    def kv_check(tmp, sreg):
        if nokv: return
        lp = A.newlabel("Lkvp"); ok = A.newlabel("Lkvo")
        A.label(ok)
        A("s_bitcmp0_b64 s[%d:%d], %s" % (sMASK, sMASK + 1, sreg))
        A("s_cbranch_scc1 %s" % lp)
        def blk(A):
            A.label(lp)
            A("global_load_dword v%d, v%d, s[%d:%d] sc1" % (tmp, VL4, sFKV, sFKV + 1))
            A("s_waitcnt vmcnt(0)")
            A("v_cmp_ne_u32 s[%d:%d], 0, v%d" % (sMASK, sMASK + 1, tmp))
            A("s_sleep 1")
            spin_guard(A)
            A("s_branch %s" % ok)
        cold.add(blk)
    def kv_ops():
        return [["s_mov_b32 m0, s%d" % sM0, "s_nop 0",
                 "global_load_lds_dwordx4 v%d, s[%d:%d] sc1" % (VMLD, sKV, sKV + 1)],
                ["global_load_lds_dwordx4 v%d, s[%d:%d] offset:1024 sc1" % (VMLD, sKV, sKV + 1), "s_mov_b32 m0, s%d" % sM1],
                ["global_load_lds_dwordx4 v%d, s[%d:%d] sc1" % (VMLD, sKV + 2, sKV + 3)],
                ["global_load_lds_dwordx4 v%d, s[%d:%d] offset:1024 sc1" % (VMLD, sKV + 2, sKV + 3)]]
    def exp_st():
        return "global_store_dwordx4 v%d, v[%d:%d], s[%d:%d] sc1" % (VMLD, EXP, EXP + 3, sKM, sKM + 1)
    def flag(tmp, off):
        A("v_mov_b32 v%d, 0" % tmp)
        A("global_store_dword v%d, v%d, s[%d:%d] offset:%d sc1" % (tmp, VSENT, sFM, sFM + 1, off))

    A.label("L_ch_layer")
    A("s_mov_b32 s%d, 0" % sSEG)
    A("s_mov_b64 s[%d:%d], 0" % (sMASK, sMASK + 1))
    A("s_lshl_b32 s40, s%d, 5" % sL)
    A("s_add_u32 s40, s40, s%d" % S_HEAD)
    A("s_lshl_b32 s40, s40, 8")
    A("s_add_u32 s41, s40, 0x%x" % F_KV)
    sadd64(A, sFKV, S_WS, "s41")
    A("s_add_u32 s41, s40, 0x%x" % (F_M - 12 + 4 * EE))
    sadd64(A, sFM, S_WS, "s41")
    A("s_lshl_b32 s40, s%d, 11" % sL)
    A("s_add_u32 s40, s40, s%d" % S_HEAD)
    A("s_lshl_b32 s40, s40, 13")
    A("s_add_u32 s41, s40, 0x%x" % OFF_KX); sadd64(A, sKV, S_WS, "s41")
    A("s_add_u32 s41, s40, 0x%x" % OFF_VX); sadd64(A, sKV + 2, S_WS, "s41")
    A("s_add_u32 s41, s40, 0x%x" % (OFF_KM - (2 - EE) * 32 * 8192)); sadd64(A, sKM, S_WS, "s41")
    A("v_bfe_u32 v27, v2, 4, 2")
    A("v_bfe_u32 v28, v2, 2, 1")
    A("v_lshl_add_u32 v27, v27, 1, v28")
    A("v_lshlrev_b32 v27, 10, v27")
    A("v_bfe_u32 v28, v2, 3, 1")
    A("v_lshl_add_u32 v27, v28, 2, v27")
    A("v_bfe_u32 v28, v2, 6, 2")
    A("v_lshl_add_u32 v27, v28, 5, v27")
    A("v_mov_b32 v%d, 0" % VFA)
    A("s_lshl_b32 s40, s%d, 8" % S_WAVE)
    A("v_add_u32 v27, s40, v27")
    for i in range(2):
        for p in range(4):
            A("global_load_dword v%d, v27, s[%d:%d] offset:%d" % (G0 + 4 * i + p, S_MEM0, S_MEM0 + 1, i * 128 + p * 8))
    if nokv:
        for g_ in kv_ops():
            for t in g_: A(t)
            A("s_nop 0")
    else:
        poll_tile(A, [(VMLD, sKV, 0), (VMLD, sKV, 1024), (VMLD, sKV + 2, 0), (VMLD, sKV + 2, 1024)], 96, 28,
                  [(VMLD, L_KX), (VMLD, L_KX + 1024), (VMLD, L_VX), (VMLD, L_VX + 1024)])
    if opt.get("rt") or opt.get("cyc"):
        A("s_add_u32 s47, s%d, 400" % sL)
        rt_stamp(A, dict(rt=opt.get("rt") or 2), "s47", 27, 28)
    if opt.get("dbgt"):
        A("s_lshl_b32 s47, s%d, 1" % sL); A("s_add_u32 s47, s47, 9")
        dbg_time(A, opt, "s47", 27, 28)
        A("s_add_u32 s47, s47, 4")
        dbg_time(A, opt, "s47", 27, 28, cyc=True)
    for r in range(0, 24, 2): z64(Q0 + r)
    setup_part_bases()
    prefetch_own()
    A("s_waitcnt vmcnt(0)")
    if not opt.get("og"):
        A("ds_write_b128 v%d, v[%d:%d] offset:%d" % (VMLD, G0, G0 + 3, L_MEM))
        A("ds_write_b128 v%d, v[%d:%d] offset:%d" % (VMLD, G1, G1 + 3, L_MEM + 1024))
    A("s_waitcnt lgkmcnt(%d)" % (0 if opt.get("og") else 2))
    A("s_branch L_ch_step")

    A.raw(".p2align 6")
    PA = opt.get("pa", 1)
    def ldA():
        A("global_load_dwordx4 v[%d:%d], v%d, s[%d:%d] sc1" % (G0, G0 + 3, VMLD, sMG, sMG + 1))
        A("global_load_dwordx4 v[%d:%d], v%d, s[%d:%d] offset:1024 sc1" % (G1, G1 + 3, VMLD, sMG, sMG + 1))
    A.label("L_ch_retryA")
    ldA()
    if opt.get("cnt"): A("s_add_u32 s87, s87, 1")
    spin_guard(A)
    A.label("L_ch_pollA")
    A("s_waitcnt vmcnt(%d) lgkmcnt(0)" % (2 * (PA - 1)))
    A("v_max_u32 v%d, v%d, v%d" % (PT, G0, G1))
    A("v_cmp_eq_u32 vcc, -1, v%d" % PT)
    if not opt.get("og"):
        A("ds_write_b128 v%d, v[%d:%d] offset:%d" % (VMLD, G0, G0 + 3, L_MEM))
        A("ds_write_b128 v%d, v[%d:%d] offset:%d" % (VMLD, G1, G1 + 3, L_MEM + 1024))
    A("s_cbranch_vccnz L_ch_retryA")
    if tr_pos:
        tr(26)
        lt = A.newlabel("Ltr")
        A("s_cmp_eq_u32 s%d, %d" % (sIT, opt.get("trit", 100)))
        A("s_cbranch_scc1 %s" % lt)
        A.label(lt + "b")
        def blk(A):
            A.label(lt)
            A("s_waitcnt lgkmcnt(0)")
            A("s_lshl_b32 s40, s%d, 2" % S_HEAD)
            A("s_add_u32 s40, s40, s%d" % S_WAVE)
            A("s_lshl_b32 s40, s40, 7")
            A("s_add_u32 s40, s40, 0x%x" % (OFF_STAMP + 0x400000))
            sadd64(A, 42, S_WS, "s40")
            A("v_mov_b32 v27, 0")
            for n, k in enumerate(tr_used):
                A("v_mov_b32 v28, s%d" % (sST + 2 * n))
                A("global_store_dword v27, v28, s[42:43] offset:%d" % (4 * k))
            A("s_branch %s" % (lt + "b"))
        cold.add(blk)
    A.label("L_ch_step")
    tr(0)
    def smfr(acc, c, breg):
        A("v_smfmac_f32_16x16x64_bf16 v[%d:%d], v[%d:%d], %s, v%d" % (acc, acc + 3, AF + 4 * c, AF + 4 * c + 3, R(breg, 8), VIDX))
    def smf(acc, c, tile): smfr(acc, c, wq_base(tile, c))
    accs = [Q0, K0, Q1, K1]
    def mf(d, x, y, c, k32=True):
        n = 4 if k32 else 2
        A("v_mfma_f32_16x16x%d_bf16 v[%d:%d], v[%d:%d], v[%d:%d], %s" % (32 if k32 else 16, d, d + 3, x, x + n - 1, y, y + n - 1, c))
    acc = lambda r: "v[%d:%d]" % (r, r + 3)
    def trd(k):
        dc, Tt = k >> 1, k & 1
        A("ds_read_b64_tr_b16 v[%d:%d], v%d offset:%d" % (ZF + 2 * k, ZF + 2 * k + 1, VZR, L_Z + dc * 1024 + Tt * 512))
    for n in range(4 + opt.get("og2", 0)):
        smfr(accs[n & 3], n >> 2, FR[n])
        if opt.get("og") and n < 2: A("ds_write_b128 v%d, v[%d:%d] offset:%d" % (VMLD, G0 + 4 * n, G0 + 4 * n + 3, L_MEM + 1024 * n))
    A("s_waitcnt lgkmcnt(0)")
    A("s_barrier")
    tr(1)
    own = [lambda n=n: smfr(accs[n], 1, FR[4 + n]) for n in range(opt.get("og2", 0), 4)] + \
          [lambda a_=a_, c=c, t=t: smf(a_, c, t) for c in range(2) for a_, t in ((V0, 4), (V1, 5))]
    rd128(AF + 8, VA, L_MEM)
    for c in range(3, 8):
        rd128(AF + 4 * c, VA + c // 2 - 1, L_MEM + (c & 1) * 1024)
        if len(own) > 1 and (c - 2 <= len(own) + 4 or True) and not (opt.get("og2", 0) and c in (4, 6)): own.pop(0)()
    while len(own) > 1: own.pop(0)()
    if PA > 1: A("s_waitcnt vmcnt(0)")
    if not opt.get("norearm"):
        store_mixed(A, cold, ["global_store_dword v%d, v%d, s[%d:%d]" % (VMLD, VSENT, sPR, sPR + 1),
                              "global_store_dword v%d, v%d, s[%d:%d] offset:1024" % (VMLD, VSENT, sPR, sPR + 1)])
    A("s_cmp_lt_u32 s%d, s%d" % (sSEG, sFW))
    A("s_cbranch_scc0 L_ch_flag")
    A.label("L_ch_noflag")
    own.pop(0)()
    A("s_cmp_eq_u32 s%d, 0" % sSEG)
    A("s_cselect_b32 s40, 4, s%d" % S_WAVE)
    EM = opt.get("em", 0)
    def exp_turn(k):
        if opt.get("noexp"): return
        l = A.newlabel("Lex")
        if EM == 0 and k == 0 and not EE:
            A("s_cbranch_scc1 %s" % l); A(exp_st()); A.label(l)
        if EM == 1 and k in (0, 2):
            A("s_cbranch_scc1 %s" % l)
            A("global_store_dwordx2 v%d, v[%d:%d], s[%d:%d] offset:%d sc1" % (VMLD, EXP + k, EXP + k + 1, sKM, sKM + 1, 4 * k))
            A.label(l)
        if EM == 2:
            A("s_cmp_lg_u32 s40, %d" % k); A("s_cbranch_scc1 %s" % l); A(exp_st()); A.label(l)
        if EM == 3 and k in (0, 2):
            A("s_cmp_lg_u32 s41, %d" % (k >> 1)); A("s_cbranch_scc1 %s" % l); A(exp_st()); A.label(l)
    if EM == 3: A("s_lshr_b32 s41, s40, 1")
    tr(2)
    kx = [(KX1 + 4 * d, VL16, L_KX + d * 1024) for d in range(4)] + [(KX2 + 4 * d, VL16, L_KX + 4096 + d * 1024) for d in range(4)]
    extra = 0
    for c in range(2, 8):
        A("s_waitcnt lgkmcnt(%d)" % (7 - c + extra))
        smf(Q0, c, 0)
        if c >= 4: rd128(*kx.pop(0)); extra += 1
        else: exp_turn(2 * (c - 2))
        smf(K0, c, 2)
        if c >= 4: rd128(*kx.pop(0)); extra += 1
        else: exp_turn(2 * (c - 2) + 1)
    assert not kx
    tr(3)
    OB = opt.get("ob", 0)
    seq = [(a_, c, t) for c in range(2, 8) for a_, t in ((Q1, 1), (K1, 3))]
    if OB: seq = [(Q1, c, 1) for c in range(2, 8)] + [(K1, c, 3) for c in range(2, 8)]
    for i, x in enumerate(seq):
        smf(*x)
        if i == 0: A("s_add_u32 s41, s%d, 1" % sSEG); A.nop(2)
        if i == 1:
            if not nokv:
                A("v_cmp_ne_u32 vcc, 0, v%d" % VFA)
                A("s_or_b64 s[%d:%d], s[%d:%d], vcc" % (sMASK, sMASK + 1, sMASK, sMASK + 1))
            else: A.nop(2)
        if i == 2: add1(Q0, 0)
        if i == 3: add1(Q0, 1)
        if i == 4: add1(K0, 0)
        if i == 5: add1(K0, 1)
        if i == 6: cvt(K0 + 3, Q0, Q0 + 1)
        if i == 7: cvt(K0 + 2, K0, K0 + 1)
        if i == 8:
            A("ds_write_b64 v%d, v[%d:%d] offset:%d" % (VZW, K0 + 2, K0 + 3, L_Z)); A("v_min_u32 v%d, -2, v%d" % (EXP, K0 + 2))
        if i == 9: rd128(VXC, VMLD, L_VX)
        if i == 10: rd128(VXC + 4, VMLD, L_VX + 1024)
        if OB and i == 9: add1(Q1, 0)
        if OB and i == 10: add1(Q1, 1)
        if OB and i == 11: cvt(Q1 + 3, Q1, Q1 + 1)
    tr(4)
    vq = [x for c in range(2, 8) for x in ((V0, c, 4), (V1, c, 5))]
    def vs(n=1):
        for _ in range(n):
            if vq: smf(*vq.pop(0))
    vs(); A.nop(3); vs(); A.nop(2 + OB)
    if OB:
        add1(K1, 0); add1(K1, 1); cvt(Q1 + 2, K1, K1 + 1)
    else:
        add1(Q1, 0); add1(Q1, 1); add1(K1, 0); add1(K1, 1)
        cvt(Q1 + 3, Q1, Q1 + 1); cvt(Q1 + 2, K1, K1 + 1)
    A("ds_write_b64 v%d, v[%d:%d] offset:%d" % (VZW, Q1 + 2, Q1 + 3, L_Z + 512))
    tr(5)
    vs()
    A("v_mov_b32 v%d, v%d" % (EXP + 1, Q1 + 2))
    vs(opt.get("vpre", 4) - 1)
    A("s_waitcnt lgkmcnt(0)")
    A("s_barrier")
    tr(6)
    tq = list(range(8))
    trd(tq.pop(0)); trd(tq.pop(0))
    while vq:
        vs()
        for _ in range(2 if len(tq) > len(vq) + 1 else 1):
            if tq: trd(tq.pop(0))
    while tq: trd(tq.pop(0))
    A("s_cmp_eq_u32 s%d, %d" % (sSEG, LAST))
    A("s_cbranch_scc1 L_ch_last")
    vq_last = []
    kv_check(52, "s41")
    kvo = kv_ops()
    if opt.get("nodma"): kvo = [["s_nop 0"]] * 4
    wrd = []
    for i in range(8):
        off = (i >> 1) * 2048 + (i & 1) * 1024
        wrd += [(SLOTS[i], VWO, off), (SLOTS[i] + 4, VWO, off + 512)]
    def w(): rd128(*wrd.pop(0))
    nw = 0
    for dc in range(4):
        A("s_waitcnt lgkmcnt(%d)" % (6 - 2 * dc + nw))
        z = ZF + 4 * dc
        mf(S1, KX1 + 4 * dc, z, "0" if dc == 0 else acc(S1))
        if dc < 3: w(); nw += 1
        if dc == 2: add1(V0, 1)
        if dc == 3: cvt(VMA, V0, V0 + 1)
        mf(S2, KX2 + 4 * dc, z, "0" if dc == 0 else acc(S2))
        if dc < 3: w(); nw += 1
        if dc == 2: add1(V1, 0)
        if dc == 3: cvt(VMA + 1, V1, V1 + 1); A("v_min_u32 v%d, -2, v%d" % (VMA, VMA))
        mf(S0, z, z, "0" if dc == 0 else acc(S0))
        for t in kvo.pop(0): A(t)
        if dc == 1: add1(V0, 0)
        if dc == 2: add1(V1, 1)
    tr(7)
    if not nokv: A("global_load_dword v%d, v%d, s[%d:%d] sc1" % (VFA, VL4, sFKV, sFKV + 1))
    else: A("s_nop 0")
    if EE: A(exp_st())
    A("v_mov_b32 v%d, 0x3f803f80" % ONES)
    A("v_mov_b32 v%d, 0x3f803f80" % (ONES + 1))
    A("v_max3_f32 v%d, v%d, v%d, v%d" % (M0_, S1, S1 + 1, S1 + 2))
    A("v_mov_b32 v%d, 0x3f803f80" % (ONES + 2))
    A("v_max3_f32 v%d, v%d, v%d, v%d" % (M1_, S1 + 3, S2, S2 + 1))
    A("v_max3_f32 v%d, v%d, v%d, v%d" % (M0_, M0_, S2 + 2, S2 + 3))
    A("v_max3_f32 v%d, v%d, v%d, v%d" % (M1_, M1_, S0, S0 + 1))
    A("v_max_f32 v%d, v%d, v%d" % (T0_, M0_, M1_))
    A("v_max_f32 v%d, v%d, v%d" % (T1_, M0_, M1_))
    A("v_mov_b32 v%d, 0x3f803f80" % (ONES + 3))
    A("s_add_u32 s40, s%d, 1" % sIT)
    A("v_permlane32_swap_b32 v%d, v%d" % (T0_, T1_))
    A("v_max_f32 v%d, v%d, v%d" % (M0_, T0_, T1_))
    A("v_max_f32 v%d, v%d, v%d" % (M1_, T0_, T1_))
    A("s_and_b32 s40, s40, 3")
    A("s_lshl_b32 s40, s40, 13")
    A("v_permlane16_swap_b32 v%d, v%d" % (M0_, M1_))
    A("v_max_f32 v%d, v%d, v%d" % (M0_, M0_, M1_))
    A("v_mul_f32 v%d, s%d, v%d" % (M0_, sC, M0_))
    tr(8)
    def pkf(r): A("v_pk_fma_f32 v[%d:%d], v[%d:%d], s[%d:%d], v[%d:%d] op_sel_hi:[1,0,0] neg_lo:[0,0,1] neg_hi:[0,0,1]" % (r, r + 1, r, r + 1, sC, sC + 1, M0_, M0_ + 1))
    def ex(r): A("v_exp_f32 v%d, v%d" % (r, r))
    pkf(S1); pkf(S1 + 2); ex(S1); ex(S1 + 1); pkf(S2); ex(S1 + 2); ex(S1 + 3); pkf(S2 + 2)
    cvt(PX, S1, S1 + 1); ex(S2); ex(S2 + 1); cvt(PX + 1, S1 + 2, S1 + 3); pkf(S0); ex(S2 + 2); ex(S2 + 3)
    cvt(PX + 2, S2, S2 + 1); ex(S0); cvt(PX + 3, S2 + 2, S2 + 3); ex(S0 + 1)
    tr(9)
    A("s_add_u32 s40, s40, 0x%x" % OFF_CMEM)
    mf(LA, ONES, PX, "0")
    cvt(PM, S0, S0 + 1)
    mf(O1, VXC + 4, PX, "0")
    w(); cvt(PMB + 1, S0, S0 + 1)
    mf(O0, VXC, PX, "0")
    w(); sadd64(A, sMG, S_WS, "s40")
    A("v_mov_b32 v%d, 0" % S1)
    mf(LA, ONES, PM, acc(LA), k32=False)
    w(); A("v_mov_b32 v%d, 0" % (S1 + 1)); A.nop(1)
    mf(O1, VMA, PMB, acc(O1), k32=False)
    w(); A("v_mov_b32 v%d, 0" % (S1 + 2))
    mf(O0, VMA, PM, acc(O0), k32=False)
    A("v_mov_b32 v%d, 0" % (S1 + 3))
    z64(WACC[1]); z64(WACC[1] + 2)
    A("v_rcp_f32 v%d, v%d" % (LA, LA))
    z64(WACC[2])
    for r in (O1, O1 + 2, O0, O0 + 2):
        if r == O0: z64(WACC[2] + 2)
        A("v_pk_mul_f32 v[%d:%d], v[%d:%d], v[%d:%d] op_sel_hi:[1,0]" % (r, r + 1, r, r + 1, LA, LA + 1))
    cvt(OP + 2, O1, O1 + 1); cvt(OP + 3, O1 + 2, O1 + 3); cvt(OP, O0, O0 + 1); cvt(OP + 1, O0 + 2, O0 + 3)
    A("ds_write_b128 v%d, v[%d:%d]" % (VOW, OP, OP + 3))
    tr(10)
    for t in (4, 5, 6, 7): z64(WACC[t]); z64(WACC[t] + 2)
    for _ in range(opt.get("wfill", 4)): A("v_mov_b32 v%d, 0" % CP)
    A("s_waitcnt vmcnt(%d) lgkmcnt(0)" % ((0 if opt.get("nodma") else 4 if nokv else 5) + EE))
    tr(11)
    A("s_barrier")
    tr(12)
    rd128(OA, VL16, L_O); rd128(OA + 4, VL16, L_O + 1024)
    z64(WACC[3]); z64(WACC[3] + 2)
    A("s_and_b32 s40, s%d, 3" % sIT); A("s_lshl_b32 s40, s40, 13"); A("s_add_u32 s40, s40, 0x%x" % OFF_CMEM)
    def tile_ops(d): return ["v_add_f32 v%d, v%d, v%d" % (d + e, d + e, d + 2 + e) for e in range(2)]
    def cv(d, x, y): return "v_cvt_pk_bf16_f32 v%d, v%d, v%d" % (d, x, y)
    t0, t1 = WACC[:4], WACC[4:]
    order = [(j, ch) for j in range(8) for ch in range(2)]
    a0, a1, a2, a3 = [tile_ops(x) for x in t0]
    b0, b1, b2, b3 = [tile_ops(x) for x in t1]
    mn = lambda r: "v_min_u32 v%d, -2, v%d" % (r, r)
    fill = {3: ["s_nop 0"], 4: [a0[0]], 5: [a0[1]], 6: [a1[0]], 7: [a1[1]], 8: [cv(t0[0] + 2, t0[0], t0[1]), a2[0]],
            9: [cv(t0[0] + 3, t0[0] + 1, t0[1] + 1), a2[1]], 10: ["s_nop 0", a3[0]], 11: [a3[1], cv(t0[0], t0[2], t0[3])],
            12: [cv(t0[0] + 1, t0[2] + 1, t0[3] + 1), mn(t0[0])], 13: [b0[0]], 14: [b0[1], b1[0]], 15: [b1[1]]}
    nlate = len(wrd)
    issued = 0
    for i, (Tt, ch) in enumerate(order):
        if i == 0: A("s_waitcnt lgkmcnt(1)")
        if i == 1: A("s_waitcnt lgkmcnt(%d)" % issued)
        if i >= 8:
            need = 2 * (i - 8) + 2 - (16 - nlate)
            if need > 0: A("s_waitcnt lgkmcnt(%d)" % (issued - need))
        b = wo_base(Tt, ch) if i < 8 else SLOTS[i - 8]
        a_ = WACC[Tt]
        A("v_smfmac_f32_16x16x64_bf16 v[%d:%d], v[%d:%d], %s, v%d" % (a_, a_ + 3, OA + 4 * ch, OA + 4 * ch + 3, R(b, 8), VIDX))
        if i == 0: tr(13)
        if i == 7: tr(14)
        if i == 15: tr(15)
        if wrd: rd128(*wrd.pop(0)); issued += 1
        for t in fill.get(i, []): A(t)
        if i == 12:
            store_mixed(A, cold, ["global_store_dwordx4 v%d, v[%d:%d], s[%d:%d]" % (VPST, t0[0], t0[0] + 3, sP0, sP0 + 1)])
    assert not wrd
    for t in [cv(t1[0] + 2, t1[0], t1[1]), cv(t1[0] + 3, t1[0] + 1, t1[1] + 1)] + b2 + ["s_nop 2"] + b3 + \
             [cv(t1[0], t1[2], t1[3]), cv(t1[0] + 1, t1[2] + 1, t1[3] + 1), mn(t1[0])]: A(t)
    store_mixed(A, cold, ["global_store_dwordx4 v%d, v[%d:%d], s[%d:%d]" % (VPST, t1[0], t1[0] + 3, sP1, sP1 + 1)])
    tr(20)
    sadd64(A, sMR, S_WS, "s40")
    A("s_add_u32 s%d, s%d, 1" % (sSEG, sSEG))
    A("s_add_u32 s%d, s%d, 1" % (sIT, sIT))
    for r in (4, 6, 16, 18, 20, 22): z64(Q0 + r)
    A("s_cmp_lg_u32 s%d, 0" % S_WAVE)
    A("s_cbranch_scc1 L_ch_nored")
    for rr in range(4): A("v_cndmask_b32 v%d, 0, v%d, s[%d:%d]" % (SEL + rr, SELV, sSM + 2 * rr, sSM + 2 * rr + 1))
    if opt.get("d1", 0): A.nop(opt["d1"])
    def ldB(i):
        b = sR0 if i < 4 else sR1
        A("global_load_dwordx4 v[%d:%d], v%d, s[%d:%d] offset:%d sc1" % (RB + 4 * i, RB + 4 * i + 3, VL16, b, b + 1, (i & 3) * 1024))
    tr(21)
    A.label("L_ch_rB")
    for i in range(8): ldB(i)
    if opt.get("cnt"): A("s_add_u32 s86, s86, 1")
    spin_guard(A)
    A("s_waitcnt vmcnt(7)")
    A("v_cmp_eq_u32 vcc, -1, v%d" % RB)
    mf(RD, SEL, RB, "0")
    A("s_cbranch_vccnz L_ch_rB")
    if opt.get("cnt"): A("s_add_u32 s85, s85, 1")
    tr(22)
    for i in range(1, 8):
        A("s_waitcnt vmcnt(%d)" % (7 - i))
        mf(RD, SEL, RB + 4 * i, acc(RD))
        if i == 2: A("v_max_u32 v%d, v%d, v%d" % (RT, RB + 4, RB + 8))
        if i in (4, 6): A("v_max3_u32 v%d, v%d, v%d, v%d" % (RT, RT, RB + 4 * i - 4, RB + 4 * i))
    tr(23)
    A("v_max_u32 v%d, v%d, v%d" % (RT, RT, RB + 28))
    A("v_cmp_eq_u32 vcc, -1, v%d" % RT)
    if opt.get("oa"):
        A.nop(6)
        cvt(RT, RD, RD + 1)
        A("v_min_u32 v%d, -2, v%d" % (RT, RT))
        A("s_cbranch_vccnz L_ch_rB")
    else:
        A.nop(5)
        A("s_cbranch_vccnz L_ch_rB")
        cvt(RT, RD, RD + 1)
        A("v_min_u32 v%d, -2, v%d" % (RT, RT))
    store_mixed(A, cold, ["global_store_dword v%d, v%d, s[%d:%d]" % (VMST, RT, sMG, sMG + 1),
                          "global_store_dword v%d, v%d, s[%d:%d]" % (VMST, VSENT, sMR, sMR + 1)])
    tr(24)
    A("s_barrier")
    setup_part_bases()
    if opt.get("d6", 0): A.nop(opt["d6"])
    tr(25)
    if opt.get("w0p", 0):
        prefetch_own(lambda n: ldA() if n in opt["w0pos"][:PA] else None)
    else:
        ldA()
        prefetch_own()
        for k in range(1, PA): ldA()
    for r in (0, 2, 8, 10, 12, 14): z64(Q0 + r)
    A("s_branch L_ch_pollA")
    A.label("L_ch_firstA")
    for k in range(PA):
        ldA()
        if k < PA - 1: A.nop(opt.get("d5", 24))
    A("s_branch L_ch_pollA")
    A.label("L_ch_nored")
    rt_stamp(A, opt, "s%d" % sIT, RT, RT + 1)
    setup_part_bases()
    prefetch_own()
    for r in (0, 2, 8, 10, 12, 14): z64(Q0 + r)
    A("s_barrier")
    if opt.get("d3", 0): A.nop(opt["d3"])
    A("s_branch L_ch_firstA")

    A.label("L_ch_flag")
    A("s_mov_b64 exec, 1")
    A("global_store_dword v%d, v%d, s[%d:%d] sc1" % (PM + 1, VSENT, sFM, sFM + 1))
    A("s_mov_b64 exec, -1")
    A("s_branch L_ch_noflag")
    A.label("L_ch_last")
    for x in vq_last: smf(*x)
    if not EE: sadd64(A, sKM, sKM, 32 * 8192)
    A.nop(8)
    pkadd(V0); pkadd(V1)
    cvt(VMA, V0, V0 + 1); cvt(VMA + 1, V1, V1 + 1)
    A("v_min_u32 v%d, -2, v%d" % (VMA, VMA))
    A(exp_st())
    A("s_waitcnt lgkmcnt(0)")
    A("s_barrier")
    if opt.get("rt") or opt.get("cyc"):
        A("s_add_u32 s47, s%d, 410" % sL)
        rt_stamp(A, dict(rt=opt.get("rt") or 2), "s47", 27, 28)
    if opt.get("dbgt"):
        A("s_lshl_b32 s47, s%d, 1" % sL); A("s_add_u32 s47, s47, 10")
        dbg_time(A, opt, "s47", 27, 28)
        A("s_cmp_eq_u32 s%d, 0" % sL)
        A("s_cselect_b32 s47, 14, 7")
        dbg_time(A, opt, "s47", 27, 28, cyc=True)
    A("s_add_u32 s%d, s%d, 1" % (sL, sL))
    A("s_cmp_lt_u32 s%d, %d" % (sL, opt.get("layers", 2)))
    A("s_cbranch_scc1 L_ch_layer")
    if opt.get("cnt"):
        rt_stamp(A, dict(rt=2), 420, 27, 28)
        for k, r in enumerate((85, 86, 87)):
            A("v_mov_b32 v28, s%d" % r)
            A("global_store_dword v27, v28, s[%d:%d] offset:%d" % (S_WS, S_WS + 1, 4 + 4 * k))
    A("s_branch L_end")
    cold.emit(A)
```

```python
from asmlib import *
NAME = "interleave_layers__linear_attn_block__memory_aug_recurrent_mem_tr__prompt"
KNAME = NAME + "_kernel"

F_X1  = 0x0000
F_Y2  = 0x4000
F_PB  = 0x8000
F_PA  = 0xC000
F_KV  = 0x10000
F_Q   = 0x1C000
F_M   = 0x14000
F_AKV = 0x18000
OFF_CPART = 0x100000
OFF_CMEM  = 0x180000
OFF_Y0 = 0x200000
OFF_X1 = 0x400000
OFF_Y1 = 0x800000
OFF_X2 = 0xC00000
OFF_Y2 = 0xE00000
OFF_AKV = 0x1000000
OFF_WP = 0x1800000
OFF_PW = 0x2000000
OFF_KX = 0x4000000
OFF_VX = 0x6000000
OFF_QX = 0x8000000
OFF_KM = 0xA000000
OFF_STAMP = 0xC000000

S_WS = 4
S_AX = 8
S_WQKV = 10
S_AWO = 12
S_MEM0 = 16
S_WQ = 18
S_WK = 20
S_WV = 22
S_WO = 24
S_OUT = 28
S_DBG = 30
S_GRP = 32
S_HEAD = 33
S_WAVE = 34
S_MIXED = 35
S_T0 = 36

KM_POLL = 60
LDS_BYTES = 163840
L_WO = 32768

def sadd64(A, d, b, imm_or_s):
    x = imm_or_s if isinstance(imm_or_s, str) else "0x%x" % imm_or_s
    A("s_add_u32 s%d, s%d, %s" % (d, b, x))
    A("s_addc_u32 s%d, s%d, 0" % (d + 1, b + 1))

def load_head_weights(A, vt, wq_base, chain, vwo=None, wo_base=None, mid=None):
    VW0, VW1, VT0, VT1, VOFFO, VTRO, VWB, VX = range(vt, vt + 8)
    TMP = vt + 8
    A("v_and_b32 %s, 63, v0" % v(VX))
    A("v_lshrrev_b32 %s, 4, %s" % (v(TMP), v(VX)))
    A("v_bfe_u32 %s, %s, 2, 2" % (v(TMP + 1), v(VX)))
    A("v_and_b32 %s, 3, %s" % (v(TMP + 2), v(VX)))
    A("v_and_b32 %s, 15, %s" % (v(TMP + 4), v(VX)))
    A("s_lshl_b32 s40, s%d, 8" % S_HEAD)
    A("s_lshl_b32 s41, s%d, 17" % S_WAVE)
    A("s_add_u32 s40, s40, s41")
    for k, dst in enumerate((VW0, VW1)):
        A("v_lshlrev_b32 %s, 1, %s" % (v(TMP + 5), v(TMP)))
        if k: A("v_or_b32 %s, 8, %s" % (v(TMP + 5), v(TMP + 5)))
        A("v_xor_b32 %s, %s, %s" % (v(TMP + 5), v(TMP + 5), v(TMP + 4)))
        A("v_lshlrev_b32 %s, 4, %s" % (v(TMP + 5), v(TMP + 5)))
        A("v_lshl_add_u32 %s, %s, 13, %s" % (v(dst), v(TMP), v(TMP + 5)))
        A("v_add_u32 %s, s40, %s" % (v(dst), v(dst)))
    A("s_lshl_b32 s41, s%d, 2" % S_WAVE)
    A("v_lshrrev_b32 %s, 1, %s" % (v(TMP + 5), v(TMP + 2)))
    A("v_add_u32 %s, s41, %s" % (v(TMP + 5), v(TMP + 5)))
    A("v_and_b32 %s, 1, %s" % (v(TMP + 6), v(TMP)))
    A("v_lshlrev_b32 %s, 3, %s" % (v(TMP + 6), v(TMP + 6)))
    A("v_lshl_add_u32 %s, %s, 1, %s" % (v(TMP + 6), v(TMP + 1), v(TMP + 6)))
    A("v_xor_b32 %s, %s, %s" % (v(TMP + 5), v(TMP + 5), v(TMP + 6)))
    A("v_lshlrev_b32 %s, 4, %s" % (v(TMP + 5), v(TMP + 5)))
    A("v_and_b32 %s, 1, %s" % (v(TMP + 6), v(TMP + 2)))
    A("v_lshl_add_u32 %s, %s, 3, %s" % (v(TMP + 5), v(TMP + 6), v(TMP + 5)))
    A("v_lshl_add_u32 %s, %s, 3, %s" % (v(TMP + 6), v(TMP), v(TMP + 1)))
    A("v_lshl_add_u32 %s, %s, 8, %s" % (v(VT0), v(TMP + 6), v(TMP + 5)))
    A("v_xor_b32 %s, 32, %s" % (v(VT1), v(VT0)))
    A("s_lshl_b32 s47, s%d, 12" % S_WAVE)
    slots = [0, 16384] + [L_WO + w * 32768 + 16384 for w in range(4)]
    NS = len(slots)
    pieces = [(X, ch) for X in range(3) for ch in range(8)]
    def issue(p):
        X, ch = pieces[p]
        sadd64(A, 42, (S_WQ, S_WK, S_WV)[X], ch * 64 * 8192)
        A("s_add_u32 s44, s47, %d" % slots[p % NS])
        for i in range(4):
            A("s_mov_b32 m0, s44")
            A("s_add_u32 s44, s44, 1024")
            A("global_load_lds_dwordx4 %s, s[42:43]" % v(VW0 if i < 2 else VW1))
            if i < 3: sadd64(A, 42, 42, 4 * 8192)
    issued = 0
    if chain:
        A("s_lshl_b32 s46, s%d, 15" % S_WAVE)
        A("s_add_u32 s46, s46, %d" % L_WO)
        A("v_lshrrev_b32 %s, 2, %s" % (v(VOFFO), v(VX)))
        A("v_lshlrev_b32 %s, 10, %s" % (v(VOFFO), v(VOFFO)))
        A("v_lshl_add_u32 %s, %s, 4, %s" % (v(VOFFO), v(TMP + 2), v(VOFFO)))
        A("s_lshl_b32 s40, s%d, 17" % S_HEAD)
        A("s_lshl_b32 s41, s%d, 8" % S_WAVE)
        A("s_add_u32 s40, s40, s41")
        A("v_add_u32 %s, s40, %s" % (v(VOFFO), v(VOFFO)))
        for b in range(4):
            sadd64(A, 42, S_WO, b * 64)
            A("s_add_u32 s44, s46, %d" % (((b + 2) & 3) * 8192))
            for i in range(8):
                A("s_mov_b32 m0, s44")
                A("s_add_u32 s44, s44, 1024")
                A("global_load_lds_dwordx4 %s, s[42:43]" % v(VOFFO))
                if i < 7: sadd64(A, 42, 42, 16 * 1024)
        issue(0); issue(1); issued = 2
        A("v_lshrrev_b32 %s, 1, %s" % (v(TMP + 3), v(TMP + 1)))
        A("v_lshlrev_b32 %s, 5, %s" % (v(TMP + 3), v(TMP + 3)))
        A("v_and_b32 %s, 1, %s" % (v(TMP + 5), v(TMP)))
        A("v_lshl_add_u32 %s, %s, 4, %s" % (v(TMP + 3), v(TMP + 5), v(TMP + 3)))
        A("v_lshrrev_b32 %s, 1, %s" % (v(TMP + 5), v(TMP)))
        A("v_lshl_add_u32 %s, %s, 2, %s" % (v(TMP + 3), v(TMP + 5), v(TMP + 3)))
        A("v_and_b32 %s, 1, %s" % (v(TMP + 5), v(TMP + 1)))
        A("v_add_u32 %s, %s, %s" % (v(TMP + 3), v(TMP + 3), v(TMP + 5)))
        A("v_lshlrev_b32 %s, 6, %s" % (v(VTRO), v(TMP + 3)))
        A("v_lshl_add_u32 %s, %s, 3, %s" % (v(VTRO), v(TMP + 2), v(VTRO)))
        A("v_add_u32 %s, s46, %s" % (v(VTRO), v(VTRO)))
        A("v_and_b32 %s, 3, %s" % (v(TMP + 5), v(TMP + 4)))
        A("v_lshlrev_b32 %s, 11, %s" % (v(VWB), v(TMP + 5)))
        A("v_lshrrev_b32 %s, 2, %s" % (v(TMP + 5), v(TMP + 4)))
        A("v_lshl_add_u32 %s, %s, 3, %s" % (v(TMP + 5), v(TMP), v(TMP + 5)))
        A("v_lshl_add_u32 %s, %s, 4, %s" % (v(VWB), v(TMP + 5), v(VWB)))
        A("v_add_u32 %s, s46, %s" % (v(VWB), v(VWB)))
        for b in range(4):
            slot = (b + 2) & 3
            A("s_waitcnt vmcnt(%d)" % (8 * (3 - b) + (8 if b < 2 else 24)))
            for ch in range(2):
                for hB in range(2):
                    for Tn in range(2):
                        for hh in range(2):
                            dst = TMP + ((ch * 2 + hB) * 2 + Tn) * 4 + hh * 2
                            A("ds_read_b64_tr_b16 %s, %s offset:%d" % (v(dst, 2), v(VTRO), slot * 8192 + (64 * ch + 8 * hB + 2 * hh) * 64 + Tn * 32))
            A("s_waitcnt lgkmcnt(0)")
            for ch in range(2):
                for hB in range(2):
                    for Tn in range(2):
                        A("ds_write_b128 %s, %s offset:%d" % (v(VWB), v(TMP + ((ch * 2 + hB) * 2 + Tn) * 4, 4), slot * 8192 + ch * 1024 + hB * 512 + Tn * 64))
            A("s_waitcnt lgkmcnt(0)")
            if b == 1:
                for ch in range(2):
                    for jj in range(4):
                        for hB in range(2):
                            A("ds_read_b128 %s, %s offset:%d" % (R(wo_base(jj, ch) + hB * 4, 4), v(vwo), 16384 + jj * 2048 + ch * 1024 + hB * 512))
                A("s_waitcnt lgkmcnt(0)")
                A("s_barrier")
                mid(A)
                for p in range(2, 6): issue(p)
                issued = 6
    else:
        for p in range(NS): issue(p)
        issued = NS
    def reads(p, w):
        X, ch = pieces[p]
        for T in range(2):
            if chain:
                cs = 2 * ((ch >> 1) ^ w) + (ch & 1)
                base = TMP + 32 * X + (T * 2 + cs) * 8 if (X < 2 and cs < 2) else wq_base(2 * X + T, cs)
            else:
                base = wq_base(2 * X + T, ch)
            for hB in range(2):
                for hh in range(2):
                    A("ds_read_b64_tr_b16 %s, %s offset:%d" % (R(base + hB * 4 + hh * 2, 2), v((VX, VOFFO)[T]), (32 * hB + 4 * hh) * 256))
    for p in range(24):
        A("s_waitcnt vmcnt(%d) lgkmcnt(0)" % (4 * (issued - 1 - p)))
        A("s_barrier")
        if p >= 1 and issued < 24:
            issue(issued); issued += 1
        A("v_add_u32 %s, %d, %s" % (v(VX), slots[p % NS], v(VT0)))
        A("v_add_u32 %s, %d, %s" % (v(VOFFO), slots[p % NS], v(VT1)))
        if chain:
            done = A.newlabel("Lwd")
            lab = [A.newlabel("Lwv") for _ in range(3)]
            for w in range(4):
                if w < 3:
                    A("s_cmp_lg_u32 s%d, %d" % (S_WAVE, w))
                    A("s_cbranch_scc1 %s" % lab[w])
                reads(p, w)
                if w < 3:
                    A("s_branch %s" % done)
                    A.label(lab[w])
            A.label(done)
        else:
            reads(p, 0)
    A("s_waitcnt lgkmcnt(0)")
    A("s_barrier")
    if chain:
        for f in range(8):
            for hB in range(2):
                A("ds_write_b128 %s, %s offset:%d" % (v(vwo), v(TMP + f * 8 + hB * 4, 4), 16384 + f * 1024 + hB * 512))
        A("s_waitcnt lgkmcnt(0)")


class Cold:
    def __init__(self): self.blocks = []
    def add(self, fn): self.blocks.append(fn)
    def emit(self, A):
        for fn in self.blocks: fn(A)
        self.blocks = []

def store_mixed(A, cold, text, cmp=True):
    l1 = A.newlabel("Lmx"); l2 = A.newlabel("Lmy")
    A("s_cbranch_scc1 %s" % l1) if False else None
    if cmp: A("s_cmp_lg_u32 s%d, 0" % S_MIXED)
    A("s_cbranch_scc1 %s" % l1)
    for t in text: A(t)
    A.label(l2)
    def blk(A):
        A.label(l1)
        for t in text: A(t + " sc1")
        A("s_branch %s" % l2)
    cold.add(blk)


S_SPIN = 101
def spin_guard(A):
    A("s_add_u32 s%d, s%d, 1" % (S_SPIN, S_SPIN))
    A("s_cmp_gt_u32 s%d, 0x40000" % S_SPIN)
    A("s_cbranch_scc1 L_end")


def rt_stamp(A, opt, idx, va, vb):
    if not opt.get("rt"): return
    A("s_memtime s[98:99]" if opt.get("rt") == 2 else "s_memrealtime s[98:99]")
    A("s_lshl_b32 s100, s%d, 5" % S_GRP)
    A("s_add_u32 s100, s100, s%d" % S_HEAD)
    A("s_lshl_b32 s100, s100, 2")
    A("s_add_u32 s100, s100, s%d" % S_WAVE)
    A("s_lshl_b32 s100, s100, 9")
    A("s_add_u32 s100, s100, %s" % idx)
    A("s_lshl_b32 s100, s100, 2")
    A("s_add_u32 s100, s100, 0x%x" % OFF_STAMP)
    A("v_mov_b32 v%d, s100" % va)
    A("s_waitcnt lgkmcnt(0)")
    A("v_mov_b32 v%d, s98" % vb)
    A("global_store_dword v%d, v%d, s[%d:%d]" % (va, vb, S_WS, S_WS + 1))


def dbg_time(A, opt, word, va, vb, cyc=False):
    if not opt.get("dbgt"): return
    l = A.newlabel("Ldt")
    A("s_cmp_lg_u32 s%d, 0" % S_HEAD)
    A("s_cbranch_scc1 %s" % l)
    A("s_cmp_lg_u32 s%d, 1" % S_WAVE)
    A("s_cbranch_scc1 %s" % l)
    A("s_memtime s[98:99]" if cyc else "s_memrealtime s[98:99]")
    A("s_lshl_b32 s100, %s, 2" % word)
    A("v_mov_b32 v%d, s100" % va)
    A("s_waitcnt lgkmcnt(0)")
    A("s_sub_u32 s98, s98, s%d" % (7 if cyc else 6))
    A("v_mov_b32 v%d, s98" % vb)
    A("global_store_dword v%d, v%d, s[%d:%d]" % (va, vb, S_DBG, S_DBG + 1))
    A.label(l)


def poll_tile(A, loads, regs, vt, writes):
    lp = A.newlabel("Lpt")
    A.label(lp)
    for i, (va, sb, off) in enumerate(loads):
        A("global_load_dwordx4 v[%d:%d], v%d, s[%d:%d] offset:%d sc1" % (regs + 4 * i, regs + 4 * i + 3, va, sb, sb + 1, off))
    spin_guard(A)
    A("s_waitcnt vmcnt(0)")
    A("v_max_u32 v%d, v%d, v%d" % (vt, regs, regs + 4))
    for i in range(2, len(loads), 2): A("v_max3_u32 v%d, v%d, v%d, v%d" % (vt, vt, regs + 4 * i, regs + 4 * i + 4))
    A("v_cmp_eq_u32 vcc, -1, v%d" % vt)
    A("s_cbranch_vccnz %s" % lp)
    for i, (va, off) in enumerate(writes):
        A("ds_write_b128 v%d, v[%d:%d] offset:%d" % (va, regs + 4 * i, regs + 4 * i + 3, off))
    A("s_waitcnt lgkmcnt(0)")
Y2_POLL = 62
```

```python
from common import *
import math, struct
def f32bits(x): return struct.unpack("<I", struct.pack("<f", x))[0]
LOG2E = math.log2(math.e)
ZZ = [1]
_RT0 = {}

def mfma(A, d, x, y, c, k32=True):
    n = 4 if k32 else 2
    A("v_mfma_f32_16x16x%d_bf16 %s, %s, %s, %s" % (32 if k32 else 16, v(d, 4), R(x, n), R(y, n), c if isinstance(c, str) else v(c, 4)))
def cvt(A, d, x, y): A("v_cvt_pk_bf16_f32 v%d, v%d, v%d" % (d, x, y))
def rd128(A, d, addr, off): A("ds_read_b128 v[%d:%d], v%d offset:%d" % (d, d + 3, addr, off))

def wait_flags(A, vtmp, voff, sbase, sleep=2):
    lp = A.newlabel("Lwf"); ok = A.newlabel("Lwo")
    A.label(lp)
    A("global_load_dword v%d, v%d, s[%d:%d] sc1" % (vtmp, voff, sbase, sbase + 1))
    A("s_waitcnt vmcnt(0)")
    A("v_cmp_eq_u32 vcc, 0, v%d" % vtmp)
    A("s_cbranch_vccz %s" % ok)
    if sleep: A("s_sleep %d" % (sleep * ZZ[0]))
    spin_guard(A)
    A("s_branch %s" % lp)
    A.label(ok)

def row_allsum16(A, regs, tmp):
    src, dst = list(regs), list(tmp)
    for sh in (8, 4, 2, 1):
        if len(regs) < 3: A.nop(3 - len(regs))
        for a_, b_ in zip(src, dst):
            A("v_add_f32_dpp v%d, v%d, v%d row_ror:%d row_mask:0xf bank_mask:0xf" % (b_, a_, a_, sh))
        src, dst = dst, src

def swap_sum(A, r, t, which):
    A("v_mov_b32 v%d, v%d" % (t, r))
    A.nop(2)
    A("v_permlane%d_swap_b32 v%d, v%d" % (which, r, t))
    A("v_add_f32 v%d, v%d, v%d" % (r, r, t))

def sel_const(A, SEL, T):
    A("v_and_b32 v%d, 1, v0" % T)
    A("v_lshlrev_b32 v%d, 4, v%d" % (T, T))
    A("v_mov_b32 v%d, 0x3f80" % (T + 1))
    A("v_lshlrev_b32 v%d, v%d, v%d" % (T + 1, T, T + 1))
    A("v_bfe_u32 v%d, v0, 1, 2" % T)
    for rr in range(4):
        A("v_cmp_eq_u32 vcc, %d, v%d" % (rr, T))
        A.nop(2)
        A("v_cndmask_b32 v%d, 0, v%d, vcc" % (SEL + rr, T + 1))

def reduce_consts(A, VRLD, VROW, VFL, T):
    A("v_and_b32 v%d, 15, v0" % T)
    A("v_bfe_u32 v%d, v0, 4, 2" % (T + 1))
    A("s_lshl_b32 s40, s%d, 8" % S_WAVE)
    A("v_lshlrev_b32 v%d, 10, v%d" % (VRLD, T + 1))
    A("v_lshl_add_u32 v%d, v%d, 4, v%d" % (VRLD, T, VRLD))
    A("v_add_u32 v%d, s40, v%d" % (VRLD, VRLD))
    A("v_and_b32 v%d, 1, v%d" % (T + 1, T + 1))
    A("v_lshlrev_b32 v%d, 3, v%d" % (VROW, T + 1))
    A("v_lshl_add_u32 v%d, v%d, 4, v%d" % (VROW, T, VROW))
    A("v_add_u32 v%d, s40, v%d" % (VROW, VROW))
    A("v_and_b32 v%d, 31, v0" % VFL)
    A("v_lshlrev_b32 v%d, 2, v%d" % (VFL, VFL))

def one_lane(A, text):
    A("s_mov_b64 exec, 1")
    A(text)
    A("s_mov_b64 exec, -1")

def ring_next(A, sRING):
    A("s_add_u32 s%d, s%d, 0x100000" % (sRING, sRING))
    A("s_cmp_eq_u32 s%d, 0x200000" % sRING)
    A("s_cselect_b32 s%d, 0, s%d" % (sRING, sRING))

def arm_partials(A, cold, VRLD, T):
    A("s_lshl_b32 s41, s%d, 22" % S_GRP)
    A("s_lshl_b32 s42, s%d, 15" % S_HEAD)
    A("s_add_u32 s41, s41, s42")
    A("s_add_u32 s41, s41, 0x%x" % OFF_PW)
    A("v_add_u32 v%d, s41, v%d" % (T, VRLD))
    A("v_mov_b32 v%d, -1" % (T + 1))
    st = []
    for k in range(1, 24): A("v_add_u32 v%d, 0x%x, v%d" % (T + 1 + k, (k >> 3) * 0x100000 + (k & 7) * 4096, T))
    store_mixed(A, cold, ["global_store_dword v%d, v%d, s[%d:%d]" % (T + 1 + k if k else T, T + 1, S_WS, S_WS + 1) for k in range(24)])

def reduce_row(A, cold, W, SEL, VRLD, VROW, VFL, VL16, sPART, sPF, sIT, sX, sY, sOF, lds_off, final_cond, defer=None):
    RB, RD, XR, T, AD = W, W + 32, W + 36, W + 40, W + 48
    rtp(A, 10)
    for i in range(1, 8): A("v_add_u32 v%d, %d, v%d" % (AD + i, i * 4096, VRLD))
    A("s_and_b32 s41, s%d, 1" % sIT)
    A("s_lshl_b32 s41, s41, 11")
    A("s_add_u32 s41, s41, %d" % lds_off)
    wait_flags(A, T, VFL, sPF, sleep=0)
    rtp(A, 11)
    for i in range(8):
        A("global_load_dwordx4 v[%d:%d], v%d, s[%d:%d] sc1" % (RB + 4 * i, RB + 4 * i + 3, AD + i if i else VRLD, sPART, sPART + 1))
    A("v_lshlrev_b32 v%d, 16, v%d" % (T, XR))
    A("v_and_b32 v%d, 0xffff0000, v%d" % (T + 1, XR))
    A("v_lshlrev_b32 v%d, 16, v%d" % (T + 2, XR + 1))
    A("v_and_b32 v%d, 0xffff0000, v%d" % (T + 3, XR + 1))
    A("s_add_u32 s42, s41, 32")
    A("v_add_u32 v%d, s42, v%d" % (T + 4, VROW))
    A("v_add_u32 v%d, s42, v%d" % (T + 6, VL16))
    A("s_lshl_b32 s40, s%d, 3" % S_WAVE)
    A("s_add_u32 s40, s40, s41")
    A("v_mov_b32 v%d, s40" % (T + 5))
    A("v_mov_b32 v%d, s41" % (T + 7))
    for i in range(8):
        A("s_waitcnt vmcnt(%d)" % (7 - i))
        mfma(A, RD, SEL, RB + 4 * i, "0" if i == 0 else RD)
    A.nop(8)
    rtp(A, 12)
    cvt(A, XR, RD, RD + 1); cvt(A, XR + 1, RD + 2, RD + 3)
    A("v_lshlrev_b32 v%d, 16, v%d" % (RD, XR))
    A("v_and_b32 v%d, 0xffff0000, v%d" % (RD + 1, XR))
    A("v_lshlrev_b32 v%d, 16, v%d" % (RD + 2, XR + 1))
    A("v_and_b32 v%d, 0xffff0000, v%d" % (RD + 3, XR + 1))
    for r in range(4): A("v_add_f32 v%d, v%d, v%d" % (RD + r, RD + r, T + r))
    cvt(A, XR, RD, RD + 1); cvt(A, XR + 1, RD + 2, RD + 3)
    A("ds_write_b64 v%d, v[%d:%d]" % (T + 4, XR, XR + 1))
    A("v_lshlrev_b32 v%d, 16, v%d" % (RD, XR))
    A("v_and_b32 v%d, 0xffff0000, v%d" % (RD + 1, XR))
    A("v_lshlrev_b32 v%d, 16, v%d" % (RD + 2, XR + 1))
    A("v_and_b32 v%d, 0xffff0000, v%d" % (RD + 3, XR + 1))
    S, Q = T, T + 1
    A("v_add_f32 v%d, v%d, v%d" % (S, RD, RD + 1))
    A("v_mul_f32 v%d, v%d, v%d" % (Q, RD, RD))
    A("v_add_f32 v%d, v%d, v%d" % (S, S, RD + 2))
    A("v_fmac_f32 v%d, v%d, v%d" % (Q, RD + 1, RD + 1))
    A("v_add_f32 v%d, v%d, v%d" % (S, S, RD + 3))
    A("v_fmac_f32 v%d, v%d, v%d" % (Q, RD + 2, RD + 2))
    A("v_fmac_f32 v%d, v%d, v%d" % (Q, RD + 3, RD + 3))
    A.nop(1)
    row_allsum16(A, [S, Q], [T + 2, T + 3])
    A("v_mov_b64 v[%d:%d], v[%d:%d]" % (T + 2, T + 3, S, Q))
    A.nop(2)
    A("v_permlane16_swap_b32 v%d, v%d" % (S, T + 2))
    A("v_permlane16_swap_b32 v%d, v%d" % (Q, T + 3))
    A("v_pk_add_f32 v[%d:%d], v[%d:%d], v[%d:%d]" % (S, Q, S, Q, T + 2, T + 3))
    A("ds_write_b64 v%d, v[%d:%d]" % (T + 5, S, Q))
    A("s_waitcnt lgkmcnt(0)")
    A("s_barrier")
    rtp(A, 13)
    ldone = A.newlabel("Lrdone"); lfin = A.newlabel("Lfin")
    A("s_cmp_lg_u32 s%d, 0" % S_WAVE)
    A("s_cbranch_scc1 %s" % ldone)
    rd128(A, RB + 8, T + 6, 0)
    rd128(A, RB, T + 7, 0); rd128(A, RB + 4, T + 7, 16)
    final_cond(A)
    A("s_waitcnt lgkmcnt(2)")
    A("s_cbranch_scc1 %s" % lfin)
    A("global_store_dwordx4 v%d, v[%d:%d], s[%d:%d] sc1" % (VL16, RB + 8, RB + 11, sX, sX + 1))
    U = RB + 16
    for r in range(4):
        A("v_lshlrev_b32 v%d, 16, v%d" % (U + 2 * r, RB + 8 + r))
        A("v_and_b32 v%d, 0xffff0000, v%d" % (U + 2 * r + 1, RB + 8 + r))
    A("s_waitcnt lgkmcnt(0)")
    A("v_pk_add_f32 v[%d:%d], v[%d:%d], v[%d:%d]" % (RB, RB + 1, RB, RB + 1, RB + 2, RB + 3))
    A("v_pk_add_f32 v[%d:%d], v[%d:%d], v[%d:%d]" % (RB + 4, RB + 5, RB + 4, RB + 5, RB + 6, RB + 7))
    A("v_pk_add_f32 v[%d:%d], v[%d:%d], v[%d:%d]" % (RB, RB + 1, RB, RB + 1, RB + 4, RB + 5))
    ln_finish(A, RB, RB + 1, T)
    for r in range(8):
        A("v_sub_f32 v%d, v%d, v%d" % (U + r, U + r, T))
        A("v_mul_f32 v%d, v%d, v%d" % (U + r, U + r, T + 1))
    for r in range(4): cvt(A, RB + 12 + r, U + 2 * r, U + 2 * r + 1)
    A("v_min_u32 v%d, -2, v%d" % (RB + 12, RB + 12))
    A("s_and_b32 s40, s%d, 15" % S_HEAD)
    A("s_lshl_b32 s40, s40, 4")
    A("v_xor_b32 v%d, s40, v%d" % (T + 2, VL16))
    A("global_store_dwordx4 v%d, v[%d:%d], s[%d:%d] sc1" % (T + 2, RB + 12, RB + 15, sY, sY + 1))
    if defer is None:
        A("v_mov_b32 v%d, 1" % (T + 1))
        A("s_waitcnt vmcnt(0)")
        one_lane(A, "global_store_dword v%d, v%d, s[%d:%d] sc1" % (VL16, T + 1, sOF, sOF + 1))
    else:
        A("s_mov_b64 s[%d:%d], s[%d:%d]" % (defer + 1, defer + 2, sOF, sOF + 1))
        A("s_mov_b32 s%d, 1" % defer)
    A.label(ldone)
    def blk(A):
        A.label(lfin)
        A("global_store_dwordx4 v%d, v[%d:%d], s[%d:%d]" % (VL16, RB + 8, RB + 11, sX, sX + 1))
        A("s_waitcnt lgkmcnt(0)")
        A("s_branch %s" % ldone)
    cold.add(blk)

def flush_deferred(A, defer, VL16, ONE):
    l = A.newlabel("Lfd")
    A("s_cmp_eq_u32 s%d, 0" % defer)
    A("s_cbranch_scc1 %s" % l)
    one_lane(A, "global_store_dword v%d, v%d, s[%d:%d] sc1" % (VL16, ONE, defer + 1, defer + 2))
    A("s_mov_b32 s%d, 0" % defer)
    A.label(l)

def ln_finish(A, S, Q, T):
    A("v_mul_f32 v%d, 0x%x, v%d" % (T, f32bits(1 / 512), S))
    A("v_mul_f32 v%d, 0x%x, v%d" % (T + 1, f32bits(1 / 512), Q))
    A("v_fma_f32 v%d, -v%d, v%d, v%d" % (T + 1, T, T, T + 1))
    A("v_max_f32 v%d, 0, v%d" % (T + 1, T + 1))
    A("v_add_f32 v%d, 0x%x, v%d" % (T + 1, f32bits(1e-5), T + 1))
    A("v_rsq_f32 v%d, v%d" % (T + 1, T + 1))
    A.nop(1)

def zero_flags(A, NP1):
    A("s_lshl_b32 s37, s%d, 5" % S_GRP)
    A("s_add_u32 s37, s37, s%d" % S_HEAD)
    A("s_sub_u32 s37, s37, 32")
    A("s_mul_i32 s37, s37, %d" % (0x20000 // (32 * NP1)))
    A("v_lshl_add_u32 v52, v0, 4, s37")
    A("v_mov_b64 v[68:69], 0"); A("v_mov_b64 v[70:71], 0")
    per = 0x20000 // (32 * NP1)
    assert per in (2048, 4096)
    if per == 2048:
        l = A.newlabel("Lz")
        A("s_cmp_ge_u32 s%d, 2" % S_WAVE)
        A("s_cbranch_scc1 %s" % l)
    A("global_store_dwordx4 v52, v[68:71], s[%d:%d] sc1" % (S_WS, S_WS + 1))
    if per == 2048: A.label(l)

def pack_wqkv(A):
    A("s_lshl_b32 s37, s%d, 5" % S_GRP)
    A("s_add_u32 s37, s37, s%d" % S_HEAD)
    A("s_sub_u32 s37, s37, 32")
    A("s_mul_i32 s38, s37, %d" % (8 * 3072))
    A("s_mul_i32 s39, s%d, 6144" % S_WAVE)
    A("s_add_u32 s38, s38, s39")
    sadd64(A, 42, S_WQKV, "s38")
    sadd64(A, 44, 42, 3072)
    A("v_and_b32 v53, 63, v0")
    A("v_lshlrev_b32 v54, 4, v53")
    A("s_mov_b32 m0, s39")
    A("s_add_u32 s39, s39, 3072")
    for i in range(3): A("global_load_lds_dwordx4 v54, s[42:43] offset:%d" % (i * 1024))
    A("s_mov_b32 m0, s39")
    A("s_nop 0")
    for i in range(3): A("global_load_lds_dwordx4 v54, s[44:45] offset:%d" % (i * 1024))
    A("v_bfe_u32 v55, v53, 1, 3")
    A("v_lshrrev_b32 v56, 4, v53")
    A("v_and_b32 v57, 1, v53")
    A("v_lshlrev_b32 v57, 4, v57")
    A("v_mul_u32_u24 v58, 3072, v55")
    A("v_lshl_add_u32 v58, v56, 5, v58")
    A("v_add_u32 v58, v58, v57")
    A("s_lshl_b32 s39, s%d, 8" % S_WAVE)
    A("v_add_u32 v58, s39, v58")
    A("v_mul_u32_u24 v59, 49152, v56")
    A("v_lshl_add_u32 v59, v55, 5, v59")
    A("v_add_u32 v59, v59, v57")
    A("s_mul_i32 s38, s37, 768")
    A("s_mul_i32 s39, s%d, %d" % (S_WAVE, 8 * 49152))
    A("s_add_u32 s38, s38, s39")
    A("s_add_u32 s38, s38, 0x%x" % OFF_WP)
    sadd64(A, 42, S_WS, "s38")
    sadd64(A, 44, 42, 4 * 49152)
    A("s_waitcnt vmcnt(0)")
    A("s_barrier")
    for k in range(2):
        for t in range(3): rd128(A, 72 + 4 * (3 * k + t), 58, t * 1024 + k * 128)
    for k in range(2):
        for t in range(3):
            A("s_waitcnt lgkmcnt(%d)" % (5 - 3 * k - t))
            A("global_store_dwordx4 v59, v[%d:%d], s[%d:%d] offset:%d sc1" % (72 + 4 * (3 * k + t), 75 + 4 * (3 * k + t), 42 + 2 * k, 43 + 2 * k, t * 256))

def arm_akv(A, NA0, NA):
    A("s_lshl_b32 s37, s%d, 5" % S_GRP)
    A("s_add_u32 s37, s37, s%d" % S_HEAD)
    A("s_sub_u32 s37, s37, 32")
    A("s_and_b32 s38, s37, 1")
    A("s_lshl_b32 s38, s38, 2")
    A("s_add_u32 s38, s38, s%d" % S_WAVE)
    A("s_min_u32 s38, s38, %d" % (NA0 + NA - 1))
    A("s_lshr_b32 s37, s37, 1")
    A("s_lshl_b32 s37, s37, 14")
    A("s_cmp_ge_u32 s38, %d" % NA0)
    A("s_cselect_b32 s39, %d, 0" % (32 * 16384 - NA0 * 2048))
    A("s_lshl_b32 s38, s38, 11")
    A("s_add_u32 s37, s37, s38")
    A("s_add_u32 s37, s37, s39")
    A("s_add_u32 s37, s37, 0x%x" % OFF_AKV)
    A("v_and_b32 v60, 63, v0")
    A("v_lshl_add_u32 v60, v60, 4, s37")
    A("v_mov_b64 v[64:65], -1"); A("v_mov_b64 v[66:67], -1")
    for k in range(2): A("global_store_dwordx4 v60, v[64:67], s[%d:%d] offset:%d sc1" % (S_WS, S_WS + 1, 1024 * k))

def arm_rows(A):
    l = A.newlabel("Lar")
    A("s_cmp_eq_u32 s%d, 3" % S_WAVE)
    A("s_cbranch_scc1 %s" % l)
    A("s_lshl_b32 s37, s%d, 5" % S_GRP)
    A("s_add_u32 s37, s37, s%d" % S_HEAD)
    A("s_sub_u32 s37, s37, 32")
    A("s_mul_i32 s37, s37, 3")
    A("s_add_u32 s37, s37, s%d" % S_WAVE)
    A("s_lshr_b32 s38, s37, 6")
    A("s_and_b32 s37, s37, 63")
    A("s_lshl_b32 s37, s37, 10")
    A("s_lshl_b32 s39, s38, 21")
    A("s_add_u32 s39, s39, 0x%x" % OFF_Y1)
    A("s_cmp_eq_u32 s38, 2")
    A("s_cselect_b32 s39, 0x%x, s39" % (OFF_Y2 + Y2_POLL * 32768))
    A("s_add_u32 s37, s37, s39")
    A("v_and_b32 v61, 63, v0")
    A("v_lshl_add_u32 v61, v61, 4, s37")
    A("global_store_dwordx4 v61, v[64:67], s[%d:%d] sc1" % (S_WS, S_WS + 1))
    A.label(l)

NROW = 4
def prepass0(A, sAG, NA0):
    A("s_lshl_b32 s38, s%d, 2" % S_HEAD)
    A("s_add_u32 s38, s38, s%d" % S_WAVE)
    A("v_and_b32 v52, 63, v0")
    A("v_lshlrev_b32 v52, 4, v52")
    A("s_lshr_b32 s39, s38, 5")
    A("s_and_b32 s38, s38, 31")
    assert 4 * NROW * NA0 >= 64
    for k in range(NROW):
        A("s_add_u32 s40, s39, %d" % (4 * k))
        A("s_mul_i32 s40, s40, %d" % NA0)
        A("s_add_u32 s40, s40, s%d" % sAG)
        if k == 0: A("s_mov_b32 s41, s40")
        A("s_cmp_lt_u32 s40, 64")
        A("s_cselect_b32 s40, s40, s41")
        A("s_lshl_b32 s40, s40, 5")
        A("s_add_u32 s40, s40, s38")
        A("s_lshl_b32 s40, s40, 10")
        A("v_add_u32 v%d, s40, v52" % (112 + k))
        A("global_load_dwordx4 v[%d:%d], v%d, s[%d:%d]" % (56 + 4 * k, 59 + 4 * k, 112 + k, S_AX, S_AX + 1))
    A("s_and_b32 s38, s38, 15")
    A("s_lshl_b32 s38, s38, 4")

def prepass1(A, behind_dma):
    sadd64(A, 42, S_WS, OFF_Y0)
    A("s_waitcnt vmcnt(%d)" % (4 if behind_dma else 0))
    rt_stamp(A, _RT0, 490, 118, 119)
    ST = 160
    for k in range(NROW):
        X = 56 + 4 * k; U = 72 + 8 * k; S, Q = ST + 2 * k, ST + 1 + 2 * k
        for r in range(4):
            A("v_lshlrev_b32 v%d, 16, v%d" % (U + 2 * r, X + r))
            A("v_and_b32 v%d, 0xffff0000, v%d" % (U + 2 * r + 1, X + r))
        A("v_add_f32 v%d, v%d, v%d" % (S, U, U + 1))
        A("v_mul_f32 v%d, v%d, v%d" % (Q, U, U))
        A("v_fmac_f32 v%d, v%d, v%d" % (Q, U + 1, U + 1))
        for r in range(2, 8):
            A("v_add_f32 v%d, v%d, v%d" % (S, S, U + r))
            A("v_fmac_f32 v%d, v%d, v%d" % (Q, U + r, U + r))
    A.nop(1)
    rg = [ST + r for r in range(2 * NROW)]; tm = [ST + 2 * NROW + r for r in range(2 * NROW)]
    row_allsum16(A, rg, tm)
    for which in (16, 32):
        for r in range(2 * NROW): A("v_mov_b32 v%d, v%d" % (tm[r], rg[r]))
        for r in range(2 * NROW): A("v_permlane%d_swap_b32 v%d, v%d" % (which, rg[r], tm[r]))
        for r in range(2 * NROW): A("v_add_f32 v%d, v%d, v%d" % (rg[r], rg[r], tm[r]))
    for k in range(NROW):
        X = 56 + 4 * k; U = 72 + 8 * k
        ln_finish(A, ST + 2 * k, ST + 1 + 2 * k, 116)
        for r in range(8):
            A("v_sub_f32 v%d, v%d, v116" % (U + r, U + r))
            A("v_mul_f32 v%d, v%d, v117" % (U + r, U + r))
        for r in range(4): cvt(A, X + r, U + 2 * r, U + 2 * r + 1)
        A("v_xor_b32 v%d, s38, v%d" % (112 + k, 112 + k))
        A("global_store_dwordx4 v%d, v[%d:%d], s[42:43] sc1" % (112 + k, X, X + 3))

def publish_partials(A, cold, T, sPF):
    A("s_lshl_b32 s40, s%d, 2" % S_HEAD)
    A("v_mov_b32 v%d, s40" % T)
    A("v_mov_b32 v%d, 1" % (T + 1))
    rtp(A, 8)
    A("s_waitcnt vmcnt(0)")
    rtp(A, 9)
    A("s_barrier")
    l = A.newlabel("Lpp")
    A("s_cmp_lg_u32 s%d, 1" % S_WAVE)
    A("s_cbranch_scc1 %s" % l)
    A("s_mov_b64 exec, 1")
    store_mixed(A, cold, ["global_store_dword v%d, v%d, s[%d:%d]" % (T, T + 1, sPF, sPF + 1)])
    A("s_mov_b64 exec, -1")
    A.label(l)

def wqw(t, c):
    return 256 + 64 * t + 8 * c if t < 4 else 128 + 64 * (t - 4) + 8 * c

def frag_addrs(A, VA4, T):
    A("v_and_b32 v%d, 15, v0" % T)
    A("v_bfe_u32 v%d, v0, 4, 2" % (T + 1))
    for q in range(4):
        A("v_add_u32 v%d, %d, v%d" % (T + 2, 4 * q, T + 1))
        A("v_xor_b32 v%d, v%d, v%d" % (T + 2, T + 2, T))
        A("v_lshlrev_b32 v%d, 4, v%d" % (T + 2, T + 2))
        A("v_lshl_add_u32 v%d, v%d, 10, v%d" % (VA4 + q, T, T + 2))

def signal_last(A, T, lds_off, text):
    l = A.newlabel("Lsg")
    A("v_mov_b32 v%d, %d" % (T, lds_off))
    A("v_mov_b32 v%d, 1" % (T + 1))
    A("s_mov_b64 exec, 1")
    A("ds_add_rtn_u32 v%d, v%d, v%d" % (T, T, T + 1))
    A("s_waitcnt lgkmcnt(0)")
    A("v_readfirstlane_b32 s40, v%d" % T)
    A("s_and_b32 s40, s40, 3")
    A("s_cmp_lg_u32 s40, 3")
    A("s_cbranch_scc1 %s" % l)
    for t in text: A(t)
    A.label(l)
    A("s_mov_b64 exec, -1")

def rts(A, opt, sL, sSEG, base, W):
    if opt.get("rt"):
        A("s_lshl_b32 s97, s%d, 6" % sL)
        A("s_add_u32 s97, s97, s%d" % sSEG)
        A("s_add_u32 s97, s97, %d" % base)
        rt_stamp(A, opt, "s97", W, W + 1)

_RTP = {"opt": None, "it": 50}
def rtp(A, k, va=240):
    opt = _RTP["opt"]
    if not opt or not opt.get("rt2"): return
    l = A.newlabel("Lrtp")
    A("s_cmp_lg_u32 s%d, %d" % (_RTP["it"], opt.get("rtp1" if _RTP["it"] != 50 else "rtit", 20)))
    A("s_cbranch_scc1 %s" % l)
    rt_stamp(A, dict(rt=1), 460 + k, va, va + 1)
    A.label(l)

def pack(A, dst, a0, a1):
    cvt(A, dst, a0, a0 + 1); cvt(A, dst + 1, a0 + 2, a0 + 3); cvt(A, dst + 2, a1, a1 + 1); cvt(A, dst + 3, a1 + 2, a1 + 3)

def tile_off(A, dst, sL, sSEG):
    A("s_lshl_b32 s40, s%d, 6" % sL)
    A("s_add_u32 s40, s40, s%d" % sSEG)
    A("s_lshl_b32 s%d, s40, 5" % dst)
    A("s_add_u32 s%d, s%d, s%d" % (dst, dst, S_HEAD))
    A("s_lshl_b32 s%d, s%d, 13" % (dst, dst))
def head_flag(A, dst, base, sL, sSEG, shift):
    A("s_lshl_b32 s41, s%d, 5" % sL)
    A("s_add_u32 s41, s41, s%d" % S_HEAD)
    A("s_lshl_b32 s41, s41, 6")
    A("s_add_u32 s41, s41, s%d" % sSEG)
    A("s_lshl_b32 s41, s41, %d" % shift)
    A("s_add_u32 s41, s41, 0x%x" % base)
    sadd64(A, dst, S_WS, "s41")

def gen_p1(A, opt):
    cold = Cold()
    NP1 = opt["NP1"]
    VY, VW2K, VL16, VKST, VFL, ZERO, ONE, VF = range(1, 9)
    VA4 = 10
    L_CNT = 65536
    W = 16
    sL, sSEG, sNX, sPF, sSLOT, sT = 48, 49, 50, 51, 66, 67
    sA, sB, sCc, sD, sE, sF, sG, sGP = 52, 54, 56, 58, 60, 62, 64, 68
    A.label("L_p1")
    T = 40
    A("v_and_b32 v%d, 63, v0" % T)
    A("v_and_b32 v%d, 15, v0" % (T + 1))
    A("v_bfe_u32 v%d, v0, 4, 2" % (T + 2))
    A("v_lshlrev_b32 v%d, 4, v%d" % (VY, T))
    A("s_lshl_b32 s40, s%d, 11" % S_WAVE)
    A("v_add_u32 v%d, s40, v%d" % (VW2K, VY))
    A("v_mov_b32 v%d, v%d" % (VL16, VY))
    frag_addrs(A, VA4, T + 3)
    A("s_lshl_b32 s40, s%d, 10" % S_WAVE)
    A("v_add_u32 v%d, s40, v%d" % (VKST, VY))
    A("v_and_b32 v%d, 31, v0" % VFL)
    A("v_lshlrev_b32 v%d, 2, v%d" % (VFL, VFL))
    A("v_mov_b32 v%d, 0" % ZERO)
    A("v_mov_b32 v%d, 1" % ONE)
    assert NP1 == 2
    zero_flags(A, NP1)
    arm_akv(A, opt["NA"] + opt["NP2"], opt["NA"])
    arm_rows(A)
    pack_wqkv(A)
    opt["arrive"](A, "flags")
    rt_stamp(A, opt, 492, 110, 111)
    for _ in range(opt.get("p1z", 0) // 50): A("s_sleep 50")
    load_head_weights(A, 40, wqw, False)
    rt_stamp(A, opt, 501, 40, 41)
    opt["init_wait"](A)
    opt["init_wait"](A, kind="chain")
    A("v_mov_b32 v%d, %d" % (W, L_CNT))
    A("v_mov_b64 v[%d:%d], 0" % (W + 2, W + 3))
    A("ds_write_b64 v%d, v[%d:%d]" % (W, W + 2, W + 3))
    A("s_waitcnt lgkmcnt(0)")
    A("s_barrier")
    A("s_mov_b32 s%d, 0" % sL)
    A("s_lshl_b32 s%d, s%d, 13" % (sSLOT, S_WAVE))

    def xflag(dst, sseg):
        A("s_lshl_b32 s40, s%d, 6" % sL)
        A("s_add_u32 s40, s40, s%d" % sseg)
        A("s_lshl_b32 s41, s40, 7")
        A("s_add_u32 s41, s41, 0x%x" % F_X1); sadd64(A, dst, S_WS, "s41")
    def dma(sseg):
        A("s_lshl_b32 s40, s%d, 6" % sL)
        A("s_add_u32 s40, s40, s%d" % sseg)
        A("s_lshl_b32 s41, s40, 15")
        A("s_lshl_b32 s42, s%d, 13" % S_WAVE)
        A("s_add_u32 s41, s41, s42")
        A("s_add_u32 s41, s41, 0x%x" % OFF_Y1); sadd64(A, sB, S_WS, "s41")
        sadd64(A, sCc, sB, 4096)
        for hf in range(2):
            A("s_add_u32 s43, s%d, %d" % (sSLOT, hf * 4096))
            A("s_mov_b32 m0, s43")
            A("s_nop 0")
            b = sB if hf == 0 else sCc
            for i in range(4): A("global_load_lds_dwordx4 v%d, s[%d:%d] offset:%d sc1" % (VL16, b, b + 1, i * 1024))
        A("s_xor_b32 s%d, s%d, 32768" % (sSLOT, sSLOT))

    def yrd(dst, ks):
        rd128(A, dst, VA4 + (ks & 3), (ks >> 2) * 256); rd128(A, dst + 4, VA4 + (ks & 3), (ks >> 2) * 256 + 16384)
    A.label("L_p1_layer")
    A("s_sub_u32 s%d, s%d, 1" % (sSEG, S_GRP))
    A("s_lshl_b32 s40, s%d, 6" % sL)
    A("s_add_u32 s40, s40, s%d" % sSEG)
    A("s_lshl_b32 s41, s40, 15")
    A("s_lshl_b32 s42, s%d, 13" % S_WAVE)
    A("s_add_u32 s41, s41, s42")
    A("s_add_u32 s41, s41, 0x%x" % OFF_Y1); sadd64(A, sB, S_WS, "s41")
    sadd64(A, sCc, sB, 4096)
    A("v_add_u32 v%d, s%d, v%d" % (W + 1, sSLOT, VL16))
    poll_tile(A, [(VL16, sB if i < 4 else sCc, (i & 3) * 1024) for i in range(8)], 96, W, [(W + 1, i * 1024) for i in range(8)])
    A("s_xor_b32 s%d, s%d, 32768" % (sSLOT, sSLOT))
    _RTP["opt"] = opt; _RTP["it"] = sSEG
    rtp(A, 15, 20)
    head_flag(A, sGP, F_KV, sL, sSEG, 2)
    A.label("L_p1_loop")
    _RTP["opt"] = opt; _RTP["it"] = sSEG
    rtp(A, 0, 20)
    A("s_barrier")
    ACC, YF = 32, 80
    yrd(YF, 0)
    A("s_add_u32 s%d, s%d, %d" % (sNX, sSEG, NP1))
    A("s_min_u32 s44, s%d, 63" % sNX)
    xflag(sA, 44)
    tile_off(A, sT, sL, sSEG)
    A("s_add_u32 s41, s%d, 0x%x" % (sT, OFF_KX)); sadd64(A, sD, S_WS, "s41")
    A("s_add_u32 s41, s%d, 0x%x" % (sT, OFF_VX)); sadd64(A, sE, S_WS, "s41")
    A("s_add_u32 s41, s%d, 0x%x" % (sT, OFF_QX)); sadd64(A, sF, S_WS, "s41")
    head_flag(A, sG, F_KV, sL, sSEG, 2)
    acc = lambda t, mt: ACC + (t * 2 + mt) * 4
    rtp(A, 3, 20)
    O = 96
    for tiles in ((2, 3, 4, 5), (0, 1)):
        for ks in range(16):
            y = YF + 8 * (ks & 1)
            last = ks == 15 and tiles == (0, 1)
            if not last:
                kn = (ks + 1) & 15
                yrd(YF + 8 * (kn & 1), kn)
            A("s_waitcnt lgkmcnt(%d)" % (0 if last else 2))
            for t in tiles:
                wf = wqw(t, 0) + 4 * ks
                for mt in range(2):
                    c = "0" if ks == 0 else acc(t, mt)
                    if t < 4: mfma(A, acc(t, mt), wf, y + 4 * mt, c)
                    else: mfma(A, acc(t, mt), y + 4 * mt, wf, c)
            if ks == 15: rtp(A, 4 if tiles != (0, 1) else 5, 20)
            if tiles != (0, 1) and ks == 12:
                A("global_load_dword v%d, v%d, s[%d:%d] sc1" % (VF, VFL, sA, sA + 1))
            if tiles == (0, 1):
                if ks in (1, 2):
                    mt = ks - 1
                    pack(A, O + 4 * mt, acc(2, mt), acc(3, mt))
                    A("v_min_u32 v%d, -2, v%d" % (O + 4 * mt, O + 4 * mt))
                    if mt == 1: sadd64(A, sD, sD, 4096)
                    A("global_store_dwordx4 v%d, v[%d:%d], s[%d:%d] sc1" % (VKST, O + 4 * mt, O + 4 * mt + 3, sD, sD + 1))
                if ks in (3, 4):
                    Tt = ks - 3
                    pack(A, O + 8 + 4 * Tt, acc(4 + Tt, 0), acc(4 + Tt, 1))
                    A("v_min_u32 v%d, -2, v%d" % (O + 8 + 4 * Tt, O + 8 + 4 * Tt))
                    A("global_store_dwordx4 v%d, v[%d:%d], s[%d:%d] offset:%d sc1" % (VW2K, O + 8 + 4 * Tt, O + 11 + 4 * Tt, sE, sE + 1, 1024 * Tt))
                if ks == 5:
                    A("s_waitcnt vmcnt(4)")
                    A("v_cmp_eq_u32 vcc, 0, v%d" % VF)
                    A("s_mov_b32 s%d, 0" % sPF)
                    A("s_cmp_ge_u32 s%d, 64" % sNX)
                    A("s_cbranch_scc1 L_p1_nopre")
                    A("s_cbranch_vccnz L_p1_nopre")
                    dma(sNX)
                    A("s_mov_b32 s%d, 1" % sPF)
                    A.label("L_p1_nopre")
    for q in range(4): A("v_xor_b32 v%d, 32768, v%d" % (VA4 + q, VA4 + q))
    A.nop(4)
    for mt in range(2): pack(A, O + 16 + 4 * mt, acc(0, mt), acc(1, mt))
    A("s_waitcnt vmcnt(0)")
    rtp(A, 6, 20)
    signal_last(A, W, L_CNT, ["global_store_dword v%d, v%d, s[%d:%d] sc1" % (ZERO, ONE, sG, sG + 1),
                              "global_store_dword v%d, v%d, s[%d:%d] sc1" % (ZERO, ONE, sGP, sGP + 1)])
    for mt in range(2):
        if mt == 1: sadd64(A, sF, sF, 4096)
        A("global_store_dwordx4 v%d, v[%d:%d], s[%d:%d] sc1" % (VKST, O + 16 + 4 * mt, O + 19 + 4 * mt, sF, sF + 1))
    rtp(A, 8, 20)
    rts(A, opt, sL, sSEG, 0, W)
    sadd64(A, sGP, sG, F_Q - F_KV)
    A("s_mov_b32 s%d, s%d" % (sSEG, sNX))
    A("s_cmp_eq_u32 s%d, 1" % sPF)
    A("s_cbranch_scc1 L_p1_loop")
    A("s_cmp_ge_u32 s%d, 64" % sSEG)
    A("s_cbranch_scc1 L_p1_flush")
    wait_flags(A, W, VFL, sA, sleep=1)
    dma(sSEG)
    A("s_waitcnt vmcnt(0)")
    A("s_branch L_p1_loop")
    A.label("L_p1_flush")
    A("s_waitcnt vmcnt(0)")
    signal_last(A, W, L_CNT + 4, ["global_store_dword v%d, v%d, s[%d:%d] sc1" % (ZERO, ONE, sGP, sGP + 1)])
    A.label("L_p1_next")
    A("s_add_u32 s%d, s%d, 1" % (sL, sL))
    A("s_cmp_lt_u32 s%d, %d" % (sL, opt.get("layers", 2)))
    A("s_cbranch_scc1 L_p1_layer")
    A("s_branch L_end")
    cold.emit(A)

def gen_p2(A, opt):
    cold = Cold()
    NP1, NP2 = opt["NP1"], opt["NP2"]
    VL16, VW2K, VS, VF8, VZR, VZW, VF, VPST, VRLD, VROW, VFL = range(1, 12)
    SEL, BIAS = 12, 16
    VQF, VVF, VOW, VKM, ZERO, PMA, PMB = 24, 25, 26, 27, 29, 28, 30
    W = 32
    RW = 144
    VTW, VTR = 208, 212
    sRING = 84
    L_TP = 65536
    WO = 256
    SLOT = 24576
    L_Q, L_K, L_V, L_Z, L_O, L_ST = 0, 8192, 16384, 49152, 53248, 61440
    sL, sSEG, sIT, sC = 48, 49, 50, 51
    sA, sB, sCc, sD, sE, sF, sG, sH, sX, sY = 52, 54, 56, 58, 60, 62, 64, 68, 70, 72
    sT, sNX, sPRE, sSLOT = 66, 67, 74, 75
    sDEF, sMM, sKP, sKN = 77, 80, 76, 82
    VFM, VL4, ONE, KE2 = 216, 217, 218, 220
    A.label("L_p2")
    A("s_barrier")
    T = 40
    A("v_and_b32 v%d, 63, v0" % T)
    A("v_and_b32 v%d, 15, v0" % (T + 1))
    A("v_bfe_u32 v%d, v0, 4, 2" % (T + 2))
    A("v_lshlrev_b32 v%d, 4, v%d" % (VL16, T))
    A("v_mov_b32 v%d, v%d" % (VS, VL16))
    A("s_lshl_b32 s40, s%d, 11" % S_WAVE)
    A("v_add_u32 v%d, s40, v%d" % (VW2K, VL16))
    A("s_mov_b32 s%d, s40" % sSLOT)
    A("s_lshl_b32 s41, s%d, 8" % S_WAVE)
    A("v_lshlrev_b32 v%d, 15, v%d" % (VPST, T + 2))
    A("v_lshl_add_u32 v%d, v%d, 4, v%d" % (VPST, T + 1, VPST))
    A("v_add_u32 v%d, s41, v%d" % (VPST, VPST))
    A("s_lshl_b32 s41, s%d, 13" % S_WAVE)
    A("s_add_u32 s41, s41, %d" % L_TP)
    for b in range(4):
        A("v_add_u32 v%d, %d, v%d" % (T + 3, 4 * b, T + 2))
        A("v_xor_b32 v%d, v%d, v%d" % (T + 3, T + 3, T + 1))
        A("v_lshlrev_b32 v%d, 4, v%d" % (T + 3, T + 3))
        A("v_lshl_add_u32 v%d, v%d, 8, v%d" % (T + 3, T + 1, T + 3))
        A("v_add_u32 v%d, s41, v%d" % (VTW + b, T + 3))
        A("v_lshlrev_b32 v%d, 8, v%d" % (T + 4, T + 2))
        A("v_lshl_add_u32 v%d, v%d, 0, v%d" % (T + 3, T + 3, T + 4))
        A("v_lshlrev_b32 v%d, 8, v%d" % (T + 4, T + 1))
        A("v_sub_u32 v%d, v%d, v%d" % (T + 3, T + 3, T + 4))
        A("v_add_u32 v%d, s41, v%d" % (VTR + b, T + 3))
    A("s_lshl_b32 s40, s%d, 10" % S_WAVE)
    A("v_lshlrev_b32 v%d, 3, v%d" % (VZR, T))
    A("v_lshlrev_b32 v%d, 5, v%d" % (VZW, T + 1))
    A("v_lshl_add_u32 v%d, v%d, 3, v%d" % (VZW, T + 2, VZW))
    A("v_add_u32 v%d, s40, v%d" % (VZW, VZW))
    A("v_and_b32 v%d, 1, v0" % VF8)
    A("v_mul_u32_u24 v%d, 0x%x, v%d" % (VF8, F_Q - F_KV, VF8))
    A("s_and_b32 s42, s%d, 1" % S_WAVE)
    A("s_lshr_b32 s43, s%d, 1" % S_WAVE)
    A("s_lshl_b32 s40, s42, 12")
    A("v_add_u32 v%d, s40, v%d" % (VQF, VL16))
    A("s_lshl_b32 s41, s43, 11")
    A("v_add_u32 v%d, s41, v%d" % (VOW, VQF))
    A("s_lshl_b32 s41, s43, 12")
    A("v_add_u32 v%d, s41, v%d" % (VVF, VL16))
    A("v_add_u32 v%d, 8, v%d" % (VKM, VVF))
    A("s_lshl_b32 s40, s42, 4")
    A("v_add_u32 v%d, s40, v%d" % (T + 3, T + 1))
    A("v_lshlrev_b32 v%d, 2, v%d" % (T + 4, T + 2))
    A("v_mov_b32 v%d, 0x%x" % (T + 6, f32bits(-1e30)))
    for kt in range(2):
        for r in range(4):
            A("v_add_u32 v%d, %d, v%d" % (T + 5, 16 * kt + r, T + 4))
            A("v_cmp_gt_u32 vcc, v%d, v%d" % (T + 5, T + 3))
            A.nop(2)
            A("v_cndmask_b32 v%d, 0, v%d, vcc" % (BIAS + 4 * kt + r, T + 6))
    A("v_mov_b64 v[28:29], 0"); A("v_mov_b64 v[30:31], 0")
    sel_const(A, SEL, T + 5)
    reduce_consts(A, VRLD, VROW, VFL, T + 5)
    A("s_mov_b32 s%d, 0x%x" % (sC, f32bits(128 ** -0.5 * LOG2E)))
    A("v_lshrrev_b32 v%d, 2, v%d" % (T + 5, T))
    A("v_lshlrev_b32 v%d, 10, v%d" % (T + 5, T + 5))
    A("v_and_b32 v%d, 3, v%d" % (T + 6, T))
    A("v_lshl_add_u32 v%d, v%d, 4, v%d" % (T + 5, T + 6, T + 5))
    A("s_lshl_b32 s40, s%d, 17" % S_HEAD)
    A("s_lshl_b32 s41, s%d, 8" % S_WAVE)
    A("s_add_u32 s40, s40, s41")
    A("v_add_u32 v%d, s40, v%d" % (T + 5, T + 5))
    A("s_lshl_b32 s46, s%d, 15" % S_WAVE)
    for b in range(4):
        for i in range(8):
            sadd64(A, sA, S_WO, b * 64 + i * 16384)
            A("s_add_u32 s44, s46, %d" % (b * 8192 + i * 1024))
            A("s_mov_b32 m0, s44")
            A("s_nop 0")
            A("global_load_lds_dwordx4 v%d, s[%d:%d]" % (T + 5, sA, sA + 1))
    A("v_bfe_u32 v%d, v0, 2, 2" % (T + 7))
    A("v_add_u32 v%d, v%d, v%d" % (T + 7, T + 7, T + 4))
    A("v_lshlrev_b32 v%d, 6, v%d" % (T + 7, T + 7))
    A("v_lshl_add_u32 v%d, v%d, 4, v%d" % (T + 7, T + 6, T + 7))
    A("v_add_u32 v%d, s46, v%d" % (T + 7, T + 7))
    for b in range(4):
        A("s_waitcnt vmcnt(%d)" % (8 * (3 - b)))
        for P in range(2):
            for f in range(4):
                for hh in range(2):
                    A("ds_read_b64_tr_b16 %s, v%d offset:%d" % (R(WO + ((b * 2 + P) * 4 + f) * 4 + 2 * hh, 2), T + 7, b * 8192 + (32 * f + 16 * hh) * 64 + P * 8))
        A("s_waitcnt lgkmcnt(0)")
    rt_stamp(A, opt, 501, 40, 41)
    A("s_barrier")
    A("s_mov_b32 s%d, 0" % sL)
    A("s_mov_b32 s%d, 0" % sDEF)
    A("s_mov_b64 s[%d:%d], s[%d:%d]" % (sDEF + 1, sDEF + 2, S_WS, S_WS + 1))
    A("v_lshrrev_b32 v%d, 2, v%d" % (VL4, VL16))
    A("v_mov_b32 v%d, 1" % ONE)

    def dma(sseg):
        tile_off(A, 45, sL, sseg)
        for k, off in enumerate((OFF_QX, OFF_KX, OFF_VX)):
            A("s_add_u32 s41, s45, 0x%x" % off); sadd64(A, 42, S_WS, "s41")
            A("s_add_u32 s44, s%d, %d" % (sSLOT, k * 8192))
            A("s_mov_b32 m0, s44")
            A("s_nop 0")
            A("global_load_lds_dwordx4 v%d, s[42:43] sc1" % VW2K)
            A("global_load_lds_dwordx4 v%d, s[42:43] offset:1024 sc1" % VW2K)
        A("s_cmp_ge_u32 s%d, %d" % (sSLOT, SLOT))
        A("s_cselect_b32 s44, %d, %d" % (-SLOT, SLOT)) if False else None
        A("s_mov_b32 s44, %d" % SLOT)
        A("s_cselect_b32 s44, %d, s44" % -SLOT)
        A("s_add_u32 s%d, s%d, s44" % (sSLOT, sSLOT))

    A.label("L_p2_layer")
    A("s_sub_u32 s%d, s%d, %d" % (sSEG, S_GRP, NP1 + 1))
    head_flag(A, sH, F_KV, sL, sSEG, 2)
    A("s_mov_b64 s[%d:%d], 0" % (sMM, sMM + 1))
    A("s_mov_b32 s%d, 0" % sKP)
    A("s_mov_b32 s44, 0")
    head_flag(A, sG, F_M, sL, 44, 2)
    wait_flags(A, W, VF8, sH)
    dma(sSEG)
    A("s_waitcnt vmcnt(0)")
    A.label("L_p2_loop")
    _RTP["opt"] = opt; _RTP["it"] = 50
    rtp(A, 0)
    tile_off(A, sT, sL, sSEG)
    A("s_mov_b32 s47, s40")
    A("s_add_u32 s%d, s%d, %d" % (sNX, sSEG, NP2))
    A("s_min_u32 s44, s%d, 63" % sNX)
    head_flag(A, sH, F_KV, sL, 44, 2)
    A("s_add_u32 s41, s%d, 0x%x" % (sT, OFF_KM)); sadd64(A, sA, S_WS, "s41")
    sadd64(A, sKN, sA, NP2 * 32 * 8192)
    A("s_lshl_b32 s41, s%d, 22" % S_GRP)
    A("s_add_u32 s41, s41, s%d" % sRING)
    A("s_add_u32 s41, s41, 0x%x" % OFF_PW); sadd64(A, sB, S_WS, "s41")
    ring_next(A, sRING)
    A("s_lshl_b32 s41, s%d, 10" % S_HEAD); sadd64(A, sCc, sB, "s41")
    A("s_lshl_b32 s41, s%d, 15" % S_HEAD); sadd64(A, sB, sB, "s41")
    A("s_lshl_b32 s41, s47, 7")
    A("s_add_u32 s41, s41, 0x%x" % F_PB); sadd64(A, sE, S_WS, "s41")
    A("s_lshl_b32 s41, s%d, 5" % sSEG)
    A("s_add_u32 s41, s41, s%d" % S_HEAD)
    A("s_lshl_b32 s42, s41, 10")
    A("s_lshl_b32 s43, s%d, 21" % sL)
    A("s_add_u32 s43, s43, s42")
    A("s_add_u32 s43, s43, 0x%x" % OFF_X1); sadd64(A, 44, S_WS, "s43")
    A("global_load_dwordx2 v[%d:%d], v%d, s[44:45] sc1" % (RW + 36, RW + 37, VROW))
    A("s_add_u32 s43, s42, 0x%x" % OFF_Y2); sadd64(A, sY, S_WS, "s43")
    A("s_lshl_b32 s41, s41, 2")
    A("s_add_u32 s41, s41, 0x%x" % F_Y2); sadd64(A, sF, S_WS, "s41")
    A("s_add_u32 s43, s42, 0x%x" % OFF_X2); sadd64(A, sX, S_WS, "s43")
    A("s_cmp_eq_u32 s%d, 0" % sL)
    A("s_cbranch_scc1 L_p2_x2")
    sadd64(A, sX, S_OUT, "s42")
    A.label("L_p2_x2")
    A("global_load_dword v%d, v%d, s[%d:%d] sc1" % (VF, VF8, sH, sH + 1))
    KE, VM = 96, 100
    def km_loads(k, m, sp):
        A("global_load_dwordx2 v[%d:%d], v%d, s[%d:%d] sc1" % (k, k + 1, VW2K, sp, sp + 1))
        A("global_load_dwordx2 v[%d:%d], v%d, s[%d:%d] sc1" % (m, m + 1, VKM, sp, sp + 1))
        A("global_load_dwordx2 v[%d:%d], v%d, s[%d:%d] offset:2048 sc1" % (m + 2, m + 3, VKM, sp, sp + 1))
    A("s_cmp_eq_u32 s%d, 0" % sKP)
    A("s_cbranch_scc1 L_p2_kmwait")
    A("v_mov_b64 v[%d:%d], v[%d:%d]" % (KE, KE + 1, KE2, KE2 + 1))
    A("v_mov_b64 v[%d:%d], v[%d:%d]" % (VM, VM + 1, KE2 + 2, KE2 + 3))
    A("v_mov_b64 v[%d:%d], v[%d:%d]" % (VM + 2, VM + 3, KE2 + 4, KE2 + 5))
    A("global_load_dword v%d, v%d, s[%d:%d] sc1" % (VFM, VL4, sG, sG + 1))
    A.label("L_p2_kmok")
    def blk(A):
        A.label("L_p2_kmlast")
        km_loads(KE, VM, sA)
        A("s_waitcnt vmcnt(0)")
        flush_deferred(A, sDEF, VL16, ONE)
        A("v_max3_u32 v%d, v%d, v%d, v%d" % (W, KE, VM, VM + 2))
        A("v_cmp_eq_u32 vcc, -1, v%d" % W)
        A("s_cbranch_vccz L_p2_kmok")
        A("s_sleep 1")
        spin_guard(A)
        A("s_branch L_p2_kmlast")
        A.label("L_p2_kmwait")
        A("s_cmp_ge_u32 s%d, %d" % (sSEG, KM_POLL))
        A("s_cbranch_scc1 L_p2_kmlast")
        A("global_load_dword v%d, v%d, s[%d:%d] sc1" % (VFM, VL4, sG, sG + 1))
        A("s_waitcnt vmcnt(0)")
        flush_deferred(A, sDEF, VL16, ONE)
        A("v_cmp_ne_u32 s[%d:%d], 0, v%d" % (sMM, sMM + 1, VFM))
        A("s_bitcmp1_b64 s[%d:%d], s%d" % (sMM, sMM + 1, sSEG))
        A("s_cbranch_scc1 L_p2_kmgo")
        A("s_sleep %d" % ZZ[0])
        spin_guard(A)
        A("s_branch L_p2_kmwait")
        A.label("L_p2_kmgo")
        km_loads(KE, VM, sA)
        A("s_branch L_p2_kmok")
    cold.add(blk)
    rts(A, opt, sL, sSEG, 128, W)
    rtp(A, 1)
    A("s_barrier")
    QF, ZF, KF, VFR = 32, 48, 64, 128
    S0, S1, S2 = 104, 108, 112
    A("v_add_u32 v%d, v%d, v%d" % (116, VS, VQF))
    A("v_sub_u32 v%d, v%d, v%d" % (116, 116, VL16))
    A("v_add_u32 v%d, v%d, v%d" % (117, VS, VVF))
    A("v_sub_u32 v%d, v%d, v%d" % (117, 117, VL16))
    for dc in range(4): rd128(A, QF + 4 * dc, 116, L_Q + dc * 1024)
    for i in range(8): rd128(A, KF + 4 * i, VS, L_K + i * 1024)
    A("v_mov_b32 v%d, 0" % (KE + 3))
    A("s_waitcnt lgkmcnt(4)")
    for dc in range(4): mfma(A, S1, KF + 4 * dc, QF + 4 * dc, BIAS if dc == 0 else S1)
    A("s_waitcnt lgkmcnt(0)")
    for i in range(4): rd128(A, VFR + 4 * i, 117, L_V + i * 1024)
    for dc in range(4): mfma(A, S2, KF + 16 + 4 * dc, QF + 4 * dc, BIAS + 4 if dc == 0 else S2)
    A("s_cmp_lg_u32 s%d, 0" % sKP)
    A("s_cbranch_scc1 L_p2_kmin")
    A("s_waitcnt vmcnt(0)")
    A.label("L_p2_kmin")
    rtp(A, 2)
    A("v_mov_b32 v%d, v%d" % (KE + 2, KE + 1))
    A("v_mov_b32 v%d, 0" % (KE + 1))
    A("ds_write_b64 v%d, v[%d:%d] offset:%d" % (VZW, KE, KE + 1, L_Z))
    A("ds_write_b64 v%d, v[%d:%d] offset:%d" % (VZW, KE + 2, KE + 3, L_Z + 512))
    A("s_waitcnt lgkmcnt(0)")
    A("s_barrier")
    for dc in range(4):
        for Tt in range(2):
            A("ds_read_b64_tr_b16 v[%d:%d], v%d offset:%d" % (ZF + 4 * dc + 2 * Tt, ZF + 4 * dc + 2 * Tt + 1, VZR, L_Z + dc * 1024 + Tt * 512))
    A("s_waitcnt lgkmcnt(0)")
    for dc in range(4): mfma(A, S0, ZF + 4 * dc, QF + 4 * dc, "0" if dc == 0 else S0)
    rtp(A, 3)
    M0_, M1_, T0_, T1_, LS, LT, PX = 116, 117, 118, 119, 120, 121, 124
    A("v_max3_f32 v%d, v%d, v%d, v%d" % (M0_, S1, S1 + 1, S1 + 2))
    A("v_max3_f32 v%d, v%d, v%d, v%d" % (M1_, S1 + 3, S2, S2 + 1))
    A("v_max3_f32 v%d, v%d, v%d, v%d" % (M0_, M0_, S2 + 2, S2 + 3))
    A("v_xor_b32 v%d, %d, v%d" % (VS, SLOT, VS))
    A.nop(4)
    A("v_max3_f32 v%d, v%d, v%d, v%d" % (M1_, M1_, S0, S0 + 1))
    A("v_max_f32 v%d, v%d, v%d" % (T0_, M0_, M1_))
    A("v_max_f32 v%d, v%d, v%d" % (T1_, M0_, M1_))
    A.nop(2)
    A("v_permlane32_swap_b32 v%d, v%d" % (T0_, T1_))
    A("v_max_f32 v%d, v%d, v%d" % (M0_, T0_, T1_))
    A("v_max_f32 v%d, v%d, v%d" % (M1_, T0_, T1_))
    A.nop(2)
    A("v_permlane16_swap_b32 v%d, v%d" % (M0_, M1_))
    A("v_max_f32 v%d, v%d, v%d" % (M0_, M0_, M1_))
    A("v_mul_f32 v%d, s%d, v%d" % (M0_, sC, M0_))
    sregs = [S1 + r for r in range(4)] + [S2 + r for r in range(4)] + [S0, S0 + 1]
    for r in sregs: A("v_fma_f32 v%d, v%d, s%d, -v%d" % (r, r, sC, M0_))
    for r in sregs: A("v_exp_f32 v%d, v%d" % (r, r))
    cvt(A, PX, S1, S1 + 1); cvt(A, PX + 1, S1 + 2, S1 + 3); cvt(A, PX + 2, S2, S2 + 1); cvt(A, PX + 3, S2 + 2, S2 + 3)
    cvt(A, PMA, S0, S0 + 1); cvt(A, PMB + 1, S0, S0 + 1)
    OC = 64
    for i in range(4): mfma(A, OC + 4 * i, VFR + 4 * i, PX, "0")
    A("v_add_f32 v%d, v%d, v%d" % (LS, S1, S1 + 1))
    A("v_add_f32 v%d, v%d, v%d" % (LT, S1 + 2, S1 + 3))
    for a_, b_ in ((S2, S2 + 1), (S2 + 2, S2 + 3), (S0, S0 + 1)):
        A("v_add_f32 v%d, v%d, v%d" % (LS, LS, a_)); A("v_add_f32 v%d, v%d, v%d" % (LT, LT, b_))
    for i in range(4): mfma(A, OC + 4 * i, VM + 2 * (i >> 1), PMA if (i & 1) == 0 else PMB, OC + 4 * i, k32=False)
    A("v_add_f32 v%d, v%d, v%d" % (LS, LS, LT))
    swap_sum(A, LS, LT, 32); swap_sum(A, LS, LT, 16)
    A("v_rcp_f32 v%d, v%d" % (LS, LS))
    A.nop(1)
    for r in range(0, 16, 2):
        A("v_pk_mul_f32 v[%d:%d], v[%d:%d], v[%d:%d] op_sel_hi:[1,0]" % (OC + r, OC + r + 1, OC + r, OC + r + 1, LS, LS + 1))
    for f in range(2):
        pack(A, 32 + 4 * f, OC + 8 * f, OC + 8 * f + 4)
        A("ds_write_b128 v%d, v[%d:%d] offset:%d" % (VOW, 32 + 4 * f, 35 + 4 * f, L_O + f * 1024))
    rtp(A, 4)
    A("s_mov_b32 s%d, 0" % sPRE)
    A("s_mov_b32 s%d, 0" % sKP)
    A("s_waitcnt vmcnt(0)")
    A("v_cmp_eq_u32 vcc, 0, v%d" % VF)
    flush_deferred(A, sDEF, VL16, ONE)
    A("v_cmp_ne_u32 s[%d:%d], 0, v%d" % (sMM, sMM + 1, VFM))
    A("s_cmp_ge_u32 s%d, 64" % sNX)
    A("s_cbranch_scc1 L_p2_nopre")
    A("s_cbranch_vccnz L_p2_nopre")
    dma(sNX)
    A("s_mov_b32 s%d, 1" % sPRE)
    A("s_bitcmp0_b64 s[%d:%d], s%d" % (sMM, sMM + 1, sNX))
    A("s_cbranch_scc1 L_p2_nopre")
    km_loads(KE2, KE2 + 2, sKN)
    A("s_mov_b32 s%d, 1" % sKP)
    A.label("L_p2_nopre")
    A("s_waitcnt lgkmcnt(0)")
    A("s_barrier")
    OF, PA = 32, 64
    rtp(A, 5)
    for f in range(4):
        for qt in range(2): rd128(A, OF + (qt * 4 + f) * 4, VL16, L_O + (qt * 4 + f) * 1024)
    def out_ops(b):
        ops = []
        for qt in range(2):
            a0 = PA + b * 16 + qt * 8
            ops += [lambda a0=a0: cvt(A, a0, a0, a0 + 1), lambda a0=a0: cvt(A, a0 + 1, a0 + 2, a0 + 3),
                    lambda a0=a0: cvt(A, a0 + 2, a0 + 4, a0 + 5), lambda a0=a0: cvt(A, a0 + 3, a0 + 6, a0 + 7)]
            ops.append(lambda a0=a0, qt=qt: A("ds_write_b128 v%d, v[%d:%d] offset:%d" % (VTW + b, a0, a0 + 3, qt * 4096)))
        return ops
    pend = []
    for b in range(4):
        n = 0
        for f in range(4):
            if b == 0: A("s_waitcnt lgkmcnt(%d)" % (6 - 2 * f))
            for P in range(2):
                for qt in range(2):
                    d = PA + b * 16 + qt * 8 + P * 4
                    mfma(A, d, WO + ((b * 2 + P) * 4 + f) * 4, OF + (qt * 4 + f) * 4, "0" if f == 0 else d)
                    n += 1
                    if n > 5 and pend: pend.pop(0)()
        assert not pend
        pend = out_ops(b)
    A.nop(8)
    for o in pend: o()
    rtp(A, 6)
    for i in range(8): rd128(A, 32 + 4 * i, VTR + (i & 3), i * 1024)
    for i in range(8):
        A("s_waitcnt lgkmcnt(%d)" % (7 - i))
        store_mixed(A, cold, ["global_store_dwordx4 v%d, v[%d:%d], s[%d:%d]" % (VPST, 32 + 4 * i, 35 + 4 * i, sCc, sCc + 1)])
        if i < 7: sadd64(A, sCc, sCc, 4 * 32768)
    publish_partials(A, cold, 64, sE)
    reduce_row(A, cold, RW, SEL, VRLD, VROW, VFL, VL16, sB, sE, sIT, sX, sY, sF, L_ST,
               lambda A: A("s_cmp_eq_u32 s%d, 1" % sL), defer=sDEF)
    rtp(A, 14)
    rts(A, opt, sL, sSEG, 256, W)
    A("s_add_u32 s%d, s%d, 1" % (sIT, sIT))
    A("s_mov_b32 s%d, s%d" % (sSEG, sNX))
    A("s_cmp_eq_u32 s%d, 1" % sPRE)
    A("s_cbranch_scc1 L_p2_loop")
    A("s_waitcnt vmcnt(0)")
    flush_deferred(A, sDEF, VL16, ONE)
    A("s_cmp_ge_u32 s%d, 64" % sSEG)
    A("s_cbranch_scc1 L_p2_next")
    wait_flags(A, W, VF8, sH)
    dma(sSEG)
    A("s_waitcnt vmcnt(0)")
    A("s_branch L_p2_loop")
    A.label("L_p2_next")
    A("s_add_u32 s%d, s%d, 1" % (sL, sL))
    A("s_cmp_lt_u32 s%d, %d" % (sL, opt.get("layers", 2)))
    A("s_cbranch_scc1 L_p2_layer")
    A("s_branch L_end")
    cold.emit(A)

def gen_aworker(A, opt):
    cold = Cold()
    NP1, NP2, NA = opt["NP1"], opt["NP2"], opt["NA"]
    NA0 = NA + NP2
    VL16, VL8, VYA, VPST, VRLD, VROW, VFL, VAF, ZERO, VPQ = range(1, 11)
    SEL, ONES = 12, 16
    KVA, ZA = 18, 20
    KV, ZS = 24, 28
    W = 32
    WO = 128
    RW = 160
    sRING = 84
    WQ = 256
    L_W, L_WOI, L_PQ, L_ST = 0, 49152, 131072, 32768
    VA4, VTW, VTR = 216, 220, 228
    sL, sSEG, sIT, sI, sAG = 48, 49, 50, 51, 66
    sA, sB, sCc, sD, sE, sF, sG = 52, 54, 56, 58, 60, 62, 64
    sLE, sNA, sMT, sWB = 67, 68, 69, 70
    A.label("L_aworker")
    A("s_sub_u32 s%d, 7, s%d" % (sAG, S_GRP))
    A("s_mov_b32 s%d, %d" % (sNA, NA0))
    prepass0(A, sAG, NA0)
    T = 40
    A("v_and_b32 v%d, 63, v0" % T)
    A("v_and_b32 v%d, 15, v0" % (T + 1))
    A("v_bfe_u32 v%d, v0, 4, 2" % (T + 2))
    A("v_lshlrev_b32 v%d, 4, v%d" % (VL16, T))
    A("v_lshlrev_b32 v%d, 3, v%d" % (VL8, T))
    A("s_and_b32 s42, s%d, 1" % S_WAVE)
    A("s_lshr_b32 s43, s%d, 1" % S_WAVE)
    frag_addrs(A, VA4, T + 3)
    A("s_lshl_b32 s%d, s42, 14" % sMT)
    A("s_lshl_b32 s%d, s%d, 15" % (sWB, S_WAVE))
    A("s_lshl_b32 s40, s%d, 15" % S_WAVE)
    for q in range(4): A("v_add_u32 v%d, s40, v%d" % (VA4 + q, VA4 + q))
    A("v_lshrrev_b32 v%d, 5, v%d" % (T + 3, T))
    A("v_and_b32 v%d, 31, v%d" % (T + 4, T))
    A("s_lshl_b32 s40, s42, 19")
    A("s_lshl_b32 s41, s43, 9")
    A("s_add_u32 s40, s40, s41")
    A("v_lshlrev_b32 v%d, 15, v%d" % (VPST, T + 3))
    A("v_lshl_add_u32 v%d, v%d, 4, v%d" % (VPST, T + 4, VPST))
    A("v_add_u32 v%d, s40, v%d" % (VPST, VPST))
    A("s_lshl_b32 s41, s%d, 13" % S_WAVE)
    for b in range(8):
        A("v_add_u32 v%d, %d, v%d" % (T + 5, 4 * b, T + 2))
        A("v_xor_b32 v%d, v%d, v%d" % (T + 5, T + 5, T + 1))
        A("v_lshlrev_b32 v%d, 4, v%d" % (T + 5, T + 5))
        A("v_lshl_add_u32 v%d, v%d, 9, v%d" % (T + 5, T + 1, T + 5))
        A("v_add_u32 v%d, s41, v%d" % (VTW + b, T + 5))
    for i in range(8):
        A("v_add_u32 v%d, %d, v%d" % (T + 5, 2 * i, T + 3))
        A("v_xor_b32 v%d, v%d, v%d" % (T + 6, T + 5, T + 4))
        A("v_lshlrev_b32 v%d, 4, v%d" % (T + 6, T + 6))
        A("v_lshl_add_u32 v%d, v%d, 9, v%d" % (T + 6, T + 5, T + 6))
        A("v_add_u32 v%d, s41, v%d" % (VTR + i, T + 6))
    A("s_lshl_b32 s40, s42, 9")
    A("s_add_u32 s40, s40, %d" % L_PQ)
    A("v_add_u32 v%d, s40, v%d" % (VPQ, VL8))
    A("v_mov_b32 v%d, 0" % ZERO)
    A("v_mov_b32 v%d, 0x3f803f80" % ONES)
    A("v_mov_b32 v%d, 0x3f803f80" % (ONES + 1))
    A("s_mov_b32 s%d, 0x%x" % (sLE, f32bits(LOG2E)))
    sel_const(A, SEL, T + 3)
    reduce_consts(A, VRLD, VROW, VFL, T + 3)
    A("s_lshl_b32 s44, s%d, 12" % S_WAVE)
    A("s_lshl_b32 s40, s%d, 14" % S_HEAD)
    A("s_add_u32 s40, s40, s44")
    sadd64(A, sA, S_AWO, "s40")
    A("s_add_u32 s45, s44, %d" % L_WOI)
    A("s_mov_b32 m0, s45")
    A("s_nop 0")
    for i in range(4): A("global_load_lds_dwordx4 v%d, s[%d:%d] offset:%d" % (VL16, sA, sA + 1, i * 1024))
    A("v_bfe_u32 v%d, v0, 2, 2" % (T + 4))
    A("v_and_b32 v%d, 3, v0" % (T + 5))
    A("v_mul_u32_u24 v%d, 768, v%d" % (T + 6, T + 2))
    A("v_lshl_add_u32 v%d, v%d, 5, v%d" % (T + 6, T + 4, T + 6))
    A("v_lshl_add_u32 v%d, v%d, 3, v%d" % (T + 6, T + 5, T + 6))
    A("v_lshl_add_u32 v%d, v%d, 2, v%d" % (T + 7, T + 2, T + 4))
    A("v_lshlrev_b32 v%d, 10, v%d" % (T + 7, T + 7))
    A("v_lshl_add_u32 v%d, v%d, 4, v%d" % (T + 7, T + 5, T + 7))
    A("s_lshl_b32 s41, s43, 9")
    A("s_add_u32 s41, s41, %d" % L_WOI)
    A("v_add_u32 v%d, s41, v%d" % (T + 7, T + 7))
    prepass1(A, True)
    rt_stamp(A, opt, 491, 110, 111)
    opt["arrive"](A, "own")
    rt_stamp(A, opt, 492, 110, 111)
    if opt.get("warm", 1):
        A("s_lshl_b32 s41, s%d, 22" % S_GRP)
        A("s_lshl_b32 s42, s%d, 15" % S_HEAD)
        A("s_add_u32 s41, s41, s42")
        A("s_add_u32 s41, s41, 0x%x" % OFF_PW)
        for k in range(16):
            A("s_add_u32 s42, s41, 0x%x" % ((k >> 3) * 0x100000 + (k & 7) * 4096)); sadd64(A, sA, S_WS, "s42")
            A("global_load_dwordx4 v[56:59], v%d, s[%d:%d] sc1" % (VRLD, sA, sA + 1))
    opt["init_wait"](A)
    rt_stamp(A, opt, 493, 110, 111)
    A("s_mul_i32 s40, s%d, 49152" % S_HEAD)
    A("s_mul_i32 s44, s%d, 12288" % S_WAVE)
    A("s_add_u32 s40, s40, s44")
    A("s_add_u32 s40, s40, 0x%x" % OFF_WP)
    sadd64(A, sA, S_WS, "s40")
    for qd in range(3):
        A("s_mov_b32 m0, s44")
        A("s_add_u32 s44, s44, 4096")
        for i in range(4): A("global_load_lds_dwordx4 v%d, s[%d:%d] offset:%d sc1" % (VL16, sA, sA + 1, i * 1024))
        if qd < 2: sadd64(A, sA, sA, 4096)
    A("s_waitcnt vmcnt(0)")
    rt_stamp(A, opt, 494, 110, 111)
    A("s_barrier")
    for t in range(3):
        for ks in range(16):
            for hh in range(2):
                A("ds_read_b64_tr_b16 %s, v%d offset:%d" % (R(WQ + (t * 16 + ks) * 4 + 2 * hh, 2), T + 6, L_W + ks * 3072 + t * 256 + hh * 128))
            if ks % 4 == 3: A("s_waitcnt lgkmcnt(0)")
    for b in range(8):
        for P in range(2):
            A("ds_read_b64_tr_b16 %s, v%d offset:%d" % (v(WO + (b * 2 + P) * 2, 2), T + 7, b * 64 + P * 8))
    A("s_waitcnt lgkmcnt(0)")
    rt_stamp(A, opt, 501, 40, 41)
    opt["init_wait"](A, kind="own")
    rt_stamp(A, opt, 502, 40, 41)
    A("s_mov_b32 s%d, 0" % sL)
    A("s_mov_b32 s%d, 0" % sIT)
    A("s_mov_b32 s%d, 0" % sRING)

    A.label("L_aw_layer")
    A("s_barrier")
    for r in range(0, 8, 2): A("v_mov_b64 v[%d:%d], 0" % (KV + r, KV + r + 1))
    A("s_lshr_b32 s%d, s%d, 1" % (sI, S_WAVE))
    YB = [0, 16384]
    YF = 32
    Q, K, V, E = 96, 100, 104, 112
    def seg_of(dst, add):
        A("s_add_u32 s%d, s%d, %d" % (dst, sI, add))
        A("s_mul_i32 s%d, s%d, s%d" % (dst, dst, sNA))
        A("s_add_u32 s%d, s%d, s%d" % (dst, dst, sAG))
    def y_ops(buf, sseg, flags):
        ops = ["s_lshl_b32 s41, s%d, 15" % sseg, "s_add_u32 s41, s41, s%d" % sMT,
               "s_add_u32 s41, s41, 0x%x" % (OFF_Y2 if flags else OFF_Y0),
               "s_add_u32 s%d, s%d, s41" % (sA, S_WS), "s_addc_u32 s%d, s%d, 0" % (sA + 1, S_WS + 1)]
        for qd in range(4):
            ops += ["s_add_u32 s42, s%d, %d" % (sWB, buf + qd * 4096), "s_mov_b32 m0, s42"]
            ops += ["s_add_u32 s%d, s%d, 4096" % (sA, sA), "s_addc_u32 s%d, s%d, 0" % (sA + 1, sA + 1)] if qd else ["s_nop 0"]
            ops += ["global_load_lds_dwordx4 v%d, s[%d:%d] offset:%d sc1" % (VL16, sA, sA + 1, i * 1024) for i in range(4)]
        return ops
    def y_loads(buf, sseg, flags):
        for t in y_ops(buf, sseg, flags): A(t)
    def phi(X):
        for r in range(4):
            A("v_mul_f32 v%d, s%d, v%d" % (E + r, sLE, X + r))
            A("v_min_f32 v%d, 0, v%d" % (E + r, E + r))
        for r in range(4): A("v_exp_f32 v%d, v%d" % (E + r, E + r))
        for r in range(4): A("v_max_f32 v%d, 0, v%d" % (X + r, X + r))
        for r in range(4): A("v_add_f32 v%d, 0x%x, v%d" % (E + r, f32bits(1e-6), E + r))
        for r in range(4): A("v_add_f32 v%d, v%d, v%d" % (X + r, X + r, E + r))
    def unit(buf, younger, refill=False, stamp=False):
        A("s_waitcnt vmcnt(%d)" % younger)
        for ks in range(8): rd128(A, YF + 4 * ks, VA4 + (ks & 3), buf + (ks >> 2) * 256)
        ops = []
        if refill:
            ops = y_ops(buf, 44, False)
        def some():
            while ops:
                t = ops.pop(0); A(t)
                if t.startswith("global"): break
        for ks in range(16):
            if ks + 8 < 16: rd128(A, YF + 4 * (ks + 8), VA4 + (ks & 3), buf + ((ks + 8) >> 2) * 256)
            A("s_waitcnt lgkmcnt(%d)" % (min(8, 15 - ks) if ks != 9 or not refill else 0))
            mfma(A, K, YF + 4 * ks, WQ + (16 + ks) * 4, "0" if ks == 0 else K)
            if ks >= 9: some()
            mfma(A, Q, WQ + ks * 4, YF + 4 * ks, "0" if ks == 0 else Q)
            if ks >= 9: some()
            mfma(A, V, YF + 4 * ks, WQ + (32 + ks) * 4, "0" if ks == 0 else V)
            if 9 <= ks < 15: some()
        assert not ops
        A("s_lshl_b32 s41, s%d, 10" % sI)
        A("v_add_u32 v108, s41, v%d" % VPQ)
        A.nop(5)
        phi(K)
        cvt(A, 116, K, K + 1); cvt(A, 117, K + 2, K + 3)
        cvt(A, 118, V, V + 1); cvt(A, 119, V + 2, V + 3)
        phi(Q)
        mfma(A, KV, 116, 118, KV, k32=False)
        mfma(A, ZS, 116, ONES, ZS, k32=False)
        cvt(A, 120, Q, Q + 1); cvt(A, 121, Q + 2, Q + 3)
        A("ds_write_b64 v108, v[120:121]")
        rts(A, dict(opt, rt=opt.get("rt") and stamp), sL, sSEG, 0, 122)
        A("s_add_u32 s%d, s%d, 2" % (sI, sI))
    A("s_cmp_lg_u32 s%d, 0" % sL)
    A("s_cbranch_scc1 L_aw_s1f")
    seg_of(sSEG, 0)
    y_loads(YB[0], sSEG, False)
    seg_of(44, 2)
    y_loads(YB[1], 44, False)
    A.label("L_aw_s1")
    for par in range(2):
        seg_of(44, 4)
        A("s_cmp_ge_u32 s44, 64")
        A("s_cbranch_scc1 L_aw_s1e%d" % par)
        unit(YB[par], 16, refill=True)
    A("s_branch L_aw_s1")
    for par in range(2):
        A.label("L_aw_s1e%d" % par)
        unit(YB[par], 16)
        unit(YB[1 - par], 0)
        if par == 0: A("s_branch L_aw_s1t")
    A.label("L_aw_s1t")
    A("s_waitcnt vmcnt(0)")
    if opt.get("rt"): rt_stamp(A, opt, 63, 122, 123)
    A("s_branch L_aw_s1done")
    A.label("L_aw_s1f")
    seg_of(sSEG, 0)
    A("s_cmp_ge_u32 s%d, 64" % sSEG)
    A("s_cbranch_scc1 L_aw_s1done")
    A("s_cmp_ge_u32 s%d, %d" % (sSEG, Y2_POLL))
    A("s_cbranch_scc1 L_aw_s1p")
    A("s_lshl_b32 s42, s%d, 7" % sSEG)
    A("s_add_u32 s42, s42, 0x%x" % F_Y2); sadd64(A, sA, S_WS, "s42")
    wait_flags(A, W, VFL, sA, sleep=1)
    y_loads(YB[0], sSEG, True)
    A.label("L_aw_s1q")
    def blk(A):
        A.label("L_aw_s1p")
        for t in y_ops(0, sSEG, True)[:5]: A(t)
        for k in range(1, 4): sadd64(A, sA + 2 * k, sA, 4096 * k)
        A("v_add_u32 v%d, s%d, v%d" % (109, sWB, VL16))
        poll_tile(A, [(VL16, sA + 2 * (i >> 2), (i & 3) * 1024) for i in range(16)], YF, 108, [(109, i * 1024) for i in range(16)])
        A("s_branch L_aw_s1q")
    cold.add(blk)
    unit(YB[0], 0, stamp=True)
    A("s_branch L_aw_s1f")
    A.label("L_aw_s1done")
    A("s_lshl_b32 s41, s%d, 5" % sL)
    A("s_add_u32 s41, s41, s%d" % S_HEAD)
    A("s_lshl_b32 s41, s41, 14")
    A("s_add_u32 s41, s41, 0x%x" % OFF_AKV); sadd64(A, sA, S_WS, "s41")
    A("s_lshl_b32 s43, s%d, 11" % sAG); sadd64(A, sCc, sA, "s43")
    A("s_lshl_b32 s42, s%d, 15" % S_WAVE)
    A("v_add_u32 v%d, s42, v%d" % (W, VL16))
    A.nop(3)
    A("ds_write_b128 v%d, v[%d:%d]" % (W, KV, KV + 3))
    A("ds_write_b128 v%d, v[%d:%d] offset:1024" % (W, ZS, ZS + 3))
    A("s_waitcnt lgkmcnt(0)")
    A("s_barrier")
    A("s_cmp_lg_u32 s%d, 0" % S_WAVE)
    A("s_cbranch_scc1 L_aw_nopub")
    A("v_add_u32 v%d, 0x10000, v%d" % (W, VL16))
    for k, (ad, off) in enumerate(((VL16, 32768), (W, 0), (W, 32768))):
        rd128(A, W + 8 + 8 * k, ad, off); rd128(A, W + 12 + 8 * k, ad, off + 1024)
    A("s_waitcnt lgkmcnt(0)")
    for k in range(3):
        for r in range(0, 8, 2):
            A("v_pk_add_f32 v[%d:%d], v[%d:%d], v[%d:%d]" % (KV + r, KV + r + 1, KV + r, KV + r + 1, W + 8 + 8 * k + r, W + 9 + 8 * k + r))
    A("v_min_u32 v%d, -2, v%d" % (KV, KV))
    A("v_min_u32 v%d, -2, v%d" % (ZS, ZS))
    A("global_store_dwordx4 v%d, v[%d:%d], s[%d:%d] sc1" % (VL16, KV, KV + 3, sCc, sCc + 1))
    A("global_store_dwordx4 v%d, v[%d:%d], s[%d:%d] offset:1024 sc1" % (VL16, ZS, ZS + 3, sCc, sCc + 1))
    A.label("L_aw_nopub")
    for k in range(1, 3): sadd64(A, sA + 2 * k, sA, 4096 * k)
    def gather(n, lp):
        A.label(lp)
        for p in range(n):
            for k in range(2):
                b = sA + 2 * (p >> 1)
                A("global_load_dwordx4 v[%d:%d], v%d, s[%d:%d] offset:%d sc1" % (W + 8 * p + 4 * k, W + 8 * p + 4 * k + 3, VL16, b, b + 1, (p & 1) * 2048 + k * 1024))
        spin_guard(A)
        A("s_waitcnt vmcnt(0)")
        A("v_max_u32 v%d, v%d, v%d" % (VAF, W, W + 4))
        for p in range(1, n): A("v_max3_u32 v%d, v%d, v%d, v%d" % (VAF, VAF, W + 8 * p, W + 8 * p + 4))
        A("v_cmp_eq_u32 vcc, -1, v%d" % VAF)
        A("s_cbranch_vccnz %s" % lp)
        for p in range(1, n):
            for r in range(0, 8, 2):
                A("v_pk_add_f32 v[%d:%d], v[%d:%d], v[%d:%d]" % (W + r, W + r + 1, W + r, W + r + 1, W + 8 * p + r, W + 8 * p + r + 1))
    assert NA0 <= 6 and NA0 + NA <= 8
    A("s_cmp_lg_u32 s%d, 0" % sL)
    A("s_cbranch_scc1 L_aw_g1")
    gather(NA0, "L_aw_g0")
    A("s_branch L_aw_g2")
    gather(NA, "L_aw_g1")
    A.label("L_aw_g2")
    A("s_barrier")
    cvt(A, KVA, W, W + 1); cvt(A, KVA + 1, W + 2, W + 3); cvt(A, ZA, W + 4, W + 5); cvt(A, ZA + 1, W + 6, W + 7)
    if opt.get("rt"):
        A("s_add_u32 s97, s%d, 400" % sL)
        rt_stamp(A, opt, "s97", W + 2, W + 3)
    A("s_mov_b32 s%d, 0" % sI)
    A("s_mov_b32 s%d, s%d" % (sSEG, sAG))
    A.label("L_aw_s2")
    rtp(A, 0, 240)
    A("s_lshl_b32 s41, s%d, 10" % sI)
    A("v_add_u32 v%d, s41, v%d" % (W, VPQ))
    A("ds_read_b64 v[%d:%d], v%d" % (W + 2, W + 3, W))
    A("s_lshl_b32 s41, s%d, 22" % S_GRP)
    A("s_add_u32 s41, s41, s%d" % sRING)
    A("s_add_u32 s41, s41, 0x%x" % OFF_PW); sadd64(A, sB, S_WS, "s41")
    ring_next(A, sRING)
    A("s_lshl_b32 s41, s%d, 10" % S_HEAD); sadd64(A, sCc, sB, "s41")
    A("s_lshl_b32 s41, s%d, 15" % S_HEAD); sadd64(A, sB, sB, "s41")
    A("s_lshl_b32 s47, s%d, 6" % sL)
    A("s_add_u32 s47, s47, s%d" % sSEG)
    A("s_lshl_b32 s41, s47, 7")
    A("s_add_u32 s41, s41, 0x%x" % F_PA); sadd64(A, sE, S_WS, "s41")
    A("s_lshl_b32 s41, s%d, 5" % sSEG)
    A("s_add_u32 s41, s41, s%d" % S_HEAD)
    A("s_lshl_b32 s42, s41, 10")
    A("s_lshl_b32 s43, s%d, 21" % sL)
    A("s_add_u32 s43, s43, s42")
    A("s_add_u32 s44, s43, 0x%x" % OFF_X1); sadd64(A, sG, S_WS, "s44")
    A("s_add_u32 s44, s43, 0x%x" % OFF_Y1); sadd64(A, sD, S_WS, "s44")
    A("s_lshl_b32 s44, s47, 5")
    A("s_add_u32 s44, s44, s%d" % S_HEAD)
    A("s_lshl_b32 s44, s44, 2")
    A("s_add_u32 s44, s44, 0x%x" % F_X1); sadd64(A, sF, S_WS, "s44")
    A("s_add_u32 s44, s42, 0x%x" % OFF_X2); sadd64(A, sA, S_WS, "s44")
    A("s_cmp_lg_u32 s%d, 0" % sL)
    A("s_cbranch_scc1 L_aw_res")
    sadd64(A, sA, S_AX, "s42")
    A.label("L_aw_res")
    A("global_load_dwordx2 v[%d:%d], v%d, s[%d:%d] sc1" % (RW + 36, RW + 37, VROW, sA, sA + 1))
    A("s_waitcnt lgkmcnt(0)")
    NU, DE = W + 4, W + 8
    mfma(A, DE, ZA, W + 2, "0", k32=False)
    mfma(A, NU, KVA, W + 2, "0", k32=False)
    A.nop(7)
    A("v_add_f32 v%d, 0x%x, v%d" % (DE, f32bits(1e-6), DE))
    A("v_rcp_f32 v%d, v%d" % (DE, DE))
    A.nop(1)
    for r in (0, 2):
        A("v_pk_mul_f32 v[%d:%d], v[%d:%d], v[%d:%d] op_sel_hi:[1,0]" % (NU + r, NU + r + 1, NU + r, NU + r + 1, DE, DE + 1))
    cvt(A, W + 2, NU, NU + 1); cvt(A, W + 3, NU + 2, NU + 3)
    A.nop(2)
    PA = W + 16
    rtp(A, 5, 240)
    for i in range(16): mfma(A, PA + 4 * i, WO + 2 * i, W + 2, "0", k32=False)
    for b in range(8):
        a0 = PA + 8 * b
        if b == 6: A.nop(2)
        cvt(A, a0, a0, a0 + 1); cvt(A, a0 + 1, a0 + 2, a0 + 3); cvt(A, a0 + 2, a0 + 4, a0 + 5); cvt(A, a0 + 3, a0 + 6, a0 + 7)
        A("ds_write_b128 v%d, v[%d:%d]" % (VTW + b, a0, a0 + 3))
    for i in range(8): rd128(A, PA + 4 * i, VTR + i, 0)
    for i in range(8):
        A("s_waitcnt lgkmcnt(%d)" % (7 - i))
        store_mixed(A, cold, ["global_store_dwordx4 v%d, v[%d:%d], s[%d:%d]" % (VPST, PA + 4 * i, PA + 4 * i + 3, sCc, sCc + 1)])
        if i < 7: sadd64(A, sCc, sCc, 2 * 32768)
    publish_partials(A, cold, W, sE)
    reduce_row(A, cold, RW, SEL, VRLD, VROW, VFL, VL16, sB, sE, sIT, sG, sD, sF, L_ST,
               lambda A: A("s_cmp_eq_u32 s%d, 2" % sL))
    rtp(A, 14, 240)
    rts(A, opt, sL, sSEG, 256, W)
    A("s_add_u32 s%d, s%d, 1" % (sIT, sIT))
    A("s_add_u32 s%d, s%d, 1" % (sI, sI))
    A("s_add_u32 s%d, s%d, s%d" % (sSEG, sSEG, sNA))
    A("s_cmp_lt_u32 s%d, 64" % sSEG)
    A("s_cbranch_scc1 L_aw_s2")
    A("s_cmp_ge_u32 s%d, %d" % (sAG, NA))
    A("s_cbranch_scc1 L_p2")
    A("s_mov_b32 s%d, %d" % (sNA, NA))
    A("s_add_u32 s%d, s%d, 1" % (sL, sL))
    A("s_cmp_lt_u32 s%d, %d" % (sL, opt.get("layers", 2)))
    A("s_cbranch_scc1 L_aw_layer")
    A("s_branch L_end")
    cold.emit(A)
```

```python
import sys
from common import *
import chain, workers

HEADER = open('cdna_kernels/%s.s.ref' % NAME).read().split('; Override launch')[0]

def prologue(A, opt):
    A("s_cmp_ge_u32 s2, 256")
    A("s_cbranch_scc1 L_end")
    A("s_mov_b32 s%d, 0" % S_SPIN)
    A("s_load_dwordx4 s[8:11], s[0:1], 0")
    A("s_load_dwordx2 s[12:13], s[0:1], 16")
    A("s_load_dwordx4 s[16:19], s[0:1], 32")
    A("s_load_dwordx4 s[20:23], s[0:1], 48")
    A("s_load_dwordx2 s[24:25], s[0:1], 64")
    A("s_load_dwordx4 s[28:31], s[0:1], 80")
    A("s_load_dwordx2 s[4:5], s[0:1], 96")
    if opt.get("rt"): A("s_memrealtime s[90:91]")
    if opt.get("dbgt"):
        A("s_memrealtime s[98:99]"); A("s_memtime s[14:15]"); A("s_waitcnt lgkmcnt(0)"); A("s_mov_b32 s6, s98"); A("s_mov_b32 s7, s14")
    A("s_getreg_b32 s36, hwreg(HW_REG_XCC_ID)")
    A("s_and_b32 s36, s36, 15")
    if opt.get("fake") == 1: A("s_lshr_b32 s36, s2, 5")
    if opt.get("fake") == 2: A("s_and_b32 s36, s36, 6")
    if opt.get("fake") == 3: A("s_add_u32 s36, s36, 5")
    A("s_mov_b32 s%d, s36" % S_GRP)
    A("v_lshrrev_b32 v1, 6, v0")
    A("s_nop 0")
    A("v_readfirstlane_b32 s%d, v1" % S_WAVE)
    A("s_waitcnt lgkmcnt(0)")
    A("s_cmp_lg_u32 s%d, 0" % S_WAVE)
    A("s_cbranch_scc1 L_noticket")
    ticket_word(A)
    A("v_mov_b32 v1, s37")
    A("v_mov_b32 v2, 1")
    A("s_mov_b64 exec, 1")
    A("global_atomic_add v3, v1, v2, s[%d:%d] sc0" % (S_DBG, S_DBG + 1))
    A("s_mov_b64 exec, -1")
    A.label("L_noticket")
    A("v_mov_b32 v6, 0")
    A("s_cmp_lg_u32 s%d, 0" % S_WAVE)
    A("s_cbranch_scc1 L_nowr")
    A("s_waitcnt vmcnt(0)")
    A("s_mov_b64 exec, 1")
    A("ds_write_b32 v6, v3")
    A("s_mov_b64 exec, -1")
    A.label("L_nowr")
    A("s_waitcnt lgkmcnt(0)")
    A("s_barrier")
    A("ds_read_b32 v3, v6")
    A("s_waitcnt lgkmcnt(0)")
    A("v_readfirstlane_b32 s%d, v3" % S_HEAD)
    A("s_barrier")
    A("s_cmp_ge_u32 s%d, 8" % S_GRP)
    A("s_cbranch_scc1 L_overflow")
    A("s_cmp_ge_u32 s%d, 32" % S_HEAD)
    A("s_cbranch_scc1 L_overflow")
    A.label("L_roles")
    if opt.get("rt"):
        rt_stamp(A, opt, 498, 40, 41)
        A("v_mov_b32 v41, s90")
        A("global_store_dword v40, v41, s[%d:%d] offset:4" % (S_WS, S_WS + 1))

def tword(x): return 32 * ((x >> 2) & 1) + (x & 3) + 4 * (x >> 3)
def ticket_word(A):
    A("s_and_b32 s37, s%d, 4" % S_GRP)
    A("s_lshl_b32 s37, s37, 5")
    A("s_and_b32 s36, s%d, 3" % S_GRP)
    A("s_lshl_b32 s36, s36, 2")
    A("s_add_u32 s37, s37, s36")
    A("s_and_b32 s36, s%d, 8" % S_GRP)
    A("s_lshl_b32 s36, s36, 1")
    A("s_add_u32 s37, s37, s36")

def arrive(A, kind):
    l = A.newlabel("Larr")
    A("s_waitcnt vmcnt(0)")
    A("s_barrier")
    A("s_cmp_lg_u32 s%d, 0" % S_WAVE)
    A("s_cbranch_scc1 %s" % l)
    if kind == "flags": A("s_mov_b32 s37, %d" % (4 * 24))
    else:
        A("s_lshl_b32 s37, s%d, 2" % S_GRP); A("s_add_u32 s37, s37, %d" % (64 if kind == "own" else 32))
    A("v_mov_b32 v40, s37")
    A("v_mov_b32 v41, 1")
    A("s_mov_b64 exec, 1")
    A("global_atomic_add v42, v40, v41, s[%d:%d] sc0" % (S_DBG, S_DBG + 1))
    A("s_waitcnt vmcnt(0)")
    A("v_readfirstlane_b32 s36, v42")
    A("s_cmp_lg_u32 s36, %d" % ((32 * NZ[0] if kind == "flags" else 32) - 1))
    l2 = A.newlabel("Larn")
    A("s_cbranch_scc1 %s" % l2)
    A("global_store_dword v40, v41, s[%d:%d] offset:128 sc1" % (S_DBG, S_DBG + 1))
    A.label(l2)
    A("s_mov_b64 exec, -1")
    A.label(l)

def init_wait(A, vt=40, kind="flags"):
    lp = A.newlabel("Liw"); l2 = A.newlabel("Liwd")
    if kind == "tickets":
        A("v_and_b32 v%d, 63, v0" % (vt + 1))
        A("v_lshlrev_b32 v%d, 2, v%d" % (vt + 1, vt + 1))
    elif kind == "flags": A("v_mov_b32 v%d, %d" % (vt + 1, 4 * 56))
    elif kind.startswith("chain"): A("v_mov_b32 v%d, 32" % (vt + 1))
    else:
        A("s_lshl_b32 s37, s%d, 2" % S_GRP); A("s_add_u32 s37, s37, %d" % (192 if kind == "own" else 160)); A("v_mov_b32 v%d, s37" % (vt + 1))
    if kind != "tickets":
        A("s_cmp_lg_u32 s%d, 0" % S_WAVE)
        A("s_cbranch_scc1 %s" % l2)
    A.label(lp)
    A("global_load_dword v%d, v%d, s[%d:%d] sc1" % (vt, vt + 1, S_DBG, S_DBG + 1))
    A("s_waitcnt vmcnt(0)")
    if kind == "tickets":
        A("s_mov_b32 s36, 0")
        for x in range(16):
            A("v_readlane_b32 s37, v%d, %d" % (vt, tword(x)))
            A("s_add_u32 s36, s36, s37")
        A("s_cmp_ge_u32 s36, 256")
    else:
        A("v_readfirstlane_b32 s36, v%d" % vt)
        A("s_cmp_ge_u32 s36, %d" % (32 if kind.startswith("chain") else 1))
    A("s_cbranch_scc1 %s" % l2)
    A("s_sleep 2")
    spin_guard(A)
    A("s_branch %s" % lp)
    A.label(l2)
    if kind in ("own", "chainm"):
        ticket_word(A)
        A("v_mov_b32 v%d, s37" % (vt + 1))
    A("s_barrier")
    if kind in ("own", "chainm"):
        A("global_load_dword v%d, v%d, s[%d:%d] sc1" % (vt, vt + 1, S_DBG, S_DBG + 1))
        A("s_waitcnt vmcnt(0)")
        A("v_readfirstlane_b32 s37, v%d" % vt)
        A("s_cmp_lt_u32 s37, 32")
        A("s_cselect_b32 s%d, 1, %d" % (S_MIXED, FORCE[0]))
NZ = [2]
FORCE = [0]

def overflow(A):
    A.label("L_overflow")
    A("s_cmp_lg_u32 s%d, 0" % S_WAVE)
    A("s_cbranch_scc1 L_of1")
    A("v_mov_b32 v1, 100")
    A("v_mov_b32 v2, 1")
    A("s_mov_b64 exec, 1")
    A("global_atomic_add v3, v1, v2, s[%d:%d] sc0" % (S_DBG, S_DBG + 1))
    A("s_waitcnt vmcnt(0)")
    A("ds_write_b32 v6, v3")
    A("s_mov_b64 exec, -1")
    A.label("L_of1")
    A("s_waitcnt lgkmcnt(0)")
    A("s_barrier")
    A("ds_read_b32 v3, v6")
    A("s_waitcnt lgkmcnt(0)")
    A("v_readfirstlane_b32 s38, v3")
    A("s_barrier")
    A("s_mov_b32 s%d, 0" % S_GRP)
    init_wait(A, kind="tickets")
    A("s_mov_b32 s%d, 0" % S_GRP)
    A.label("L_of2")
    ticket_word(A)
    A("s_lshr_b32 s37, s37, 2")
    A("v_readlane_b32 s37, v40, s37")
    A("s_min_u32 s37, s37, 32")
    A("s_sub_u32 s39, 32, s37")
    A("s_cmp_lt_u32 s38, s39")
    A("s_cbranch_scc1 L_of3")
    A("s_sub_u32 s38, s38, s39")
    A("s_add_u32 s%d, s%d, 1" % (S_GRP, S_GRP))
    A("s_cmp_lt_u32 s%d, 8" % S_GRP)
    A("s_cbranch_scc1 L_of2")
    A("s_branch L_end")
    A.label("L_of3")
    A("s_add_u32 s%d, s37, s38" % S_HEAD)
    A("s_and_b32 s%d, s%d, 31" % (S_HEAD, S_HEAD))
    A("s_branch L_roles")

def build(opt, roles):
    A = Asm()
    A.raw(HEADER.rstrip())
    A.raw("; @launch grid=(256,1,1) block=(256,1,1) lds=%d" % LDS_BYTES)
    A.raw('.amdgcn_target "amdgcn-amd-amdhsa--gfx950"')
    A.raw(".text\n.globl %s\n.p2align 8\n.type %s,@function" % (KNAME, KNAME))
    A.label(KNAME)
    opt["init_wait"] = init_wait
    opt["arrive"] = arrive
    prologue(A, opt)
    roles(A, opt)
    overflow(A)
    A.label("L_end")
    A("s_endpgm")
    A.raw('''.section .rodata,"a"
.p2align 6
.amdhsa_kernel %s
  .amdhsa_next_free_vgpr 512
  .amdhsa_next_free_sgpr 102
  .amdhsa_accum_offset 256
  .amdhsa_group_segment_fixed_size 0
  .amdhsa_kernarg_size 104
  .amdhsa_user_sgpr_count 2
  .amdhsa_user_sgpr_kernarg_segment_ptr 1
  .amdhsa_system_sgpr_workgroup_id_x 1
.end_amdhsa_kernel''' % KNAME)
    errs = A.check()
    for e in errs: print(e, file=sys.stderr)
    return A.text(), errs

def roles_chain_only(A, opt):
    A("s_cmp_eq_u32 s%d, 0" % S_GRP)
    A("s_cbranch_scc1 L_chain")
    A("s_cmp_gt_u32 s%d, 2" % S_GRP)
    A("s_cbranch_scc1 L_end")
    workers.zero_flags(A, 2)
    opt["arrive"](A, "flags")
    A("s_branch L_end")
    chain.gen_chain(A, opt)

def roles_full(A, opt):
    if opt.get("tlb"):
        l = A.newlabel("Ltlb")
        A("s_cmp_lg_u32 s%d, 3" % S_WAVE)
        A("s_cbranch_scc1 %s" % l)
        A("s_cmp_gt_u32 s%d, 1" % S_HEAD)
        A("s_cbranch_scc1 %s" % l)
        A("v_and_b32 v4, 63, v0")
        A("s_lshl_b32 s37, s%d, 6" % S_HEAD)
        A("v_add_u32 v4, s37, v4")
        A("v_min_u32 v4, 95, v4")
        A("v_lshlrev_b32 v4, 21, v4")
        A("v_add_u32 v4, 0x1ff000, v4")
        A("v_mov_b32 v5, 0")
        A("global_atomic_or v4, v5, s[%d:%d]" % (S_WS, S_WS + 1))
        A.label(l)
    A("s_cmp_gt_u32 s%d, %d" % (S_GRP, opt["NP1"]))
    A("s_cbranch_scc1 L_aworker")
    A("s_cmp_lg_u32 s%d, 0" % S_GRP)
    A("s_cbranch_scc1 L_p1")
    chain.gen_chain(A, opt)
    workers.gen_p1(A, opt)
    workers.gen_p2(A, opt)
    workers.gen_aworker(A, opt)

if __name__ == "__main__":
    mode = sys.argv[1]; out = sys.argv[2]
    opt = {}
    for kv in sys.argv[3:]:
        k, x = kv.split("="); opt[k] = int(x)
    if mode == "chain":
        opt["nokv"] = True
        opt.setdefault("cyc", 1)
        t, errs = build(opt, roles_chain_only)
    if mode == "full":
        opt.setdefault("NP1", 2); opt.setdefault("NP2", 3); opt["NA"] = 7 - opt["NP1"] - opt["NP2"]
        for k, x in (("pa", 2), ("d1", 48), ("d3", 35), ("d5", 20), ("p1z", 150), ("oa", 1), ("ob", 1)): opt.setdefault(k, x)
        NZ[0] = opt["NP1"]
        FORCE[0] = 1 if opt.get("fake") == 1 else 0
        workers.ZZ[0] = opt.get("zz", 1)
        workers._RT0["rt"] = opt.get("rt")
        t, errs = build(opt, roles_full)
    open(out, "w").write(t)
    print("wrote", out, len(t), "bytes;", len(errs), "hazards")
```

```python
from common import *
import math, struct

L_KX = 0
L_VX = 8192
L_MEM = 16384
L_Z = 24576
L_O = 28672
L_VM = 30720

def f32bits(x): return struct.unpack("<I", struct.pack("<f", x))[0]

def wq_base(t, c):
    if t < 4:
        assert c >= 2
        return 256 + 8 * (t * 6 + c - 2)
    return 128 + 64 * (t - 4) + 8 * c
def wo_base(j, ch):
    return 256 + 192 + 8 * (ch * 4 + j)

def gen_chain(A, opt):
    cold = Cold()
    nokv = opt.get("nokv", False)
    LAST = opt.get("last", 63)
    opt["w0pos"] = {0: [], 1: [0, 4, 7], 2: [2, 5, 7], 3: [3, 7], 4: [1, 6]}[opt.get("w0p", 0)]
    EE = 0
    VL16, VSENT, VMLD, VZR, VZW, VOW, VWO, VPST, VMST, VIDX = 1, 11, 3, 4, 5, 6, 7, 8, 9, 10
    SELV, EXP, VMA, PM, PMB = 12, 16, 18, 20, 22
    CP = 14
    PT, VL4, VFA = 27, 2, 0
    VA = 24
    AF = 40
    FR = [48, 56, 64, 96, 104, 112, 120, 32]
    Q0, K0, Q1, K1, V0, V1 = 72, 76, 80, 84, 88, 92
    ZF, KX1, KX2 = 96, 112, 24
    S1, S2, S0 = 40, 44, 48
    M0_, M1_, T0_, T1_ = 52, 53, 54, 55
    VXC = 72
    PX, O0, O1, LA, ONES = 88, 92, 104, 108, 100
    OP, OA = 52, 104
    WACC = [40, 44, 48, 52, 72, 76, 88, 92]
    SLOTS = [80, 56, 64, 112, 120, 24, 32, 96]
    RB, RD, RT, SEL = 96, 80, 84, 88
    G0, G1 = 40, 44
    sSM = 88
    sL, sSEG, sIT = 48, 49, 50
    sMASK, sP0, sP1, sMG, sMR, sPR, sKV, sKM, sFM, sFKV, sR0, sR1 = 52, 54, 56, 58, 60, 62, 64, 68, 70, 72, 74, 78
    sC, sM0, sM1, sFW = 96, 77, 51, 76
    sST = 80
    NTR = 4

    tr_pos = opt.get("trace", 0)
    tr_used = []
    def tr(k):
        if not (tr_pos >> k) & 1: return
        if len(tr_used) >= NTR: raise ValueError("too many trace points")
        A("%s s[%d:%d]" % ("s_memrealtime" if opt.get("rtclk") else "s_memtime", sST + 2 * len(tr_used), sST + 1 + 2 * len(tr_used)))
        tr_used.append(k)

    A.label("L_chain")
    T = 40
    A("v_and_b32 v%d, 63, v0" % T)
    A("v_and_b32 v%d, 15, v0" % (T + 1))
    A("v_bfe_u32 v%d, v0, 4, 2" % (T + 2))
    A("v_lshlrev_b32 v%d, 4, v%d" % (VL16, T))
    A("v_mov_b32 v%d, -1" % VSENT)
    A("v_lshlrev_b32 v%d, 2, v%d" % (VL4, T))
    A("v_lshlrev_b32 v%d, 3, v%d" % (VZR, T))
    A("s_lshl_b32 s40, s%d, 10" % S_WAVE)
    A("v_lshlrev_b32 v%d, 5, v%d" % (VZW, T + 1))
    A("v_lshl_add_u32 v%d, v%d, 3, v%d" % (VZW, T + 2, VZW))
    A("v_add_u32 v%d, s40, v%d" % (VZW, VZW))
    A("s_lshr_b32 s41, s%d, 1" % S_WAVE)
    A("s_lshl_b32 s41, s41, 10")
    A("s_and_b32 s42, s%d, 1" % S_WAVE)
    A("s_lshl_b32 s42, s42, 5")
    A("s_add_u32 s41, s41, s42")
    A("s_add_u32 s41, s41, %d" % (L_O - 32))
    A("v_add_u32 v%d, s41, v%d" % (VOW, VL16))
    A("v_add_u32 v%d, 0x%x, v%d" % (T + 5, L_MEM, VL16))
    A("v_and_b32 v%d, 2, v%d" % (T + 3, T))
    A("v_cmp_ne_u32 vcc, 0, v%d" % (T + 3))
    A("v_mov_b32 v%d, 0xeeee" % (T + 6))
    A("v_mov_b32 v%d, 0x4444" % (T + 7))
    A("v_cndmask_b32 v%d, v%d, v%d, vcc" % (VOW, T + 5, VOW))
    A("v_cndmask_b32 v%d, v%d, v%d, vcc" % (VIDX, T + 7, T + 6))
    A("v_lshrrev_b32 v%d, 3, v%d" % (T + 5, T + 1))
    A("v_lshlrev_b32 v%d, 13, v%d" % (VWO, T + 5))
    A("v_and_b32 v%d, 7, v%d" % (T + 5, T + 1))
    A("v_lshl_add_u32 v%d, v%d, 3, v%d" % (T + 5, T + 2, T + 5))
    A("v_lshl_add_u32 v%d, v%d, 4, v%d" % (VWO, T + 5, VWO))
    A("s_lshl_b32 s41, s%d, 15" % S_WAVE)
    A("s_add_u32 s41, s41, %d" % L_WO)
    A("v_add_u32 v%d, s41, v%d" % (VWO, VWO))
    A("s_lshl_b32 s41, s%d, 11" % S_WAVE)
    A("v_add_u32 v%d, s41, v%d" % (VMLD, VL16))
    A("s_mov_b32 s%d, s41" % sM0)
    A("s_add_u32 s%d, s41, %d" % (sM1, L_VX))
    A("v_lshrrev_b32 v%d, 2, v%d" % (T + 5, T + 1))
    A("v_lshlrev_b32 v%d, 13, v%d" % (VPST, T + 5))
    A("v_and_b32 v%d, 3, v%d" % (T + 5, T + 1))
    A("v_lshl_add_u32 v%d, v%d, 2, v%d" % (T + 6, T + 2, T + 5))
    A("v_lshl_add_u32 v%d, v%d, 4, v%d" % (VPST, T + 6, VPST))
    A("s_lshl_b32 s41, s%d, 16" % S_WAVE)
    A("s_lshl_b32 s42, s%d, 8" % S_HEAD)
    A("s_add_u32 s41, s41, s42")
    A("v_add_u32 v%d, s41, v%d" % (VPST, VPST))
    A("v_and_b32 v%d, 12, v%d" % (T + 6, T + 1))
    A("v_add_u32 v%d, v%d, v%d" % (T + 6, T + 6, T + 2))
    A("v_lshlrev_b32 v%d, 4, v%d" % (VMST, T + 6))
    A("v_lshl_add_u32 v%d, v%d, 2, v%d" % (VMST, T + 5, VMST))
    A("v_add_u32 v%d, s42, v%d" % (VMST, VMST))
    A("v_and_b32 v%d, 1, v%d" % (T + 5, T))
    A("v_lshlrev_b32 v%d, 4, v%d" % (T + 5, T + 5))
    A("v_mov_b32 v%d, 0x3f80" % (T + 7))
    A("v_lshlrev_b32 v%d, v%d, v%d" % (T + 7, T + 5, T + 7))
    A("v_cndmask_b32_e64 v%d, v%d, 0, vcc" % (SELV, T + 7))
    A("v_lshrrev_b32 v%d, 2, v%d" % (T + 6, T + 1))
    for rr in range(4): A("v_cmp_eq_u32 s[%d:%d], %d, v%d" % (sSM + 2 * rr, sSM + 2 * rr + 1, rr ^ 2, T + 6))
    for r in (EXP, VMA, PM, PMB): A("v_mov_b64 v[%d:%d], 0" % (r, r + 1))
    A("s_mov_b32 s%d, 0x%x" % (sC, f32bits(128 ** -0.5 * math.log2(math.e))))
    A("s_mov_b32 s%d, s%d" % (sC + 1, sC))
    A("s_cmp_eq_u32 s%d, 3" % S_WAVE)
    A("s_cselect_b32 s%d, %d, 64" % (sFW, 2 - EE))
    A("s_mov_b32 s%d, 0" % sIT)
    if opt.get("cnt"):
        for r in (85, 86, 87): A("s_mov_b32 s%d, 0" % r)
    A("s_mov_b32 s%d, 0" % sL)
    rt_stamp(A, opt, 500, 40, 41)
    A("v_mov_b64 v[44:45], -1"); A("v_mov_b64 v[46:47], -1")
    A("s_lshl_b32 s40, s%d, 13" % S_HEAD)
    for k in range(2):
        A("s_add_u32 s41, s40, 0x%x" % (OFF_CPART + k * 0x40000)); sadd64(A, 42, S_WS, "s41")
        for i in range(2): A("global_store_dwordx4 v%d, v[44:47], s[42:43] offset:%d sc1" % (VMLD, i * 1024))
    A("s_lshl_b32 s41, s%d, 13" % S_WAVE)
    A("s_add_u32 s41, s41, 0x%x" % OFF_CMEM); sadd64(A, 42, S_WS, "s41")
    A("global_store_dword v%d, v44, s[42:43] sc1" % VMST)
    for k in range(2 * (64 - KM_POLL)):
        A("s_add_u32 s41, s40, 0x%x" % (OFF_KM + (64 * (k & 1) + KM_POLL + (k >> 1)) * 32 * 8192)); sadd64(A, 42, S_WS, "s41")
        A("global_store_dwordx4 v%d, v[44:47], s[42:43] sc1" % VMLD)
    for k in range(0 if nokv else 4):
        A("s_add_u32 s41, s40, 0x%x" % ((OFF_KX, OFF_VX)[k & 1] + 64 * (k >> 1) * 32 * 8192)); sadd64(A, 42, S_WS, "s41")
        for i in range(2): A("global_store_dwordx4 v%d, v[44:47], s[42:43] offset:%d sc1" % (VMLD, i * 1024))
    A.nop(2)
    def mid(A):
        l = A.newlabel("Lmid")
        A("s_cmp_lg_u32 s%d, 0" % S_WAVE)
        A("s_cbranch_scc1 %s" % l)
        A("v_mov_b32 v112, 32")
        A("v_mov_b32 v113, 1")
        A("s_mov_b64 exec, 1")
        A("global_atomic_add v112, v113, s[%d:%d]" % (S_DBG, S_DBG + 1))
        A("s_mov_b64 exec, -1")
        A.label(l)
    load_head_weights(A, 40, wq_base, True, vwo=VWO, wo_base=wo_base, mid=mid)
    rt_stamp(A, opt, 501, 40, 41)
    dbg_time(A, opt, "8", 40, 41)
    opt["init_wait"](A, kind="chainm")
    opt["init_wait"](A)
    rt_stamp(A, opt, 502, 40, 41)

    def pkadd(d): A("v_pk_add_f32 v[%d:%d], v[%d:%d], v[%d:%d]" % (d, d + 1, d, d + 1, d + 2, d + 3))
    def add1(d, e): A("v_add_f32 v%d, v%d, v%d" % (d + e, d + e, d + 2 + e))
    def cvt(d, x, y): A("v_cvt_pk_bf16_f32 v%d, v%d, v%d" % (d, x, y))
    def rd128(d, addr, off): A("ds_read_b128 v[%d:%d], v%d offset:%d" % (d, d + 3, addr, off))
    def z64(r): A("v_mov_b64 v[%d:%d], 0" % (r, r + 1))

    def setup_part_bases():
        sadd64(A, sKV, sKV, 32 * 8192)
        sadd64(A, sKV + 2, sKV + 2, 32 * 8192)
        sadd64(A, sKM, sKM, 32 * 8192)
        sadd64(A, sFM, sFM, 4)
        A("s_and_b32 s40, s%d, 1" % sIT)
        A("s_lshl_b32 s40, s40, 18")
        A("s_add_u32 s41, s40, 0x%x" % OFF_CPART); sadd64(A, sP0, S_WS, "s41")
        sadd64(A, sP1, sP0, 32768)
        A("s_lshl_b32 s42, s%d, 13" % S_HEAD)
        sadd64(A, sR0, sP0, "s42")
        sadd64(A, sR1, sR0, 4096)
        A("s_xor_b32 s41, s41, 0x40000")
        A("s_add_u32 s41, s41, s42"); sadd64(A, sPR, S_WS, "s41")
    def prefetch_own(hook=None, only=range(8)):
        for p in range(1, 4):
            if 0 in only: A("v_xor_b32 v%d, %d, v%d" % (VA + p - 1, p * 2048, VMLD))
        for n, (X, Tt, cc) in enumerate([(0, 0, 0), (1, 0, 0), (0, 1, 0), (1, 1, 0), (0, 0, 1), (1, 0, 1), (0, 1, 1), (1, 1, 1)]):
            f = (X * 2 + Tt) * 2 + cc
            if n not in only: continue
            if hook: hook(n)
            for hB in range(2): rd128(FR[n] + 4 * hB, VWO, 16384 + f * 1024 + hB * 512)
    def kv_check(tmp, sreg):
        if nokv: return
        lp = A.newlabel("Lkvp"); ok = A.newlabel("Lkvo")
        A.label(ok)
        A("s_bitcmp0_b64 s[%d:%d], %s" % (sMASK, sMASK + 1, sreg))
        A("s_cbranch_scc1 %s" % lp)
        def blk(A):
            A.label(lp)
            A("global_load_dword v%d, v%d, s[%d:%d] sc1" % (tmp, VL4, sFKV, sFKV + 1))
            A("s_waitcnt vmcnt(0)")
            A("v_cmp_ne_u32 s[%d:%d], 0, v%d" % (sMASK, sMASK + 1, tmp))
            A("s_sleep 1")
            spin_guard(A)
            A("s_branch %s" % ok)
        cold.add(blk)
    def kv_ops():
        return [["s_mov_b32 m0, s%d" % sM0, "s_nop 0",
                 "global_load_lds_dwordx4 v%d, s[%d:%d] sc1" % (VMLD, sKV, sKV + 1)],
                ["global_load_lds_dwordx4 v%d, s[%d:%d] offset:1024 sc1" % (VMLD, sKV, sKV + 1), "s_mov_b32 m0, s%d" % sM1],
                ["global_load_lds_dwordx4 v%d, s[%d:%d] sc1" % (VMLD, sKV + 2, sKV + 3)],
                ["global_load_lds_dwordx4 v%d, s[%d:%d] offset:1024 sc1" % (VMLD, sKV + 2, sKV + 3)]]
    def exp_st():
        return "global_store_dwordx4 v%d, v[%d:%d], s[%d:%d] sc1" % (VMLD, EXP, EXP + 3, sKM, sKM + 1)
    def flag(tmp, off):
        A("v_mov_b32 v%d, 0" % tmp)
        A("global_store_dword v%d, v%d, s[%d:%d] offset:%d sc1" % (tmp, VSENT, sFM, sFM + 1, off))

    A.label("L_ch_layer")
    A("s_mov_b32 s%d, 0" % sSEG)
    A("s_mov_b64 s[%d:%d], 0" % (sMASK, sMASK + 1))
    A("s_lshl_b32 s40, s%d, 5" % sL)
    A("s_add_u32 s40, s40, s%d" % S_HEAD)
    A("s_lshl_b32 s40, s40, 8")
    A("s_add_u32 s41, s40, 0x%x" % F_KV)
    sadd64(A, sFKV, S_WS, "s41")
    A("s_add_u32 s41, s40, 0x%x" % (F_M - 12 + 4 * EE))
    sadd64(A, sFM, S_WS, "s41")
    A("s_lshl_b32 s40, s%d, 11" % sL)
    A("s_add_u32 s40, s40, s%d" % S_HEAD)
    A("s_lshl_b32 s40, s40, 13")
    A("s_add_u32 s41, s40, 0x%x" % OFF_KX); sadd64(A, sKV, S_WS, "s41")
    A("s_add_u32 s41, s40, 0x%x" % OFF_VX); sadd64(A, sKV + 2, S_WS, "s41")
    A("s_add_u32 s41, s40, 0x%x" % (OFF_KM - (2 - EE) * 32 * 8192)); sadd64(A, sKM, S_WS, "s41")
    A("v_bfe_u32 v27, v2, 4, 2")
    A("v_bfe_u32 v28, v2, 2, 1")
    A("v_lshl_add_u32 v27, v27, 1, v28")
    A("v_lshlrev_b32 v27, 10, v27")
    A("v_bfe_u32 v28, v2, 3, 1")
    A("v_lshl_add_u32 v27, v28, 2, v27")
    A("v_bfe_u32 v28, v2, 6, 2")
    A("v_lshl_add_u32 v27, v28, 5, v27")
    A("v_mov_b32 v%d, 0" % VFA)
    A("s_lshl_b32 s40, s%d, 8" % S_WAVE)
    A("v_add_u32 v27, s40, v27")
    for i in range(2):
        for p in range(4):
            A("global_load_dword v%d, v27, s[%d:%d] offset:%d" % (G0 + 4 * i + p, S_MEM0, S_MEM0 + 1, i * 128 + p * 8))
    if nokv:
        for g_ in kv_ops():
            for t in g_: A(t)
            A("s_nop 0")
    else:
        poll_tile(A, [(VMLD, sKV, 0), (VMLD, sKV, 1024), (VMLD, sKV + 2, 0), (VMLD, sKV + 2, 1024)], 96, 28,
                  [(VMLD, L_KX), (VMLD, L_KX + 1024), (VMLD, L_VX), (VMLD, L_VX + 1024)])
    if opt.get("rt") or opt.get("cyc"):
        A("s_add_u32 s47, s%d, 400" % sL)
        rt_stamp(A, dict(rt=opt.get("rt") or 2), "s47", 27, 28)
    if opt.get("dbgt"):
        A("s_lshl_b32 s47, s%d, 1" % sL); A("s_add_u32 s47, s47, 9")
        dbg_time(A, opt, "s47", 27, 28)
        A("s_add_u32 s47, s47, 4")
        dbg_time(A, opt, "s47", 27, 28, cyc=True)
    for r in range(0, 24, 2): z64(Q0 + r)
    setup_part_bases()
    prefetch_own()
    A("s_waitcnt vmcnt(0)")
    if not opt.get("og"):
        A("ds_write_b128 v%d, v[%d:%d] offset:%d" % (VMLD, G0, G0 + 3, L_MEM))
        A("ds_write_b128 v%d, v[%d:%d] offset:%d" % (VMLD, G1, G1 + 3, L_MEM + 1024))
    A("s_waitcnt lgkmcnt(%d)" % (0 if opt.get("og") else 2))
    A("s_branch L_ch_step")

    A.raw(".p2align 6")
    PA = opt.get("pa", 1)
    def ldA():
        A("global_load_dwordx4 v[%d:%d], v%d, s[%d:%d] sc1" % (G0, G0 + 3, VMLD, sMG, sMG + 1))
        A("global_load_dwordx4 v[%d:%d], v%d, s[%d:%d] offset:1024 sc1" % (G1, G1 + 3, VMLD, sMG, sMG + 1))
    A.label("L_ch_retryA")
    ldA()
    if opt.get("cnt"): A("s_add_u32 s87, s87, 1")
    spin_guard(A)
    A.label("L_ch_pollA")
    A("s_waitcnt vmcnt(%d) lgkmcnt(0)" % (2 * (PA - 1)))
    A("v_max_u32 v%d, v%d, v%d" % (PT, G0, G1))
    A("v_cmp_eq_u32 vcc, -1, v%d" % PT)
    if not opt.get("og"):
        A("ds_write_b128 v%d, v[%d:%d] offset:%d" % (VMLD, G0, G0 + 3, L_MEM))
        A("ds_write_b128 v%d, v[%d:%d] offset:%d" % (VMLD, G1, G1 + 3, L_MEM + 1024))
    A("s_cbranch_vccnz L_ch_retryA")
    if tr_pos:
        tr(26)
        lt = A.newlabel("Ltr")
        A("s_cmp_eq_u32 s%d, %d" % (sIT, opt.get("trit", 100)))
        A("s_cbranch_scc1 %s" % lt)
        A.label(lt + "b")
        def blk(A):
            A.label(lt)
            A("s_waitcnt lgkmcnt(0)")
            A("s_lshl_b32 s40, s%d, 2" % S_HEAD)
            A("s_add_u32 s40, s40, s%d" % S_WAVE)
            A("s_lshl_b32 s40, s40, 7")
            A("s_add_u32 s40, s40, 0x%x" % (OFF_STAMP + 0x400000))
            sadd64(A, 42, S_WS, "s40")
            A("v_mov_b32 v27, 0")
            for n, k in enumerate(tr_used):
                A("v_mov_b32 v28, s%d" % (sST + 2 * n))
                A("global_store_dword v27, v28, s[42:43] offset:%d" % (4 * k))
            A("s_branch %s" % (lt + "b"))
        cold.add(blk)
    A.label("L_ch_step")
    tr(0)
    def smfr(acc, c, breg):
        A("v_smfmac_f32_16x16x64_bf16 v[%d:%d], v[%d:%d], %s, v%d" % (acc, acc + 3, AF + 4 * c, AF + 4 * c + 3, R(breg, 8), VIDX))
    def smf(acc, c, tile): smfr(acc, c, wq_base(tile, c))
    accs = [Q0, K0, Q1, K1]
    def mf(d, x, y, c, k32=True):
        n = 4 if k32 else 2
        A("v_mfma_f32_16x16x%d_bf16 v[%d:%d], v[%d:%d], v[%d:%d], %s" % (32 if k32 else 16, d, d + 3, x, x + n - 1, y, y + n - 1, c))
    acc = lambda r: "v[%d:%d]" % (r, r + 3)
    def trd(k):
        dc, Tt = k >> 1, k & 1
        A("ds_read_b64_tr_b16 v[%d:%d], v%d offset:%d" % (ZF + 2 * k, ZF + 2 * k + 1, VZR, L_Z + dc * 1024 + Tt * 512))
    for n in range(4 + opt.get("og2", 0)):
        smfr(accs[n & 3], n >> 2, FR[n])
        if opt.get("og") and n < 2: A("ds_write_b128 v%d, v[%d:%d] offset:%d" % (VMLD, G0 + 4 * n, G0 + 4 * n + 3, L_MEM + 1024 * n))
    A("s_waitcnt lgkmcnt(0)")
    A("s_barrier")
    tr(1)
    own = [lambda n=n: smfr(accs[n], 1, FR[4 + n]) for n in range(opt.get("og2", 0), 4)] + \
          [lambda a_=a_, c=c, t=t: smf(a_, c, t) for c in range(2) for a_, t in ((V0, 4), (V1, 5))]
    rd128(AF + 8, VA, L_MEM)
    for c in range(3, 8):
        rd128(AF + 4 * c, VA + c // 2 - 1, L_MEM + (c & 1) * 1024)
        if len(own) > 1 and (c - 2 <= len(own) + 4 or True) and not (opt.get("og2", 0) and c in (4, 6)): own.pop(0)()
    while len(own) > 1: own.pop(0)()
    if PA > 1: A("s_waitcnt vmcnt(0)")
    if not opt.get("norearm"):
        store_mixed(A, cold, ["global_store_dword v%d, v%d, s[%d:%d]" % (VMLD, VSENT, sPR, sPR + 1),
                              "global_store_dword v%d, v%d, s[%d:%d] offset:1024" % (VMLD, VSENT, sPR, sPR + 1)])
    A("s_cmp_lt_u32 s%d, s%d" % (sSEG, sFW))
    A("s_cbranch_scc0 L_ch_flag")
    A.label("L_ch_noflag")
    own.pop(0)()
    A("s_cmp_eq_u32 s%d, 0" % sSEG)
    A("s_cselect_b32 s40, 4, s%d" % S_WAVE)
    EM = opt.get("em", 0)
    def exp_turn(k):
        if opt.get("noexp"): return
        l = A.newlabel("Lex")
        if EM == 0 and k == 0 and not EE:
            A("s_cbranch_scc1 %s" % l); A(exp_st()); A.label(l)
        if EM == 1 and k in (0, 2):
            A("s_cbranch_scc1 %s" % l)
            A("global_store_dwordx2 v%d, v[%d:%d], s[%d:%d] offset:%d sc1" % (VMLD, EXP + k, EXP + k + 1, sKM, sKM + 1, 4 * k))
            A.label(l)
        if EM == 2:
            A("s_cmp_lg_u32 s40, %d" % k); A("s_cbranch_scc1 %s" % l); A(exp_st()); A.label(l)
        if EM == 3 and k in (0, 2):
            A("s_cmp_lg_u32 s41, %d" % (k >> 1)); A("s_cbranch_scc1 %s" % l); A(exp_st()); A.label(l)
    if EM == 3: A("s_lshr_b32 s41, s40, 1")
    tr(2)
    kx = [(KX1 + 4 * d, VL16, L_KX + d * 1024) for d in range(4)] + [(KX2 + 4 * d, VL16, L_KX + 4096 + d * 1024) for d in range(4)]
    extra = 0
    for c in range(2, 8):
        A("s_waitcnt lgkmcnt(%d)" % (7 - c + extra))
        if not opt.get("xnoq"): smf(Q0, c, 0)
        if c >= 4: rd128(*kx.pop(0)); extra += 1
        else: exp_turn(2 * (c - 2))
        smf(K0, c, 2)
        if c >= 4: rd128(*kx.pop(0)); extra += 1
        else: exp_turn(2 * (c - 2) + 1)
    assert not kx
    tr(3)
    OB = opt.get("ob", 0)
    seq = [(a_, c, t) for c in range(2, 8) for a_, t in ((Q1, 1), (K1, 3))]
    if OB: seq = [(Q1, c, 1) for c in range(2, 8)] + [(K1, c, 3) for c in range(2, 8)]
    for i, x in enumerate(seq):
        smf(*x)
        if i == 0: A("s_add_u32 s41, s%d, 1" % sSEG); A.nop(2)
        if i == 1:
            if not nokv:
                A("v_cmp_ne_u32 vcc, 0, v%d" % VFA)
                A("s_or_b64 s[%d:%d], s[%d:%d], vcc" % (sMASK, sMASK + 1, sMASK, sMASK + 1))
            else: A.nop(2)
        if i == 2: add1(Q0, 0)
        if i == 3: add1(Q0, 1)
        if i == 4: add1(K0, 0)
        if i == 5: add1(K0, 1)
        if i == 6: cvt(K0 + 3, Q0, Q0 + 1)
        if i == 7: cvt(K0 + 2, K0, K0 + 1)
        if i == 8:
            A("ds_write_b64 v%d, v[%d:%d] offset:%d" % (VZW, K0 + 2, K0 + 3, L_Z)); A("v_min_u32 v%d, -2, v%d" % (EXP, K0 + 2))
        if i == 9: rd128(VXC, VMLD, L_VX)
        if i == 10: rd128(VXC + 4, VMLD, L_VX + 1024)
        if OB and i == 9: add1(Q1, 0)
        if OB and i == 10: add1(Q1, 1)
        if OB and i == 11: cvt(Q1 + 3, Q1, Q1 + 1)
    tr(4)
    vq = [x for c in range(2, 8) for x in ((V0, c, 4), (V1, c, 5))]
    def vs(n=1):
        for _ in range(n):
            if vq: smf(*vq.pop(0))
    vs(); A.nop(3); vs(); A.nop(2 + OB)
    if OB:
        add1(K1, 0); add1(K1, 1); cvt(Q1 + 2, K1, K1 + 1)
    else:
        add1(Q1, 0); add1(Q1, 1); add1(K1, 0); add1(K1, 1)
        cvt(Q1 + 3, Q1, Q1 + 1); cvt(Q1 + 2, K1, K1 + 1)
    A("ds_write_b64 v%d, v[%d:%d] offset:%d" % (VZW, Q1 + 2, Q1 + 3, L_Z + 512))
    tr(5)
    vs()
    A("v_mov_b32 v%d, v%d" % (EXP + 1, Q1 + 2))
    vs(opt.get("vpre", 4) - 1)
    A("s_waitcnt lgkmcnt(0)")
    A("s_barrier")
    tr(6)
    tq = list(range(8))
    trd(tq.pop(0)); trd(tq.pop(0))
    while vq:
        vs()
        for _ in range(2 if len(tq) > len(vq) + 1 else 1):
            if tq: trd(tq.pop(0))
    while tq: trd(tq.pop(0))
    A("s_cmp_eq_u32 s%d, %d" % (sSEG, LAST))
    A("s_cbranch_scc1 L_ch_last")
    vq_last = []
    kv_check(52, "s41")
    kvo = kv_ops()
    if opt.get("nodma"): kvo = [["s_nop 0"]] * 4
    wrd = []
    for i in range(8):
        off = (i >> 1) * 2048 + (i & 1) * 1024
        wrd += [(SLOTS[i], VWO, off), (SLOTS[i] + 4, VWO, off + 512)]
    def w(): rd128(*wrd.pop(0))
    nw = 0
    for dc in range(4):
        A("s_waitcnt lgkmcnt(%d)" % (6 - 2 * dc + nw))
        z = ZF + 4 * dc
        mf(S1, KX1 + 4 * dc, z, "0" if dc == 0 else acc(S1))
        if dc < 3: w(); nw += 1
        if dc == 2: add1(V0, 1)
        if dc == 3: cvt(VMA, V0, V0 + 1)
        mf(S2, KX2 + 4 * dc, z, "0" if dc == 0 else acc(S2))
        if dc < 3: w(); nw += 1
        if dc == 2: add1(V1, 0)
        if dc == 3: cvt(VMA + 1, V1, V1 + 1); A("v_min_u32 v%d, -2, v%d" % (VMA, VMA))
        mf(S0, z, z, "0" if dc == 0 else acc(S0))
        for t in kvo.pop(0): A(t)
        if dc == 1: add1(V0, 0)
        if dc == 2: add1(V1, 1)
    tr(7)
    if not nokv: A("global_load_dword v%d, v%d, s[%d:%d] sc1" % (VFA, VL4, sFKV, sFKV + 1))
    else: A("s_nop 0")
    if EE: A(exp_st())
    A("v_mov_b32 v%d, 0x3f803f80" % ONES)
    A("v_mov_b32 v%d, 0x3f803f80" % (ONES + 1))
    A("v_max3_f32 v%d, v%d, v%d, v%d" % (M0_, S1, S1 + 1, S1 + 2))
    A("v_mov_b32 v%d, 0x3f803f80" % (ONES + 2))
    A("v_max3_f32 v%d, v%d, v%d, v%d" % (M1_, S1 + 3, S2, S2 + 1))
    A("v_max3_f32 v%d, v%d, v%d, v%d" % (M0_, M0_, S2 + 2, S2 + 3))
    A("v_max3_f32 v%d, v%d, v%d, v%d" % (M1_, M1_, S0, S0 + 1))
    A("v_max_f32 v%d, v%d, v%d" % (T0_, M0_, M1_))
    A("v_max_f32 v%d, v%d, v%d" % (T1_, M0_, M1_))
    A("v_mov_b32 v%d, 0x3f803f80" % (ONES + 3))
    A("s_add_u32 s40, s%d, 1" % sIT)
    A("v_permlane32_swap_b32 v%d, v%d" % (T0_, T1_))
    A("v_max_f32 v%d, v%d, v%d" % (M0_, T0_, T1_))
    A("v_max_f32 v%d, v%d, v%d" % (M1_, T0_, T1_))
    A("s_and_b32 s40, s40, 3")
    A("s_lshl_b32 s40, s40, 13")
    A("v_permlane16_swap_b32 v%d, v%d" % (M0_, M1_))
    A("v_max_f32 v%d, v%d, v%d" % (M0_, M0_, M1_))
    A("v_mul_f32 v%d, s%d, v%d" % (M0_, sC, M0_))
    tr(8)
    def pkf(r): A("v_pk_fma_f32 v[%d:%d], v[%d:%d], s[%d:%d], v[%d:%d] op_sel_hi:[1,0,0] neg_lo:[0,0,1] neg_hi:[0,0,1]" % (r, r + 1, r, r + 1, sC, sC + 1, M0_, M0_ + 1))
    def ex(r):
        if not opt.get("xnoexp"): A("v_exp_f32 v%d, v%d" % (r, r))
    pkf(S1); pkf(S1 + 2); ex(S1); ex(S1 + 1); pkf(S2); ex(S1 + 2); ex(S1 + 3); pkf(S2 + 2)
    cvt(PX, S1, S1 + 1); ex(S2); ex(S2 + 1); cvt(PX + 1, S1 + 2, S1 + 3); pkf(S0); ex(S2 + 2); ex(S2 + 3)
    cvt(PX + 2, S2, S2 + 1); ex(S0); cvt(PX + 3, S2 + 2, S2 + 3); ex(S0 + 1)
    tr(9)
    A("s_add_u32 s40, s40, 0x%x" % OFF_CMEM)
    mf(LA, ONES, PX, "0")
    cvt(PM, S0, S0 + 1)
    mf(O1, VXC + 4, PX, "0")
    w(); cvt(PMB + 1, S0, S0 + 1)
    mf(O0, VXC, PX, "0")
    w(); sadd64(A, sMG, S_WS, "s40")
    A("v_mov_b32 v%d, 0" % S1)
    mf(LA, ONES, PM, acc(LA), k32=False)
    w(); A("v_mov_b32 v%d, 0" % (S1 + 1)); A.nop(1)
    mf(O1, VMA, PMB, acc(O1), k32=False)
    w(); A("v_mov_b32 v%d, 0" % (S1 + 2))
    mf(O0, VMA, PM, acc(O0), k32=False)
    A("v_mov_b32 v%d, 0" % (S1 + 3))
    z64(WACC[1]); z64(WACC[1] + 2)
    A("v_rcp_f32 v%d, v%d" % (LA, LA))
    z64(WACC[2])
    for r in (O1, O1 + 2, O0, O0 + 2):
        if r == O0: z64(WACC[2] + 2)
        A("v_pk_mul_f32 v[%d:%d], v[%d:%d], v[%d:%d] op_sel_hi:[1,0]" % (r, r + 1, r, r + 1, LA, LA + 1))
    cvt(OP + 2, O1, O1 + 1); cvt(OP + 3, O1 + 2, O1 + 3); cvt(OP, O0, O0 + 1); cvt(OP + 1, O0 + 2, O0 + 3)
    A("ds_write_b128 v%d, v[%d:%d]" % (VOW, OP, OP + 3))
    tr(10)
    for t in (4, 5, 6, 7): z64(WACC[t]); z64(WACC[t] + 2)
    for _ in range(opt.get("wfill", 4)): A("v_mov_b32 v%d, 0" % CP)
    A("s_waitcnt vmcnt(%d) lgkmcnt(0)" % ((0 if opt.get("nodma") else 4 if nokv else 5) + EE))
    tr(11)
    A("s_barrier")
    tr(12)
    rd128(OA, VL16, L_O); rd128(OA + 4, VL16, L_O + 1024)
    z64(WACC[3]); z64(WACC[3] + 2)
    A("s_and_b32 s40, s%d, 3" % sIT); A("s_lshl_b32 s40, s40, 13"); A("s_add_u32 s40, s40, 0x%x" % OFF_CMEM)
    def tile_ops(d): return ["v_add_f32 v%d, v%d, v%d" % (d + e, d + e, d + 2 + e) for e in range(2)]
    def cv(d, x, y): return "v_cvt_pk_bf16_f32 v%d, v%d, v%d" % (d, x, y)
    t0, t1 = WACC[:4], WACC[4:]
    order = [(j, ch) for j in range(8) for ch in range(2)]
    a0, a1, a2, a3 = [tile_ops(x) for x in t0]
    b0, b1, b2, b3 = [tile_ops(x) for x in t1]
    mn = lambda r: "v_min_u32 v%d, -2, v%d" % (r, r)
    fill = {3: ["s_nop 0"], 4: [a0[0]], 5: [a0[1]], 6: [a1[0]], 7: [a1[1]], 8: [cv(t0[0] + 2, t0[0], t0[1]), a2[0]],
            9: [cv(t0[0] + 3, t0[0] + 1, t0[1] + 1), a2[1]], 10: ["s_nop 0", a3[0]], 11: [a3[1], cv(t0[0], t0[2], t0[3])],
            12: [cv(t0[0] + 1, t0[2] + 1, t0[3] + 1), mn(t0[0])], 13: [b0[0]], 14: [b0[1], b1[0]], 15: [b1[1]]}
    nlate = len(wrd)
    issued = 0
    for i, (Tt, ch) in enumerate(order):
        if i == 0: A("s_waitcnt lgkmcnt(1)")
        if i == 1: A("s_waitcnt lgkmcnt(%d)" % issued)
        if i >= 8:
            need = 2 * (i - 8) + 2 - (16 - nlate)
            if need > 0: A("s_waitcnt lgkmcnt(%d)" % (issued - need))
        b = wo_base(Tt, ch) if i < 8 else SLOTS[i - 8]
        a_ = WACC[Tt]
        A("v_smfmac_f32_16x16x64_bf16 v[%d:%d], v[%d:%d], %s, v%d" % (a_, a_ + 3, OA + 4 * ch, OA + 4 * ch + 3, R(b, 8), VIDX))
        if i == 0: tr(13)
        if i == 7: tr(14)
        if i == 15: tr(15)
        if wrd: rd128(*wrd.pop(0)); issued += 1
        for t in fill.get(i, []): A(t)
        if i == 12:
            store_mixed(A, cold, ["global_store_dwordx4 v%d, v[%d:%d], s[%d:%d]" % (VPST, t0[0], t0[0] + 3, sP0, sP0 + 1)])
    assert not wrd
    for t in [cv(t1[0] + 2, t1[0], t1[1]), cv(t1[0] + 3, t1[0] + 1, t1[1] + 1)] + b2 + ["s_nop 2"] + b3 + \
             [cv(t1[0], t1[2], t1[3]), cv(t1[0] + 1, t1[2] + 1, t1[3] + 1), mn(t1[0])]: A(t)
    store_mixed(A, cold, ["global_store_dwordx4 v%d, v[%d:%d], s[%d:%d]" % (VPST, t1[0], t1[0] + 3, sP1, sP1 + 1)])
    tr(20)
    sadd64(A, sMR, S_WS, "s40")
    A("s_add_u32 s%d, s%d, 1" % (sSEG, sSEG))
    A("s_add_u32 s%d, s%d, 1" % (sIT, sIT))
    for r in (4, 6, 20, 22): z64(Q0 + r)
    A("s_cmp_lg_u32 s%d, 0" % S_WAVE)
    A("s_cbranch_scc1 L_ch_nored")
    for rr in range(4): A("v_cndmask_b32 v%d, 0, v%d, s[%d:%d]" % (SEL + rr, SELV, sSM + 2 * rr, sSM + 2 * rr + 1))
    prefetch_own(only=(0, 1, 2, 7))
    if opt.get("d1", 0): A.nop(opt["d1"])
    def ldB(i):
        b = sR0 if i < 4 else sR1
        A("global_load_dwordx4 v[%d:%d], v%d, s[%d:%d] offset:%d sc1" % (RB + 4 * i, RB + 4 * i + 3, VL16, b, b + 1, (i & 3) * 1024))
    tr(21)
    A.label("L_ch_rB")
    for i in range(8): ldB(i)
    if opt.get("cnt"): A("s_add_u32 s86, s86, 1")
    spin_guard(A)
    A("s_waitcnt vmcnt(7)")
    A("v_cmp_eq_u32 vcc, -1, v%d" % RB)
    mf(RD, SEL, RB, "0")
    A("s_cbranch_vccnz L_ch_rB")
    if opt.get("cnt"): A("s_add_u32 s85, s85, 1")
    tr(22)
    for i in range(1, 8):
        A("s_waitcnt vmcnt(%d)" % (7 - i))
        mf(RD, SEL, RB + 4 * i, acc(RD))
        if i == 2: A("v_max_u32 v%d, v%d, v%d" % (RT, RB + 4, RB + 8))
        if i in (4, 6): A("v_max3_u32 v%d, v%d, v%d, v%d" % (RT, RT, RB + 4 * i - 4, RB + 4 * i))
    tr(23)
    A("v_max_u32 v%d, v%d, v%d" % (RT, RT, RB + 28))
    A("v_cmp_eq_u32 vcc, -1, v%d" % RT)
    if opt.get("oa"):
        A.nop(6)
        cvt(RT, RD, RD + 1)
        A("v_min_u32 v%d, -2, v%d" % (RT, RT))
        A("s_cbranch_vccnz L_ch_rB")
    else:
        A.nop(5)
        A("s_cbranch_vccnz L_ch_rB")
        cvt(RT, RD, RD + 1)
        A("v_min_u32 v%d, -2, v%d" % (RT, RT))
    store_mixed(A, cold, ["global_store_dword v%d, v%d, s[%d:%d]" % (VMST, RT, sMG, sMG + 1),
                          "global_store_dword v%d, v%d, s[%d:%d]" % (VMST, VSENT, sMR, sMR + 1)])
    tr(24)
    A("s_barrier")
    setup_part_bases()
    if opt.get("d6", 0): A.nop(opt["d6"])
    tr(25)
    ldA()
    prefetch_own(only=(3, 4, 5, 6))
    for r in (0, 2, 8, 10, 12, 14, 16, 18): z64(Q0 + r)
    if opt.get("d7", 0): A.nop(opt["d7"])
    for k in range(1, PA): ldA()
    A("s_branch L_ch_pollA")
    A.label("L_ch_firstA")
    for k in range(PA):
        ldA()
        if k < PA - 1: A.nop(opt.get("d5", 24))
    A("s_branch L_ch_pollA")
    A.label("L_ch_nored")
    rt_stamp(A, opt, "s%d" % sIT, RT, RT + 1)
    setup_part_bases()
    prefetch_own()
    for r in (0, 2, 8, 10, 12, 14, 16, 18): z64(Q0 + r)
    A("s_barrier")
    if opt.get("d3", 0): A.nop(opt["d3"])
    A("s_branch L_ch_firstA")

    A.label("L_ch_flag")
    A("s_mov_b64 exec, 1")
    A("global_store_dword v%d, v%d, s[%d:%d] sc1" % (PM + 1, VSENT, sFM, sFM + 1))
    A("s_mov_b64 exec, -1")
    A("s_branch L_ch_noflag")
    A.label("L_ch_last")
    for x in vq_last: smf(*x)
    if not EE: sadd64(A, sKM, sKM, 32 * 8192)
    A.nop(8)
    pkadd(V0); pkadd(V1)
    cvt(VMA, V0, V0 + 1); cvt(VMA + 1, V1, V1 + 1)
    A("v_min_u32 v%d, -2, v%d" % (VMA, VMA))
    A(exp_st())
    A("s_waitcnt lgkmcnt(0)")
    A("s_barrier")
    if opt.get("rt") or opt.get("cyc"):
        A("s_add_u32 s47, s%d, 410" % sL)
        rt_stamp(A, dict(rt=opt.get("rt") or 2), "s47", 27, 28)
    if opt.get("dbgt"):
        A("s_lshl_b32 s47, s%d, 1" % sL); A("s_add_u32 s47, s47, 10")
        dbg_time(A, opt, "s47", 27, 28)
        A("s_cmp_eq_u32 s%d, 0" % sL)
        A("s_cselect_b32 s47, 14, 7")
        dbg_time(A, opt, "s47", 27, 28, cyc=True)
    A("s_add_u32 s%d, s%d, 1" % (sL, sL))
    A("s_cmp_lt_u32 s%d, %d" % (sL, opt.get("layers", 2)))
    A("s_cbranch_scc1 L_ch_layer")
    if opt.get("cnt"):
        rt_stamp(A, dict(rt=2), 420, 27, 28)
        for k, r in enumerate((85, 86, 87)):
            A("v_mov_b32 v28, s%d" % r)
            A("global_store_dword v27, v28, s[%d:%d] offset:%d" % (S_WS, S_WS + 1, 4 + 4 * k))
    A("s_branch L_end")
    cold.emit(A)
```

```python
from common import *
import math, struct
def f32bits(x): return struct.unpack("<I", struct.pack("<f", x))[0]
LOG2E = math.log2(math.e)
ZZ = [1]
_RT0 = {}

def mfma(A, d, x, y, c, k32=True):
    n = 4 if k32 else 2
    A("v_mfma_f32_16x16x%d_bf16 %s, %s, %s, %s" % (32 if k32 else 16, v(d, 4), R(x, n), R(y, n), c if isinstance(c, str) else v(c, 4)))
def cvt(A, d, x, y): A("v_cvt_pk_bf16_f32 v%d, v%d, v%d" % (d, x, y))
def rd128(A, d, addr, off): A("ds_read_b128 v[%d:%d], v%d offset:%d" % (d, d + 3, addr, off))

def wait_flags(A, vtmp, voff, sbase, sleep=2):
    lp = A.newlabel("Lwf"); ok = A.newlabel("Lwo")
    A.label(lp)
    A("global_load_dword v%d, v%d, s[%d:%d] sc1" % (vtmp, voff, sbase, sbase + 1))
    A("s_waitcnt vmcnt(0)")
    A("v_cmp_eq_u32 vcc, 0, v%d" % vtmp)
    A("s_cbranch_vccz %s" % ok)
    if sleep: A("s_sleep %d" % (sleep * ZZ[0]))
    spin_guard(A)
    A("s_branch %s" % lp)
    A.label(ok)

def row_allsum16(A, regs, tmp):
    src, dst = list(regs), list(tmp)
    for sh in (8, 4, 2, 1):
        if len(regs) < 3: A.nop(3 - len(regs))
        for a_, b_ in zip(src, dst):
            A("v_add_f32_dpp v%d, v%d, v%d row_ror:%d row_mask:0xf bank_mask:0xf" % (b_, a_, a_, sh))
        src, dst = dst, src

def swap_sum(A, r, t, which):
    A("v_mov_b32 v%d, v%d" % (t, r))
    A.nop(2)
    A("v_permlane%d_swap_b32 v%d, v%d" % (which, r, t))
    A("v_add_f32 v%d, v%d, v%d" % (r, r, t))

def sel_const(A, SEL, T):
    A("v_and_b32 v%d, 1, v0" % T)
    A("v_lshlrev_b32 v%d, 4, v%d" % (T, T))
    A("v_mov_b32 v%d, 0x3f80" % (T + 1))
    A("v_lshlrev_b32 v%d, v%d, v%d" % (T + 1, T, T + 1))
    A("v_bfe_u32 v%d, v0, 1, 2" % T)
    for rr in range(4):
        A("v_cmp_eq_u32 vcc, %d, v%d" % (rr, T))
        A.nop(2)
        A("v_cndmask_b32 v%d, 0, v%d, vcc" % (SEL + rr, T + 1))

def reduce_consts(A, VRLD, VROW, VFL, T):
    A("v_and_b32 v%d, 15, v0" % T)
    A("v_bfe_u32 v%d, v0, 4, 2" % (T + 1))
    A("s_lshl_b32 s40, s%d, 8" % S_WAVE)
    A("v_lshlrev_b32 v%d, 10, v%d" % (VRLD, T + 1))
    A("v_lshl_add_u32 v%d, v%d, 4, v%d" % (VRLD, T, VRLD))
    A("v_add_u32 v%d, s40, v%d" % (VRLD, VRLD))
    A("v_and_b32 v%d, 1, v%d" % (T + 1, T + 1))
    A("v_lshlrev_b32 v%d, 3, v%d" % (VROW, T + 1))
    A("v_lshl_add_u32 v%d, v%d, 4, v%d" % (VROW, T, VROW))
    A("v_add_u32 v%d, s40, v%d" % (VROW, VROW))
    A("v_and_b32 v%d, 31, v0" % VFL)
    A("v_lshlrev_b32 v%d, 2, v%d" % (VFL, VFL))

def one_lane(A, text):
    A("s_mov_b64 exec, 1")
    A(text)
    A("s_mov_b64 exec, -1")

def ring_next(A, sRING):
    A("s_add_u32 s%d, s%d, 0x100000" % (sRING, sRING))
    A("s_cmp_eq_u32 s%d, 0x200000" % sRING)
    A("s_cselect_b32 s%d, 0, s%d" % (sRING, sRING))

def arm_partials(A, cold, VRLD, T):
    A("s_lshl_b32 s41, s%d, 22" % S_GRP)
    A("s_lshl_b32 s42, s%d, 15" % S_HEAD)
    A("s_add_u32 s41, s41, s42")
    A("s_add_u32 s41, s41, 0x%x" % OFF_PW)
    A("v_add_u32 v%d, s41, v%d" % (T, VRLD))
    A("v_mov_b32 v%d, -1" % (T + 1))
    st = []
    for k in range(1, 24): A("v_add_u32 v%d, 0x%x, v%d" % (T + 1 + k, (k >> 3) * 0x100000 + (k & 7) * 4096, T))
    store_mixed(A, cold, ["global_store_dword v%d, v%d, s[%d:%d]" % (T + 1 + k if k else T, T + 1, S_WS, S_WS + 1) for k in range(24)])

def reduce_row(A, cold, W, SEL, VRLD, VROW, VFL, VL16, sPART, sPF, sIT, sX, sY, sOF, lds_off, final_cond, defer=None):
    RB, RD, XR, T, AD = W, W + 32, W + 36, W + 40, W + 48
    rtp(A, 10)
    for i in range(1, 8): A("v_add_u32 v%d, %d, v%d" % (AD + i, i * 4096, VRLD))
    A("s_and_b32 s41, s%d, 1" % sIT)
    A("s_lshl_b32 s41, s41, 11")
    A("s_add_u32 s41, s41, %d" % lds_off)
    wait_flags(A, T, VFL, sPF, sleep=0)
    rtp(A, 11)
    for i in range(8):
        A("global_load_dwordx4 v[%d:%d], v%d, s[%d:%d] sc1" % (RB + 4 * i, RB + 4 * i + 3, AD + i if i else VRLD, sPART, sPART + 1))
    A("v_lshlrev_b32 v%d, 16, v%d" % (T, XR))
    A("v_and_b32 v%d, 0xffff0000, v%d" % (T + 1, XR))
    A("v_lshlrev_b32 v%d, 16, v%d" % (T + 2, XR + 1))
    A("v_and_b32 v%d, 0xffff0000, v%d" % (T + 3, XR + 1))
    A("s_add_u32 s42, s41, 32")
    A("v_add_u32 v%d, s42, v%d" % (T + 4, VROW))
    A("v_add_u32 v%d, s42, v%d" % (T + 6, VL16))
    A("s_lshl_b32 s40, s%d, 3" % S_WAVE)
    A("s_add_u32 s40, s40, s41")
    A("v_mov_b32 v%d, s40" % (T + 5))
    A("v_mov_b32 v%d, s41" % (T + 7))
    for i in range(8):
        A("s_waitcnt vmcnt(%d)" % (7 - i))
        mfma(A, RD, SEL, RB + 4 * i, "0" if i == 0 else RD)
    A.nop(8)
    rtp(A, 12)
    cvt(A, XR, RD, RD + 1); cvt(A, XR + 1, RD + 2, RD + 3)
    A("v_lshlrev_b32 v%d, 16, v%d" % (RD, XR))
    A("v_and_b32 v%d, 0xffff0000, v%d" % (RD + 1, XR))
    A("v_lshlrev_b32 v%d, 16, v%d" % (RD + 2, XR + 1))
    A("v_and_b32 v%d, 0xffff0000, v%d" % (RD + 3, XR + 1))
    for r in range(4): A("v_add_f32 v%d, v%d, v%d" % (RD + r, RD + r, T + r))
    cvt(A, XR, RD, RD + 1); cvt(A, XR + 1, RD + 2, RD + 3)
    A("ds_write_b64 v%d, v[%d:%d]" % (T + 4, XR, XR + 1))
    A("v_lshlrev_b32 v%d, 16, v%d" % (RD, XR))
    A("v_and_b32 v%d, 0xffff0000, v%d" % (RD + 1, XR))
    A("v_lshlrev_b32 v%d, 16, v%d" % (RD + 2, XR + 1))
    A("v_and_b32 v%d, 0xffff0000, v%d" % (RD + 3, XR + 1))
    S, Q = T, T + 1
    A("v_add_f32 v%d, v%d, v%d" % (S, RD, RD + 1))
    A("v_mul_f32 v%d, v%d, v%d" % (Q, RD, RD))
    A("v_add_f32 v%d, v%d, v%d" % (S, S, RD + 2))
    A("v_fmac_f32 v%d, v%d, v%d" % (Q, RD + 1, RD + 1))
    A("v_add_f32 v%d, v%d, v%d" % (S, S, RD + 3))
    A("v_fmac_f32 v%d, v%d, v%d" % (Q, RD + 2, RD + 2))
    A("v_fmac_f32 v%d, v%d, v%d" % (Q, RD + 3, RD + 3))
    A.nop(1)
    row_allsum16(A, [S, Q], [T + 2, T + 3])
    A("v_mov_b64 v[%d:%d], v[%d:%d]" % (T + 2, T + 3, S, Q))
    A.nop(2)
    A("v_permlane16_swap_b32 v%d, v%d" % (S, T + 2))
    A("v_permlane16_swap_b32 v%d, v%d" % (Q, T + 3))
    A("v_pk_add_f32 v[%d:%d], v[%d:%d], v[%d:%d]" % (S, Q, S, Q, T + 2, T + 3))
    A("ds_write_b64 v%d, v[%d:%d]" % (T + 5, S, Q))
    A("s_waitcnt lgkmcnt(0)")
    A("s_barrier")
    rtp(A, 13)
    ldone = A.newlabel("Lrdone"); lfin = A.newlabel("Lfin")
    A("s_cmp_lg_u32 s%d, 0" % S_WAVE)
    A("s_cbranch_scc1 %s" % ldone)
    rd128(A, RB + 8, T + 6, 0)
    rd128(A, RB, T + 7, 0); rd128(A, RB + 4, T + 7, 16)
    final_cond(A)
    A("s_waitcnt lgkmcnt(2)")
    A("s_cbranch_scc1 %s" % lfin)
    A("global_store_dwordx4 v%d, v[%d:%d], s[%d:%d] sc1" % (VL16, RB + 8, RB + 11, sX, sX + 1))
    U = RB + 16
    for r in range(4):
        A("v_lshlrev_b32 v%d, 16, v%d" % (U + 2 * r, RB + 8 + r))
        A("v_and_b32 v%d, 0xffff0000, v%d" % (U + 2 * r + 1, RB + 8 + r))
    A("s_waitcnt lgkmcnt(0)")
    A("v_pk_add_f32 v[%d:%d], v[%d:%d], v[%d:%d]" % (RB, RB + 1, RB, RB + 1, RB + 2, RB + 3))
    A("v_pk_add_f32 v[%d:%d], v[%d:%d], v[%d:%d]" % (RB + 4, RB + 5, RB + 4, RB + 5, RB + 6, RB + 7))
    A("v_pk_add_f32 v[%d:%d], v[%d:%d], v[%d:%d]" % (RB, RB + 1, RB, RB + 1, RB + 4, RB + 5))
    ln_finish(A, RB, RB + 1, T)
    for r in range(8):
        A("v_sub_f32 v%d, v%d, v%d" % (U + r, U + r, T))
        A("v_mul_f32 v%d, v%d, v%d" % (U + r, U + r, T + 1))
    for r in range(4): cvt(A, RB + 12 + r, U + 2 * r, U + 2 * r + 1)
    A("v_min_u32 v%d, -2, v%d" % (RB + 12, RB + 12))
    A("s_and_b32 s40, s%d, 15" % S_HEAD)
    A("s_lshl_b32 s40, s40, 4")
    A("v_xor_b32 v%d, s40, v%d" % (T + 2, VL16))
    A("global_store_dwordx4 v%d, v[%d:%d], s[%d:%d] sc1" % (T + 2, RB + 12, RB + 15, sY, sY + 1))
    if defer is None:
        A("v_mov_b32 v%d, 1" % (T + 1))
        A("s_waitcnt vmcnt(0)")
        one_lane(A, "global_store_dword v%d, v%d, s[%d:%d] sc1" % (VL16, T + 1, sOF, sOF + 1))
    else:
        A("s_mov_b64 s[%d:%d], s[%d:%d]" % (defer + 1, defer + 2, sOF, sOF + 1))
        A("s_mov_b32 s%d, 1" % defer)
    A.label(ldone)
    def blk(A):
        A.label(lfin)
        A("global_store_dwordx4 v%d, v[%d:%d], s[%d:%d]" % (VL16, RB + 8, RB + 11, sX, sX + 1))
        A("s_waitcnt lgkmcnt(0)")
        A("s_branch %s" % ldone)
    cold.add(blk)

def flush_deferred(A, defer, VL16, ONE):
    l = A.newlabel("Lfd")
    A("s_cmp_eq_u32 s%d, 0" % defer)
    A("s_cbranch_scc1 %s" % l)
    one_lane(A, "global_store_dword v%d, v%d, s[%d:%d] sc1" % (VL16, ONE, defer + 1, defer + 2))
    A("s_mov_b32 s%d, 0" % defer)
    A.label(l)

def ln_finish(A, S, Q, T):
    A("v_mul_f32 v%d, 0x%x, v%d" % (T, f32bits(1 / 512), S))
    A("v_mul_f32 v%d, 0x%x, v%d" % (T + 1, f32bits(1 / 512), Q))
    A("v_fma_f32 v%d, -v%d, v%d, v%d" % (T + 1, T, T, T + 1))
    A("v_max_f32 v%d, 0, v%d" % (T + 1, T + 1))
    A("v_add_f32 v%d, 0x%x, v%d" % (T + 1, f32bits(1e-5), T + 1))
    A("v_rsq_f32 v%d, v%d" % (T + 1, T + 1))
    A.nop(1)

def zero_flags(A, NP1):
    A("s_lshl_b32 s37, s%d, 5" % S_GRP)
    A("s_add_u32 s37, s37, s%d" % S_HEAD)
    A("s_sub_u32 s37, s37, 32")
    A("s_mul_i32 s37, s37, %d" % (0x20000 // (32 * NP1)))
    A("v_lshl_add_u32 v52, v0, 4, s37")
    A("v_mov_b64 v[68:69], 0"); A("v_mov_b64 v[70:71], 0")
    per = 0x20000 // (32 * NP1)
    assert per in (2048, 4096)
    if per == 2048:
        l = A.newlabel("Lz")
        A("s_cmp_ge_u32 s%d, 2" % S_WAVE)
        A("s_cbranch_scc1 %s" % l)
    A("global_store_dwordx4 v52, v[68:71], s[%d:%d] sc1" % (S_WS, S_WS + 1))
    if per == 2048: A.label(l)

def pack_wqkv(A):
    A("s_lshl_b32 s37, s%d, 5" % S_GRP)
    A("s_add_u32 s37, s37, s%d" % S_HEAD)
    A("s_sub_u32 s37, s37, 32")
    A("s_mul_i32 s38, s37, %d" % (8 * 3072))
    A("s_mul_i32 s39, s%d, 6144" % S_WAVE)
    A("s_add_u32 s38, s38, s39")
    sadd64(A, 42, S_WQKV, "s38")
    sadd64(A, 44, 42, 3072)
    A("v_and_b32 v53, 63, v0")
    A("v_lshlrev_b32 v54, 4, v53")
    A("s_mov_b32 m0, s39")
    A("s_add_u32 s39, s39, 3072")
    for i in range(3): A("global_load_lds_dwordx4 v54, s[42:43] offset:%d" % (i * 1024))
    A("s_mov_b32 m0, s39")
    A("s_nop 0")
    for i in range(3): A("global_load_lds_dwordx4 v54, s[44:45] offset:%d" % (i * 1024))
    A("v_bfe_u32 v55, v53, 1, 3")
    A("v_lshrrev_b32 v56, 4, v53")
    A("v_and_b32 v57, 1, v53")
    A("v_lshlrev_b32 v57, 4, v57")
    A("v_mul_u32_u24 v58, 3072, v55")
    A("v_lshl_add_u32 v58, v56, 5, v58")
    A("v_add_u32 v58, v58, v57")
    A("s_lshl_b32 s39, s%d, 8" % S_WAVE)
    A("v_add_u32 v58, s39, v58")
    A("v_mul_u32_u24 v59, 49152, v56")
    A("v_lshl_add_u32 v59, v55, 5, v59")
    A("v_add_u32 v59, v59, v57")
    A("s_mul_i32 s38, s37, 768")
    A("s_mul_i32 s39, s%d, %d" % (S_WAVE, 8 * 49152))
    A("s_add_u32 s38, s38, s39")
    A("s_add_u32 s38, s38, 0x%x" % OFF_WP)
    sadd64(A, 42, S_WS, "s38")
    sadd64(A, 44, 42, 4 * 49152)
    A("s_waitcnt vmcnt(0)")
    A("s_barrier")
    for k in range(2):
        for t in range(3): rd128(A, 72 + 4 * (3 * k + t), 58, t * 1024 + k * 128)
    for k in range(2):
        for t in range(3):
            A("s_waitcnt lgkmcnt(%d)" % (5 - 3 * k - t))
            A("global_store_dwordx4 v59, v[%d:%d], s[%d:%d] offset:%d sc1" % (72 + 4 * (3 * k + t), 75 + 4 * (3 * k + t), 42 + 2 * k, 43 + 2 * k, t * 256))

def arm_akv(A, NA0, NA):
    A("s_lshl_b32 s37, s%d, 5" % S_GRP)
    A("s_add_u32 s37, s37, s%d" % S_HEAD)
    A("s_sub_u32 s37, s37, 32")
    A("s_and_b32 s38, s37, 1")
    A("s_lshl_b32 s38, s38, 2")
    A("s_add_u32 s38, s38, s%d" % S_WAVE)
    A("s_min_u32 s38, s38, %d" % (NA0 + NA - 1))
    A("s_lshr_b32 s37, s37, 1")
    A("s_lshl_b32 s37, s37, 14")
    A("s_cmp_ge_u32 s38, %d" % NA0)
    A("s_cselect_b32 s39, %d, 0" % (32 * 16384 - NA0 * 2048))
    A("s_lshl_b32 s38, s38, 11")
    A("s_add_u32 s37, s37, s38")
    A("s_add_u32 s37, s37, s39")
    A("s_add_u32 s37, s37, 0x%x" % OFF_AKV)
    A("v_and_b32 v60, 63, v0")
    A("v_lshl_add_u32 v60, v60, 4, s37")
    A("v_mov_b64 v[64:65], -1"); A("v_mov_b64 v[66:67], -1")
    for k in range(2): A("global_store_dwordx4 v60, v[64:67], s[%d:%d] offset:%d sc1" % (S_WS, S_WS + 1, 1024 * k))

def arm_rows(A):
    l = A.newlabel("Lar")
    A("s_cmp_eq_u32 s%d, 3" % S_WAVE)
    A("s_cbranch_scc1 %s" % l)
    A("s_lshl_b32 s37, s%d, 5" % S_GRP)
    A("s_add_u32 s37, s37, s%d" % S_HEAD)
    A("s_sub_u32 s37, s37, 32")
    A("s_mul_i32 s37, s37, 3")
    A("s_add_u32 s37, s37, s%d" % S_WAVE)
    A("s_lshr_b32 s38, s37, 6")
    A("s_and_b32 s37, s37, 63")
    A("s_lshl_b32 s37, s37, 10")
    A("s_lshl_b32 s39, s38, 21")
    A("s_add_u32 s39, s39, 0x%x" % OFF_Y1)
    A("s_cmp_eq_u32 s38, 2")
    A("s_cselect_b32 s39, 0x%x, s39" % (OFF_Y2 + Y2_POLL * 32768))
    A("s_add_u32 s37, s37, s39")
    A("v_and_b32 v61, 63, v0")
    A("v_lshl_add_u32 v61, v61, 4, s37")
    A("global_store_dwordx4 v61, v[64:67], s[%d:%d] sc1" % (S_WS, S_WS + 1))
    A.label(l)

NROW = 4
def prepass0(A, sAG, NA0):
    A("s_lshl_b32 s38, s%d, 2" % S_HEAD)
    A("s_add_u32 s38, s38, s%d" % S_WAVE)
    A("v_and_b32 v52, 63, v0")
    A("v_lshlrev_b32 v52, 4, v52")
    A("s_lshr_b32 s39, s38, 5")
    A("s_and_b32 s38, s38, 31")
    assert 4 * NROW * NA0 >= 64
    for k in range(NROW):
        A("s_add_u32 s40, s39, %d" % (4 * k))
        A("s_mul_i32 s40, s40, %d" % NA0)
        A("s_add_u32 s40, s40, s%d" % sAG)
        if k == 0: A("s_mov_b32 s41, s40")
        A("s_cmp_lt_u32 s40, 64")
        A("s_cselect_b32 s40, s40, s41")
        A("s_lshl_b32 s40, s40, 5")
        A("s_add_u32 s40, s40, s38")
        A("s_lshl_b32 s40, s40, 10")
        A("v_add_u32 v%d, s40, v52" % (112 + k))
        A("global_load_dwordx4 v[%d:%d], v%d, s[%d:%d]" % (56 + 4 * k, 59 + 4 * k, 112 + k, S_AX, S_AX + 1))
    A("s_and_b32 s38, s38, 15")
    A("s_lshl_b32 s38, s38, 4")

def prepass1(A, behind_dma):
    sadd64(A, 42, S_WS, OFF_Y0)
    A("s_waitcnt vmcnt(%d)" % (4 if behind_dma else 0))
    rt_stamp(A, _RT0, 490, 118, 119)
    ST = 160
    for k in range(NROW):
        X = 56 + 4 * k; U = 72 + 8 * k; S, Q = ST + 2 * k, ST + 1 + 2 * k
        for r in range(4):
            A("v_lshlrev_b32 v%d, 16, v%d" % (U + 2 * r, X + r))
            A("v_and_b32 v%d, 0xffff0000, v%d" % (U + 2 * r + 1, X + r))
        A("v_add_f32 v%d, v%d, v%d" % (S, U, U + 1))
        A("v_mul_f32 v%d, v%d, v%d" % (Q, U, U))
        A("v_fmac_f32 v%d, v%d, v%d" % (Q, U + 1, U + 1))
        for r in range(2, 8):
            A("v_add_f32 v%d, v%d, v%d" % (S, S, U + r))
            A("v_fmac_f32 v%d, v%d, v%d" % (Q, U + r, U + r))
    A.nop(1)
    rg = [ST + r for r in range(2 * NROW)]; tm = [ST + 2 * NROW + r for r in range(2 * NROW)]
    row_allsum16(A, rg, tm)
    for which in (16, 32):
        for r in range(2 * NROW): A("v_mov_b32 v%d, v%d" % (tm[r], rg[r]))
        for r in range(2 * NROW): A("v_permlane%d_swap_b32 v%d, v%d" % (which, rg[r], tm[r]))
        for r in range(2 * NROW): A("v_add_f32 v%d, v%d, v%d" % (rg[r], rg[r], tm[r]))
    for k in range(NROW):
        X = 56 + 4 * k; U = 72 + 8 * k
        ln_finish(A, ST + 2 * k, ST + 1 + 2 * k, 116)
        for r in range(8):
            A("v_sub_f32 v%d, v%d, v116" % (U + r, U + r))
            A("v_mul_f32 v%d, v%d, v117" % (U + r, U + r))
        for r in range(4): cvt(A, X + r, U + 2 * r, U + 2 * r + 1)
        A("v_xor_b32 v%d, s38, v%d" % (112 + k, 112 + k))
        A("global_store_dwordx4 v%d, v[%d:%d], s[42:43] sc1" % (112 + k, X, X + 3))

def publish_partials(A, cold, T, sPF):
    A("s_lshl_b32 s40, s%d, 2" % S_HEAD)
    A("v_mov_b32 v%d, s40" % T)
    A("v_mov_b32 v%d, 1" % (T + 1))
    rtp(A, 8)
    A("s_waitcnt vmcnt(0)")
    rtp(A, 9)
    A("s_barrier")
    l = A.newlabel("Lpp")
    A("s_cmp_lg_u32 s%d, 1" % S_WAVE)
    A("s_cbranch_scc1 %s" % l)
    A("s_mov_b64 exec, 1")
    store_mixed(A, cold, ["global_store_dword v%d, v%d, s[%d:%d]" % (T, T + 1, sPF, sPF + 1)])
    A("s_mov_b64 exec, -1")
    A.label(l)

def wqw(t, c):
    return 256 + 64 * t + 8 * c if t < 4 else 128 + 64 * (t - 4) + 8 * c

def frag_addrs(A, VA4, T):
    A("v_and_b32 v%d, 15, v0" % T)
    A("v_bfe_u32 v%d, v0, 4, 2" % (T + 1))
    for q in range(4):
        A("v_add_u32 v%d, %d, v%d" % (T + 2, 4 * q, T + 1))
        A("v_xor_b32 v%d, v%d, v%d" % (T + 2, T + 2, T))
        A("v_lshlrev_b32 v%d, 4, v%d" % (T + 2, T + 2))
        A("v_lshl_add_u32 v%d, v%d, 10, v%d" % (VA4 + q, T, T + 2))

def signal_last(A, T, lds_off, text):
    l = A.newlabel("Lsg")
    A("v_mov_b32 v%d, %d" % (T, lds_off))
    A("v_mov_b32 v%d, 1" % (T + 1))
    A("s_mov_b64 exec, 1")
    A("ds_add_rtn_u32 v%d, v%d, v%d" % (T, T, T + 1))
    A("s_waitcnt lgkmcnt(0)")
    A("v_readfirstlane_b32 s40, v%d" % T)
    A("s_and_b32 s40, s40, 3")
    A("s_cmp_lg_u32 s40, 3")
    A("s_cbranch_scc1 %s" % l)
    for t in text: A(t)
    A.label(l)
    A("s_mov_b64 exec, -1")

def rts(A, opt, sL, sSEG, base, W):
    if opt.get("rt"):
        A("s_lshl_b32 s97, s%d, 6" % sL)
        A("s_add_u32 s97, s97, s%d" % sSEG)
        A("s_add_u32 s97, s97, %d" % base)
        rt_stamp(A, opt, "s97", W, W + 1)

_RTP = {"opt": None, "it": 50}
def rtp(A, k, va=240):
    opt = _RTP["opt"]
    if not opt or not opt.get("rt2"): return
    l = A.newlabel("Lrtp")
    A("s_cmp_lg_u32 s%d, %d" % (_RTP["it"], opt.get("rtp1" if _RTP["it"] != 50 else "rtit", 20)))
    A("s_cbranch_scc1 %s" % l)
    rt_stamp(A, dict(rt=1), 460 + k, va, va + 1)
    A.label(l)

def pack(A, dst, a0, a1):
    cvt(A, dst, a0, a0 + 1); cvt(A, dst + 1, a0 + 2, a0 + 3); cvt(A, dst + 2, a1, a1 + 1); cvt(A, dst + 3, a1 + 2, a1 + 3)

def tile_off(A, dst, sL, sSEG):
    A("s_lshl_b32 s40, s%d, 6" % sL)
    A("s_add_u32 s40, s40, s%d" % sSEG)
    A("s_lshl_b32 s%d, s40, 5" % dst)
    A("s_add_u32 s%d, s%d, s%d" % (dst, dst, S_HEAD))
    A("s_lshl_b32 s%d, s%d, 13" % (dst, dst))
def head_flag(A, dst, base, sL, sSEG, shift):
    A("s_lshl_b32 s41, s%d, 5" % sL)
    A("s_add_u32 s41, s41, s%d" % S_HEAD)
    A("s_lshl_b32 s41, s41, 6")
    A("s_add_u32 s41, s41, s%d" % sSEG)
    A("s_lshl_b32 s41, s41, %d" % shift)
    A("s_add_u32 s41, s41, 0x%x" % base)
    sadd64(A, dst, S_WS, "s41")

def gen_p1(A, opt):
    cold = Cold()
    NP1 = opt["NP1"]
    VY, VW2K, VL16, VKST, VFL, ZERO, ONE, VF = range(1, 9)
    VA4 = 10
    L_CNT = 65536
    W = 16
    sL, sSEG, sNX, sPF, sSLOT, sT = 48, 49, 50, 51, 66, 67
    sA, sB, sCc, sD, sE, sF, sG, sGP = 52, 54, 56, 58, 60, 62, 64, 68
    A.label("L_p1")
    T = 40
    A("v_and_b32 v%d, 63, v0" % T)
    A("v_and_b32 v%d, 15, v0" % (T + 1))
    A("v_bfe_u32 v%d, v0, 4, 2" % (T + 2))
    A("v_lshlrev_b32 v%d, 4, v%d" % (VY, T))
    A("s_lshl_b32 s40, s%d, 11" % S_WAVE)
    A("v_add_u32 v%d, s40, v%d" % (VW2K, VY))
    A("v_mov_b32 v%d, v%d" % (VL16, VY))
    frag_addrs(A, VA4, T + 3)
    A("s_lshl_b32 s40, s%d, 10" % S_WAVE)
    A("v_add_u32 v%d, s40, v%d" % (VKST, VY))
    A("v_and_b32 v%d, 31, v0" % VFL)
    A("v_lshlrev_b32 v%d, 2, v%d" % (VFL, VFL))
    A("v_mov_b32 v%d, 0" % ZERO)
    A("v_mov_b32 v%d, 1" % ONE)
    assert NP1 == 2
    zero_flags(A, NP1)
    arm_akv(A, opt["NA"] + opt["NP2"], opt["NA"])
    arm_rows(A)
    pack_wqkv(A)
    opt["arrive"](A, "flags")
    rt_stamp(A, opt, 492, 110, 111)
    if opt.get("p1w", 1):
        for g_ in (7, 5, 3)[:opt.get("p1w", 1)]: opt["init_wait"](A, kind="go%d" % g_)
    load_head_weights(A, 40, wqw, False)
    rt_stamp(A, opt, 501, 40, 41)
    opt["init_wait"](A)
    opt["init_wait"](A, kind="chain")
    A("v_mov_b32 v%d, %d" % (W, L_CNT))
    A("v_mov_b64 v[%d:%d], 0" % (W + 2, W + 3))
    A("ds_write_b64 v%d, v[%d:%d]" % (W, W + 2, W + 3))
    A("s_waitcnt lgkmcnt(0)")
    A("s_barrier")
    A("s_mov_b32 s%d, 0" % sL)
    A("s_lshl_b32 s%d, s%d, 13" % (sSLOT, S_WAVE))

    def xflag(dst, sseg):
        A("s_lshl_b32 s40, s%d, 6" % sL)
        A("s_add_u32 s40, s40, s%d" % sseg)
        A("s_lshl_b32 s41, s40, 7")
        A("s_add_u32 s41, s41, 0x%x" % F_X1); sadd64(A, dst, S_WS, "s41")
    def dma(sseg):
        A("s_lshl_b32 s40, s%d, 6" % sL)
        A("s_add_u32 s40, s40, s%d" % sseg)
        A("s_lshl_b32 s41, s40, 15")
        A("s_lshl_b32 s42, s%d, 13" % S_WAVE)
        A("s_add_u32 s41, s41, s42")
        A("s_add_u32 s41, s41, 0x%x" % OFF_Y1); sadd64(A, sB, S_WS, "s41")
        sadd64(A, sCc, sB, 4096)
        for hf in range(2):
            A("s_add_u32 s43, s%d, %d" % (sSLOT, hf * 4096))
            A("s_mov_b32 m0, s43")
            A("s_nop 0")
            b = sB if hf == 0 else sCc
            for i in range(4): A("global_load_lds_dwordx4 v%d, s[%d:%d] offset:%d sc1" % (VL16, b, b + 1, i * 1024))
        A("s_xor_b32 s%d, s%d, 32768" % (sSLOT, sSLOT))

    def yrd(dst, ks):
        rd128(A, dst, VA4 + (ks & 3), (ks >> 2) * 256); rd128(A, dst + 4, VA4 + (ks & 3), (ks >> 2) * 256 + 16384)
    A.label("L_p1_layer")
    A("s_sub_u32 s%d, s%d, 1" % (sSEG, S_GRP))
    A("s_lshl_b32 s40, s%d, 6" % sL)
    A("s_add_u32 s40, s40, s%d" % sSEG)
    A("s_lshl_b32 s41, s40, 15")
    A("s_lshl_b32 s42, s%d, 13" % S_WAVE)
    A("s_add_u32 s41, s41, s42")
    A("s_add_u32 s41, s41, 0x%x" % OFF_Y1); sadd64(A, sB, S_WS, "s41")
    sadd64(A, sCc, sB, 4096)
    A("v_add_u32 v%d, s%d, v%d" % (W + 1, sSLOT, VL16))
    poll_tile(A, [(VL16, sB if i < 4 else sCc, (i & 3) * 1024) for i in range(8)], 96, W, [(W + 1, i * 1024) for i in range(8)])
    A("s_xor_b32 s%d, s%d, 32768" % (sSLOT, sSLOT))
    _RTP["opt"] = opt; _RTP["it"] = sSEG
    rtp(A, 15, 20)
    head_flag(A, sGP, F_KV, sL, sSEG, 2)
    A.label("L_p1_loop")
    _RTP["opt"] = opt; _RTP["it"] = sSEG
    rtp(A, 0, 20)
    A("s_barrier")
    ACC, YF = 32, 80
    yrd(YF, 0)
    A("s_add_u32 s%d, s%d, %d" % (sNX, sSEG, NP1))
    A("s_min_u32 s44, s%d, 63" % sNX)
    xflag(sA, 44)
    tile_off(A, sT, sL, sSEG)
    A("s_add_u32 s41, s%d, 0x%x" % (sT, OFF_KX)); sadd64(A, sD, S_WS, "s41")
    A("s_add_u32 s41, s%d, 0x%x" % (sT, OFF_VX)); sadd64(A, sE, S_WS, "s41")
    A("s_add_u32 s41, s%d, 0x%x" % (sT, OFF_QX)); sadd64(A, sF, S_WS, "s41")
    head_flag(A, sG, F_KV, sL, sSEG, 2)
    acc = lambda t, mt: ACC + (t * 2 + mt) * 4
    rtp(A, 3, 20)
    O = 96
    for tiles in ((2, 3, 4, 5), (0, 1)):
        for ks in range(16):
            y = YF + 8 * (ks & 1)
            last = ks == 15 and tiles == (0, 1)
            if not last:
                kn = (ks + 1) & 15
                yrd(YF + 8 * (kn & 1), kn)
            A("s_waitcnt lgkmcnt(%d)" % (0 if last else 2))
            for t in tiles:
                wf = wqw(t, 0) + 4 * ks
                for mt in range(2):
                    c = "0" if ks == 0 else acc(t, mt)
                    if t < 4: mfma(A, acc(t, mt), wf, y + 4 * mt, c)
                    else: mfma(A, acc(t, mt), y + 4 * mt, wf, c)
            if ks == 15: rtp(A, 4 if tiles != (0, 1) else 5, 20)
            if tiles != (0, 1) and ks == 12:
                A("global_load_dword v%d, v%d, s[%d:%d] sc1" % (VF, VFL, sA, sA + 1))
            if tiles == (0, 1):
                if ks in (1, 2):
                    mt = ks - 1
                    pack(A, O + 4 * mt, acc(2, mt), acc(3, mt))
                    A("v_min_u32 v%d, -2, v%d" % (O + 4 * mt, O + 4 * mt))
                    if mt == 1: sadd64(A, sD, sD, 4096)
                    A("global_store_dwordx4 v%d, v[%d:%d], s[%d:%d] sc1" % (VKST, O + 4 * mt, O + 4 * mt + 3, sD, sD + 1))
                if ks in (3, 4):
                    Tt = ks - 3
                    pack(A, O + 8 + 4 * Tt, acc(4 + Tt, 0), acc(4 + Tt, 1))
                    A("v_min_u32 v%d, -2, v%d" % (O + 8 + 4 * Tt, O + 8 + 4 * Tt))
                    A("global_store_dwordx4 v%d, v[%d:%d], s[%d:%d] offset:%d sc1" % (VW2K, O + 8 + 4 * Tt, O + 11 + 4 * Tt, sE, sE + 1, 1024 * Tt))
                if ks == 5:
                    A("s_waitcnt vmcnt(4)")
                    A("v_cmp_eq_u32 vcc, 0, v%d" % VF)
                    A("s_mov_b32 s%d, 0" % sPF)
                    A("s_cmp_ge_u32 s%d, 64" % sNX)
                    A("s_cbranch_scc1 L_p1_nopre")
                    A("s_cbranch_vccnz L_p1_nopre")
                    dma(sNX)
                    A("s_mov_b32 s%d, 1" % sPF)
                    A.label("L_p1_nopre")
    for q in range(4): A("v_xor_b32 v%d, 32768, v%d" % (VA4 + q, VA4 + q))
    A.nop(4)
    for mt in range(2): pack(A, O + 16 + 4 * mt, acc(0, mt), acc(1, mt))
    A("s_waitcnt vmcnt(0)")
    rtp(A, 6, 20)
    signal_last(A, W, L_CNT, ["global_store_dword v%d, v%d, s[%d:%d] sc1" % (ZERO, ONE, sG, sG + 1),
                              "global_store_dword v%d, v%d, s[%d:%d] sc1" % (ZERO, ONE, sGP, sGP + 1)])
    for mt in range(2):
        if mt == 1: sadd64(A, sF, sF, 4096)
        A("global_store_dwordx4 v%d, v[%d:%d], s[%d:%d] sc1" % (VKST, O + 16 + 4 * mt, O + 19 + 4 * mt, sF, sF + 1))
    rtp(A, 8, 20)
    rts(A, opt, sL, sSEG, 0, W)
    sadd64(A, sGP, sG, F_Q - F_KV)
    A("s_mov_b32 s%d, s%d" % (sSEG, sNX))
    A("s_cmp_eq_u32 s%d, 1" % sPF)
    A("s_cbranch_scc1 L_p1_loop")
    A("s_cmp_ge_u32 s%d, 64" % sSEG)
    A("s_cbranch_scc1 L_p1_flush")
    wait_flags(A, W, VFL, sA, sleep=1)
    dma(sSEG)
    A("s_waitcnt vmcnt(0)")
    A("s_branch L_p1_loop")
    A.label("L_p1_flush")
    A("s_waitcnt vmcnt(0)")
    signal_last(A, W, L_CNT + 4, ["global_store_dword v%d, v%d, s[%d:%d] sc1" % (ZERO, ONE, sGP, sGP + 1)])
    A.label("L_p1_next")
    A("s_add_u32 s%d, s%d, 1" % (sL, sL))
    A("s_cmp_lt_u32 s%d, %d" % (sL, opt.get("layers", 2)))
    A("s_cbranch_scc1 L_p1_layer")
    A("s_branch L_end")
    cold.emit(A)

def gen_p2(A, opt):
    cold = Cold()
    NP1, NP2 = opt["NP1"], opt["NP2"]
    VL16, VW2K, VS, VF8, VZR, VZW, VF, VPST, VRLD, VROW, VFL = range(1, 12)
    SEL, BIAS = 12, 16
    VQF, VVF, VOW, VKM, ZERO, PMA, PMB = 24, 25, 26, 27, 29, 28, 30
    W = 32
    RW = 144
    VTW, VTR = 208, 212
    sRING = 84
    L_TP = 65536
    WO = 256
    SLOT = 24576
    L_Q, L_K, L_V, L_Z, L_O, L_ST = 0, 8192, 16384, 49152, 53248, 61440
    sL, sSEG, sIT, sC = 48, 49, 50, 51
    sA, sB, sCc, sD, sE, sF, sG, sH, sX, sY = 52, 54, 56, 58, 60, 62, 64, 68, 70, 72
    sT, sNX, sPRE, sSLOT = 66, 67, 74, 75
    sDEF, sMM, sKP, sKN = 77, 80, 76, 82
    VFM, VL4, ONE, KE2 = 216, 217, 218, 220
    A.label("L_p2")
    A("s_barrier")
    T = 40
    A("v_and_b32 v%d, 63, v0" % T)
    A("v_and_b32 v%d, 15, v0" % (T + 1))
    A("v_bfe_u32 v%d, v0, 4, 2" % (T + 2))
    A("v_lshlrev_b32 v%d, 4, v%d" % (VL16, T))
    A("v_mov_b32 v%d, v%d" % (VS, VL16))
    A("s_lshl_b32 s40, s%d, 11" % S_WAVE)
    A("v_add_u32 v%d, s40, v%d" % (VW2K, VL16))
    A("s_mov_b32 s%d, s40" % sSLOT)
    A("s_lshl_b32 s41, s%d, 8" % S_WAVE)
    A("v_lshlrev_b32 v%d, 15, v%d" % (VPST, T + 2))
    A("v_lshl_add_u32 v%d, v%d, 4, v%d" % (VPST, T + 1, VPST))
    A("v_add_u32 v%d, s41, v%d" % (VPST, VPST))
    A("s_lshl_b32 s41, s%d, 13" % S_WAVE)
    A("s_add_u32 s41, s41, %d" % L_TP)
    for b in range(4):
        A("v_add_u32 v%d, %d, v%d" % (T + 3, 4 * b, T + 2))
        A("v_xor_b32 v%d, v%d, v%d" % (T + 3, T + 3, T + 1))
        A("v_lshlrev_b32 v%d, 4, v%d" % (T + 3, T + 3))
        A("v_lshl_add_u32 v%d, v%d, 8, v%d" % (T + 3, T + 1, T + 3))
        A("v_add_u32 v%d, s41, v%d" % (VTW + b, T + 3))
        A("v_lshlrev_b32 v%d, 8, v%d" % (T + 4, T + 2))
        A("v_lshl_add_u32 v%d, v%d, 0, v%d" % (T + 3, T + 3, T + 4))
        A("v_lshlrev_b32 v%d, 8, v%d" % (T + 4, T + 1))
        A("v_sub_u32 v%d, v%d, v%d" % (T + 3, T + 3, T + 4))
        A("v_add_u32 v%d, s41, v%d" % (VTR + b, T + 3))
    A("s_lshl_b32 s40, s%d, 10" % S_WAVE)
    A("v_lshlrev_b32 v%d, 3, v%d" % (VZR, T))
    A("v_lshlrev_b32 v%d, 5, v%d" % (VZW, T + 1))
    A("v_lshl_add_u32 v%d, v%d, 3, v%d" % (VZW, T + 2, VZW))
    A("v_add_u32 v%d, s40, v%d" % (VZW, VZW))
    A("v_and_b32 v%d, 1, v0" % VF8)
    A("v_mul_u32_u24 v%d, 0x%x, v%d" % (VF8, F_Q - F_KV, VF8))
    A("s_and_b32 s42, s%d, 1" % S_WAVE)
    A("s_lshr_b32 s43, s%d, 1" % S_WAVE)
    A("s_lshl_b32 s40, s42, 12")
    A("v_add_u32 v%d, s40, v%d" % (VQF, VL16))
    A("s_lshl_b32 s41, s43, 11")
    A("v_add_u32 v%d, s41, v%d" % (VOW, VQF))
    A("s_lshl_b32 s41, s43, 12")
    A("v_add_u32 v%d, s41, v%d" % (VVF, VL16))
    A("v_add_u32 v%d, 8, v%d" % (VKM, VVF))
    A("s_lshl_b32 s40, s42, 4")
    A("v_add_u32 v%d, s40, v%d" % (T + 3, T + 1))
    A("v_lshlrev_b32 v%d, 2, v%d" % (T + 4, T + 2))
    A("v_mov_b32 v%d, 0x%x" % (T + 6, f32bits(-1e30)))
    for kt in range(2):
        for r in range(4):
            A("v_add_u32 v%d, %d, v%d" % (T + 5, 16 * kt + r, T + 4))
            A("v_cmp_gt_u32 vcc, v%d, v%d" % (T + 5, T + 3))
            A.nop(2)
            A("v_cndmask_b32 v%d, 0, v%d, vcc" % (BIAS + 4 * kt + r, T + 6))
    A("v_mov_b64 v[28:29], 0"); A("v_mov_b64 v[30:31], 0")
    sel_const(A, SEL, T + 5)
    reduce_consts(A, VRLD, VROW, VFL, T + 5)
    A("s_mov_b32 s%d, 0x%x" % (sC, f32bits(128 ** -0.5 * LOG2E)))
    A("v_lshrrev_b32 v%d, 2, v%d" % (T + 5, T))
    A("v_lshlrev_b32 v%d, 10, v%d" % (T + 5, T + 5))
    A("v_and_b32 v%d, 3, v%d" % (T + 6, T))
    A("v_lshl_add_u32 v%d, v%d, 4, v%d" % (T + 5, T + 6, T + 5))
    A("s_lshl_b32 s40, s%d, 17" % S_HEAD)
    A("s_lshl_b32 s41, s%d, 8" % S_WAVE)
    A("s_add_u32 s40, s40, s41")
    A("v_add_u32 v%d, s40, v%d" % (T + 5, T + 5))
    A("s_lshl_b32 s46, s%d, 15" % S_WAVE)
    for b in range(4):
        for i in range(8):
            sadd64(A, sA, S_WO, b * 64 + i * 16384)
            A("s_add_u32 s44, s46, %d" % (b * 8192 + i * 1024))
            A("s_mov_b32 m0, s44")
            A("s_nop 0")
            A("global_load_lds_dwordx4 v%d, s[%d:%d]" % (T + 5, sA, sA + 1))
    A("v_bfe_u32 v%d, v0, 2, 2" % (T + 7))
    A("v_add_u32 v%d, v%d, v%d" % (T + 7, T + 7, T + 4))
    A("v_lshlrev_b32 v%d, 6, v%d" % (T + 7, T + 7))
    A("v_lshl_add_u32 v%d, v%d, 4, v%d" % (T + 7, T + 6, T + 7))
    A("v_add_u32 v%d, s46, v%d" % (T + 7, T + 7))
    for b in range(4):
        A("s_waitcnt vmcnt(%d)" % (8 * (3 - b)))
        for P in range(2):
            for f in range(4):
                for hh in range(2):
                    A("ds_read_b64_tr_b16 %s, v%d offset:%d" % (R(WO + ((b * 2 + P) * 4 + f) * 4 + 2 * hh, 2), T + 7, b * 8192 + (32 * f + 16 * hh) * 64 + P * 8))
        A("s_waitcnt lgkmcnt(0)")
    rt_stamp(A, opt, 501, 40, 41)
    A("s_barrier")
    A("s_mov_b32 s%d, 0" % sL)
    A("s_mov_b32 s%d, 0" % sDEF)
    A("s_mov_b64 s[%d:%d], s[%d:%d]" % (sDEF + 1, sDEF + 2, S_WS, S_WS + 1))
    A("v_lshrrev_b32 v%d, 2, v%d" % (VL4, VL16))
    A("v_mov_b32 v%d, 1" % ONE)

    def dma(sseg):
        tile_off(A, 45, sL, sseg)
        for k, off in enumerate((OFF_QX, OFF_KX, OFF_VX)):
            A("s_add_u32 s41, s45, 0x%x" % off); sadd64(A, 42, S_WS, "s41")
            A("s_add_u32 s44, s%d, %d" % (sSLOT, k * 8192))
            A("s_mov_b32 m0, s44")
            A("s_nop 0")
            A("global_load_lds_dwordx4 v%d, s[42:43] sc1" % VW2K)
            A("global_load_lds_dwordx4 v%d, s[42:43] offset:1024 sc1" % VW2K)
        A("s_cmp_ge_u32 s%d, %d" % (sSLOT, SLOT))
        A("s_cselect_b32 s44, %d, %d" % (-SLOT, SLOT)) if False else None
        A("s_mov_b32 s44, %d" % SLOT)
        A("s_cselect_b32 s44, %d, s44" % -SLOT)
        A("s_add_u32 s%d, s%d, s44" % (sSLOT, sSLOT))

    A.label("L_p2_layer")
    A("s_sub_u32 s%d, s%d, %d" % (sSEG, S_GRP, NP1 + 1))
    head_flag(A, sH, F_KV, sL, sSEG, 2)
    A("s_mov_b64 s[%d:%d], 0" % (sMM, sMM + 1))
    A("s_mov_b32 s%d, 0" % sKP)
    A("s_mov_b32 s44, 0")
    head_flag(A, sG, F_M, sL, 44, 2)
    wait_flags(A, W, VF8, sH)
    dma(sSEG)
    A("s_waitcnt vmcnt(0)")
    A.label("L_p2_loop")
    _RTP["opt"] = opt; _RTP["it"] = 50
    rtp(A, 0)
    tile_off(A, sT, sL, sSEG)
    A("s_mov_b32 s47, s40")
    A("s_add_u32 s%d, s%d, %d" % (sNX, sSEG, NP2))
    A("s_min_u32 s44, s%d, 63" % sNX)
    head_flag(A, sH, F_KV, sL, 44, 2)
    A("s_add_u32 s41, s%d, 0x%x" % (sT, OFF_KM)); sadd64(A, sA, S_WS, "s41")
    sadd64(A, sKN, sA, NP2 * 32 * 8192)
    A("s_lshl_b32 s41, s%d, 22" % S_GRP)
    A("s_add_u32 s41, s41, s%d" % sRING)
    A("s_add_u32 s41, s41, 0x%x" % OFF_PW); sadd64(A, sB, S_WS, "s41")
    ring_next(A, sRING)
    A("s_lshl_b32 s41, s%d, 10" % S_HEAD); sadd64(A, sCc, sB, "s41")
    A("s_lshl_b32 s41, s%d, 15" % S_HEAD); sadd64(A, sB, sB, "s41")
    A("s_lshl_b32 s41, s47, 7")
    A("s_add_u32 s41, s41, 0x%x" % F_PB); sadd64(A, sE, S_WS, "s41")
    A("s_lshl_b32 s41, s%d, 5" % sSEG)
    A("s_add_u32 s41, s41, s%d" % S_HEAD)
    A("s_lshl_b32 s42, s41, 10")
    A("s_lshl_b32 s43, s%d, 21" % sL)
    A("s_add_u32 s43, s43, s42")
    A("s_add_u32 s43, s43, 0x%x" % OFF_X1); sadd64(A, 44, S_WS, "s43")
    A("global_load_dwordx2 v[%d:%d], v%d, s[44:45] sc1" % (RW + 36, RW + 37, VROW))
    A("s_add_u32 s43, s42, 0x%x" % OFF_Y2); sadd64(A, sY, S_WS, "s43")
    A("s_lshl_b32 s41, s41, 2")
    A("s_add_u32 s41, s41, 0x%x" % F_Y2); sadd64(A, sF, S_WS, "s41")
    A("s_add_u32 s43, s42, 0x%x" % OFF_X2); sadd64(A, sX, S_WS, "s43")
    A("s_cmp_eq_u32 s%d, 0" % sL)
    A("s_cbranch_scc1 L_p2_x2")
    sadd64(A, sX, S_OUT, "s42")
    A.label("L_p2_x2")
    A("global_load_dword v%d, v%d, s[%d:%d] sc1" % (VF, VF8, sH, sH + 1))
    KE, VM = 96, 100
    def km_loads(k, m, sp):
        A("global_load_dwordx2 v[%d:%d], v%d, s[%d:%d] sc1" % (k, k + 1, VW2K, sp, sp + 1))
        A("global_load_dwordx2 v[%d:%d], v%d, s[%d:%d] sc1" % (m, m + 1, VKM, sp, sp + 1))
        A("global_load_dwordx2 v[%d:%d], v%d, s[%d:%d] offset:2048 sc1" % (m + 2, m + 3, VKM, sp, sp + 1))
    def blk(A):
        A.label("L_p2_kmlast")
        km_loads(KE, VM, sA)
        A("s_waitcnt vmcnt(0)")
        flush_deferred(A, sDEF, VL16, ONE)
        A("v_max3_u32 v%d, v%d, v%d, v%d" % (118, KE, VM, VM + 2))
        A("v_cmp_eq_u32 vcc, -1, v118")
        A("s_cbranch_vccz L_p2_kmok")
        A("s_sleep 1")
        spin_guard(A)
        A("s_branch L_p2_kmlast")
        A.label("L_p2_kmwait")
        A("s_cmp_ge_u32 s%d, %d" % (sSEG, KM_POLL))
        A("s_cbranch_scc1 L_p2_kmlast")
        A("global_load_dword v%d, v%d, s[%d:%d] sc1" % (VFM, VL4, sG, sG + 1))
        A("s_waitcnt vmcnt(0)")
        flush_deferred(A, sDEF, VL16, ONE)
        A("v_cmp_ne_u32 s[%d:%d], 0, v%d" % (sMM, sMM + 1, VFM))
        A("s_bitcmp1_b64 s[%d:%d], s%d" % (sMM, sMM + 1, sSEG))
        A("s_cbranch_scc1 L_p2_kmgo")
        A("s_sleep %d" % ZZ[0])
        spin_guard(A)
        A("s_branch L_p2_kmwait")
        A.label("L_p2_kmgo")
        km_loads(KE, VM, sA)
        A("s_waitcnt vmcnt(0)")
        A("s_branch L_p2_kmok")
    cold.add(blk)
    rtp(A, 1)
    A("s_barrier")
    QF, ZF, KF, VFR = 32, 48, 64, 128
    S0, S1, S2 = 104, 108, 112
    A("v_add_u32 v%d, v%d, v%d" % (116, VS, VQF))
    A("v_sub_u32 v%d, v%d, v%d" % (116, 116, VL16))
    A("v_add_u32 v%d, v%d, v%d" % (117, VS, VVF))
    A("v_sub_u32 v%d, v%d, v%d" % (117, 117, VL16))
    for dc in range(4): rd128(A, QF + 4 * dc, 116, L_Q + dc * 1024)
    for i in range(8): rd128(A, KF + 4 * i, VS, L_K + i * 1024)
    A("v_mov_b32 v%d, 0" % (KE + 3))
    A("s_waitcnt lgkmcnt(4)")
    for dc in range(4): mfma(A, S1, KF + 4 * dc, QF + 4 * dc, BIAS if dc == 0 else S1)
    A("s_waitcnt lgkmcnt(0)")
    for i in range(4): rd128(A, VFR + 4 * i, 117, L_V + i * 1024)
    for dc in range(4): mfma(A, S2, KF + 16 + 4 * dc, QF + 4 * dc, BIAS + 4 if dc == 0 else S2)
    A("s_cmp_eq_u32 s%d, 0" % sKP)
    A("s_cbranch_scc1 L_p2_kmwait")
    A("v_mov_b64 v[%d:%d], v[%d:%d]" % (KE, KE + 1, KE2, KE2 + 1))
    A("v_mov_b64 v[%d:%d], v[%d:%d]" % (VM, VM + 1, KE2 + 2, KE2 + 3))
    A("v_mov_b64 v[%d:%d], v[%d:%d]" % (VM + 2, VM + 3, KE2 + 4, KE2 + 5))
    A("global_load_dword v%d, v%d, s[%d:%d] sc1" % (VFM, VL4, sG, sG + 1))
    A.label("L_p2_kmok")
    rts(A, opt, sL, sSEG, 128, 118)
    rtp(A, 2)
    A("v_mov_b32 v%d, v%d" % (KE + 2, KE + 1))
    A("v_mov_b32 v%d, 0" % (KE + 1))
    A("ds_write_b64 v%d, v[%d:%d] offset:%d" % (VZW, KE, KE + 1, L_Z))
    A("ds_write_b64 v%d, v[%d:%d] offset:%d" % (VZW, KE + 2, KE + 3, L_Z + 512))
    A("s_waitcnt lgkmcnt(0)")
    A("s_barrier")
    for dc in range(4):
        for Tt in range(2):
            A("ds_read_b64_tr_b16 v[%d:%d], v%d offset:%d" % (ZF + 4 * dc + 2 * Tt, ZF + 4 * dc + 2 * Tt + 1, VZR, L_Z + dc * 1024 + Tt * 512))
    A("s_waitcnt lgkmcnt(0)")
    for dc in range(4): mfma(A, S0, ZF + 4 * dc, QF + 4 * dc, "0" if dc == 0 else S0)
    rtp(A, 3)
    M0_, M1_, T0_, T1_, LS, LT, PX = 116, 117, 118, 119, 120, 121, 124
    A("v_max3_f32 v%d, v%d, v%d, v%d" % (M0_, S1, S1 + 1, S1 + 2))
    A("v_max3_f32 v%d, v%d, v%d, v%d" % (M1_, S1 + 3, S2, S2 + 1))
    A("v_max3_f32 v%d, v%d, v%d, v%d" % (M0_, M0_, S2 + 2, S2 + 3))
    A("v_xor_b32 v%d, %d, v%d" % (VS, SLOT, VS))
    A.nop(4)
    A("v_max3_f32 v%d, v%d, v%d, v%d" % (M1_, M1_, S0, S0 + 1))
    A("v_max_f32 v%d, v%d, v%d" % (T0_, M0_, M1_))
    A("v_max_f32 v%d, v%d, v%d" % (T1_, M0_, M1_))
    A.nop(2)
    A("v_permlane32_swap_b32 v%d, v%d" % (T0_, T1_))
    A("v_max_f32 v%d, v%d, v%d" % (M0_, T0_, T1_))
    A("v_max_f32 v%d, v%d, v%d" % (M1_, T0_, T1_))
    A.nop(2)
    A("v_permlane16_swap_b32 v%d, v%d" % (M0_, M1_))
    A("v_max_f32 v%d, v%d, v%d" % (M0_, M0_, M1_))
    A("v_mul_f32 v%d, s%d, v%d" % (M0_, sC, M0_))
    sregs = [S1 + r for r in range(4)] + [S2 + r for r in range(4)] + [S0, S0 + 1]
    for r in sregs: A("v_fma_f32 v%d, v%d, s%d, -v%d" % (r, r, sC, M0_))
    for r in sregs: A("v_exp_f32 v%d, v%d" % (r, r))
    cvt(A, PX, S1, S1 + 1); cvt(A, PX + 1, S1 + 2, S1 + 3); cvt(A, PX + 2, S2, S2 + 1); cvt(A, PX + 3, S2 + 2, S2 + 3)
    cvt(A, PMA, S0, S0 + 1); cvt(A, PMB + 1, S0, S0 + 1)
    OC = 64
    for i in range(4): mfma(A, OC + 4 * i, VFR + 4 * i, PX, "0")
    A("v_add_f32 v%d, v%d, v%d" % (LS, S1, S1 + 1))
    A("v_add_f32 v%d, v%d, v%d" % (LT, S1 + 2, S1 + 3))
    for a_, b_ in ((S2, S2 + 1), (S2 + 2, S2 + 3), (S0, S0 + 1)):
        A("v_add_f32 v%d, v%d, v%d" % (LS, LS, a_)); A("v_add_f32 v%d, v%d, v%d" % (LT, LT, b_))
    for i in range(4): mfma(A, OC + 4 * i, VM + 2 * (i >> 1), PMA if (i & 1) == 0 else PMB, OC + 4 * i, k32=False)
    A("v_add_f32 v%d, v%d, v%d" % (LS, LS, LT))
    swap_sum(A, LS, LT, 32); swap_sum(A, LS, LT, 16)
    A("v_rcp_f32 v%d, v%d" % (LS, LS))
    A.nop(1)
    for r in range(0, 16, 2):
        A("v_pk_mul_f32 v[%d:%d], v[%d:%d], v[%d:%d] op_sel_hi:[1,0]" % (OC + r, OC + r + 1, OC + r, OC + r + 1, LS, LS + 1))
    for f in range(2):
        pack(A, 32 + 4 * f, OC + 8 * f, OC + 8 * f + 4)
        A("ds_write_b128 v%d, v[%d:%d] offset:%d" % (VOW, 32 + 4 * f, 35 + 4 * f, L_O + f * 1024))
    rtp(A, 4)
    A("s_mov_b32 s%d, 0" % sPRE)
    A("s_mov_b32 s%d, 0" % sKP)
    A("s_waitcnt vmcnt(0)")
    A("v_cmp_eq_u32 vcc, 0, v%d" % VF)
    flush_deferred(A, sDEF, VL16, ONE)
    A("v_cmp_ne_u32 s[%d:%d], 0, v%d" % (sMM, sMM + 1, VFM))
    A("s_cmp_ge_u32 s%d, 64" % sNX)
    A("s_cbranch_scc1 L_p2_nopre")
    A("s_cbranch_vccnz L_p2_nopre")
    dma(sNX)
    A("s_mov_b32 s%d, 1" % sPRE)
    A("s_bitcmp0_b64 s[%d:%d], s%d" % (sMM, sMM + 1, sNX))
    A("s_cbranch_scc1 L_p2_nopre")
    km_loads(KE2, KE2 + 2, sKN)
    A("s_mov_b32 s%d, 1" % sKP)
    A.label("L_p2_nopre")
    A("s_waitcnt lgkmcnt(0)")
    A("s_barrier")
    OF, PA = 32, 64
    rtp(A, 5)
    for f in range(4):
        for qt in range(2): rd128(A, OF + (qt * 4 + f) * 4, VL16, L_O + (qt * 4 + f) * 1024)
    def out_ops(b):
        ops = []
        for qt in range(2):
            a0 = PA + b * 16 + qt * 8
            ops += [lambda a0=a0: cvt(A, a0, a0, a0 + 1), lambda a0=a0: cvt(A, a0 + 1, a0 + 2, a0 + 3),
                    lambda a0=a0: cvt(A, a0 + 2, a0 + 4, a0 + 5), lambda a0=a0: cvt(A, a0 + 3, a0 + 6, a0 + 7)]
            ops.append(lambda a0=a0, qt=qt: A("ds_write_b128 v%d, v[%d:%d] offset:%d" % (VTW + b, a0, a0 + 3, qt * 4096)))
        return ops
    pend = []
    for b in range(4):
        n = 0
        for f in range(4):
            if b == 0: A("s_waitcnt lgkmcnt(%d)" % (6 - 2 * f))
            for P in range(2):
                for qt in range(2):
                    d = PA + b * 16 + qt * 8 + P * 4
                    mfma(A, d, WO + ((b * 2 + P) * 4 + f) * 4, OF + (qt * 4 + f) * 4, "0" if f == 0 else d)
                    n += 1
                    if n > 5 and pend: pend.pop(0)()
        assert not pend
        pend = out_ops(b)
    A.nop(8)
    for o in pend: o()
    rtp(A, 6)
    for i in range(8): rd128(A, 32 + 4 * i, VTR + (i & 3), i * 1024)
    for i in range(8):
        A("s_waitcnt lgkmcnt(%d)" % (7 - i))
        store_mixed(A, cold, ["global_store_dwordx4 v%d, v[%d:%d], s[%d:%d]" % (VPST, 32 + 4 * i, 35 + 4 * i, sCc, sCc + 1)])
        if i < 7: sadd64(A, sCc, sCc, 4 * 32768)
    publish_partials(A, cold, 64, sE)
    reduce_row(A, cold, RW, SEL, VRLD, VROW, VFL, VL16, sB, sE, sIT, sX, sY, sF, L_ST,
               lambda A: A("s_cmp_eq_u32 s%d, 1" % sL), defer=sDEF)
    rtp(A, 14)
    rts(A, opt, sL, sSEG, 256, W)
    A("s_add_u32 s%d, s%d, 1" % (sIT, sIT))
    A("s_mov_b32 s%d, s%d" % (sSEG, sNX))
    A("s_cmp_eq_u32 s%d, 1" % sPRE)
    A("s_cbranch_scc1 L_p2_loop")
    A("s_waitcnt vmcnt(0)")
    flush_deferred(A, sDEF, VL16, ONE)
    A("s_cmp_ge_u32 s%d, 64" % sSEG)
    A("s_cbranch_scc1 L_p2_next")
    wait_flags(A, W, VF8, sH)
    dma(sSEG)
    A("s_waitcnt vmcnt(0)")
    A("s_branch L_p2_loop")
    A.label("L_p2_next")
    A("s_add_u32 s%d, s%d, 1" % (sL, sL))
    A("s_cmp_lt_u32 s%d, %d" % (sL, opt.get("layers", 2)))
    A("s_cbranch_scc1 L_p2_layer")
    A("s_branch L_end")
    cold.emit(A)

def gen_aworker(A, opt):
    cold = Cold()
    NP1, NP2, NA = opt["NP1"], opt["NP2"], opt["NA"]
    NA0 = NA + NP2
    VL16, VL8, VYA, VPST, VRLD, VROW, VFL, VAF, ZERO, VPQ = range(1, 11)
    SEL, ONES = 12, 16
    KVA, ZA = 18, 20
    KV, ZS = 24, 28
    W = 32
    WO = 128
    RW = 160
    sRING = 84
    WQ = 256
    L_W, L_WOI, L_PQ, L_ST = 0, 49152, 131072, 32768
    VA4, VTW, VTR = 216, 220, 228
    sL, sSEG, sIT, sI, sAG = 48, 49, 50, 51, 66
    sA, sB, sCc, sD, sE, sF, sG = 52, 54, 56, 58, 60, 62, 64
    sLE, sNA, sMT, sWB = 67, 68, 69, 70
    A.label("L_aworker")
    A("s_sub_u32 s%d, 7, s%d" % (sAG, S_GRP))
    A("s_mov_b32 s%d, %d" % (sNA, NA0))
    prepass0(A, sAG, NA0)
    T = 40
    A("v_and_b32 v%d, 63, v0" % T)
    A("v_and_b32 v%d, 15, v0" % (T + 1))
    A("v_bfe_u32 v%d, v0, 4, 2" % (T + 2))
    A("v_lshlrev_b32 v%d, 4, v%d" % (VL16, T))
    A("v_lshlrev_b32 v%d, 3, v%d" % (VL8, T))
    A("s_and_b32 s42, s%d, 1" % S_WAVE)
    A("s_lshr_b32 s43, s%d, 1" % S_WAVE)
    frag_addrs(A, VA4, T + 3)
    A("s_lshl_b32 s%d, s42, 14" % sMT)
    A("s_lshl_b32 s%d, s%d, 15" % (sWB, S_WAVE))
    A("s_lshl_b32 s40, s%d, 15" % S_WAVE)
    for q in range(4): A("v_add_u32 v%d, s40, v%d" % (VA4 + q, VA4 + q))
    A("v_lshrrev_b32 v%d, 5, v%d" % (T + 3, T))
    A("v_and_b32 v%d, 31, v%d" % (T + 4, T))
    A("s_lshl_b32 s40, s42, 19")
    A("s_lshl_b32 s41, s43, 9")
    A("s_add_u32 s40, s40, s41")
    A("v_lshlrev_b32 v%d, 15, v%d" % (VPST, T + 3))
    A("v_lshl_add_u32 v%d, v%d, 4, v%d" % (VPST, T + 4, VPST))
    A("v_add_u32 v%d, s40, v%d" % (VPST, VPST))
    A("s_lshl_b32 s41, s%d, 13" % S_WAVE)
    for b in range(8):
        A("v_add_u32 v%d, %d, v%d" % (T + 5, 4 * b, T + 2))
        A("v_xor_b32 v%d, v%d, v%d" % (T + 5, T + 5, T + 1))
        A("v_lshlrev_b32 v%d, 4, v%d" % (T + 5, T + 5))
        A("v_lshl_add_u32 v%d, v%d, 9, v%d" % (T + 5, T + 1, T + 5))
        A("v_add_u32 v%d, s41, v%d" % (VTW + b, T + 5))
    for i in range(8):
        A("v_add_u32 v%d, %d, v%d" % (T + 5, 2 * i, T + 3))
        A("v_xor_b32 v%d, v%d, v%d" % (T + 6, T + 5, T + 4))
        A("v_lshlrev_b32 v%d, 4, v%d" % (T + 6, T + 6))
        A("v_lshl_add_u32 v%d, v%d, 9, v%d" % (T + 6, T + 5, T + 6))
        A("v_add_u32 v%d, s41, v%d" % (VTR + i, T + 6))
    A("s_lshl_b32 s40, s42, 9")
    A("s_add_u32 s40, s40, %d" % L_PQ)
    A("v_add_u32 v%d, s40, v%d" % (VPQ, VL8))
    A("v_mov_b32 v%d, 0" % ZERO)
    A("v_mov_b32 v%d, 0x3f803f80" % ONES)
    A("v_mov_b32 v%d, 0x3f803f80" % (ONES + 1))
    A("s_mov_b32 s%d, 0x%x" % (sLE, f32bits(LOG2E)))
    sel_const(A, SEL, T + 3)
    reduce_consts(A, VRLD, VROW, VFL, T + 3)
    A("s_lshl_b32 s44, s%d, 12" % S_WAVE)
    A("s_lshl_b32 s40, s%d, 14" % S_HEAD)
    A("s_add_u32 s40, s40, s44")
    sadd64(A, sA, S_AWO, "s40")
    A("s_add_u32 s45, s44, %d" % L_WOI)
    A("s_mov_b32 m0, s45")
    A("s_nop 0")
    for i in range(4): A("global_load_lds_dwordx4 v%d, s[%d:%d] offset:%d" % (VL16, sA, sA + 1, i * 1024))
    A("v_bfe_u32 v%d, v0, 2, 2" % (T + 4))
    A("v_and_b32 v%d, 3, v0" % (T + 5))
    A("v_mul_u32_u24 v%d, 768, v%d" % (T + 6, T + 2))
    A("v_lshl_add_u32 v%d, v%d, 5, v%d" % (T + 6, T + 4, T + 6))
    A("v_lshl_add_u32 v%d, v%d, 3, v%d" % (T + 6, T + 5, T + 6))
    A("v_lshl_add_u32 v%d, v%d, 2, v%d" % (T + 7, T + 2, T + 4))
    A("v_lshlrev_b32 v%d, 10, v%d" % (T + 7, T + 7))
    A("v_lshl_add_u32 v%d, v%d, 4, v%d" % (T + 7, T + 5, T + 7))
    A("s_lshl_b32 s41, s43, 9")
    A("s_add_u32 s41, s41, %d" % L_WOI)
    A("v_add_u32 v%d, s41, v%d" % (T + 7, T + 7))
    prepass1(A, True)
    rt_stamp(A, opt, 491, 110, 111)
    opt["arrive"](A, "own")
    rt_stamp(A, opt, 492, 110, 111)
    if opt.get("warm", 1):
        A("s_lshl_b32 s41, s%d, 22" % S_GRP)
        A("s_lshl_b32 s42, s%d, 15" % S_HEAD)
        A("s_add_u32 s41, s41, s42")
        A("s_add_u32 s41, s41, 0x%x" % OFF_PW)
        for k in range(16):
            A("s_add_u32 s42, s41, 0x%x" % ((k >> 3) * 0x100000 + (k & 7) * 4096)); sadd64(A, sA, S_WS, "s42")
            A("global_load_dwordx4 v[56:59], v%d, s[%d:%d] sc1" % (VRLD, sA, sA + 1))
    opt["init_wait"](A)
    rt_stamp(A, opt, 493, 110, 111)
    A("s_mul_i32 s40, s%d, 49152" % S_HEAD)
    A("s_mul_i32 s44, s%d, 12288" % S_WAVE)
    A("s_add_u32 s40, s40, s44")
    A("s_add_u32 s40, s40, 0x%x" % OFF_WP)
    sadd64(A, sA, S_WS, "s40")
    for qd in range(3):
        A("s_mov_b32 m0, s44")
        A("s_add_u32 s44, s44, 4096")
        for i in range(4): A("global_load_lds_dwordx4 v%d, s[%d:%d] offset:%d sc1" % (VL16, sA, sA + 1, i * 1024))
        if qd < 2: sadd64(A, sA, sA, 4096)
    A("s_waitcnt vmcnt(0)")
    rt_stamp(A, opt, 494, 110, 111)
    A("s_barrier")
    for t in range(3):
        for ks in range(16):
            for hh in range(2):
                A("ds_read_b64_tr_b16 %s, v%d offset:%d" % (R(WQ + (t * 16 + ks) * 4 + 2 * hh, 2), T + 6, L_W + ks * 3072 + t * 256 + hh * 128))
    for b in range(8):
        for P in range(2):
            A("ds_read_b64_tr_b16 %s, v%d offset:%d" % (v(WO + (b * 2 + P) * 2, 2), T + 7, b * 64 + P * 8))
    A("s_waitcnt lgkmcnt(0)")
    rt_stamp(A, opt, 501, 40, 41)
    opt["init_wait"](A, kind="own")
    rt_stamp(A, opt, 502, 40, 41)
    A("s_mov_b32 s%d, 0" % sL)
    A("s_mov_b32 s%d, 0" % sIT)
    A("s_mov_b32 s%d, 0" % sRING)

    A.label("L_aw_layer")
    A("s_barrier")
    for r in range(0, 8, 2): A("v_mov_b64 v[%d:%d], 0" % (KV + r, KV + r + 1))
    A("s_lshr_b32 s%d, s%d, 1" % (sI, S_WAVE))
    YB = [0, 16384]
    YF = 32
    Q, K, V, E = 96, 100, 104, 112
    def seg_of(dst, add):
        A("s_add_u32 s%d, s%d, %d" % (dst, sI, add))
        A("s_mul_i32 s%d, s%d, s%d" % (dst, dst, sNA))
        A("s_add_u32 s%d, s%d, s%d" % (dst, dst, sAG))
    def y_ops(buf, sseg, flags):
        ops = ["s_lshl_b32 s41, s%d, 15" % sseg, "s_add_u32 s41, s41, s%d" % sMT,
               "s_add_u32 s41, s41, 0x%x" % (OFF_Y2 if flags else OFF_Y0),
               "s_add_u32 s%d, s%d, s41" % (sA, S_WS), "s_addc_u32 s%d, s%d, 0" % (sA + 1, S_WS + 1)]
        for qd in range(4):
            ops += ["s_add_u32 s42, s%d, %d" % (sWB, buf + qd * 4096), "s_mov_b32 m0, s42"]
            ops += ["s_add_u32 s%d, s%d, 4096" % (sA, sA), "s_addc_u32 s%d, s%d, 0" % (sA + 1, sA + 1)] if qd else ["s_nop 0"]
            ops += ["global_load_lds_dwordx4 v%d, s[%d:%d] offset:%d sc1" % (VL16, sA, sA + 1, i * 1024) for i in range(4)]
        return ops
    def y_loads(buf, sseg, flags):
        for t in y_ops(buf, sseg, flags): A(t)
    def phi(X):
        for r in range(4):
            A("v_mul_f32 v%d, s%d, v%d" % (E + r, sLE, X + r))
            A("v_min_f32 v%d, 0, v%d" % (E + r, E + r))
        for r in range(4): A("v_exp_f32 v%d, v%d" % (E + r, E + r))
        for r in range(4): A("v_max_f32 v%d, 0, v%d" % (X + r, X + r))
        for r in range(4): A("v_add_f32 v%d, 0x%x, v%d" % (E + r, f32bits(1e-6), E + r))
        for r in range(4): A("v_add_f32 v%d, v%d, v%d" % (X + r, X + r, E + r))
    def unit(buf, younger, refill=False, stamp=False):
        A("s_waitcnt vmcnt(%d)" % younger)
        for ks in range(8): rd128(A, YF + 4 * ks, VA4 + (ks & 3), buf + (ks >> 2) * 256)
        ops = []
        if refill:
            ops = y_ops(buf, 44, False)
        def some():
            while ops:
                t = ops.pop(0); A(t)
                if t.startswith("global"): break
        for ks in range(16):
            if ks + 8 < 16: rd128(A, YF + 4 * (ks + 8), VA4 + (ks & 3), buf + ((ks + 8) >> 2) * 256)
            A("s_waitcnt lgkmcnt(%d)" % (min(8, 15 - ks) if ks != 9 or not refill else 0))
            mfma(A, K, YF + 4 * ks, WQ + (16 + ks) * 4, "0" if ks == 0 else K)
            if ks >= 9: some()
            mfma(A, Q, WQ + ks * 4, YF + 4 * ks, "0" if ks == 0 else Q)
            if ks >= 9: some()
            mfma(A, V, YF + 4 * ks, WQ + (32 + ks) * 4, "0" if ks == 0 else V)
            if 9 <= ks < 15: some()
        assert not ops
        A("s_lshl_b32 s41, s%d, 10" % sI)
        A("v_add_u32 v108, s41, v%d" % VPQ)
        A.nop(5)
        phi(K)
        cvt(A, 116, K, K + 1); cvt(A, 117, K + 2, K + 3)
        cvt(A, 118, V, V + 1); cvt(A, 119, V + 2, V + 3)
        phi(Q)
        mfma(A, KV, 116, 118, KV, k32=False)
        mfma(A, ZS, 116, ONES, ZS, k32=False)
        cvt(A, 120, Q, Q + 1); cvt(A, 121, Q + 2, Q + 3)
        A("ds_write_b64 v108, v[120:121]")
        rts(A, dict(opt, rt=opt.get("rt") and stamp), sL, sSEG, 0, 122)
        A("s_add_u32 s%d, s%d, 2" % (sI, sI))
    A("s_cmp_lg_u32 s%d, 0" % sL)
    A("s_cbranch_scc1 L_aw_s1f")
    seg_of(sSEG, 0)
    y_loads(YB[0], sSEG, False)
    seg_of(44, 2)
    y_loads(YB[1], 44, False)
    A.label("L_aw_s1")
    for par in range(2):
        seg_of(44, 4)
        A("s_cmp_ge_u32 s44, 64")
        A("s_cbranch_scc1 L_aw_s1e%d" % par)
        unit(YB[par], 16, refill=True)
    A("s_branch L_aw_s1")
    for par in range(2):
        A.label("L_aw_s1e%d" % par)
        unit(YB[par], 16)
        unit(YB[1 - par], 0)
        if par == 0: A("s_branch L_aw_s1t")
    A.label("L_aw_s1t")
    A("s_waitcnt vmcnt(0)")
    if opt.get("rt"): rt_stamp(A, opt, 63, 122, 123)
    A("s_branch L_aw_s1done")
    A.label("L_aw_s1f")
    seg_of(sSEG, 0)
    A("s_cmp_ge_u32 s%d, 64" % sSEG)
    A("s_cbranch_scc1 L_aw_s1done")
    A("s_cmp_ge_u32 s%d, %d" % (sSEG, Y2_POLL))
    A("s_cbranch_scc1 L_aw_s1p")
    A("s_lshl_b32 s42, s%d, 7" % sSEG)
    A("s_add_u32 s42, s42, 0x%x" % F_Y2); sadd64(A, sA, S_WS, "s42")
    wait_flags(A, W, VFL, sA, sleep=1)
    y_loads(YB[0], sSEG, True)
    A.label("L_aw_s1q")
    def blk(A):
        A.label("L_aw_s1p")
        for t in y_ops(0, sSEG, True)[:5]: A(t)
        for k in range(1, 4): sadd64(A, sA + 2 * k, sA, 4096 * k)
        A("v_add_u32 v%d, s%d, v%d" % (109, sWB, VL16))
        poll_tile(A, [(VL16, sA + 2 * (i >> 2), (i & 3) * 1024) for i in range(16)], YF, 108, [(109, i * 1024) for i in range(16)])
        A("s_branch L_aw_s1q")
    cold.add(blk)
    unit(YB[0], 0, stamp=True)
    A("s_branch L_aw_s1f")
    A.label("L_aw_s1done")
    A("s_lshl_b32 s41, s%d, 5" % sL)
    A("s_add_u32 s41, s41, s%d" % S_HEAD)
    A("s_lshl_b32 s41, s41, 14")
    A("s_add_u32 s41, s41, 0x%x" % OFF_AKV); sadd64(A, sA, S_WS, "s41")
    A("s_lshl_b32 s43, s%d, 11" % sAG); sadd64(A, sCc, sA, "s43")
    A("s_lshl_b32 s42, s%d, 15" % S_WAVE)
    A("v_add_u32 v%d, s42, v%d" % (W, VL16))
    A.nop(3)
    A("ds_write_b128 v%d, v[%d:%d]" % (W, KV, KV + 3))
    A("ds_write_b128 v%d, v[%d:%d] offset:1024" % (W, ZS, ZS + 3))
    A("s_waitcnt lgkmcnt(0)")
    A("s_barrier")
    A("s_cmp_lg_u32 s%d, 0" % S_WAVE)
    A("s_cbranch_scc1 L_aw_nopub")
    A("v_add_u32 v%d, 0x10000, v%d" % (W, VL16))
    for k, (ad, off) in enumerate(((VL16, 32768), (W, 0), (W, 32768))):
        rd128(A, W + 8 + 8 * k, ad, off); rd128(A, W + 12 + 8 * k, ad, off + 1024)
    A("s_waitcnt lgkmcnt(0)")
    for k in range(3):
        for r in range(0, 8, 2):
            A("v_pk_add_f32 v[%d:%d], v[%d:%d], v[%d:%d]" % (KV + r, KV + r + 1, KV + r, KV + r + 1, W + 8 + 8 * k + r, W + 9 + 8 * k + r))
    A("v_min_u32 v%d, -2, v%d" % (KV, KV))
    A("v_min_u32 v%d, -2, v%d" % (ZS, ZS))
    A("global_store_dwordx4 v%d, v[%d:%d], s[%d:%d] sc1" % (VL16, KV, KV + 3, sCc, sCc + 1))
    A("global_store_dwordx4 v%d, v[%d:%d], s[%d:%d] offset:1024 sc1" % (VL16, ZS, ZS + 3, sCc, sCc + 1))
    A.label("L_aw_nopub")
    for k in range(1, 3): sadd64(A, sA + 2 * k, sA, 4096 * k)
    def gather(n, lp):
        A.label(lp)
        for p in range(n):
            for k in range(2):
                b = sA + 2 * (p >> 1)
                A("global_load_dwordx4 v[%d:%d], v%d, s[%d:%d] offset:%d sc1" % (W + 8 * p + 4 * k, W + 8 * p + 4 * k + 3, VL16, b, b + 1, (p & 1) * 2048 + k * 1024))
        spin_guard(A)
        A("s_waitcnt vmcnt(0)")
        A("v_max_u32 v%d, v%d, v%d" % (VAF, W, W + 4))
        for p in range(1, n): A("v_max3_u32 v%d, v%d, v%d, v%d" % (VAF, VAF, W + 8 * p, W + 8 * p + 4))
        A("v_cmp_eq_u32 vcc, -1, v%d" % VAF)
        A("s_cbranch_vccnz %s" % lp)
        for p in range(1, n):
            for r in range(0, 8, 2):
                A("v_pk_add_f32 v[%d:%d], v[%d:%d], v[%d:%d]" % (W + r, W + r + 1, W + r, W + r + 1, W + 8 * p + r, W + 8 * p + r + 1))
    assert NA0 <= 6 and NA0 + NA <= 8
    A("s_cmp_lg_u32 s%d, 0" % sL)
    A("s_cbranch_scc1 L_aw_g1")
    gather(NA0, "L_aw_g0")
    A("s_branch L_aw_g2")
    gather(NA, "L_aw_g1")
    A.label("L_aw_g2")
    A("s_barrier")
    cvt(A, KVA, W, W + 1); cvt(A, KVA + 1, W + 2, W + 3); cvt(A, ZA, W + 4, W + 5); cvt(A, ZA + 1, W + 6, W + 7)
    if opt.get("rt"):
        A("s_add_u32 s97, s%d, 400" % sL)
        rt_stamp(A, opt, "s97", W + 2, W + 3)
    A("s_mov_b32 s%d, 0" % sI)
    A("s_mov_b32 s%d, s%d" % (sSEG, sAG))
    A.label("L_aw_s2")
    rtp(A, 0, 240)
    A("s_lshl_b32 s41, s%d, 10" % sI)
    A("v_add_u32 v%d, s41, v%d" % (W, VPQ))
    A("ds_read_b64 v[%d:%d], v%d" % (W + 2, W + 3, W))
    A("s_lshl_b32 s41, s%d, 22" % S_GRP)
    A("s_add_u32 s41, s41, s%d" % sRING)
    A("s_add_u32 s41, s41, 0x%x" % OFF_PW); sadd64(A, sB, S_WS, "s41")
    ring_next(A, sRING)
    A("s_lshl_b32 s41, s%d, 10" % S_HEAD); sadd64(A, sCc, sB, "s41")
    A("s_lshl_b32 s41, s%d, 15" % S_HEAD); sadd64(A, sB, sB, "s41")
    A("s_lshl_b32 s47, s%d, 6" % sL)
    A("s_add_u32 s47, s47, s%d" % sSEG)
    A("s_lshl_b32 s41, s47, 7")
    A("s_add_u32 s41, s41, 0x%x" % F_PA); sadd64(A, sE, S_WS, "s41")
    A("s_lshl_b32 s41, s%d, 5" % sSEG)
    A("s_add_u32 s41, s41, s%d" % S_HEAD)
    A("s_lshl_b32 s42, s41, 10")
    A("s_lshl_b32 s43, s%d, 21" % sL)
    A("s_add_u32 s43, s43, s42")
    A("s_add_u32 s44, s43, 0x%x" % OFF_X1); sadd64(A, sG, S_WS, "s44")
    A("s_add_u32 s44, s43, 0x%x" % OFF_Y1); sadd64(A, sD, S_WS, "s44")
    A("s_lshl_b32 s44, s47, 5")
    A("s_add_u32 s44, s44, s%d" % S_HEAD)
    A("s_lshl_b32 s44, s44, 2")
    A("s_add_u32 s44, s44, 0x%x" % F_X1); sadd64(A, sF, S_WS, "s44")
    A("s_add_u32 s44, s42, 0x%x" % OFF_X2); sadd64(A, sA, S_WS, "s44")
    A("s_cmp_lg_u32 s%d, 0" % sL)
    A("s_cbranch_scc1 L_aw_res")
    sadd64(A, sA, S_AX, "s42")
    A.label("L_aw_res")
    A("global_load_dwordx2 v[%d:%d], v%d, s[%d:%d] sc1" % (RW + 36, RW + 37, VROW, sA, sA + 1))
    A("s_waitcnt lgkmcnt(0)")
    NU, DE = W + 4, W + 8
    mfma(A, DE, ZA, W + 2, "0", k32=False)
    mfma(A, NU, KVA, W + 2, "0", k32=False)
    A.nop(7)
    A("v_add_f32 v%d, 0x%x, v%d" % (DE, f32bits(1e-6), DE))
    A("v_rcp_f32 v%d, v%d" % (DE, DE))
    A.nop(1)
    for r in (0, 2):
        A("v_pk_mul_f32 v[%d:%d], v[%d:%d], v[%d:%d] op_sel_hi:[1,0]" % (NU + r, NU + r + 1, NU + r, NU + r + 1, DE, DE + 1))
    cvt(A, W + 2, NU, NU + 1); cvt(A, W + 3, NU + 2, NU + 3)
    A.nop(2)
    PA = W + 16
    rtp(A, 5, 240)
    for i in range(16): mfma(A, PA + 4 * i, WO + 2 * i, W + 2, "0", k32=False)
    for b in range(8):
        a0 = PA + 8 * b
        if b == 6: A.nop(2)
        cvt(A, a0, a0, a0 + 1); cvt(A, a0 + 1, a0 + 2, a0 + 3); cvt(A, a0 + 2, a0 + 4, a0 + 5); cvt(A, a0 + 3, a0 + 6, a0 + 7)
        A("ds_write_b128 v%d, v[%d:%d]" % (VTW + b, a0, a0 + 3))
    for i in range(8): rd128(A, PA + 4 * i, VTR + i, 0)
    for i in range(8):
        A("s_waitcnt lgkmcnt(%d)" % (7 - i))
        store_mixed(A, cold, ["global_store_dwordx4 v%d, v[%d:%d], s[%d:%d]" % (VPST, PA + 4 * i, PA + 4 * i + 3, sCc, sCc + 1)])
        if i < 7: sadd64(A, sCc, sCc, 2 * 32768)
    publish_partials(A, cold, W, sE)
    reduce_row(A, cold, RW, SEL, VRLD, VROW, VFL, VL16, sB, sE, sIT, sG, sD, sF, L_ST,
               lambda A: A("s_cmp_eq_u32 s%d, 2" % sL))
    rtp(A, 14, 240)
    rts(A, opt, sL, sSEG, 256, W)
    A("s_add_u32 s%d, s%d, 1" % (sIT, sIT))
    A("s_add_u32 s%d, s%d, 1" % (sI, sI))
    A("s_add_u32 s%d, s%d, s%d" % (sSEG, sSEG, sNA))
    A("s_cmp_lt_u32 s%d, 64" % sSEG)
    A("s_cbranch_scc1 L_aw_s2")
    A("s_cmp_ge_u32 s%d, %d" % (sAG, NA))
    A("s_cbranch_scc1 L_p2")
    A("s_mov_b32 s%d, %d" % (sNA, NA))
    A("s_add_u32 s%d, s%d, 1" % (sL, sL))
    A("s_cmp_lt_u32 s%d, %d" % (sL, opt.get("layers", 2)))
    A("s_cbranch_scc1 L_aw_layer")
    A("s_branch L_end")
    cold.emit(A)
```

```python
import sys
from common import *
import chain, workers

HEADER = open('cdna_kernels/%s.s.ref' % NAME).read().split('; Override launch')[0]

def prologue(A, opt):
    A("s_cmp_ge_u32 s2, 256")
    A("s_cbranch_scc1 L_end")
    A("s_mov_b32 s%d, 0" % S_SPIN)
    A("s_load_dwordx4 s[8:11], s[0:1], 0")
    A("s_load_dwordx2 s[12:13], s[0:1], 16")
    A("s_load_dwordx4 s[16:19], s[0:1], 32")
    A("s_load_dwordx4 s[20:23], s[0:1], 48")
    A("s_load_dwordx2 s[24:25], s[0:1], 64")
    A("s_load_dwordx4 s[28:31], s[0:1], 80")
    A("s_load_dwordx2 s[4:5], s[0:1], 96")
    if opt.get("rt"): A("s_memrealtime s[90:91]")
    if opt.get("dbgt"):
        A("s_memrealtime s[98:99]"); A("s_memtime s[14:15]"); A("s_waitcnt lgkmcnt(0)"); A("s_mov_b32 s6, s98"); A("s_mov_b32 s7, s14")
    A("s_getreg_b32 s36, hwreg(HW_REG_XCC_ID)")
    A("s_and_b32 s36, s36, 15")
    if opt.get("fake") == 1: A("s_lshr_b32 s36, s2, 5")
    if opt.get("fake") == 2: A("s_and_b32 s36, s36, 6")
    if opt.get("fake") == 3: A("s_add_u32 s36, s36, 5")
    A("s_mov_b32 s%d, s36" % S_GRP)
    A("v_lshrrev_b32 v1, 6, v0")
    A("s_nop 0")
    A("v_readfirstlane_b32 s%d, v1" % S_WAVE)
    A("s_waitcnt lgkmcnt(0)")
    A("s_cmp_lg_u32 s%d, 0" % S_WAVE)
    A("s_cbranch_scc1 L_noticket")
    ticket_word(A)
    A("v_mov_b32 v1, s37")
    A("v_mov_b32 v2, 1")
    A("s_mov_b64 exec, 1")
    A("global_atomic_add v3, v1, v2, s[%d:%d] sc0" % (S_DBG, S_DBG + 1))
    A("s_mov_b64 exec, -1")
    A.label("L_noticket")
    A("v_mov_b32 v6, 0")
    A("s_cmp_lg_u32 s%d, 0" % S_WAVE)
    A("s_cbranch_scc1 L_nowr")
    A("s_waitcnt vmcnt(0)")
    A("s_mov_b64 exec, 1")
    A("ds_write_b32 v6, v3")
    A("s_mov_b64 exec, -1")
    A.label("L_nowr")
    A("s_waitcnt lgkmcnt(0)")
    A("s_barrier")
    A("ds_read_b32 v3, v6")
    A("s_waitcnt lgkmcnt(0)")
    A("v_readfirstlane_b32 s%d, v3" % S_HEAD)
    A("s_barrier")
    A("s_cmp_ge_u32 s%d, 8" % S_GRP)
    A("s_cbranch_scc1 L_overflow")
    A("s_cmp_ge_u32 s%d, 32" % S_HEAD)
    A("s_cbranch_scc1 L_overflow")
    A.label("L_roles")
    if opt.get("rt"):
        rt_stamp(A, opt, 498, 40, 41)
        A("v_mov_b32 v41, s90")
        A("global_store_dword v40, v41, s[%d:%d] offset:4" % (S_WS, S_WS + 1))

def tword(x): return 32 * ((x >> 2) & 1) + (x & 3) + 4 * (x >> 3)
def ticket_word(A):
    A("s_and_b32 s37, s%d, 4" % S_GRP)
    A("s_lshl_b32 s37, s37, 5")
    A("s_and_b32 s36, s%d, 3" % S_GRP)
    A("s_lshl_b32 s36, s36, 2")
    A("s_add_u32 s37, s37, s36")
    A("s_and_b32 s36, s%d, 8" % S_GRP)
    A("s_lshl_b32 s36, s36, 1")
    A("s_add_u32 s37, s37, s36")

def arrive(A, kind):
    l = A.newlabel("Larr")
    A("s_waitcnt vmcnt(0)")
    A("s_barrier")
    A("s_cmp_lg_u32 s%d, 0" % S_WAVE)
    A("s_cbranch_scc1 %s" % l)
    if kind == "flags": A("s_mov_b32 s37, %d" % (4 * 24))
    else:
        A("s_lshl_b32 s37, s%d, 2" % S_GRP); A("s_add_u32 s37, s37, %d" % (64 if kind == "own" else 32))
    A("v_mov_b32 v40, s37")
    A("v_mov_b32 v41, 1")
    A("s_mov_b64 exec, 1")
    A("global_atomic_add v42, v40, v41, s[%d:%d] sc0" % (S_DBG, S_DBG + 1))
    A("s_waitcnt vmcnt(0)")
    A("v_readfirstlane_b32 s36, v42")
    A("s_cmp_lg_u32 s36, %d" % ((32 * NZ[0] if kind == "flags" else 32) - 1))
    l2 = A.newlabel("Larn")
    A("s_cbranch_scc1 %s" % l2)
    A("global_store_dword v40, v41, s[%d:%d] offset:128 sc1" % (S_DBG, S_DBG + 1))
    A.label(l2)
    A("s_mov_b64 exec, -1")
    A.label(l)

def init_wait(A, vt=40, kind="flags"):
    lp = A.newlabel("Liw"); l2 = A.newlabel("Liwd")
    if kind == "tickets":
        A("v_and_b32 v%d, 63, v0" % (vt + 1))
        A("v_lshlrev_b32 v%d, 2, v%d" % (vt + 1, vt + 1))
    elif kind == "flags": A("v_mov_b32 v%d, %d" % (vt + 1, 4 * 56))
    elif kind.startswith("chain"): A("v_mov_b32 v%d, 32" % (vt + 1))
    elif kind.startswith("go"): A("v_mov_b32 v%d, %d" % (vt + 1, 192 + 4 * int(kind[2:])))
    else:
        A("s_lshl_b32 s37, s%d, 2" % S_GRP); A("s_add_u32 s37, s37, %d" % (192 if kind == "own" else 160)); A("v_mov_b32 v%d, s37" % (vt + 1))
    if kind != "tickets":
        A("s_cmp_lg_u32 s%d, 0" % S_WAVE)
        A("s_cbranch_scc1 %s" % l2)
    A.label(lp)
    A("global_load_dword v%d, v%d, s[%d:%d] sc1" % (vt, vt + 1, S_DBG, S_DBG + 1))
    A("s_waitcnt vmcnt(0)")
    if kind == "tickets":
        A("s_mov_b32 s36, 0")
        for x in range(16):
            A("v_readlane_b32 s37, v%d, %d" % (vt, tword(x)))
            A("s_add_u32 s36, s36, s37")
        A("s_cmp_ge_u32 s36, 256")
    else:
        A("v_readfirstlane_b32 s36, v%d" % vt)
        A("s_cmp_ge_u32 s36, %d" % (32 if kind.startswith("chain") else int(kind[5:]) if kind.startswith("early") else 1))
    A("s_cbranch_scc1 %s" % l2)
    A("s_sleep %d" % (8 if kind.startswith("early") else 2))
    spin_guard(A)
    A("s_branch %s" % lp)
    A.label(l2)
    if kind in ("own", "chainm"):
        ticket_word(A)
        A("v_mov_b32 v%d, s37" % (vt + 1))
    A("s_barrier")
    if kind in ("own", "chainm"):
        A("global_load_dword v%d, v%d, s[%d:%d] sc1" % (vt, vt + 1, S_DBG, S_DBG + 1))
        A("s_waitcnt vmcnt(0)")
        A("v_readfirstlane_b32 s37, v%d" % vt)
        A("s_cmp_lt_u32 s37, 32")
        A("s_cselect_b32 s%d, 1, %d" % (S_MIXED, FORCE[0]))
NZ = [2]
FORCE = [0]

def overflow(A):
    A.label("L_overflow")
    A("s_cmp_lg_u32 s%d, 0" % S_WAVE)
    A("s_cbranch_scc1 L_of1")
    A("v_mov_b32 v1, 100")
    A("v_mov_b32 v2, 1")
    A("s_mov_b64 exec, 1")
    A("global_atomic_add v3, v1, v2, s[%d:%d] sc0" % (S_DBG, S_DBG + 1))
    A("s_waitcnt vmcnt(0)")
    A("ds_write_b32 v6, v3")
    A("s_mov_b64 exec, -1")
    A.label("L_of1")
    A("s_waitcnt lgkmcnt(0)")
    A("s_barrier")
    A("ds_read_b32 v3, v6")
    A("s_waitcnt lgkmcnt(0)")
    A("v_readfirstlane_b32 s38, v3")
    A("s_barrier")
    A("s_mov_b32 s%d, 0" % S_GRP)
    init_wait(A, kind="tickets")
    A("s_mov_b32 s%d, 0" % S_GRP)
    A.label("L_of2")
    ticket_word(A)
    A("s_lshr_b32 s37, s37, 2")
    A("v_readlane_b32 s37, v40, s37")
    A("s_min_u32 s37, s37, 32")
    A("s_sub_u32 s39, 32, s37")
    A("s_cmp_lt_u32 s38, s39")
    A("s_cbranch_scc1 L_of3")
    A("s_sub_u32 s38, s38, s39")
    A("s_add_u32 s%d, s%d, 1" % (S_GRP, S_GRP))
    A("s_cmp_lt_u32 s%d, 8" % S_GRP)
    A("s_cbranch_scc1 L_of2")
    A("s_branch L_end")
    A.label("L_of3")
    A("s_add_u32 s%d, s37, s38" % S_HEAD)
    A("s_and_b32 s%d, s%d, 31" % (S_HEAD, S_HEAD))
    A("s_branch L_roles")

def build(opt, roles):
    A = Asm()
    A.raw(HEADER.rstrip())
    A.raw("; @launch grid=(256,1,1) block=(256,1,1) lds=%d" % LDS_BYTES)
    A.raw('.amdgcn_target "amdgcn-amd-amdhsa--gfx950"')
    A.raw(".text\n.globl %s\n.p2align 8\n.type %s,@function" % (KNAME, KNAME))
    A.label(KNAME)
    opt["init_wait"] = init_wait
    opt["arrive"] = arrive
    prologue(A, opt)
    roles(A, opt)
    overflow(A)
    A.label("L_end")
    A("s_endpgm")
    A.raw('''.section .rodata,"a"
.p2align 6
.amdhsa_kernel %s
  .amdhsa_next_free_vgpr 512
  .amdhsa_next_free_sgpr 102
  .amdhsa_accum_offset 256
  .amdhsa_group_segment_fixed_size 0
  .amdhsa_kernarg_size 104
  .amdhsa_user_sgpr_count 2
  .amdhsa_user_sgpr_kernarg_segment_ptr 1
  .amdhsa_system_sgpr_workgroup_id_x 1
.end_amdhsa_kernel''' % KNAME)
    errs = A.check()
    for e in errs: print(e, file=sys.stderr)
    return A.text(), errs

def roles_chain_only(A, opt):
    A("s_cmp_eq_u32 s%d, 0" % S_GRP)
    A("s_cbranch_scc1 L_chain")
    A("s_cmp_gt_u32 s%d, 2" % S_GRP)
    A("s_cbranch_scc1 L_end")
    workers.zero_flags(A, 2)
    opt["arrive"](A, "flags")
    A("s_branch L_end")
    chain.gen_chain(A, opt)

def roles_full(A, opt):
    if opt.get("tlb"):
        l = A.newlabel("Ltlb")
        A("s_cmp_lg_u32 s%d, 3" % S_WAVE)
        A("s_cbranch_scc1 %s" % l)
        A("s_cmp_gt_u32 s%d, 1" % S_HEAD)
        A("s_cbranch_scc1 %s" % l)
        A("v_and_b32 v4, 63, v0")
        A("s_lshl_b32 s37, s%d, 6" % S_HEAD)
        A("v_add_u32 v4, s37, v4")
        A("v_min_u32 v4, 95, v4")
        A("v_lshlrev_b32 v4, 21, v4")
        A("v_add_u32 v4, 0x1ff000, v4")
        A("v_mov_b32 v5, 0")
        A("global_atomic_or v4, v5, s[%d:%d]" % (S_WS, S_WS + 1))
        A.label(l)
    A("s_cmp_gt_u32 s%d, %d" % (S_GRP, opt["NP1"]))
    A("s_cbranch_scc1 L_aworker")
    A("s_cmp_lg_u32 s%d, 0" % S_GRP)
    A("s_cbranch_scc1 L_p1")
    chain.gen_chain(A, opt)
    workers.gen_p1(A, opt)
    workers.gen_p2(A, opt)
    workers.gen_aworker(A, opt)

if __name__ == "__main__":
    mode = sys.argv[1]; out = sys.argv[2]
    opt = {}
    for kv in sys.argv[3:]:
        k, x = kv.split("="); opt[k] = int(x)
    if mode == "chain":
        opt["nokv"] = True
        opt.setdefault("cyc", 1)
        t, errs = build(opt, roles_chain_only)
    if mode == "full":
        opt.setdefault("NP1", 2); opt.setdefault("NP2", 3); opt["NA"] = 7 - opt["NP1"] - opt["NP2"]
        for k, x in (("pa", 2), ("d1", 46), ("d3", 30), ("d5", 20), ("p1z", 0), ("oa", 1), ("ob", 1)): opt.setdefault(k, x)
        NZ[0] = opt["NP1"]
        FORCE[0] = 1 if opt.get("fake") == 1 else 0
        workers.ZZ[0] = opt.get("zz", 1)
        workers._RT0["rt"] = opt.get("rt")
        t, errs = build(opt, roles_full)
    open(out, "w").write(t)
    print("wrote", out, len(t), "bytes;", len(errs), "hazards")
```

```python
from common import *
import math, struct
def f32bits(x): return struct.unpack("<I", struct.pack("<f", x))[0]
LOG2E = math.log2(math.e)
ZZ = [1]
_RT0 = {}

def mfma(A, d, x, y, c, k32=True):
    n = 4 if k32 else 2
    A("v_mfma_f32_16x16x%d_bf16 %s, %s, %s, %s" % (32 if k32 else 16, v(d, 4), R(x, n), R(y, n), c if isinstance(c, str) else v(c, 4)))
def cvt(A, d, x, y): A("v_cvt_pk_bf16_f32 v%d, v%d, v%d" % (d, x, y))
def rd128(A, d, addr, off): A("ds_read_b128 v[%d:%d], v%d offset:%d" % (d, d + 3, addr, off))

def wait_flags(A, vtmp, voff, sbase, sleep=2):
    lp = A.newlabel("Lwf"); ok = A.newlabel("Lwo")
    A.label(lp)
    A("global_load_dword v%d, v%d, s[%d:%d] sc1" % (vtmp, voff, sbase, sbase + 1))
    A("s_waitcnt vmcnt(0)")
    A("v_cmp_eq_u32 vcc, 0, v%d" % vtmp)
    A("s_cbranch_vccz %s" % ok)
    if sleep: A("s_sleep %d" % (sleep * ZZ[0]))
    spin_guard(A)
    A("s_branch %s" % lp)
    A.label(ok)

def row_allsum16(A, regs, tmp):
    src, dst = list(regs), list(tmp)
    for sh in (8, 4, 2, 1):
        if len(regs) < 3: A.nop(3 - len(regs))
        for a_, b_ in zip(src, dst):
            A("v_add_f32_dpp v%d, v%d, v%d row_ror:%d row_mask:0xf bank_mask:0xf" % (b_, a_, a_, sh))
        src, dst = dst, src

def swap_sum(A, r, t, which):
    A("v_mov_b32 v%d, v%d" % (t, r))
    A.nop(2)
    A("v_permlane%d_swap_b32 v%d, v%d" % (which, r, t))
    A("v_add_f32 v%d, v%d, v%d" % (r, r, t))

def sel_const(A, SEL, T):
    A("v_and_b32 v%d, 1, v0" % T)
    A("v_lshlrev_b32 v%d, 4, v%d" % (T, T))
    A("v_mov_b32 v%d, 0x3f80" % (T + 1))
    A("v_lshlrev_b32 v%d, v%d, v%d" % (T + 1, T, T + 1))
    A("v_bfe_u32 v%d, v0, 1, 2" % T)
    for rr in range(4):
        A("v_cmp_eq_u32 vcc, %d, v%d" % (rr, T))
        A.nop(2)
        A("v_cndmask_b32 v%d, 0, v%d, vcc" % (SEL + rr, T + 1))

def reduce_consts(A, VRLD, VROW, VFL, T):
    A("v_and_b32 v%d, 15, v0" % T)
    A("v_bfe_u32 v%d, v0, 4, 2" % (T + 1))
    A("s_lshl_b32 s40, s%d, 8" % S_WAVE)
    A("v_lshlrev_b32 v%d, 10, v%d" % (VRLD, T + 1))
    A("v_lshl_add_u32 v%d, v%d, 4, v%d" % (VRLD, T, VRLD))
    A("v_add_u32 v%d, s40, v%d" % (VRLD, VRLD))
    A("v_and_b32 v%d, 1, v%d" % (T + 1, T + 1))
    A("v_lshlrev_b32 v%d, 3, v%d" % (VROW, T + 1))
    A("v_lshl_add_u32 v%d, v%d, 4, v%d" % (VROW, T, VROW))
    A("v_add_u32 v%d, s40, v%d" % (VROW, VROW))
    A("v_and_b32 v%d, 31, v0" % VFL)
    A("v_lshlrev_b32 v%d, 2, v%d" % (VFL, VFL))

def one_lane(A, text):
    A("s_mov_b64 exec, 1")
    A(text)
    A("s_mov_b64 exec, -1")

def ring_next(A, sRING):
    A("s_add_u32 s%d, s%d, 0x100000" % (sRING, sRING))
    A("s_cmp_eq_u32 s%d, 0x200000" % sRING)
    A("s_cselect_b32 s%d, 0, s%d" % (sRING, sRING))

def arm_partials(A, cold, VRLD, T):
    A("s_lshl_b32 s41, s%d, 22" % S_GRP)
    A("s_lshl_b32 s42, s%d, 15" % S_HEAD)
    A("s_add_u32 s41, s41, s42")
    A("s_add_u32 s41, s41, 0x%x" % OFF_PW)
    A("v_add_u32 v%d, s41, v%d" % (T, VRLD))
    A("v_mov_b32 v%d, -1" % (T + 1))
    st = []
    for k in range(1, 24): A("v_add_u32 v%d, 0x%x, v%d" % (T + 1 + k, (k >> 3) * 0x100000 + (k & 7) * 4096, T))
    store_mixed(A, cold, ["global_store_dword v%d, v%d, s[%d:%d]" % (T + 1 + k if k else T, T + 1, S_WS, S_WS + 1) for k in range(24)])

def reduce_row(A, cold, W, SEL, VRLD, VROW, VFL, VL16, sPART, sPF, sIT, sX, sY, sOF, lds_off, final_cond, defer=None):
    RB, RD, XR, T, AD = W, W + 32, W + 36, W + 40, W + 48
    rtp(A, 10)
    for i in range(1, 8): A("v_add_u32 v%d, %d, v%d" % (AD + i, i * 4096, VRLD))
    A("s_and_b32 s41, s%d, 1" % sIT)
    A("s_lshl_b32 s41, s41, 11")
    A("s_add_u32 s41, s41, %d" % lds_off)
    wait_flags(A, T, VFL, sPF, sleep=0)
    rtp(A, 11)
    for i in range(8):
        A("global_load_dwordx4 v[%d:%d], v%d, s[%d:%d] sc1" % (RB + 4 * i, RB + 4 * i + 3, AD + i if i else VRLD, sPART, sPART + 1))
    A("v_lshlrev_b32 v%d, 16, v%d" % (T, XR))
    A("v_and_b32 v%d, 0xffff0000, v%d" % (T + 1, XR))
    A("v_lshlrev_b32 v%d, 16, v%d" % (T + 2, XR + 1))
    A("v_and_b32 v%d, 0xffff0000, v%d" % (T + 3, XR + 1))
    A("s_add_u32 s42, s41, 32")
    A("v_add_u32 v%d, s42, v%d" % (T + 4, VROW))
    A("v_add_u32 v%d, s42, v%d" % (T + 6, VL16))
    A("s_lshl_b32 s40, s%d, 3" % S_WAVE)
    A("s_add_u32 s40, s40, s41")
    A("v_mov_b32 v%d, s40" % (T + 5))
    A("v_mov_b32 v%d, s41" % (T + 7))
    for i in range(8):
        A("s_waitcnt vmcnt(%d)" % (7 - i))
        mfma(A, RD, SEL, RB + 4 * i, "0" if i == 0 else RD)
    A.nop(8)
    rtp(A, 12)
    cvt(A, XR, RD, RD + 1); cvt(A, XR + 1, RD + 2, RD + 3)
    A("v_lshlrev_b32 v%d, 16, v%d" % (RD, XR))
    A("v_and_b32 v%d, 0xffff0000, v%d" % (RD + 1, XR))
    A("v_lshlrev_b32 v%d, 16, v%d" % (RD + 2, XR + 1))
    A("v_and_b32 v%d, 0xffff0000, v%d" % (RD + 3, XR + 1))
    for r in range(4): A("v_add_f32 v%d, v%d, v%d" % (RD + r, RD + r, T + r))
    cvt(A, XR, RD, RD + 1); cvt(A, XR + 1, RD + 2, RD + 3)
    A("ds_write_b64 v%d, v[%d:%d]" % (T + 4, XR, XR + 1))
    A("v_lshlrev_b32 v%d, 16, v%d" % (RD, XR))
    A("v_and_b32 v%d, 0xffff0000, v%d" % (RD + 1, XR))
    A("v_lshlrev_b32 v%d, 16, v%d" % (RD + 2, XR + 1))
    A("v_and_b32 v%d, 0xffff0000, v%d" % (RD + 3, XR + 1))
    S, Q = T, T + 1
    A("v_add_f32 v%d, v%d, v%d" % (S, RD, RD + 1))
    A("v_mul_f32 v%d, v%d, v%d" % (Q, RD, RD))
    A("v_add_f32 v%d, v%d, v%d" % (S, S, RD + 2))
    A("v_fmac_f32 v%d, v%d, v%d" % (Q, RD + 1, RD + 1))
    A("v_add_f32 v%d, v%d, v%d" % (S, S, RD + 3))
    A("v_fmac_f32 v%d, v%d, v%d" % (Q, RD + 2, RD + 2))
    A("v_fmac_f32 v%d, v%d, v%d" % (Q, RD + 3, RD + 3))
    A.nop(1)
    row_allsum16(A, [S, Q], [T + 2, T + 3])
    A("v_mov_b64 v[%d:%d], v[%d:%d]" % (T + 2, T + 3, S, Q))
    A.nop(2)
    A("v_permlane16_swap_b32 v%d, v%d" % (S, T + 2))
    A("v_permlane16_swap_b32 v%d, v%d" % (Q, T + 3))
    A("v_pk_add_f32 v[%d:%d], v[%d:%d], v[%d:%d]" % (S, Q, S, Q, T + 2, T + 3))
    A("ds_write_b64 v%d, v[%d:%d]" % (T + 5, S, Q))
    A("s_waitcnt lgkmcnt(0)")
    A("s_barrier")
    rtp(A, 13)
    ldone = A.newlabel("Lrdone"); lfin = A.newlabel("Lfin")
    A("s_cmp_lg_u32 s%d, 0" % S_WAVE)
    A("s_cbranch_scc1 %s" % ldone)
    rd128(A, RB + 8, T + 6, 0)
    rd128(A, RB, T + 7, 0); rd128(A, RB + 4, T + 7, 16)
    final_cond(A)
    A("s_waitcnt lgkmcnt(2)")
    A("s_cbranch_scc1 %s" % lfin)
    A("global_store_dwordx4 v%d, v[%d:%d], s[%d:%d] sc1" % (VL16, RB + 8, RB + 11, sX, sX + 1))
    U = RB + 16
    for r in range(4):
        A("v_lshlrev_b32 v%d, 16, v%d" % (U + 2 * r, RB + 8 + r))
        A("v_and_b32 v%d, 0xffff0000, v%d" % (U + 2 * r + 1, RB + 8 + r))
    A("s_waitcnt lgkmcnt(0)")
    A("v_pk_add_f32 v[%d:%d], v[%d:%d], v[%d:%d]" % (RB, RB + 1, RB, RB + 1, RB + 2, RB + 3))
    A("v_pk_add_f32 v[%d:%d], v[%d:%d], v[%d:%d]" % (RB + 4, RB + 5, RB + 4, RB + 5, RB + 6, RB + 7))
    A("v_pk_add_f32 v[%d:%d], v[%d:%d], v[%d:%d]" % (RB, RB + 1, RB, RB + 1, RB + 4, RB + 5))
    ln_finish(A, RB, RB + 1, T)
    ln_apply(A, U, RB + 12, T)
    A("v_min_u32 v%d, -2, v%d" % (RB + 12, RB + 12))
    A("s_and_b32 s40, s%d, 15" % S_HEAD)
    A("s_lshl_b32 s40, s40, 4")
    A("v_xor_b32 v%d, s40, v%d" % (T + 2, VL16))
    A("global_store_dwordx4 v%d, v[%d:%d], s[%d:%d] sc1" % (T + 2, RB + 12, RB + 15, sY, sY + 1))
    if defer is None:
        A("v_mov_b32 v%d, 1" % (T + 1))
        A("s_waitcnt vmcnt(0)")
        one_lane(A, "global_store_dword v%d, v%d, s[%d:%d] sc1" % (VL16, T + 1, sOF, sOF + 1))
    else:
        A("s_mov_b64 s[%d:%d], s[%d:%d]" % (defer + 1, defer + 2, sOF, sOF + 1))
        A("s_mov_b32 s%d, 1" % defer)
    A.label(ldone)
    def blk(A):
        A.label(lfin)
        A("global_store_dwordx4 v%d, v[%d:%d], s[%d:%d]" % (VL16, RB + 8, RB + 11, sX, sX + 1))
        A("s_waitcnt lgkmcnt(0)")
        A("s_branch %s" % ldone)
    cold.add(blk)

def flush_deferred(A, defer, VL16, ONE):
    l = A.newlabel("Lfd")
    A("s_cmp_eq_u32 s%d, 0" % defer)
    A("s_cbranch_scc1 %s" % l)
    one_lane(A, "global_store_dword v%d, v%d, s[%d:%d] sc1" % (VL16, ONE, defer + 1, defer + 2))
    A("s_mov_b32 s%d, 0" % defer)
    A.label(l)

def rbf(A, r):
    cvt(A, r, r, r)
    A("v_and_b32 v%d, 0xffff0000, v%d" % (r, r))

def ln_finish(A, S, Q, T):
    A("v_mul_f32 v%d, 0x%x, v%d" % (T, f32bits(1 / 512), S))
    A("v_mul_f32 v%d, 0x%x, v%d" % (T + 1, f32bits(1 / 512), Q))
    A("v_fma_f32 v%d, -v%d, v%d, v%d" % (T + 1, T, T, T + 1))
    A("v_max_f32 v%d, 0, v%d" % (T + 1, T + 1))
    rbf(A, T + 1)
    A("v_add_f32 v%d, 0x%x, v%d" % (T + 1, f32bits(1e-5), T + 1))
    rbf(A, T + 1)
    A("v_sqrt_f32 v%d, v%d" % (T + 1, T + 1))
    rbf(A, T)
    rbf(A, T + 1)
    A("v_rcp_f32 v%d, v%d" % (T + 1, T + 1))

def ln_apply(A, U, X, T):
    for r in range(8): A("v_sub_f32 v%d, v%d, v%d" % (U + r, U + r, T))
    for r in range(4): cvt(A, X + r, U + 2 * r, U + 2 * r + 1)
    for r in range(4):
        A("v_lshlrev_b32 v%d, 16, v%d" % (U + 2 * r, X + r))
        A("v_and_b32 v%d, 0xffff0000, v%d" % (U + 2 * r + 1, X + r))
    for r in range(0, 8, 2):
        A("v_pk_mul_f32 v[%d:%d], v[%d:%d], v[%d:%d] op_sel:[0,1] op_sel_hi:[1,1]" % (U + r, U + r + 1, U + r, U + r + 1, T, T + 1))
    for r in range(4): cvt(A, X + r, U + 2 * r, U + 2 * r + 1)

def zero_flags(A, NP1):
    A("s_lshl_b32 s37, s%d, 5" % S_GRP)
    A("s_add_u32 s37, s37, s%d" % S_HEAD)
    A("s_sub_u32 s37, s37, 32")
    A("s_mul_i32 s37, s37, %d" % (0x20000 // (32 * NP1)))
    A("v_lshl_add_u32 v52, v0, 4, s37")
    A("v_mov_b64 v[68:69], 0"); A("v_mov_b64 v[70:71], 0")
    per = 0x20000 // (32 * NP1)
    assert per in (2048, 4096)
    if per == 2048:
        l = A.newlabel("Lz")
        A("s_cmp_ge_u32 s%d, 2" % S_WAVE)
        A("s_cbranch_scc1 %s" % l)
    A("global_store_dwordx4 v52, v[68:71], s[%d:%d] sc1" % (S_WS, S_WS + 1))
    if per == 2048: A.label(l)

def pack_wqkv(A):
    A("s_lshl_b32 s37, s%d, 5" % S_GRP)
    A("s_add_u32 s37, s37, s%d" % S_HEAD)
    A("s_sub_u32 s37, s37, 32")
    A("s_mul_i32 s38, s37, %d" % (8 * 3072))
    A("s_mul_i32 s39, s%d, 6144" % S_WAVE)
    A("s_add_u32 s38, s38, s39")
    sadd64(A, 42, S_WQKV, "s38")
    sadd64(A, 44, 42, 3072)
    A("v_and_b32 v53, 63, v0")
    A("v_lshlrev_b32 v54, 4, v53")
    A("s_mov_b32 m0, s39")
    A("s_add_u32 s39, s39, 3072")
    for i in range(3): A("global_load_lds_dwordx4 v54, s[42:43] offset:%d" % (i * 1024))
    A("s_mov_b32 m0, s39")
    A("s_nop 0")
    for i in range(3): A("global_load_lds_dwordx4 v54, s[44:45] offset:%d" % (i * 1024))
    A("v_bfe_u32 v55, v53, 1, 3")
    A("v_lshrrev_b32 v56, 4, v53")
    A("v_and_b32 v57, 1, v53")
    A("v_lshlrev_b32 v57, 4, v57")
    A("v_mul_u32_u24 v58, 3072, v55")
    A("v_lshl_add_u32 v58, v56, 5, v58")
    A("v_add_u32 v58, v58, v57")
    A("s_lshl_b32 s39, s%d, 8" % S_WAVE)
    A("v_add_u32 v58, s39, v58")
    A("v_mul_u32_u24 v59, 49152, v56")
    A("v_lshl_add_u32 v59, v55, 5, v59")
    A("v_add_u32 v59, v59, v57")
    A("s_mul_i32 s38, s37, 768")
    A("s_mul_i32 s39, s%d, %d" % (S_WAVE, 8 * 49152))
    A("s_add_u32 s38, s38, s39")
    A("s_add_u32 s38, s38, 0x%x" % OFF_WP)
    sadd64(A, 42, S_WS, "s38")
    sadd64(A, 44, 42, 4 * 49152)
    A("s_waitcnt vmcnt(0)")
    A("s_barrier")
    for k in range(2):
        for t in range(3): rd128(A, 72 + 4 * (3 * k + t), 58, t * 1024 + k * 128)
    for k in range(2):
        for t in range(3):
            A("s_waitcnt lgkmcnt(%d)" % (5 - 3 * k - t))
            A("global_store_dwordx4 v59, v[%d:%d], s[%d:%d] offset:%d sc1" % (72 + 4 * (3 * k + t), 75 + 4 * (3 * k + t), 42 + 2 * k, 43 + 2 * k, t * 256))

def arm_akv(A, NA0, NA):
    A("s_lshl_b32 s37, s%d, 5" % S_GRP)
    A("s_add_u32 s37, s37, s%d" % S_HEAD)
    A("s_sub_u32 s37, s37, 32")
    A("s_and_b32 s38, s37, 1")
    A("s_lshl_b32 s38, s38, 2")
    A("s_add_u32 s38, s38, s%d" % S_WAVE)
    A("s_min_u32 s38, s38, %d" % (NA0 + NA - 1))
    A("s_lshr_b32 s37, s37, 1")
    A("s_lshl_b32 s37, s37, 14")
    A("s_cmp_ge_u32 s38, %d" % NA0)
    A("s_cselect_b32 s39, %d, 0" % (32 * 16384 - NA0 * 2048))
    A("s_lshl_b32 s38, s38, 11")
    A("s_add_u32 s37, s37, s38")
    A("s_add_u32 s37, s37, s39")
    A("s_add_u32 s37, s37, 0x%x" % OFF_AKV)
    A("v_and_b32 v60, 63, v0")
    A("v_lshl_add_u32 v60, v60, 4, s37")
    A("v_mov_b64 v[64:65], -1"); A("v_mov_b64 v[66:67], -1")
    for k in range(2): A("global_store_dwordx4 v60, v[64:67], s[%d:%d] offset:%d sc1" % (S_WS, S_WS + 1, 1024 * k))

def arm_rows(A):
    l = A.newlabel("Lar")
    A("s_cmp_eq_u32 s%d, 3" % S_WAVE)
    A("s_cbranch_scc1 %s" % l)
    A("s_lshl_b32 s37, s%d, 5" % S_GRP)
    A("s_add_u32 s37, s37, s%d" % S_HEAD)
    A("s_sub_u32 s37, s37, 32")
    A("s_mul_i32 s37, s37, 3")
    A("s_add_u32 s37, s37, s%d" % S_WAVE)
    A("s_lshr_b32 s38, s37, 6")
    A("s_and_b32 s37, s37, 63")
    A("s_lshl_b32 s37, s37, 10")
    A("s_lshl_b32 s39, s38, 21")
    A("s_add_u32 s39, s39, 0x%x" % OFF_Y1)
    A("s_cmp_eq_u32 s38, 2")
    A("s_cselect_b32 s39, 0x%x, s39" % (OFF_Y2 + Y2_POLL * 32768))
    A("s_add_u32 s37, s37, s39")
    A("v_and_b32 v61, 63, v0")
    A("v_lshl_add_u32 v61, v61, 4, s37")
    A("global_store_dwordx4 v61, v[64:67], s[%d:%d] sc1" % (S_WS, S_WS + 1))
    A.label(l)

NROW = 4
def prepass0(A, sAG, NA0):
    A("s_lshl_b32 s38, s%d, 2" % S_HEAD)
    A("s_add_u32 s38, s38, s%d" % S_WAVE)
    A("v_and_b32 v52, 63, v0")
    A("v_lshlrev_b32 v52, 4, v52")
    A("s_lshr_b32 s39, s38, 5")
    A("s_and_b32 s38, s38, 31")
    assert 4 * NROW * NA0 >= 64
    for k in range(NROW):
        A("s_add_u32 s40, s39, %d" % (4 * k))
        A("s_mul_i32 s40, s40, %d" % NA0)
        A("s_add_u32 s40, s40, s%d" % sAG)
        if k == 0: A("s_mov_b32 s41, s40")
        A("s_cmp_lt_u32 s40, 64")
        A("s_cselect_b32 s40, s40, s41")
        A("s_lshl_b32 s40, s40, 5")
        A("s_add_u32 s40, s40, s38")
        A("s_lshl_b32 s40, s40, 10")
        A("v_add_u32 v%d, s40, v52" % (112 + k))
        A("global_load_dwordx4 v[%d:%d], v%d, s[%d:%d]" % (56 + 4 * k, 59 + 4 * k, 112 + k, S_AX, S_AX + 1))
    A("s_and_b32 s38, s38, 15")
    A("s_lshl_b32 s38, s38, 4")

def prepass1(A, behind_dma):
    sadd64(A, 42, S_WS, OFF_Y0)
    A("s_waitcnt vmcnt(%d)" % (4 if behind_dma else 0))
    rt_stamp(A, _RT0, 490, 118, 119)
    ST = 160
    for k in range(NROW):
        X = 56 + 4 * k; U = 72 + 8 * k; S, Q = ST + 2 * k, ST + 1 + 2 * k
        for r in range(4):
            A("v_lshlrev_b32 v%d, 16, v%d" % (U + 2 * r, X + r))
            A("v_and_b32 v%d, 0xffff0000, v%d" % (U + 2 * r + 1, X + r))
        A("v_add_f32 v%d, v%d, v%d" % (S, U, U + 1))
        A("v_mul_f32 v%d, v%d, v%d" % (Q, U, U))
        A("v_fmac_f32 v%d, v%d, v%d" % (Q, U + 1, U + 1))
        for r in range(2, 8):
            A("v_add_f32 v%d, v%d, v%d" % (S, S, U + r))
            A("v_fmac_f32 v%d, v%d, v%d" % (Q, U + r, U + r))
    A.nop(1)
    rg = [ST + r for r in range(2 * NROW)]; tm = [ST + 2 * NROW + r for r in range(2 * NROW)]
    row_allsum16(A, rg, tm)
    for which in (16, 32):
        for r in range(2 * NROW): A("v_mov_b32 v%d, v%d" % (tm[r], rg[r]))
        for r in range(2 * NROW): A("v_permlane%d_swap_b32 v%d, v%d" % (which, rg[r], tm[r]))
        for r in range(2 * NROW): A("v_add_f32 v%d, v%d, v%d" % (rg[r], rg[r], tm[r]))
    for k in range(NROW):
        X = 56 + 4 * k; U = 72 + 8 * k
        ln_finish(A, ST + 2 * k, ST + 1 + 2 * k, 116)
        ln_apply(A, U, X, 116)
        A("v_xor_b32 v%d, s38, v%d" % (112 + k, 112 + k))
        A("global_store_dwordx4 v%d, v[%d:%d], s[42:43] sc1" % (112 + k, X, X + 3))

def publish_partials(A, cold, T, sPF):
    A("s_lshl_b32 s40, s%d, 2" % S_HEAD)
    A("v_mov_b32 v%d, s40" % T)
    A("v_mov_b32 v%d, 1" % (T + 1))
    rtp(A, 8)
    A("s_waitcnt vmcnt(0)")
    rtp(A, 9)
    A("s_barrier")
    l = A.newlabel("Lpp")
    A("s_cmp_lg_u32 s%d, 1" % S_WAVE)
    A("s_cbranch_scc1 %s" % l)
    A("s_mov_b64 exec, 1")
    store_mixed(A, cold, ["global_store_dword v%d, v%d, s[%d:%d]" % (T, T + 1, sPF, sPF + 1)])
    A("s_mov_b64 exec, -1")
    A.label(l)

def wqw(t, c):
    return 256 + 64 * t + 8 * c if t < 4 else 128 + 64 * (t - 4) + 8 * c

def frag_addrs(A, VA4, T):
    A("v_and_b32 v%d, 15, v0" % T)
    A("v_bfe_u32 v%d, v0, 4, 2" % (T + 1))
    for q in range(4):
        A("v_add_u32 v%d, %d, v%d" % (T + 2, 4 * q, T + 1))
        A("v_xor_b32 v%d, v%d, v%d" % (T + 2, T + 2, T))
        A("v_lshlrev_b32 v%d, 4, v%d" % (T + 2, T + 2))
        A("v_lshl_add_u32 v%d, v%d, 10, v%d" % (VA4 + q, T, T + 2))

def signal_last(A, T, lds_off, text):
    l = A.newlabel("Lsg")
    A("v_mov_b32 v%d, %d" % (T, lds_off))
    A("v_mov_b32 v%d, 1" % (T + 1))
    A("s_mov_b64 exec, 1")
    A("ds_add_rtn_u32 v%d, v%d, v%d" % (T, T, T + 1))
    A("s_waitcnt lgkmcnt(0)")
    A("v_readfirstlane_b32 s40, v%d" % T)
    A("s_and_b32 s40, s40, 3")
    A("s_cmp_lg_u32 s40, 3")
    A("s_cbranch_scc1 %s" % l)
    for t in text: A(t)
    A.label(l)
    A("s_mov_b64 exec, -1")

def rts(A, opt, sL, sSEG, base, W):
    if opt.get("rt"):
        A("s_lshl_b32 s97, s%d, 6" % sL)
        A("s_add_u32 s97, s97, s%d" % sSEG)
        A("s_add_u32 s97, s97, %d" % base)
        rt_stamp(A, opt, "s97", W, W + 1)

_RTP = {"opt": None, "it": 50}
def rtp(A, k, va=240):
    opt = _RTP["opt"]
    if not opt or not opt.get("rt2"): return
    l = A.newlabel("Lrtp")
    A("s_cmp_lg_u32 s%d, %d" % (_RTP["it"], opt.get("rtp1" if _RTP["it"] != 50 else "rtit", 20)))
    A("s_cbranch_scc1 %s" % l)
    rt_stamp(A, dict(rt=1), 460 + k, va, va + 1)
    A.label(l)

def pack(A, dst, a0, a1):
    cvt(A, dst, a0, a0 + 1); cvt(A, dst + 1, a0 + 2, a0 + 3); cvt(A, dst + 2, a1, a1 + 1); cvt(A, dst + 3, a1 + 2, a1 + 3)

def tile_off(A, dst, sL, sSEG):
    A("s_lshl_b32 s40, s%d, 6" % sL)
    A("s_add_u32 s40, s40, s%d" % sSEG)
    A("s_lshl_b32 s%d, s40, 5" % dst)
    A("s_add_u32 s%d, s%d, s%d" % (dst, dst, S_HEAD))
    A("s_lshl_b32 s%d, s%d, 13" % (dst, dst))
def head_flag(A, dst, base, sL, sSEG, shift):
    A("s_lshl_b32 s41, s%d, 5" % sL)
    A("s_add_u32 s41, s41, s%d" % S_HEAD)
    A("s_lshl_b32 s41, s41, 6")
    A("s_add_u32 s41, s41, s%d" % sSEG)
    A("s_lshl_b32 s41, s41, %d" % shift)
    A("s_add_u32 s41, s41, 0x%x" % base)
    sadd64(A, dst, S_WS, "s41")

def gen_p1(A, opt):
    cold = Cold()
    NP1 = opt["NP1"]
    VY, VW2K, VL16, VKST, VFL, ZERO, ONE, VF = range(1, 9)
    VA4 = 10
    L_CNT = 65536
    W = 16
    sL, sSEG, sNX, sPF, sSLOT, sT = 48, 49, 50, 51, 66, 67
    sA, sB, sCc, sD, sE, sF, sG, sGP = 52, 54, 56, 58, 60, 62, 64, 68
    A.label("L_p1")
    T = 40
    A("v_and_b32 v%d, 63, v0" % T)
    A("v_and_b32 v%d, 15, v0" % (T + 1))
    A("v_bfe_u32 v%d, v0, 4, 2" % (T + 2))
    A("v_lshlrev_b32 v%d, 4, v%d" % (VY, T))
    A("s_lshl_b32 s40, s%d, 11" % S_WAVE)
    A("v_add_u32 v%d, s40, v%d" % (VW2K, VY))
    A("v_mov_b32 v%d, v%d" % (VL16, VY))
    frag_addrs(A, VA4, T + 3)
    A("s_lshl_b32 s40, s%d, 10" % S_WAVE)
    A("v_add_u32 v%d, s40, v%d" % (VKST, VY))
    A("v_and_b32 v%d, 31, v0" % VFL)
    A("v_lshlrev_b32 v%d, 2, v%d" % (VFL, VFL))
    A("v_mov_b32 v%d, 0" % ZERO)
    A("v_mov_b32 v%d, 1" % ONE)
    assert NP1 == 2
    zero_flags(A, NP1)
    arm_akv(A, opt["NA"] + opt["NP2"], opt["NA"])
    arm_rows(A)
    pack_wqkv(A)
    opt["arrive"](A, "flags")
    rt_stamp(A, opt, 492, 110, 111)
    if opt.get("p1w", 1):
        for g_ in (7, 5, 3)[:opt.get("p1w", 1)]: opt["init_wait"](A, kind="go%d" % g_)
    load_head_weights(A, 40, wqw, False)
    rt_stamp(A, opt, 501, 40, 41)
    opt["init_wait"](A)
    opt["init_wait"](A, kind="chain")
    A("v_mov_b32 v%d, %d" % (W, L_CNT))
    A("v_mov_b64 v[%d:%d], 0" % (W + 2, W + 3))
    A("ds_write_b64 v%d, v[%d:%d]" % (W, W + 2, W + 3))
    A("s_waitcnt lgkmcnt(0)")
    A("s_barrier")
    A("s_mov_b32 s%d, 0" % sL)
    A("s_lshl_b32 s%d, s%d, 13" % (sSLOT, S_WAVE))

    def xflag(dst, sseg):
        A("s_lshl_b32 s40, s%d, 6" % sL)
        A("s_add_u32 s40, s40, s%d" % sseg)
        A("s_lshl_b32 s41, s40, 7")
        A("s_add_u32 s41, s41, 0x%x" % F_X1); sadd64(A, dst, S_WS, "s41")
    def dma(sseg):
        A("s_lshl_b32 s40, s%d, 6" % sL)
        A("s_add_u32 s40, s40, s%d" % sseg)
        A("s_lshl_b32 s41, s40, 15")
        A("s_lshl_b32 s42, s%d, 13" % S_WAVE)
        A("s_add_u32 s41, s41, s42")
        A("s_add_u32 s41, s41, 0x%x" % OFF_Y1); sadd64(A, sB, S_WS, "s41")
        sadd64(A, sCc, sB, 4096)
        for hf in range(2):
            A("s_add_u32 s43, s%d, %d" % (sSLOT, hf * 4096))
            A("s_mov_b32 m0, s43")
            A("s_nop 0")
            b = sB if hf == 0 else sCc
            for i in range(4): A("global_load_lds_dwordx4 v%d, s[%d:%d] offset:%d sc1" % (VL16, b, b + 1, i * 1024))
        A("s_xor_b32 s%d, s%d, 32768" % (sSLOT, sSLOT))

    def yrd(dst, ks):
        rd128(A, dst, VA4 + (ks & 3), (ks >> 2) * 256); rd128(A, dst + 4, VA4 + (ks & 3), (ks >> 2) * 256 + 16384)
    A.label("L_p1_layer")
    A("s_sub_u32 s%d, s%d, 1" % (sSEG, S_GRP))
    if opt.get("p1c", 1):
        A("s_cmp_eq_u32 s%d, 0" % sL)
        A("s_cbranch_scc1 L_p1_near")
        sadd64(A, sA, S_WS, F_Y2 + (Y2_POLL - 1) * 128)
        wait_flags(A, W, VFL, sA, sleep=4)
        A.label("L_p1_near")
    A("s_lshl_b32 s40, s%d, 6" % sL)
    A("s_add_u32 s40, s40, s%d" % sSEG)
    A("s_lshl_b32 s41, s40, 15")
    A("s_lshl_b32 s42, s%d, 13" % S_WAVE)
    A("s_add_u32 s41, s41, s42")
    A("s_add_u32 s41, s41, 0x%x" % OFF_Y1); sadd64(A, sB, S_WS, "s41")
    sadd64(A, sCc, sB, 4096)
    A("v_add_u32 v%d, s%d, v%d" % (W + 1, sSLOT, VL16))
    poll_tile(A, [(VL16, sB if i < 4 else sCc, (i & 3) * 1024) for i in range(8)], 96, W, [(W + 1, i * 1024) for i in range(8)])
    A("s_xor_b32 s%d, s%d, 32768" % (sSLOT, sSLOT))
    _RTP["opt"] = opt; _RTP["it"] = sSEG
    rtp(A, 15, 20)
    head_flag(A, sGP, F_KV, sL, sSEG, 2)
    A.label("L_p1_loop")
    _RTP["opt"] = opt; _RTP["it"] = sSEG
    rtp(A, 0, 20)
    A("s_barrier")
    ACC, YF = 32, 80
    yrd(YF, 0)
    A("s_add_u32 s%d, s%d, %d" % (sNX, sSEG, NP1))
    A("s_min_u32 s44, s%d, 63" % sNX)
    xflag(sA, 44)
    tile_off(A, sT, sL, sSEG)
    A("s_add_u32 s41, s%d, 0x%x" % (sT, OFF_KX)); sadd64(A, sD, S_WS, "s41")
    A("s_add_u32 s41, s%d, 0x%x" % (sT, OFF_VX)); sadd64(A, sE, S_WS, "s41")
    A("s_add_u32 s41, s%d, 0x%x" % (sT, OFF_QX)); sadd64(A, sF, S_WS, "s41")
    head_flag(A, sG, F_KV, sL, sSEG, 2)
    acc = lambda t, mt: ACC + (t * 2 + mt) * 4
    rtp(A, 3, 20)
    O = 96
    for tiles in ((2, 3, 4, 5), (0, 1)):
        for ks in range(16):
            y = YF + 8 * (ks & 1)
            last = ks == 15 and tiles == (0, 1)
            if not last:
                kn = (ks + 1) & 15
                yrd(YF + 8 * (kn & 1), kn)
            A("s_waitcnt lgkmcnt(%d)" % (0 if last else 2))
            for t in tiles:
                wf = wqw(t, 0) + 4 * ks
                for mt in range(2):
                    c = "0" if ks == 0 else acc(t, mt)
                    if t < 4: mfma(A, acc(t, mt), wf, y + 4 * mt, c)
                    else: mfma(A, acc(t, mt), y + 4 * mt, wf, c)
                    if opt.get("dil"): A.nop(opt["dil"])
            if ks == 15: rtp(A, 4 if tiles != (0, 1) else 5, 20)
            if tiles != (0, 1) and ks == 12:
                A("global_load_dword v%d, v%d, s[%d:%d] sc1" % (VF, VFL, sA, sA + 1))
            if tiles == (0, 1):
                if ks in (1, 2):
                    mt = ks - 1
                    pack(A, O + 4 * mt, acc(2, mt), acc(3, mt))
                    A("v_min_u32 v%d, -2, v%d" % (O + 4 * mt, O + 4 * mt))
                    if mt == 1: sadd64(A, sD, sD, 4096)
                    A("global_store_dwordx4 v%d, v[%d:%d], s[%d:%d] sc1" % (VKST, O + 4 * mt, O + 4 * mt + 3, sD, sD + 1))
                if ks in (3, 4):
                    Tt = ks - 3
                    pack(A, O + 8 + 4 * Tt, acc(4 + Tt, 0), acc(4 + Tt, 1))
                    A("v_min_u32 v%d, -2, v%d" % (O + 8 + 4 * Tt, O + 8 + 4 * Tt))
                    A("global_store_dwordx4 v%d, v[%d:%d], s[%d:%d] offset:%d sc1" % (VW2K, O + 8 + 4 * Tt, O + 11 + 4 * Tt, sE, sE + 1, 1024 * Tt))
                if ks == 5:
                    A("s_waitcnt vmcnt(4)")
                    A("v_cmp_eq_u32 vcc, 0, v%d" % VF)
                    A("s_mov_b32 s%d, 0" % sPF)
                    A("s_cmp_ge_u32 s%d, 64" % sNX)
                    A("s_cbranch_scc1 L_p1_nopre")
                    A("s_cbranch_vccnz L_p1_nopre")
                    dma(sNX)
                    A("s_mov_b32 s%d, 1" % sPF)
                    A.label("L_p1_nopre")
    for q in range(4): A("v_xor_b32 v%d, 32768, v%d" % (VA4 + q, VA4 + q))
    A.nop(4)
    for mt in range(2): pack(A, O + 16 + 4 * mt, acc(0, mt), acc(1, mt))
    A("s_waitcnt vmcnt(0)")
    rtp(A, 6, 20)
    signal_last(A, W, L_CNT, ["global_store_dword v%d, v%d, s[%d:%d] sc1" % (ZERO, ONE, sG, sG + 1),
                              "global_store_dword v%d, v%d, s[%d:%d] sc1" % (ZERO, ONE, sGP, sGP + 1)])
    for mt in range(2):
        if mt == 1: sadd64(A, sF, sF, 4096)
        A("global_store_dwordx4 v%d, v[%d:%d], s[%d:%d] sc1" % (VKST, O + 16 + 4 * mt, O + 19 + 4 * mt, sF, sF + 1))
    rtp(A, 8, 20)
    rts(A, opt, sL, sSEG, 0, W)
    sadd64(A, sGP, sG, F_Q - F_KV)
    A("s_mov_b32 s%d, s%d" % (sSEG, sNX))
    A("s_cmp_eq_u32 s%d, 1" % sPF)
    A("s_cbranch_scc1 L_p1_loop")
    A("s_cmp_ge_u32 s%d, 64" % sSEG)
    A("s_cbranch_scc1 L_p1_flush")
    wait_flags(A, W, VFL, sA, sleep=1)
    dma(sSEG)
    A("s_waitcnt vmcnt(0)")
    A("s_branch L_p1_loop")
    A.label("L_p1_flush")
    A("s_waitcnt vmcnt(0)")
    signal_last(A, W, L_CNT + 4, ["global_store_dword v%d, v%d, s[%d:%d] sc1" % (ZERO, ONE, sGP, sGP + 1)])
    A.label("L_p1_next")
    A("s_add_u32 s%d, s%d, 1" % (sL, sL))
    A("s_cmp_lt_u32 s%d, %d" % (sL, opt.get("layers", 2)))
    A("s_cbranch_scc1 L_p1_layer")
    A("s_branch L_end")
    cold.emit(A)

def gen_p2(A, opt):
    cold = Cold()
    NP1, NP2 = opt["NP1"], opt["NP2"]
    VL16, VW2K, VS, VF8, VZR, VZW, VF, VPST, VRLD, VROW, VFL = range(1, 12)
    SEL, BIAS = 12, 16
    VQF, VVF, VOW, VKM, ZERO, PMA, PMB = 24, 25, 26, 27, 29, 28, 30
    W = 32
    RW = 144
    VTW, VTR = 208, 212
    sRING = 84
    L_TP = 65536
    WO = 256
    SLOT = 24576
    L_Q, L_K, L_V, L_Z, L_O, L_ST = 0, 8192, 16384, 49152, 53248, 61440
    sL, sSEG, sIT, sC = 48, 49, 50, 51
    sA, sB, sCc, sD, sE, sF, sG, sH, sX, sY = 52, 54, 56, 58, 60, 62, 64, 68, 70, 72
    sT, sNX, sPRE, sSLOT = 66, 67, 74, 75
    sDEF, sMM, sKP, sKN = 77, 80, 76, 82
    VFM, VL4, ONE, KE2 = 216, 217, 218, 220
    A.label("L_p2")
    A("s_barrier")
    T = 40
    A("v_and_b32 v%d, 63, v0" % T)
    A("v_and_b32 v%d, 15, v0" % (T + 1))
    A("v_bfe_u32 v%d, v0, 4, 2" % (T + 2))
    A("v_lshlrev_b32 v%d, 4, v%d" % (VL16, T))
    A("v_mov_b32 v%d, v%d" % (VS, VL16))
    A("s_lshl_b32 s40, s%d, 11" % S_WAVE)
    A("v_add_u32 v%d, s40, v%d" % (VW2K, VL16))
    A("s_mov_b32 s%d, s40" % sSLOT)
    A("s_lshl_b32 s41, s%d, 8" % S_WAVE)
    A("v_lshlrev_b32 v%d, 15, v%d" % (VPST, T + 2))
    A("v_lshl_add_u32 v%d, v%d, 4, v%d" % (VPST, T + 1, VPST))
    A("v_add_u32 v%d, s41, v%d" % (VPST, VPST))
    A("s_lshl_b32 s41, s%d, 13" % S_WAVE)
    A("s_add_u32 s41, s41, %d" % L_TP)
    for b in range(4):
        A("v_add_u32 v%d, %d, v%d" % (T + 3, 4 * b, T + 2))
        A("v_xor_b32 v%d, v%d, v%d" % (T + 3, T + 3, T + 1))
        A("v_lshlrev_b32 v%d, 4, v%d" % (T + 3, T + 3))
        A("v_lshl_add_u32 v%d, v%d, 8, v%d" % (T + 3, T + 1, T + 3))
        A("v_add_u32 v%d, s41, v%d" % (VTW + b, T + 3))
        A("v_lshlrev_b32 v%d, 8, v%d" % (T + 4, T + 2))
        A("v_lshl_add_u32 v%d, v%d, 0, v%d" % (T + 3, T + 3, T + 4))
        A("v_lshlrev_b32 v%d, 8, v%d" % (T + 4, T + 1))
        A("v_sub_u32 v%d, v%d, v%d" % (T + 3, T + 3, T + 4))
        A("v_add_u32 v%d, s41, v%d" % (VTR + b, T + 3))
    A("s_lshl_b32 s40, s%d, 10" % S_WAVE)
    A("v_lshlrev_b32 v%d, 3, v%d" % (VZR, T))
    A("v_lshlrev_b32 v%d, 5, v%d" % (VZW, T + 1))
    A("v_lshl_add_u32 v%d, v%d, 3, v%d" % (VZW, T + 2, VZW))
    A("v_add_u32 v%d, s40, v%d" % (VZW, VZW))
    A("v_and_b32 v%d, 1, v0" % VF8)
    A("v_mul_u32_u24 v%d, 0x%x, v%d" % (VF8, F_Q - F_KV, VF8))
    A("s_and_b32 s42, s%d, 1" % S_WAVE)
    A("s_lshr_b32 s43, s%d, 1" % S_WAVE)
    A("s_lshl_b32 s40, s42, 12")
    A("v_add_u32 v%d, s40, v%d" % (VQF, VL16))
    A("s_lshl_b32 s41, s43, 11")
    A("v_add_u32 v%d, s41, v%d" % (VOW, VQF))
    A("s_lshl_b32 s41, s43, 12")
    A("v_add_u32 v%d, s41, v%d" % (VVF, VL16))
    A("v_add_u32 v%d, 8, v%d" % (VKM, VVF))
    A("s_lshl_b32 s40, s42, 4")
    A("v_add_u32 v%d, s40, v%d" % (T + 3, T + 1))
    A("v_lshlrev_b32 v%d, 2, v%d" % (T + 4, T + 2))
    A("v_mov_b32 v%d, 0x%x" % (T + 6, f32bits(-1e30)))
    for kt in range(2):
        for r in range(4):
            A("v_add_u32 v%d, %d, v%d" % (T + 5, 16 * kt + r, T + 4))
            A("v_cmp_gt_u32 vcc, v%d, v%d" % (T + 5, T + 3))
            A.nop(2)
            A("v_cndmask_b32 v%d, 0, v%d, vcc" % (BIAS + 4 * kt + r, T + 6))
    A("v_mov_b64 v[28:29], 0"); A("v_mov_b64 v[30:31], 0")
    sel_const(A, SEL, T + 5)
    reduce_consts(A, VRLD, VROW, VFL, T + 5)
    A("s_mov_b32 s%d, 0x%x" % (sC, f32bits(128 ** -0.5 * LOG2E)))
    A("v_lshrrev_b32 v%d, 2, v%d" % (T + 5, T))
    A("v_lshlrev_b32 v%d, 10, v%d" % (T + 5, T + 5))
    A("v_and_b32 v%d, 3, v%d" % (T + 6, T))
    A("v_lshl_add_u32 v%d, v%d, 4, v%d" % (T + 5, T + 6, T + 5))
    A("s_lshl_b32 s40, s%d, 17" % S_HEAD)
    A("s_lshl_b32 s41, s%d, 8" % S_WAVE)
    A("s_add_u32 s40, s40, s41")
    A("v_add_u32 v%d, s40, v%d" % (T + 5, T + 5))
    A("s_lshl_b32 s46, s%d, 15" % S_WAVE)
    for b in range(4):
        for i in range(8):
            sadd64(A, sA, S_WO, b * 64 + i * 16384)
            A("s_add_u32 s44, s46, %d" % (b * 8192 + i * 1024))
            A("s_mov_b32 m0, s44")
            A("s_nop 0")
            A("global_load_lds_dwordx4 v%d, s[%d:%d]" % (T + 5, sA, sA + 1))
    A("v_bfe_u32 v%d, v0, 2, 2" % (T + 7))
    A("v_add_u32 v%d, v%d, v%d" % (T + 7, T + 7, T + 4))
    A("v_lshlrev_b32 v%d, 6, v%d" % (T + 7, T + 7))
    A("v_lshl_add_u32 v%d, v%d, 4, v%d" % (T + 7, T + 6, T + 7))
    A("v_add_u32 v%d, s46, v%d" % (T + 7, T + 7))
    for b in range(4):
        A("s_waitcnt vmcnt(%d)" % (8 * (3 - b)))
        for P in range(2):
            for f in range(4):
                for hh in range(2):
                    A("ds_read_b64_tr_b16 %s, v%d offset:%d" % (R(WO + ((b * 2 + P) * 4 + f) * 4 + 2 * hh, 2), T + 7, b * 8192 + (32 * f + 16 * hh) * 64 + P * 8))
        A("s_waitcnt lgkmcnt(0)")
    rt_stamp(A, opt, 501, 40, 41)
    A("s_barrier")
    A("s_mov_b32 s%d, 0" % sL)
    A("s_mov_b32 s%d, 0" % sDEF)
    A("s_mov_b64 s[%d:%d], s[%d:%d]" % (sDEF + 1, sDEF + 2, S_WS, S_WS + 1))
    A("v_lshrrev_b32 v%d, 2, v%d" % (VL4, VL16))
    A("v_mov_b32 v%d, 1" % ONE)

    def dma(sseg):
        tile_off(A, 45, sL, sseg)
        for k, off in enumerate((OFF_QX, OFF_KX, OFF_VX)):
            A("s_add_u32 s41, s45, 0x%x" % off); sadd64(A, 42, S_WS, "s41")
            A("s_add_u32 s44, s%d, %d" % (sSLOT, k * 8192))
            A("s_mov_b32 m0, s44")
            A("s_nop 0")
            A("global_load_lds_dwordx4 v%d, s[42:43] sc1" % VW2K)
            A("global_load_lds_dwordx4 v%d, s[42:43] offset:1024 sc1" % VW2K)
        A("s_cmp_ge_u32 s%d, %d" % (sSLOT, SLOT))
        A("s_cselect_b32 s44, %d, %d" % (-SLOT, SLOT)) if False else None
        A("s_mov_b32 s44, %d" % SLOT)
        A("s_cselect_b32 s44, %d, s44" % -SLOT)
        A("s_add_u32 s%d, s%d, s44" % (sSLOT, sSLOT))

    A.label("L_p2_layer")
    A("s_sub_u32 s%d, s%d, %d" % (sSEG, S_GRP, NP1 + 1))
    head_flag(A, sH, F_KV, sL, sSEG, 2)
    A("s_mov_b64 s[%d:%d], 0" % (sMM, sMM + 1))
    A("s_mov_b32 s%d, 0" % sKP)
    A("s_mov_b32 s44, 0")
    head_flag(A, sG, F_M, sL, 44, 2)
    wait_flags(A, W, VF8, sH)
    dma(sSEG)
    A("s_waitcnt vmcnt(0)")
    A.label("L_p2_loop")
    _RTP["opt"] = opt; _RTP["it"] = 50
    rtp(A, 0)
    tile_off(A, sT, sL, sSEG)
    A("s_mov_b32 s47, s40")
    A("s_add_u32 s%d, s%d, %d" % (sNX, sSEG, NP2))
    A("s_min_u32 s44, s%d, 63" % sNX)
    head_flag(A, sH, F_KV, sL, 44, 2)
    A("s_add_u32 s41, s%d, 0x%x" % (sT, OFF_KM)); sadd64(A, sA, S_WS, "s41")
    sadd64(A, sKN, sA, NP2 * 32 * 8192)
    A("s_lshl_b32 s41, s%d, 22" % S_GRP)
    A("s_add_u32 s41, s41, s%d" % sRING)
    A("s_add_u32 s41, s41, 0x%x" % OFF_PW); sadd64(A, sB, S_WS, "s41")
    ring_next(A, sRING)
    A("s_lshl_b32 s41, s%d, 10" % S_HEAD); sadd64(A, sCc, sB, "s41")
    A("s_lshl_b32 s41, s%d, 15" % S_HEAD); sadd64(A, sB, sB, "s41")
    A("s_lshl_b32 s41, s47, 7")
    A("s_add_u32 s41, s41, 0x%x" % F_PB); sadd64(A, sE, S_WS, "s41")
    A("s_lshl_b32 s41, s%d, 5" % sSEG)
    A("s_add_u32 s41, s41, s%d" % S_HEAD)
    A("s_lshl_b32 s42, s41, 10")
    A("s_lshl_b32 s43, s%d, 21" % sL)
    A("s_add_u32 s43, s43, s42")
    A("s_add_u32 s43, s43, 0x%x" % OFF_X1); sadd64(A, 44, S_WS, "s43")
    A("global_load_dwordx2 v[%d:%d], v%d, s[44:45] sc1" % (RW + 36, RW + 37, VROW))
    A("s_add_u32 s43, s42, 0x%x" % OFF_Y2); sadd64(A, sY, S_WS, "s43")
    A("s_lshl_b32 s41, s41, 2")
    A("s_add_u32 s41, s41, 0x%x" % F_Y2); sadd64(A, sF, S_WS, "s41")
    A("s_add_u32 s43, s42, 0x%x" % OFF_X2); sadd64(A, sX, S_WS, "s43")
    A("s_cmp_eq_u32 s%d, 0" % sL)
    A("s_cbranch_scc1 L_p2_x2")
    sadd64(A, sX, S_OUT, "s42")
    A.label("L_p2_x2")
    A("global_load_dword v%d, v%d, s[%d:%d] sc1" % (VF, VF8, sH, sH + 1))
    KE, VM = 96, 100
    def km_loads(k, m, sp):
        A("global_load_dwordx2 v[%d:%d], v%d, s[%d:%d] sc1" % (k, k + 1, VW2K, sp, sp + 1))
        A("global_load_dwordx2 v[%d:%d], v%d, s[%d:%d] sc1" % (m, m + 1, VKM, sp, sp + 1))
        A("global_load_dwordx2 v[%d:%d], v%d, s[%d:%d] offset:2048 sc1" % (m + 2, m + 3, VKM, sp, sp + 1))
    def blk(A):
        A.label("L_p2_kmlast")
        km_loads(KE, VM, sA)
        A("s_waitcnt vmcnt(0)")
        flush_deferred(A, sDEF, VL16, ONE)
        A("v_max3_u32 v%d, v%d, v%d, v%d" % (118, KE, VM, VM + 2))
        A("v_cmp_eq_u32 vcc, -1, v118")
        A("s_cbranch_vccz L_p2_kmok")
        A("s_sleep 1")
        spin_guard(A)
        A("s_branch L_p2_kmlast")
        A.label("L_p2_kmwait")
        A("s_cmp_ge_u32 s%d, %d" % (sSEG, KM_POLL))
        A("s_cbranch_scc1 L_p2_kmlast")
        A("global_load_dword v%d, v%d, s[%d:%d] sc1" % (VFM, VL4, sG, sG + 1))
        A("s_waitcnt vmcnt(0)")
        flush_deferred(A, sDEF, VL16, ONE)
        A("v_cmp_ne_u32 s[%d:%d], 0, v%d" % (sMM, sMM + 1, VFM))
        A("s_bitcmp1_b64 s[%d:%d], s%d" % (sMM, sMM + 1, sSEG))
        A("s_cbranch_scc1 L_p2_kmgo")
        A("s_sleep %d" % opt.get("zk", 8))
        spin_guard(A)
        A("s_branch L_p2_kmwait")
        A.label("L_p2_kmgo")
        km_loads(KE, VM, sA)
        A("s_waitcnt vmcnt(0)")
        A("s_branch L_p2_kmok")
    cold.add(blk)
    rtp(A, 1)
    A("s_barrier")
    QF, ZF, KF, VFR = 32, 48, 64, 128
    S0, S1, S2 = 104, 108, 112
    A("v_add_u32 v%d, v%d, v%d" % (116, VS, VQF))
    A("v_sub_u32 v%d, v%d, v%d" % (116, 116, VL16))
    A("v_add_u32 v%d, v%d, v%d" % (117, VS, VVF))
    A("v_sub_u32 v%d, v%d, v%d" % (117, 117, VL16))
    for dc in range(4): rd128(A, QF + 4 * dc, 116, L_Q + dc * 1024)
    for i in range(8): rd128(A, KF + 4 * i, VS, L_K + i * 1024)
    A("v_mov_b32 v%d, 0" % (KE + 3))
    A("s_waitcnt lgkmcnt(4)")
    for dc in range(4): mfma(A, S1, KF + 4 * dc, QF + 4 * dc, BIAS if dc == 0 else S1)
    A("s_waitcnt lgkmcnt(0)")
    for i in range(4): rd128(A, VFR + 4 * i, 117, L_V + i * 1024)
    for dc in range(4): mfma(A, S2, KF + 16 + 4 * dc, QF + 4 * dc, BIAS + 4 if dc == 0 else S2)
    A("s_cmp_eq_u32 s%d, 0" % sKP)
    A("s_cbranch_scc1 L_p2_kmwait")
    A("v_mov_b64 v[%d:%d], v[%d:%d]" % (KE, KE + 1, KE2, KE2 + 1))
    A("v_mov_b64 v[%d:%d], v[%d:%d]" % (VM, VM + 1, KE2 + 2, KE2 + 3))
    A("v_mov_b64 v[%d:%d], v[%d:%d]" % (VM + 2, VM + 3, KE2 + 4, KE2 + 5))
    A("global_load_dword v%d, v%d, s[%d:%d] sc1" % (VFM, VL4, sG, sG + 1))
    A.label("L_p2_kmok")
    rts(A, opt, sL, sSEG, 128, 118)
    rtp(A, 2)
    A("v_mov_b32 v%d, v%d" % (KE + 2, KE + 1))
    A("v_mov_b32 v%d, 0" % (KE + 1))
    A("ds_write_b64 v%d, v[%d:%d] offset:%d" % (VZW, KE, KE + 1, L_Z))
    A("ds_write_b64 v%d, v[%d:%d] offset:%d" % (VZW, KE + 2, KE + 3, L_Z + 512))
    A("s_waitcnt lgkmcnt(0)")
    A("s_barrier")
    for dc in range(4):
        for Tt in range(2):
            A("ds_read_b64_tr_b16 v[%d:%d], v%d offset:%d" % (ZF + 4 * dc + 2 * Tt, ZF + 4 * dc + 2 * Tt + 1, VZR, L_Z + dc * 1024 + Tt * 512))
    A("s_waitcnt lgkmcnt(0)")
    for dc in range(4): mfma(A, S0, ZF + 4 * dc, QF + 4 * dc, "0" if dc == 0 else S0)
    rtp(A, 3)
    M0_, M1_, T0_, T1_, LS, LT, PX = 116, 117, 118, 119, 120, 121, 124
    A("v_max3_f32 v%d, v%d, v%d, v%d" % (M0_, S1, S1 + 1, S1 + 2))
    A("v_max3_f32 v%d, v%d, v%d, v%d" % (M1_, S1 + 3, S2, S2 + 1))
    A("v_max3_f32 v%d, v%d, v%d, v%d" % (M0_, M0_, S2 + 2, S2 + 3))
    A("v_xor_b32 v%d, %d, v%d" % (VS, SLOT, VS))
    A.nop(4)
    A("v_max3_f32 v%d, v%d, v%d, v%d" % (M1_, M1_, S0, S0 + 1))
    A("v_max_f32 v%d, v%d, v%d" % (T0_, M0_, M1_))
    A("v_max_f32 v%d, v%d, v%d" % (T1_, M0_, M1_))
    A.nop(2)
    A("v_permlane32_swap_b32 v%d, v%d" % (T0_, T1_))
    A("v_max_f32 v%d, v%d, v%d" % (M0_, T0_, T1_))
    A("v_max_f32 v%d, v%d, v%d" % (M1_, T0_, T1_))
    A.nop(2)
    A("v_permlane16_swap_b32 v%d, v%d" % (M0_, M1_))
    A("v_max_f32 v%d, v%d, v%d" % (M0_, M0_, M1_))
    A("v_mul_f32 v%d, s%d, v%d" % (M0_, sC, M0_))
    sregs = [S1 + r for r in range(4)] + [S2 + r for r in range(4)] + [S0, S0 + 1]
    for r in sregs: A("v_fma_f32 v%d, v%d, s%d, -v%d" % (r, r, sC, M0_))
    for r in sregs: A("v_exp_f32 v%d, v%d" % (r, r))
    cvt(A, PX, S1, S1 + 1); cvt(A, PX + 1, S1 + 2, S1 + 3); cvt(A, PX + 2, S2, S2 + 1); cvt(A, PX + 3, S2 + 2, S2 + 3)
    cvt(A, PMA, S0, S0 + 1); cvt(A, PMB + 1, S0, S0 + 1)
    OC = 64
    for i in range(4): mfma(A, OC + 4 * i, VFR + 4 * i, PX, "0")
    A("v_add_f32 v%d, v%d, v%d" % (LS, S1, S1 + 1))
    A("v_add_f32 v%d, v%d, v%d" % (LT, S1 + 2, S1 + 3))
    for a_, b_ in ((S2, S2 + 1), (S2 + 2, S2 + 3), (S0, S0 + 1)):
        A("v_add_f32 v%d, v%d, v%d" % (LS, LS, a_)); A("v_add_f32 v%d, v%d, v%d" % (LT, LT, b_))
    for i in range(4): mfma(A, OC + 4 * i, VM + 2 * (i >> 1), PMA if (i & 1) == 0 else PMB, OC + 4 * i, k32=False)
    A("v_add_f32 v%d, v%d, v%d" % (LS, LS, LT))
    swap_sum(A, LS, LT, 32); swap_sum(A, LS, LT, 16)
    A("v_rcp_f32 v%d, v%d" % (LS, LS))
    A.nop(1)
    for r in range(0, 16, 2):
        A("v_pk_mul_f32 v[%d:%d], v[%d:%d], v[%d:%d] op_sel_hi:[1,0]" % (OC + r, OC + r + 1, OC + r, OC + r + 1, LS, LS + 1))
    for f in range(2):
        pack(A, 32 + 4 * f, OC + 8 * f, OC + 8 * f + 4)
        A("ds_write_b128 v%d, v[%d:%d] offset:%d" % (VOW, 32 + 4 * f, 35 + 4 * f, L_O + f * 1024))
    rtp(A, 4)
    A("s_mov_b32 s%d, 0" % sPRE)
    A("s_mov_b32 s%d, 0" % sKP)
    A("s_waitcnt vmcnt(0)")
    A("v_cmp_eq_u32 vcc, 0, v%d" % VF)
    flush_deferred(A, sDEF, VL16, ONE)
    A("v_cmp_ne_u32 s[%d:%d], 0, v%d" % (sMM, sMM + 1, VFM))
    A("s_cmp_ge_u32 s%d, 64" % sNX)
    A("s_cbranch_scc1 L_p2_nopre")
    A("s_cbranch_vccnz L_p2_nopre")
    dma(sNX)
    A("s_mov_b32 s%d, 1" % sPRE)
    A("s_bitcmp0_b64 s[%d:%d], s%d" % (sMM, sMM + 1, sNX))
    A("s_cbranch_scc1 L_p2_nopre")
    km_loads(KE2, KE2 + 2, sKN)
    A("s_mov_b32 s%d, 1" % sKP)
    A.label("L_p2_nopre")
    A("s_waitcnt lgkmcnt(0)")
    A("s_barrier")
    OF, PA = 32, 64
    rtp(A, 5)
    for f in range(4):
        for qt in range(2): rd128(A, OF + (qt * 4 + f) * 4, VL16, L_O + (qt * 4 + f) * 1024)
    def out_ops(b):
        ops = []
        for qt in range(2):
            a0 = PA + b * 16 + qt * 8
            ops += [lambda a0=a0: cvt(A, a0, a0, a0 + 1), lambda a0=a0: cvt(A, a0 + 1, a0 + 2, a0 + 3),
                    lambda a0=a0: cvt(A, a0 + 2, a0 + 4, a0 + 5), lambda a0=a0: cvt(A, a0 + 3, a0 + 6, a0 + 7)]
            ops.append(lambda a0=a0, qt=qt: A("ds_write_b128 v%d, v[%d:%d] offset:%d" % (VTW + b, a0, a0 + 3, qt * 4096)))
        return ops
    pend = []
    for b in range(4):
        n = 0
        for f in range(4):
            if b == 0: A("s_waitcnt lgkmcnt(%d)" % (6 - 2 * f))
            for P in range(2):
                for qt in range(2):
                    d = PA + b * 16 + qt * 8 + P * 4
                    mfma(A, d, WO + ((b * 2 + P) * 4 + f) * 4, OF + (qt * 4 + f) * 4, "0" if f == 0 else d)
                    n += 1
                    if n > 5 and pend: pend.pop(0)()
        assert not pend
        pend = out_ops(b)
    A.nop(8)
    for o in pend: o()
    rtp(A, 6)
    for i in range(8): rd128(A, 32 + 4 * i, VTR + (i & 3), i * 1024)
    for i in range(8):
        A("s_waitcnt lgkmcnt(%d)" % (7 - i))
        store_mixed(A, cold, ["global_store_dwordx4 v%d, v[%d:%d], s[%d:%d]" % (VPST, 32 + 4 * i, 35 + 4 * i, sCc, sCc + 1)])
        if i < 7: sadd64(A, sCc, sCc, 4 * 32768)
    publish_partials(A, cold, 64, sE)
    reduce_row(A, cold, RW, SEL, VRLD, VROW, VFL, VL16, sB, sE, sIT, sX, sY, sF, L_ST,
               lambda A: A("s_cmp_eq_u32 s%d, 1" % sL), defer=sDEF)
    rtp(A, 14)
    rts(A, opt, sL, sSEG, 256, W)
    A("s_add_u32 s%d, s%d, 1" % (sIT, sIT))
    A("s_mov_b32 s%d, s%d" % (sSEG, sNX))
    A("s_cmp_eq_u32 s%d, 1" % sPRE)
    A("s_cbranch_scc1 L_p2_loop")
    A("s_waitcnt vmcnt(0)")
    flush_deferred(A, sDEF, VL16, ONE)
    A("s_cmp_ge_u32 s%d, 64" % sSEG)
    A("s_cbranch_scc1 L_p2_next")
    wait_flags(A, W, VF8, sH)
    dma(sSEG)
    A("s_waitcnt vmcnt(0)")
    A("s_branch L_p2_loop")
    A.label("L_p2_next")
    A("s_add_u32 s%d, s%d, 1" % (sL, sL))
    A("s_cmp_lt_u32 s%d, %d" % (sL, opt.get("layers", 2)))
    A("s_cbranch_scc1 L_p2_layer")
    A("s_branch L_end")
    cold.emit(A)

def gen_aworker(A, opt):
    cold = Cold()
    NP1, NP2, NA = opt["NP1"], opt["NP2"], opt["NA"]
    NA0 = NA + NP2
    VL16, VL8, VYA, VPST, VRLD, VROW, VFL, VAF, ZERO, VPQ = range(1, 11)
    SEL, ONES = 12, 16
    KVA, ZA = 18, 20
    KV, ZS = 24, 28
    W = 32
    WO = 128
    RW = 160
    sRING = 84
    WQ = 256
    L_W, L_WOI, L_PQ, L_ST = 0, 49152, 131072, 32768
    VA4, VTW, VTR = 216, 220, 228
    sL, sSEG, sIT, sI, sAG = 48, 49, 50, 51, 66
    sA, sB, sCc, sD, sE, sF, sG = 52, 54, 56, 58, 60, 62, 64
    sLE, sNA, sMT, sWB = 67, 68, 69, 70
    A.label("L_aworker")
    A("s_sub_u32 s%d, 7, s%d" % (sAG, S_GRP))
    A("s_mov_b32 s%d, %d" % (sNA, NA0))
    prepass0(A, sAG, NA0)
    T = 40
    A("v_and_b32 v%d, 63, v0" % T)
    A("v_and_b32 v%d, 15, v0" % (T + 1))
    A("v_bfe_u32 v%d, v0, 4, 2" % (T + 2))
    A("v_lshlrev_b32 v%d, 4, v%d" % (VL16, T))
    A("v_lshlrev_b32 v%d, 3, v%d" % (VL8, T))
    A("s_and_b32 s42, s%d, 1" % S_WAVE)
    A("s_lshr_b32 s43, s%d, 1" % S_WAVE)
    frag_addrs(A, VA4, T + 3)
    A("s_lshl_b32 s%d, s42, 14" % sMT)
    A("s_lshl_b32 s%d, s%d, 15" % (sWB, S_WAVE))
    A("s_lshl_b32 s40, s%d, 15" % S_WAVE)
    for q in range(4): A("v_add_u32 v%d, s40, v%d" % (VA4 + q, VA4 + q))
    A("v_lshrrev_b32 v%d, 5, v%d" % (T + 3, T))
    A("v_and_b32 v%d, 31, v%d" % (T + 4, T))
    A("s_lshl_b32 s40, s42, 19")
    A("s_lshl_b32 s41, s43, 9")
    A("s_add_u32 s40, s40, s41")
    A("v_lshlrev_b32 v%d, 15, v%d" % (VPST, T + 3))
    A("v_lshl_add_u32 v%d, v%d, 4, v%d" % (VPST, T + 4, VPST))
    A("v_add_u32 v%d, s40, v%d" % (VPST, VPST))
    A("s_lshl_b32 s41, s%d, 13" % S_WAVE)
    for b in range(8):
        A("v_add_u32 v%d, %d, v%d" % (T + 5, 4 * b, T + 2))
        A("v_xor_b32 v%d, v%d, v%d" % (T + 5, T + 5, T + 1))
        A("v_lshlrev_b32 v%d, 4, v%d" % (T + 5, T + 5))
        A("v_lshl_add_u32 v%d, v%d, 9, v%d" % (T + 5, T + 1, T + 5))
        A("v_add_u32 v%d, s41, v%d" % (VTW + b, T + 5))
    for i in range(8):
        A("v_add_u32 v%d, %d, v%d" % (T + 5, 2 * i, T + 3))
        A("v_xor_b32 v%d, v%d, v%d" % (T + 6, T + 5, T + 4))
        A("v_lshlrev_b32 v%d, 4, v%d" % (T + 6, T + 6))
        A("v_lshl_add_u32 v%d, v%d, 9, v%d" % (T + 6, T + 5, T + 6))
        A("v_add_u32 v%d, s41, v%d" % (VTR + i, T + 6))
    A("s_lshl_b32 s40, s42, 9")
    A("s_add_u32 s40, s40, %d" % L_PQ)
    A("v_add_u32 v%d, s40, v%d" % (VPQ, VL8))
    A("v_mov_b32 v%d, 0" % ZERO)
    A("v_mov_b32 v%d, 0x3f803f80" % ONES)
    A("v_mov_b32 v%d, 0x3f803f80" % (ONES + 1))
    A("s_mov_b32 s%d, 0x%x" % (sLE, f32bits(LOG2E)))
    sel_const(A, SEL, T + 3)
    reduce_consts(A, VRLD, VROW, VFL, T + 3)
    A("s_lshl_b32 s44, s%d, 12" % S_WAVE)
    A("s_lshl_b32 s40, s%d, 14" % S_HEAD)
    A("s_add_u32 s40, s40, s44")
    sadd64(A, sA, S_AWO, "s40")
    A("s_add_u32 s45, s44, %d" % L_WOI)
    A("s_mov_b32 m0, s45")
    A("s_nop 0")
    for i in range(4): A("global_load_lds_dwordx4 v%d, s[%d:%d] offset:%d" % (VL16, sA, sA + 1, i * 1024))
    A("v_bfe_u32 v%d, v0, 2, 2" % (T + 4))
    A("v_and_b32 v%d, 3, v0" % (T + 5))
    A("v_mul_u32_u24 v%d, 768, v%d" % (T + 6, T + 2))
    A("v_lshl_add_u32 v%d, v%d, 5, v%d" % (T + 6, T + 4, T + 6))
    A("v_lshl_add_u32 v%d, v%d, 3, v%d" % (T + 6, T + 5, T + 6))
    A("v_lshl_add_u32 v%d, v%d, 2, v%d" % (T + 7, T + 2, T + 4))
    A("v_lshlrev_b32 v%d, 10, v%d" % (T + 7, T + 7))
    A("v_lshl_add_u32 v%d, v%d, 4, v%d" % (T + 7, T + 5, T + 7))
    A("s_lshl_b32 s41, s43, 9")
    A("s_add_u32 s41, s41, %d" % L_WOI)
    A("v_add_u32 v%d, s41, v%d" % (T + 7, T + 7))
    prepass1(A, True)
    rt_stamp(A, opt, 491, 110, 111)
    opt["arrive"](A, "own")
    rt_stamp(A, opt, 492, 110, 111)
    if opt.get("warm", 1):
        A("s_lshl_b32 s41, s%d, 22" % S_GRP)
        A("s_lshl_b32 s42, s%d, 15" % S_HEAD)
        A("s_add_u32 s41, s41, s42")
        A("s_add_u32 s41, s41, 0x%x" % OFF_PW)
        for k in range(16):
            A("s_add_u32 s42, s41, 0x%x" % ((k >> 3) * 0x100000 + (k & 7) * 4096)); sadd64(A, sA, S_WS, "s42")
            A("global_load_dwordx4 v[56:59], v%d, s[%d:%d] sc1" % (VRLD, sA, sA + 1))
    opt["init_wait"](A)
    rt_stamp(A, opt, 493, 110, 111)
    A("s_mul_i32 s40, s%d, 49152" % S_HEAD)
    A("s_mul_i32 s44, s%d, 12288" % S_WAVE)
    A("s_add_u32 s40, s40, s44")
    A("s_add_u32 s40, s40, 0x%x" % OFF_WP)
    sadd64(A, sA, S_WS, "s40")
    for qd in range(3):
        A("s_mov_b32 m0, s44")
        A("s_add_u32 s44, s44, 4096")
        for i in range(4): A("global_load_lds_dwordx4 v%d, s[%d:%d] offset:%d sc1" % (VL16, sA, sA + 1, i * 1024))
        if qd < 2: sadd64(A, sA, sA, 4096)
    A("s_waitcnt vmcnt(0)")
    rt_stamp(A, opt, 494, 110, 111)
    A("s_barrier")
    for t in range(3):
        for ks in range(16):
            for hh in range(2):
                A("ds_read_b64_tr_b16 %s, v%d offset:%d" % (R(WQ + (t * 16 + ks) * 4 + 2 * hh, 2), T + 6, L_W + ks * 3072 + t * 256 + hh * 128))
    for b in range(8):
        for P in range(2):
            A("ds_read_b64_tr_b16 %s, v%d offset:%d" % (v(WO + (b * 2 + P) * 2, 2), T + 7, b * 64 + P * 8))
    A("s_waitcnt lgkmcnt(0)")
    rt_stamp(A, opt, 501, 40, 41)
    opt["init_wait"](A, kind="own")
    rt_stamp(A, opt, 502, 40, 41)
    A("s_mov_b32 s%d, 0" % sL)
    A("s_mov_b32 s%d, 0" % sIT)
    A("s_mov_b32 s%d, 0" % sRING)

    A.label("L_aw_layer")
    A("s_barrier")
    for r in range(0, 8, 2): A("v_mov_b64 v[%d:%d], 0" % (KV + r, KV + r + 1))
    A("s_lshr_b32 s%d, s%d, 1" % (sI, S_WAVE))
    YB = [0, 16384]
    YF = 32
    Q, K, V, E = 96, 100, 104, 112
    def seg_of(dst, add):
        A("s_add_u32 s%d, s%d, %d" % (dst, sI, add))
        A("s_mul_i32 s%d, s%d, s%d" % (dst, dst, sNA))
        A("s_add_u32 s%d, s%d, s%d" % (dst, dst, sAG))
    def y_ops(buf, sseg, flags):
        ops = ["s_lshl_b32 s41, s%d, 15" % sseg, "s_add_u32 s41, s41, s%d" % sMT,
               "s_add_u32 s41, s41, 0x%x" % (OFF_Y2 if flags else OFF_Y0),
               "s_add_u32 s%d, s%d, s41" % (sA, S_WS), "s_addc_u32 s%d, s%d, 0" % (sA + 1, S_WS + 1)]
        for qd in range(4):
            ops += ["s_add_u32 s42, s%d, %d" % (sWB, buf + qd * 4096), "s_mov_b32 m0, s42"]
            ops += ["s_add_u32 s%d, s%d, 4096" % (sA, sA), "s_addc_u32 s%d, s%d, 0" % (sA + 1, sA + 1)] if qd else ["s_nop 0"]
            ops += ["global_load_lds_dwordx4 v%d, s[%d:%d] offset:%d sc1" % (VL16, sA, sA + 1, i * 1024) for i in range(4)]
        return ops
    def y_loads(buf, sseg, flags):
        for t in y_ops(buf, sseg, flags): A(t)
    def phi(X):
        for r in range(4):
            A("v_mul_f32 v%d, s%d, v%d" % (E + r, sLE, X + r))
            A("v_min_f32 v%d, 0, v%d" % (E + r, E + r))
        for r in range(4): A("v_exp_f32 v%d, v%d" % (E + r, E + r))
        for r in range(4): A("v_max_f32 v%d, 0, v%d" % (X + r, X + r))
        for r in range(4): A("v_add_f32 v%d, 0x%x, v%d" % (E + r, f32bits(1e-6), E + r))
        for r in range(4): A("v_add_f32 v%d, v%d, v%d" % (X + r, X + r, E + r))
    def unit(buf, younger, refill=False, stamp=False):
        A("s_waitcnt vmcnt(%d)" % younger)
        for ks in range(8): rd128(A, YF + 4 * ks, VA4 + (ks & 3), buf + (ks >> 2) * 256)
        ops = []
        if refill:
            ops = y_ops(buf, 44, False)
        def some():
            while ops:
                t = ops.pop(0); A(t)
                if t.startswith("global"): break
        for ks in range(16):
            if ks + 8 < 16: rd128(A, YF + 4 * (ks + 8), VA4 + (ks & 3), buf + ((ks + 8) >> 2) * 256)
            A("s_waitcnt lgkmcnt(%d)" % (min(8, 15 - ks) if ks != 9 or not refill else 0))
            mfma(A, K, YF + 4 * ks, WQ + (16 + ks) * 4, "0" if ks == 0 else K)
            if ks >= 9: some()
            mfma(A, Q, WQ + ks * 4, YF + 4 * ks, "0" if ks == 0 else Q)
            if ks >= 9: some()
            mfma(A, V, YF + 4 * ks, WQ + (32 + ks) * 4, "0" if ks == 0 else V)
            if 9 <= ks < 15: some()
        assert not ops
        A("s_lshl_b32 s41, s%d, 10" % sI)
        A("v_add_u32 v108, s41, v%d" % VPQ)
        A.nop(5)
        phi(K)
        cvt(A, 116, K, K + 1); cvt(A, 117, K + 2, K + 3)
        cvt(A, 118, V, V + 1); cvt(A, 119, V + 2, V + 3)
        phi(Q)
        mfma(A, KV, 116, 118, KV, k32=False)
        mfma(A, ZS, 116, ONES, ZS, k32=False)
        cvt(A, 120, Q, Q + 1); cvt(A, 121, Q + 2, Q + 3)
        A("ds_write_b64 v108, v[120:121]")
        rts(A, dict(opt, rt=opt.get("rt") and stamp), sL, sSEG, 0, 122)
        A("s_add_u32 s%d, s%d, 2" % (sI, sI))
    A("s_cmp_lg_u32 s%d, 0" % sL)
    A("s_cbranch_scc1 L_aw_s1f")
    seg_of(sSEG, 0)
    y_loads(YB[0], sSEG, False)
    seg_of(44, 2)
    y_loads(YB[1], 44, False)
    A.label("L_aw_s1")
    for par in range(2):
        seg_of(44, 4)
        A("s_cmp_ge_u32 s44, 64")
        A("s_cbranch_scc1 L_aw_s1e%d" % par)
        unit(YB[par], 16, refill=True)
    A("s_branch L_aw_s1")
    for par in range(2):
        A.label("L_aw_s1e%d" % par)
        unit(YB[par], 16)
        unit(YB[1 - par], 0)
        if par == 0: A("s_branch L_aw_s1t")
    A.label("L_aw_s1t")
    A("s_waitcnt vmcnt(0)")
    if opt.get("rt"): rt_stamp(A, opt, 63, 122, 123)
    A("s_branch L_aw_s1done")
    A.label("L_aw_s1f")
    seg_of(sSEG, 0)
    A("s_cmp_ge_u32 s%d, 64" % sSEG)
    A("s_cbranch_scc1 L_aw_s1done")
    A("s_cmp_ge_u32 s%d, %d" % (sSEG, Y2_POLL))
    A("s_cbranch_scc1 L_aw_s1p")
    A("s_lshl_b32 s42, s%d, 7" % sSEG)
    A("s_add_u32 s42, s42, 0x%x" % F_Y2); sadd64(A, sA, S_WS, "s42")
    wait_flags(A, W, VFL, sA, sleep=opt.get("zk", 8))
    y_loads(YB[0], sSEG, True)
    A.label("L_aw_s1q")
    def blk(A):
        A.label("L_aw_s1p")
        for t in y_ops(0, sSEG, True)[:5]: A(t)
        for k in range(1, 4): sadd64(A, sA + 2 * k, sA, 4096 * k)
        A("v_add_u32 v%d, s%d, v%d" % (109, sWB, VL16))
        poll_tile(A, [(VL16, sA + 2 * (i >> 2), (i & 3) * 1024) for i in range(16)], YF, 108, [(109, i * 1024) for i in range(16)])
        A("s_branch L_aw_s1q")
    cold.add(blk)
    unit(YB[0], 0, stamp=True)
    A("s_branch L_aw_s1f")
    A.label("L_aw_s1done")
    A("s_lshl_b32 s41, s%d, 5" % sL)
    A("s_add_u32 s41, s41, s%d" % S_HEAD)
    A("s_lshl_b32 s41, s41, 14")
    A("s_add_u32 s41, s41, 0x%x" % OFF_AKV); sadd64(A, sA, S_WS, "s41")
    A("s_lshl_b32 s43, s%d, 11" % sAG); sadd64(A, sCc, sA, "s43")
    A("s_lshl_b32 s42, s%d, 15" % S_WAVE)
    A("v_add_u32 v%d, s42, v%d" % (W, VL16))
    A.nop(3)
    A("ds_write_b128 v%d, v[%d:%d]" % (W, KV, KV + 3))
    A("ds_write_b128 v%d, v[%d:%d] offset:1024" % (W, ZS, ZS + 3))
    A("s_waitcnt lgkmcnt(0)")
    A("s_barrier")
    A("s_cmp_lg_u32 s%d, 0" % S_WAVE)
    A("s_cbranch_scc1 L_aw_nopub")
    A("v_add_u32 v%d, 0x10000, v%d" % (W, VL16))
    for k, (ad, off) in enumerate(((VL16, 32768), (W, 0), (W, 32768))):
        rd128(A, W + 8 + 8 * k, ad, off); rd128(A, W + 12 + 8 * k, ad, off + 1024)
    A("s_waitcnt lgkmcnt(0)")
    for k in range(3):
        for r in range(0, 8, 2):
            A("v_pk_add_f32 v[%d:%d], v[%d:%d], v[%d:%d]" % (KV + r, KV + r + 1, KV + r, KV + r + 1, W + 8 + 8 * k + r, W + 9 + 8 * k + r))
    A("v_min_u32 v%d, -2, v%d" % (KV, KV))
    A("v_min_u32 v%d, -2, v%d" % (ZS, ZS))
    A("global_store_dwordx4 v%d, v[%d:%d], s[%d:%d] sc1" % (VL16, KV, KV + 3, sCc, sCc + 1))
    A("global_store_dwordx4 v%d, v[%d:%d], s[%d:%d] offset:1024 sc1" % (VL16, ZS, ZS + 3, sCc, sCc + 1))
    A.label("L_aw_nopub")
    for k in range(1, 3): sadd64(A, sA + 2 * k, sA, 4096 * k)
    def gather(n, lp):
        A.label(lp)
        for p in range(n):
            for k in range(2):
                b = sA + 2 * (p >> 1)
                A("global_load_dwordx4 v[%d:%d], v%d, s[%d:%d] offset:%d sc1" % (W + 8 * p + 4 * k, W + 8 * p + 4 * k + 3, VL16, b, b + 1, (p & 1) * 2048 + k * 1024))
        spin_guard(A)
        A("s_waitcnt vmcnt(0)")
        A("v_max_u32 v%d, v%d, v%d" % (VAF, W, W + 4))
        for p in range(1, n): A("v_max3_u32 v%d, v%d, v%d, v%d" % (VAF, VAF, W + 8 * p, W + 8 * p + 4))
        A("v_cmp_eq_u32 vcc, -1, v%d" % VAF)
        A("s_cbranch_vccnz %s" % lp)
        for p in range(1, n):
            for r in range(0, 8, 2):
                A("v_pk_add_f32 v[%d:%d], v[%d:%d], v[%d:%d]" % (W + r, W + r + 1, W + r, W + r + 1, W + 8 * p + r, W + 8 * p + r + 1))
    assert NA0 <= 6 and NA0 + NA <= 8
    A("s_cmp_lg_u32 s%d, 0" % sL)
    A("s_cbranch_scc1 L_aw_g1")
    gather(NA0, "L_aw_g0")
    A("s_branch L_aw_g2")
    gather(NA, "L_aw_g1")
    A.label("L_aw_g2")
    A("s_barrier")
    cvt(A, KVA, W, W + 1); cvt(A, KVA + 1, W + 2, W + 3); cvt(A, ZA, W + 4, W + 5); cvt(A, ZA + 1, W + 6, W + 7)
    if opt.get("rt"):
        A("s_add_u32 s97, s%d, 400" % sL)
        rt_stamp(A, opt, "s97", W + 2, W + 3)
    A("s_mov_b32 s%d, 0" % sI)
    A("s_mov_b32 s%d, s%d" % (sSEG, sAG))
    A.label("L_aw_s2")
    rtp(A, 0, 240)
    A("s_lshl_b32 s41, s%d, 10" % sI)
    A("v_add_u32 v%d, s41, v%d" % (W, VPQ))
    A("ds_read_b64 v[%d:%d], v%d" % (W + 2, W + 3, W))
    A("s_lshl_b32 s41, s%d, 22" % S_GRP)
    A("s_add_u32 s41, s41, s%d" % sRING)
    A("s_add_u32 s41, s41, 0x%x" % OFF_PW); sadd64(A, sB, S_WS, "s41")
    ring_next(A, sRING)
    A("s_lshl_b32 s41, s%d, 10" % S_HEAD); sadd64(A, sCc, sB, "s41")
    A("s_lshl_b32 s41, s%d, 15" % S_HEAD); sadd64(A, sB, sB, "s41")
    A("s_lshl_b32 s47, s%d, 6" % sL)
    A("s_add_u32 s47, s47, s%d" % sSEG)
    A("s_lshl_b32 s41, s47, 7")
    A("s_add_u32 s41, s41, 0x%x" % F_PA); sadd64(A, sE, S_WS, "s41")
    A("s_lshl_b32 s41, s%d, 5" % sSEG)
    A("s_add_u32 s41, s41, s%d" % S_HEAD)
    A("s_lshl_b32 s42, s41, 10")
    A("s_lshl_b32 s43, s%d, 21" % sL)
    A("s_add_u32 s43, s43, s42")
    A("s_add_u32 s44, s43, 0x%x" % OFF_X1); sadd64(A, sG, S_WS, "s44")
    A("s_add_u32 s44, s43, 0x%x" % OFF_Y1); sadd64(A, sD, S_WS, "s44")
    A("s_lshl_b32 s44, s47, 5")
    A("s_add_u32 s44, s44, s%d" % S_HEAD)
    A("s_lshl_b32 s44, s44, 2")
    A("s_add_u32 s44, s44, 0x%x" % F_X1); sadd64(A, sF, S_WS, "s44")
    A("s_add_u32 s44, s42, 0x%x" % OFF_X2); sadd64(A, sA, S_WS, "s44")
    A("s_cmp_lg_u32 s%d, 0" % sL)
    A("s_cbranch_scc1 L_aw_res")
    sadd64(A, sA, S_AX, "s42")
    A.label("L_aw_res")
    A("global_load_dwordx2 v[%d:%d], v%d, s[%d:%d] sc1" % (RW + 36, RW + 37, VROW, sA, sA + 1))
    A("s_waitcnt lgkmcnt(0)")
    NU, DE = W + 4, W + 8
    mfma(A, DE, ZA, W + 2, "0", k32=False)
    mfma(A, NU, KVA, W + 2, "0", k32=False)
    A.nop(7)
    A("v_add_f32 v%d, 0x%x, v%d" % (DE, f32bits(1e-6), DE))
    A("v_rcp_f32 v%d, v%d" % (DE, DE))
    A.nop(1)
    for r in (0, 2):
        A("v_pk_mul_f32 v[%d:%d], v[%d:%d], v[%d:%d] op_sel_hi:[1,0]" % (NU + r, NU + r + 1, NU + r, NU + r + 1, DE, DE + 1))
    cvt(A, W + 2, NU, NU + 1); cvt(A, W + 3, NU + 2, NU + 3)
    A.nop(2)
    PA = W + 16
    rtp(A, 5, 240)
    for i in range(16): mfma(A, PA + 4 * i, WO + 2 * i, W + 2, "0", k32=False)
    for b in range(8):
        a0 = PA + 8 * b
        if b == 6: A.nop(2)
        cvt(A, a0, a0, a0 + 1); cvt(A, a0 + 1, a0 + 2, a0 + 3); cvt(A, a0 + 2, a0 + 4, a0 + 5); cvt(A, a0 + 3, a0 + 6, a0 + 7)
        A("ds_write_b128 v%d, v[%d:%d]" % (VTW + b, a0, a0 + 3))
    for i in range(8): rd128(A, PA + 4 * i, VTR + i, 0)
    for i in range(8):
        A("s_waitcnt lgkmcnt(%d)" % (7 - i))
        store_mixed(A, cold, ["global_store_dwordx4 v%d, v[%d:%d], s[%d:%d]" % (VPST, PA + 4 * i, PA + 4 * i + 3, sCc, sCc + 1)])
        if i < 7: sadd64(A, sCc, sCc, 2 * 32768)
    publish_partials(A, cold, W, sE)
    reduce_row(A, cold, RW, SEL, VRLD, VROW, VFL, VL16, sB, sE, sIT, sG, sD, sF, L_ST,
               lambda A: A("s_cmp_eq_u32 s%d, 2" % sL))
    rtp(A, 14, 240)
    rts(A, opt, sL, sSEG, 256, W)
    A("s_add_u32 s%d, s%d, 1" % (sIT, sIT))
    A("s_add_u32 s%d, s%d, 1" % (sI, sI))
    A("s_add_u32 s%d, s%d, s%d" % (sSEG, sSEG, sNA))
    A("s_cmp_lt_u32 s%d, 64" % sSEG)
    A("s_cbranch_scc1 L_aw_s2")
    A("s_cmp_ge_u32 s%d, %d" % (sAG, NA))
    A("s_cbranch_scc1 L_p2")
    A("s_mov_b32 s%d, %d" % (sNA, NA))
    A("s_add_u32 s%d, s%d, 1" % (sL, sL))
    A("s_cmp_lt_u32 s%d, %d" % (sL, opt.get("layers", 2)))
    A("s_cbranch_scc1 L_aw_layer")
    A("s_branch L_end")
    cold.emit(A)
```

```python
import sys
from common import *
import chain, workers

HEADER = open('cdna_kernels/%s.s.ref' % NAME).read().split('; Override launch')[0]

DOC = '''; ---------------------------------------------------------------------------------------------------------------
;                matrix instructions carry the 8 memory rows at full rate, two L2 hand-offs per step)
; Generated by my own Python scripts (register maps, schedules and wait counts are written out by hand there).
; ---------------------------------------------------------------------------------------------------------------'''

def prologue(A, opt):
    A("s_cmp_ge_u32 s2, 256")
    A("s_cbranch_scc1 L_end")
    A("s_mov_b32 s%d, 0" % S_SPIN)
    A("s_load_dwordx4 s[8:11], s[0:1], 0")
    A("s_load_dwordx2 s[12:13], s[0:1], 16")
    A("s_load_dwordx4 s[16:19], s[0:1], 32")
    A("s_load_dwordx4 s[20:23], s[0:1], 48")
    A("s_load_dwordx2 s[24:25], s[0:1], 64")
    A("s_load_dwordx4 s[28:31], s[0:1], 80")
    A("s_load_dwordx2 s[4:5], s[0:1], 96")
    if opt.get("rt"): A("s_memrealtime s[90:91]")
    if opt.get("dbgt"):
        A("s_memrealtime s[98:99]"); A("s_memtime s[14:15]"); A("s_waitcnt lgkmcnt(0)"); A("s_mov_b32 s6, s98"); A("s_mov_b32 s7, s14")
    A("s_getreg_b32 s36, hwreg(HW_REG_XCC_ID)")
    A("s_and_b32 s36, s36, 15")
    if opt.get("fake") == 1: A("s_lshr_b32 s36, s2, 5")
    if opt.get("fake") == 2: A("s_and_b32 s36, s36, 6")
    if opt.get("fake") == 3: A("s_add_u32 s36, s36, 5")
    A("s_mov_b32 s%d, s36" % S_GRP)
    A("v_lshrrev_b32 v1, 6, v0")
    A("s_nop 0")
    A("v_readfirstlane_b32 s%d, v1" % S_WAVE)
    A("s_waitcnt lgkmcnt(0)")
    A("s_cmp_lg_u32 s%d, 0" % S_WAVE)
    A("s_cbranch_scc1 L_noticket")
    ticket_word(A)
    A("v_mov_b32 v1, s37")
    A("v_mov_b32 v2, 1")
    A("s_mov_b64 exec, 1")
    A("global_atomic_add v3, v1, v2, s[%d:%d] sc0" % (S_DBG, S_DBG + 1))
    A("s_mov_b64 exec, -1")
    A.label("L_noticket")
    A("v_mov_b32 v6, 0")
    A("s_cmp_lg_u32 s%d, 0" % S_WAVE)
    A("s_cbranch_scc1 L_nowr")
    A("s_waitcnt vmcnt(0)")
    A("s_mov_b64 exec, 1")
    A("ds_write_b32 v6, v3")
    A("s_mov_b64 exec, -1")
    A.label("L_nowr")
    A("s_waitcnt lgkmcnt(0)")
    A("s_barrier")
    A("ds_read_b32 v3, v6")
    A("s_waitcnt lgkmcnt(0)")
    A("v_readfirstlane_b32 s%d, v3" % S_HEAD)
    A("s_barrier")
    A("s_cmp_ge_u32 s%d, 8" % S_GRP)
    A("s_cbranch_scc1 L_overflow")
    A("s_cmp_ge_u32 s%d, 32" % S_HEAD)
    A("s_cbranch_scc1 L_overflow")
    A.label("L_roles")
    if opt.get("rt"):
        rt_stamp(A, opt, 498, 40, 41)
        A("v_mov_b32 v41, s90")
        A("global_store_dword v40, v41, s[%d:%d] offset:4" % (S_WS, S_WS + 1))

def tword(x): return 32 * ((x >> 2) & 1) + (x & 3) + 4 * (x >> 3)
def ticket_word(A):
    A("s_and_b32 s37, s%d, 4" % S_GRP)
    A("s_lshl_b32 s37, s37, 5")
    A("s_and_b32 s36, s%d, 3" % S_GRP)
    A("s_lshl_b32 s36, s36, 2")
    A("s_add_u32 s37, s37, s36")
    A("s_and_b32 s36, s%d, 8" % S_GRP)
    A("s_lshl_b32 s36, s36, 1")
    A("s_add_u32 s37, s37, s36")

def arrive(A, kind):
    l = A.newlabel("Larr")
    A("s_waitcnt vmcnt(0)")
    A("s_barrier")
    A("s_cmp_lg_u32 s%d, 0" % S_WAVE)
    A("s_cbranch_scc1 %s" % l)
    if kind == "flags": A("s_mov_b32 s37, %d" % (4 * 24))
    else:
        A("s_lshl_b32 s37, s%d, 2" % S_GRP); A("s_add_u32 s37, s37, %d" % (64 if kind == "own" else 32))
    A("v_mov_b32 v40, s37")
    A("v_mov_b32 v41, 1")
    A("s_mov_b64 exec, 1")
    A("global_atomic_add v42, v40, v41, s[%d:%d] sc0" % (S_DBG, S_DBG + 1))
    A("s_waitcnt vmcnt(0)")
    A("v_readfirstlane_b32 s36, v42")
    A("s_cmp_lg_u32 s36, %d" % ((32 * NZ[0] if kind == "flags" else 32) - 1))
    l2 = A.newlabel("Larn")
    A("s_cbranch_scc1 %s" % l2)
    A("global_store_dword v40, v41, s[%d:%d] offset:128 sc1" % (S_DBG, S_DBG + 1))
    A.label(l2)
    A("s_mov_b64 exec, -1")
    A.label(l)

def init_wait(A, vt=40, kind="flags"):
    lp = A.newlabel("Liw"); l2 = A.newlabel("Liwd")
    if kind == "tickets":
        A("v_and_b32 v%d, 63, v0" % (vt + 1))
        A("v_lshlrev_b32 v%d, 2, v%d" % (vt + 1, vt + 1))
    elif kind == "flags": A("v_mov_b32 v%d, %d" % (vt + 1, 4 * 56))
    elif kind.startswith("chain"): A("v_mov_b32 v%d, 32" % (vt + 1))
    elif kind.startswith("go"): A("v_mov_b32 v%d, %d" % (vt + 1, 192 + 4 * int(kind[2:])))
    else:
        A("s_lshl_b32 s37, s%d, 2" % S_GRP); A("s_add_u32 s37, s37, %d" % (192 if kind == "own" else 160)); A("v_mov_b32 v%d, s37" % (vt + 1))
    if kind != "tickets":
        A("s_cmp_lg_u32 s%d, 0" % S_WAVE)
        A("s_cbranch_scc1 %s" % l2)
    A.label(lp)
    A("global_load_dword v%d, v%d, s[%d:%d] sc1" % (vt, vt + 1, S_DBG, S_DBG + 1))
    A("s_waitcnt vmcnt(0)")
    if kind == "tickets":
        A("s_mov_b32 s36, 0")
        for x in range(16):
            A("v_readlane_b32 s37, v%d, %d" % (vt, tword(x)))
            A("s_add_u32 s36, s36, s37")
        A("s_cmp_ge_u32 s36, 256")
    else:
        A("v_readfirstlane_b32 s36, v%d" % vt)
        A("s_cmp_ge_u32 s36, %d" % (32 if kind.startswith("chain") else int(kind[5:]) if kind.startswith("early") else 1))
    A("s_cbranch_scc1 %s" % l2)
    A("s_sleep %d" % (8 if kind.startswith("early") else 2))
    spin_guard(A)
    A("s_branch %s" % lp)
    A.label(l2)
    if kind in ("own", "chainm"):
        ticket_word(A)
        A("v_mov_b32 v%d, s37" % (vt + 1))
    A("s_barrier")
    if kind in ("own", "chainm"):
        A("global_load_dword v%d, v%d, s[%d:%d] sc1" % (vt, vt + 1, S_DBG, S_DBG + 1))
        A("s_waitcnt vmcnt(0)")
        A("v_readfirstlane_b32 s37, v%d" % vt)
        A("s_cmp_lt_u32 s37, 32")
        A("s_cselect_b32 s%d, 1, %d" % (S_MIXED, FORCE[0]))
NZ = [2]
FORCE = [0]

def overflow(A):
    A.label("L_overflow")
    A("s_cmp_lg_u32 s%d, 0" % S_WAVE)
    A("s_cbranch_scc1 L_of1")
    A("v_mov_b32 v1, 100")
    A("v_mov_b32 v2, 1")
    A("s_mov_b64 exec, 1")
    A("global_atomic_add v3, v1, v2, s[%d:%d] sc0" % (S_DBG, S_DBG + 1))
    A("s_waitcnt vmcnt(0)")
    A("ds_write_b32 v6, v3")
    A("s_mov_b64 exec, -1")
    A.label("L_of1")
    A("s_waitcnt lgkmcnt(0)")
    A("s_barrier")
    A("ds_read_b32 v3, v6")
    A("s_waitcnt lgkmcnt(0)")
    A("v_readfirstlane_b32 s38, v3")
    A("s_barrier")
    A("s_mov_b32 s%d, 0" % S_GRP)
    init_wait(A, kind="tickets")
    A("s_mov_b32 s%d, 0" % S_GRP)
    A.label("L_of2")
    ticket_word(A)
    A("s_lshr_b32 s37, s37, 2")
    A("v_readlane_b32 s37, v40, s37")
    A("s_min_u32 s37, s37, 32")
    A("s_sub_u32 s39, 32, s37")
    A("s_cmp_lt_u32 s38, s39")
    A("s_cbranch_scc1 L_of3")
    A("s_sub_u32 s38, s38, s39")
    A("s_add_u32 s%d, s%d, 1" % (S_GRP, S_GRP))
    A("s_cmp_lt_u32 s%d, 8" % S_GRP)
    A("s_cbranch_scc1 L_of2")
    A("s_branch L_end")
    A.label("L_of3")
    A("s_add_u32 s%d, s37, s38" % S_HEAD)
    A("s_and_b32 s%d, s%d, 31" % (S_HEAD, S_HEAD))
    A("s_branch L_roles")

def build(opt, roles):
    A = Asm()
    A.raw(HEADER.rstrip())
    A.raw("; @launch grid=(256,1,1) block=(256,1,1) lds=%d" % LDS_BYTES)
    A.raw(DOC)
    A.raw('.amdgcn_target "amdgcn-amd-amdhsa--gfx950"')
    A.raw(".text\n.globl %s\n.p2align 8\n.type %s,@function" % (KNAME, KNAME))
    A.label(KNAME)
    opt["init_wait"] = init_wait
    opt["arrive"] = arrive
    prologue(A, opt)
    roles(A, opt)
    overflow(A)
    A.label("L_end")
    A("s_endpgm")
    A.raw('''.section .rodata,"a"
.p2align 6
.amdhsa_kernel %s
  .amdhsa_next_free_vgpr 512
  .amdhsa_next_free_sgpr 102
  .amdhsa_accum_offset 256
  .amdhsa_group_segment_fixed_size 0
  .amdhsa_kernarg_size 104
  .amdhsa_user_sgpr_count 2
  .amdhsa_user_sgpr_kernarg_segment_ptr 1
  .amdhsa_system_sgpr_workgroup_id_x 1
.end_amdhsa_kernel''' % KNAME)
    errs = A.check()
    for e in errs: print(e, file=sys.stderr)
    return A.text(), errs

def roles_chain_only(A, opt):
    A("s_cmp_eq_u32 s%d, 0" % S_GRP)
    A("s_cbranch_scc1 L_chain")
    A("s_cmp_gt_u32 s%d, 2" % S_GRP)
    A("s_cbranch_scc1 L_end")
    workers.zero_flags(A, 2)
    opt["arrive"](A, "flags")
    A("s_branch L_end")
    chain.gen_chain(A, opt)

def roles_full(A, opt):
    if opt.get("tlb"):
        l = A.newlabel("Ltlb")
        A("s_cmp_lg_u32 s%d, 3" % S_WAVE)
        A("s_cbranch_scc1 %s" % l)
        A("s_cmp_gt_u32 s%d, 1" % S_HEAD)
        A("s_cbranch_scc1 %s" % l)
        A("v_and_b32 v4, 63, v0")
        A("s_lshl_b32 s37, s%d, 6" % S_HEAD)
        A("v_add_u32 v4, s37, v4")
        A("v_min_u32 v4, 95, v4")
        A("v_lshlrev_b32 v4, 21, v4")
        A("v_add_u32 v4, 0x1ff000, v4")
        A("v_mov_b32 v5, 0")
        A("global_atomic_or v4, v5, s[%d:%d]" % (S_WS, S_WS + 1))
        A.label(l)
    A("s_cmp_gt_u32 s%d, %d" % (S_GRP, opt["NP1"]))
    A("s_cbranch_scc1 L_aworker")
    A("s_cmp_lg_u32 s%d, 0" % S_GRP)
    A("s_cbranch_scc1 L_p1")
    chain.gen_chain(A, opt)
    workers.gen_p1(A, opt)
    workers.gen_p2(A, opt)
    workers.gen_aworker(A, opt)

if __name__ == "__main__":
    mode = sys.argv[1]; out = sys.argv[2]
    opt = {}
    for kv in sys.argv[3:]:
        k, x = kv.split("="); opt[k] = int(x)
    if mode == "chain":
        opt["nokv"] = True
        opt.setdefault("cyc", 1)
        t, errs = build(opt, roles_chain_only)
    if mode == "full":
        opt.setdefault("NP1", 2); opt.setdefault("NP2", 3); opt["NA"] = 7 - opt["NP1"] - opt["NP2"]
        for k, x in (("pa", 2), ("d1", 46), ("d3", 30), ("d5", 20), ("p1w", 0), ("oa", 1), ("ob", 1), ("r6", 1)): opt.setdefault(k, x)
        NZ[0] = opt["NP1"]
        FORCE[0] = 1 if opt.get("fake") == 1 else 0
        workers.ZZ[0] = opt.get("zz", 1)
        workers._RT0["rt"] = opt.get("rt")
        t, errs = build(opt, roles_full)
    open(out, "w").write(t)
    print("wrote", out, len(t), "bytes;", len(errs), "hazards")
```

```python
from common import *
import math, struct

L_KX = 0
L_VX = 8192
L_MEM = 16384
L_Z = 24576
L_O = 28672
L_VM = 30720

def f32bits(x): return struct.unpack("<I", struct.pack("<f", x))[0]

def wq_base(t, c):
    if t < 4:
        assert c >= 2
        return 256 + 8 * (t * 6 + c - 2)
    return 128 + 64 * (t - 4) + 8 * c
def wo_base(j, ch):
    return 256 + 192 + 8 * (ch * 4 + j)

def gen_chain(A, opt):
    cold = Cold()
    nokv = opt.get("nokv", False)
    LAST = opt.get("last", 63)
    opt["w0pos"] = {0: [], 1: [0, 4, 7], 2: [2, 5, 7], 3: [3, 7], 4: [1, 6]}[opt.get("w0p", 0)]
    TAG = opt.get("tag", 0)
    VP = 13
    EE = 0
    VL16, VSENT, VMLD, VZR, VZW, VOW, VWO, VPST, VMST, VIDX = 1, 11, 3, 4, 5, 6, 7, 8, 9, 10
    SELV, EXP, VMA, PM, PMB = 12, 16, 18, 20, 22
    CP = 14
    PT, VL4, VFA = 27, 2, 0
    VA = 24
    AF = 40
    FR = [48, 56, 64, 96, 104, 112, 120, 32]
    Q0, K0, Q1, K1, V0, V1 = 72, 76, 80, 84, 88, 92
    ZF, KX1, KX2 = 96, 112, 24
    S1, S2, S0 = 40, 44, 48
    M0_, M1_, T0_, T1_ = 52, 53, 54, 55
    VXC = 72
    PX, O0, O1, LA, ONES = 88, 92, 104, 108, 100
    OP, OA = 52, 104
    WACC = [40, 44, 48, 52, 72, 76, 88, 92]
    SLOTS = [80, 56, 64, 112, 120, 24, 32, 96]
    RB, RD, RT, SEL = 96, 80, 84, 88
    G0, G1 = 40, 44
    sSM = 88
    sL, sSEG, sIT = 48, 49, 50
    sMASK, sP0, sP1, sMG, sMR, sPR, sKV, sKM, sFM, sFKV, sR0, sR1 = 52, 54, 56, 58, 60, 62, 64, 68, 70, 72, 74, 78
    sC, sM0, sM1, sFW = 96, 77, 51, 76
    sST = 80
    NTR = 4

    tr_pos = opt.get("trace", 0)
    tr_used = []
    def tr(k):
        if not (tr_pos >> k) & 1: return
        if len(tr_used) >= NTR: raise ValueError("too many trace points")
        A("%s s[%d:%d]" % ("s_memrealtime" if opt.get("rtclk") else "s_memtime", sST + 2 * len(tr_used), sST + 1 + 2 * len(tr_used)))
        tr_used.append(k)

    A.label("L_chain")
    T = 40
    A("v_and_b32 v%d, 63, v0" % T)
    A("v_and_b32 v%d, 15, v0" % (T + 1))
    A("v_bfe_u32 v%d, v0, 4, 2" % (T + 2))
    A("v_lshlrev_b32 v%d, 4, v%d" % (VL16, T))
    A("v_mov_b32 v%d, -1" % VSENT)
    A("v_lshlrev_b32 v%d, 2, v%d" % (VL4, T))
    A("v_lshlrev_b32 v%d, 3, v%d" % (VZR, T))
    A("s_lshl_b32 s40, s%d, 10" % S_WAVE)
    A("v_lshlrev_b32 v%d, 5, v%d" % (VZW, T + 1))
    A("v_lshl_add_u32 v%d, v%d, 3, v%d" % (VZW, T + 2, VZW))
    A("v_add_u32 v%d, s40, v%d" % (VZW, VZW))
    A("s_lshr_b32 s41, s%d, 1" % S_WAVE)
    A("s_lshl_b32 s41, s41, 10")
    A("s_and_b32 s42, s%d, 1" % S_WAVE)
    A("s_lshl_b32 s42, s42, 5")
    A("s_add_u32 s41, s41, s42")
    A("s_add_u32 s41, s41, %d" % (L_O - 32))
    A("v_add_u32 v%d, s41, v%d" % (VOW, VL16))
    A("v_add_u32 v%d, 0x%x, v%d" % (T + 5, L_MEM, VL16))
    A("v_and_b32 v%d, 2, v%d" % (T + 3, T))
    A("v_cmp_ne_u32 vcc, 0, v%d" % (T + 3))
    A("v_mov_b32 v%d, 0xeeee" % (T + 6))
    A("v_mov_b32 v%d, 0x4444" % (T + 7))
    A("v_cndmask_b32 v%d, v%d, v%d, vcc" % (VOW, T + 5, VOW))
    A("v_cndmask_b32 v%d, v%d, v%d, vcc" % (VIDX, T + 7, T + 6))
    A("v_lshrrev_b32 v%d, 3, v%d" % (T + 5, T + 1))
    A("v_lshlrev_b32 v%d, 13, v%d" % (VWO, T + 5))
    A("v_and_b32 v%d, 7, v%d" % (T + 5, T + 1))
    A("v_lshl_add_u32 v%d, v%d, 3, v%d" % (T + 5, T + 2, T + 5))
    A("v_lshl_add_u32 v%d, v%d, 4, v%d" % (VWO, T + 5, VWO))
    A("s_lshl_b32 s41, s%d, 15" % S_WAVE)
    A("s_add_u32 s41, s41, %d" % L_WO)
    A("v_add_u32 v%d, s41, v%d" % (VWO, VWO))
    A("s_lshl_b32 s41, s%d, 11" % S_WAVE)
    A("v_add_u32 v%d, s41, v%d" % (VMLD, VL16))
    A("s_mov_b32 s%d, s41" % sM0)
    A("s_add_u32 s%d, s41, %d" % (sM1, L_VX))
    A("v_lshrrev_b32 v%d, 2, v%d" % (T + 5, T + 1))
    A("v_lshlrev_b32 v%d, 13, v%d" % (VPST, T + 5))
    A("v_and_b32 v%d, 3, v%d" % (T + 5, T + 1))
    A("v_lshl_add_u32 v%d, v%d, 2, v%d" % (T + 6, T + 2, T + 5))
    A("v_lshl_add_u32 v%d, v%d, 4, v%d" % (VPST, T + 6, VPST))
    A("s_lshl_b32 s41, s%d, 16" % S_WAVE)
    A("s_lshl_b32 s42, s%d, 8" % S_HEAD)
    A("s_add_u32 s41, s41, s42")
    A("v_add_u32 v%d, s41, v%d" % (VPST, VPST))
    A("v_and_b32 v%d, 12, v%d" % (T + 6, T + 1))
    A("v_add_u32 v%d, v%d, v%d" % (T + 6, T + 6, T + 2))
    A("v_lshlrev_b32 v%d, 4, v%d" % (VMST, T + 6))
    A("v_lshl_add_u32 v%d, v%d, 2, v%d" % (VMST, T + 5, VMST))
    A("v_add_u32 v%d, s42, v%d" % (VMST, VMST))
    A("v_and_b32 v%d, 1, v%d" % (T + 5, T))
    A("v_lshlrev_b32 v%d, 4, v%d" % (T + 5, T + 5))
    A("v_mov_b32 v%d, 0x3f80" % (T + 7))
    A("v_lshlrev_b32 v%d, v%d, v%d" % (T + 7, T + 5, T + 7))
    A("v_cndmask_b32_e64 v%d, v%d, 0, vcc" % (SELV, T + 7))
    A("v_lshrrev_b32 v%d, 2, v%d" % (T + 6, T + 1))
    for rr in range(4): A("v_cmp_eq_u32 s[%d:%d], %d, v%d" % (sSM + 2 * rr, sSM + 2 * rr + 1, rr ^ 2, T + 6))
    for r in (EXP, VMA, PM, PMB): A("v_mov_b64 v[%d:%d], 0" % (r, r + 1))
    A("s_mov_b32 s%d, 0x%x" % (sC, f32bits(128 ** -0.5 * math.log2(math.e))))
    A("s_mov_b32 s%d, s%d" % (sC + 1, sC))
    A("s_cmp_eq_u32 s%d, 3" % S_WAVE)
    A("s_cselect_b32 s%d, %d, 64" % (sFW, 2 - EE))
    A("s_mov_b32 s%d, 0" % sIT)
    if opt.get("cnt"):
        for r in (85, 86, 87): A("s_mov_b32 s%d, 0" % r)
    A("s_mov_b32 s%d, 0" % sL)
    rt_stamp(A, opt, 500, 40, 41)
    A("v_mov_b64 v[44:45], -1"); A("v_mov_b64 v[46:47], -1")
    A("s_lshl_b32 s40, s%d, 13" % S_HEAD)
    for k in range(2):
        A("s_add_u32 s41, s40, 0x%x" % (OFF_CPART + k * 0x40000)); sadd64(A, 42, S_WS, "s41")
        for i in range(2): A("global_store_dwordx4 v%d, v[44:47], s[42:43] offset:%d sc1" % (VMLD, i * 1024))
    A("s_lshl_b32 s41, s%d, 13" % S_WAVE)
    A("s_add_u32 s41, s41, 0x%x" % OFF_CMEM); sadd64(A, 42, S_WS, "s41")
    A("global_store_dword v%d, v44, s[42:43] sc1" % VMST)
    for k in range(2 * (64 - KM_POLL)):
        A("s_add_u32 s41, s40, 0x%x" % (OFF_KM + (64 * (k & 1) + KM_POLL + (k >> 1)) * 32 * 8192)); sadd64(A, 42, S_WS, "s41")
        A("global_store_dwordx4 v%d, v[44:47], s[42:43] sc1" % VMLD)
    for k in range(0 if nokv else 4):
        A("s_add_u32 s41, s40, 0x%x" % ((OFF_KX, OFF_VX)[k & 1] + 64 * (k >> 1) * 32 * 8192)); sadd64(A, 42, S_WS, "s41")
        for i in range(2): A("global_store_dwordx4 v%d, v[44:47], s[42:43] offset:%d sc1" % (VMLD, i * 1024))
    A.nop(2)
    def mid(A):
        l = A.newlabel("Lmid")
        A("s_cmp_lg_u32 s%d, 0" % S_WAVE)
        A("s_cbranch_scc1 %s" % l)
        A("v_mov_b32 v112, 32")
        A("v_mov_b32 v113, 1")
        A("s_mov_b64 exec, 1")
        A("global_atomic_add v112, v113, s[%d:%d]" % (S_DBG, S_DBG + 1))
        A("s_mov_b64 exec, -1")
        A.label(l)
    load_head_weights(A, 40, wq_base, True, vwo=VWO, wo_base=wo_base, mid=mid)
    rt_stamp(A, opt, 501, 40, 41)
    dbg_time(A, opt, "8", 40, 41)
    opt["init_wait"](A, kind="chainm")
    opt["init_wait"](A)
    rt_stamp(A, opt, 502, 40, 41)

    def pkadd(d): A("v_pk_add_f32 v[%d:%d], v[%d:%d], v[%d:%d]" % (d, d + 1, d, d + 1, d + 2, d + 3))
    def add1(d, e): A("v_add_f32 v%d, v%d, v%d" % (d + e, d + e, d + 2 + e))
    def cvt(d, x, y): A("v_cvt_pk_bf16_f32 v%d, v%d, v%d" % (d, x, y))
    def rd128(d, addr, off): A("ds_read_b128 v[%d:%d], v%d offset:%d" % (d, d + 3, addr, off))
    def z64(r): A("v_mov_b64 v[%d:%d], 0" % (r, r + 1))

    def setup_part_bases():
        sadd64(A, sKV, sKV, 32 * 8192)
        sadd64(A, sKV + 2, sKV + 2, 32 * 8192)
        sadd64(A, sKM, sKM, 32 * 8192)
        sadd64(A, sFM, sFM, 4)
        A("s_and_b32 s40, s%d, %d" % (sIT, 0 if TAG else 1))
        if TAG: A("v_mov_b32 v%d, s%d" % (VP, sIT))
        A("s_lshl_b32 s40, s40, 18")
        A("s_add_u32 s41, s40, 0x%x" % OFF_CPART); sadd64(A, sP0, S_WS, "s41")
        sadd64(A, sP1, sP0, 32768)
        A("s_lshl_b32 s42, s%d, 13" % S_HEAD)
        sadd64(A, sR0, sP0, "s42")
        sadd64(A, sR1, sR0, 4096)
        A("s_xor_b32 s41, s41, 0x40000")
        A("s_add_u32 s41, s41, s42"); sadd64(A, sPR, S_WS, "s41")
    def prefetch_own(hook=None, only=range(8)):
        for p in range(1, 4):
            if 0 in only: A("v_xor_b32 v%d, %d, v%d" % (VA + p - 1, p * 2048, VMLD))
        for n, (X, Tt, cc) in enumerate([(0, 0, 0), (1, 0, 0), (0, 1, 0), (1, 1, 0), (0, 0, 1), (1, 0, 1), (0, 1, 1), (1, 1, 1)]):
            f = (X * 2 + Tt) * 2 + cc
            if n not in only: continue
            if hook: hook(n)
            for hB in range(2): rd128(FR[n] + 4 * hB, VWO, 16384 + f * 1024 + hB * 512)
    def kv_check(tmp, sreg):
        if nokv: return
        lp = A.newlabel("Lkvp"); ok = A.newlabel("Lkvo")
        A.label(ok)
        A("s_bitcmp0_b64 s[%d:%d], %s" % (sMASK, sMASK + 1, sreg))
        A("s_cbranch_scc1 %s" % lp)
        def blk(A):
            A.label(lp)
            A("global_load_dword v%d, v%d, s[%d:%d] sc1" % (tmp, VL4, sFKV, sFKV + 1))
            A("s_waitcnt vmcnt(0)")
            A("v_cmp_ne_u32 s[%d:%d], 0, v%d" % (sMASK, sMASK + 1, tmp))
            A("s_sleep 1")
            spin_guard(A)
            A("s_branch %s" % ok)
        cold.add(blk)
    def kv_ops():
        return [["s_mov_b32 m0, s%d" % sM0, "s_nop 0",
                 "global_load_lds_dwordx4 v%d, s[%d:%d] sc1" % (VMLD, sKV, sKV + 1)],
                ["global_load_lds_dwordx4 v%d, s[%d:%d] offset:1024 sc1" % (VMLD, sKV, sKV + 1), "s_mov_b32 m0, s%d" % sM1],
                ["global_load_lds_dwordx4 v%d, s[%d:%d] sc1" % (VMLD, sKV + 2, sKV + 3)],
                ["global_load_lds_dwordx4 v%d, s[%d:%d] offset:1024 sc1" % (VMLD, sKV + 2, sKV + 3)]]
    def exp_st():
        return "global_store_dwordx4 v%d, v[%d:%d], s[%d:%d] sc1" % (VMLD, EXP, EXP + 3, sKM, sKM + 1)
    def flag(tmp, off):
        A("v_mov_b32 v%d, 0" % tmp)
        A("global_store_dword v%d, v%d, s[%d:%d] offset:%d sc1" % (tmp, VSENT, sFM, sFM + 1, off))

    A.label("L_ch_layer")
    A("s_mov_b32 s%d, 0" % sSEG)
    A("s_mov_b64 s[%d:%d], 0" % (sMASK, sMASK + 1))
    A("s_lshl_b32 s40, s%d, 5" % sL)
    A("s_add_u32 s40, s40, s%d" % S_HEAD)
    A("s_lshl_b32 s40, s40, 8")
    A("s_add_u32 s41, s40, 0x%x" % F_KV)
    sadd64(A, sFKV, S_WS, "s41")
    A("s_add_u32 s41, s40, 0x%x" % (F_M - 12 + 4 * EE))
    sadd64(A, sFM, S_WS, "s41")
    A("s_lshl_b32 s40, s%d, 11" % sL)
    A("s_add_u32 s40, s40, s%d" % S_HEAD)
    A("s_lshl_b32 s40, s40, 13")
    A("s_add_u32 s41, s40, 0x%x" % OFF_KX); sadd64(A, sKV, S_WS, "s41")
    A("s_add_u32 s41, s40, 0x%x" % OFF_VX); sadd64(A, sKV + 2, S_WS, "s41")
    A("s_add_u32 s41, s40, 0x%x" % (OFF_KM - (2 - EE) * 32 * 8192)); sadd64(A, sKM, S_WS, "s41")
    A("v_bfe_u32 v27, v2, 4, 2")
    A("v_bfe_u32 v28, v2, 2, 1")
    A("v_lshl_add_u32 v27, v27, 1, v28")
    A("v_lshlrev_b32 v27, 10, v27")
    A("v_bfe_u32 v28, v2, 3, 1")
    A("v_lshl_add_u32 v27, v28, 2, v27")
    A("v_bfe_u32 v28, v2, 6, 2")
    A("v_lshl_add_u32 v27, v28, 5, v27")
    A("v_mov_b32 v%d, 0" % VFA)
    A("s_lshl_b32 s40, s%d, 8" % S_WAVE)
    A("v_add_u32 v27, s40, v27")
    for i in range(2):
        for p in range(4):
            A("global_load_dword v%d, v27, s[%d:%d] offset:%d" % (G0 + 4 * i + p, S_MEM0, S_MEM0 + 1, i * 128 + p * 8))
    if nokv:
        for g_ in kv_ops():
            for t in g_: A(t)
            A("s_nop 0")
    else:
        poll_tile(A, [(VMLD, sKV, 0), (VMLD, sKV, 1024), (VMLD, sKV + 2, 0), (VMLD, sKV + 2, 1024)], 96, 28,
                  [(VMLD, L_KX), (VMLD, L_KX + 1024), (VMLD, L_VX), (VMLD, L_VX + 1024)])
    if opt.get("rt") or opt.get("cyc"):
        A("s_add_u32 s47, s%d, 400" % sL)
        rt_stamp(A, dict(rt=opt.get("rt") or 2), "s47", 27, 28)
    if opt.get("dbgt"):
        A("s_lshl_b32 s47, s%d, 1" % sL); A("s_add_u32 s47, s47, 9")
        dbg_time(A, opt, "s47", 27, 28)
        A("s_add_u32 s47, s47, 4")
        dbg_time(A, opt, "s47", 27, 28, cyc=True)
    for r in range(0, 24, 2): z64(Q0 + r)
    setup_part_bases()
    prefetch_own()
    A("s_waitcnt vmcnt(0)")
    if not opt.get("og"):
        A("ds_write_b128 v%d, v[%d:%d] offset:%d" % (VMLD, G0, G0 + 3, L_MEM))
        A("ds_write_b128 v%d, v[%d:%d] offset:%d" % (VMLD, G1, G1 + 3, L_MEM + 1024))
    A("s_waitcnt lgkmcnt(%d)" % (0 if opt.get("og") else 2))
    A("s_branch L_ch_step")

    A.raw(".p2align 6")
    PA = opt.get("pa", 1)
    def ldA():
        A("global_load_dwordx4 v[%d:%d], v%d, s[%d:%d] sc1" % (G0, G0 + 3, VMLD, sMG, sMG + 1))
        A("global_load_dwordx4 v[%d:%d], v%d, s[%d:%d] offset:1024 sc1" % (G1, G1 + 3, VMLD, sMG, sMG + 1))
    A.label("L_ch_retryA")
    ldA()
    if opt.get("cnt"): A("s_add_u32 s87, s87, 1")
    spin_guard(A)
    A.label("L_ch_pollA")
    A("s_waitcnt vmcnt(%d) lgkmcnt(0)" % (2 * (PA - 1)))
    A("v_max_u32 v%d, v%d, v%d" % (PT, G0, G1))
    A("v_cmp_eq_u32 vcc, -1, v%d" % PT)
    if not opt.get("og"):
        A("ds_write_b128 v%d, v[%d:%d] offset:%d" % (VMLD, G0, G0 + 3, L_MEM))
        A("ds_write_b128 v%d, v[%d:%d] offset:%d" % (VMLD, G1, G1 + 3, L_MEM + 1024))
    A("s_cbranch_vccnz L_ch_retryA")
    if tr_pos:
        tr(26)
        lt = A.newlabel("Ltr")
        A("s_cmp_eq_u32 s%d, %d" % (sIT, opt.get("trit", 100)))
        A("s_cbranch_scc1 %s" % lt)
        A.label(lt + "b")
        def blk(A):
            A.label(lt)
            A("s_waitcnt lgkmcnt(0)")
            A("s_lshl_b32 s40, s%d, 2" % S_HEAD)
            A("s_add_u32 s40, s40, s%d" % S_WAVE)
            A("s_lshl_b32 s40, s40, 7")
            A("s_add_u32 s40, s40, 0x%x" % (OFF_STAMP + 0x400000))
            sadd64(A, 42, S_WS, "s40")
            A("v_mov_b32 v27, 0")
            for n, k in enumerate(tr_used):
                A("v_mov_b32 v28, s%d" % (sST + 2 * n))
                A("global_store_dword v27, v28, s[42:43] offset:%d" % (4 * k))
            A("s_branch %s" % (lt + "b"))
        cold.add(blk)
    A.label("L_ch_step")
    tr(0)
    def smfr(acc, c, breg):
        A("v_smfmac_f32_16x16x64_bf16 v[%d:%d], v[%d:%d], %s, v%d" % (acc, acc + 3, AF + 4 * c, AF + 4 * c + 3, R(breg, 8), VIDX))
    def smf(acc, c, tile): smfr(acc, c, wq_base(tile, c))
    accs = [Q0, K0, Q1, K1]
    def mf(d, x, y, c, k32=True):
        n = 4 if k32 else 2
        A("v_mfma_f32_16x16x%d_bf16 v[%d:%d], v[%d:%d], v[%d:%d], %s" % (32 if k32 else 16, d, d + 3, x, x + n - 1, y, y + n - 1, c))
    acc = lambda r: "v[%d:%d]" % (r, r + 3)
    def trd(k):
        dc, Tt = k >> 1, k & 1
        A("ds_read_b64_tr_b16 v[%d:%d], v%d offset:%d" % (ZF + 2 * k, ZF + 2 * k + 1, VZR, L_Z + dc * 1024 + Tt * 512))
    for n in range(4 + opt.get("og2", 0)):
        smfr(accs[n & 3], n >> 2, FR[n])
        if opt.get("og") and n < 2: A("ds_write_b128 v%d, v[%d:%d] offset:%d" % (VMLD, G0 + 4 * n, G0 + 4 * n + 3, L_MEM + 1024 * n))
    A("s_waitcnt lgkmcnt(0)")
    A("s_barrier")
    tr(1)
    own = [lambda n=n: smfr(accs[n], 1, FR[4 + n]) for n in range(opt.get("og2", 0), 4)] + \
          [lambda a_=a_, c=c, t=t: smf(a_, c, t) for c in range(2) for a_, t in ((V0, 4), (V1, 5))]
    rd128(AF + 8, VA, L_MEM)
    for c in range(3, 8):
        rd128(AF + 4 * c, VA + c // 2 - 1, L_MEM + (c & 1) * 1024)
        if len(own) > 1 and (c - 2 <= len(own) + 4 or True) and not (opt.get("og2", 0) and c in (4, 6)): own.pop(0)()
    while len(own) > 1: own.pop(0)()
    R1 = opt.get("r1", 0) or TAG
    if not R1:
        if PA > 1: A("s_waitcnt vmcnt(0)")
        store_mixed(A, cold, ["global_store_dword v%d, v%d, s[%d:%d]" % (VMLD, VSENT, sPR, sPR + 1),
                              "global_store_dword v%d, v%d, s[%d:%d] offset:1024" % (VMLD, VSENT, sPR, sPR + 1)])
    else:
        own.pop(0)()
        if PA > 1: A("s_waitcnt vmcnt(0)")
    A("s_cmp_lt_u32 s%d, s%d" % (sSEG, sFW))
    A("s_cbranch_scc0 L_ch_flag")
    A.label("L_ch_noflag")
    if own: own.pop(0)()
    A("s_cmp_eq_u32 s%d, 0" % sSEG)
    A("s_cselect_b32 s40, 4, s%d" % S_WAVE)
    EM = opt.get("em", 0)
    def exp_turn(k):
        if opt.get("noexp"): return
        l = A.newlabel("Lex")
        if EM == 0 and k == 0 and not EE:
            A("s_cbranch_scc1 %s" % l); A(exp_st()); A.label(l)
        if EM == 1 and k in (0, 2):
            A("s_cbranch_scc1 %s" % l)
            A("global_store_dwordx2 v%d, v[%d:%d], s[%d:%d] offset:%d sc1" % (VMLD, EXP + k, EXP + k + 1, sKM, sKM + 1, 4 * k))
            A.label(l)
        if EM == 2:
            A("s_cmp_lg_u32 s40, %d" % k); A("s_cbranch_scc1 %s" % l); A(exp_st()); A.label(l)
        if EM == 3 and k in (0, 2):
            A("s_cmp_lg_u32 s41, %d" % (k >> 1)); A("s_cbranch_scc1 %s" % l); A(exp_st()); A.label(l)
    if EM == 3: A("s_lshr_b32 s41, s40, 1")
    tr(2)
    kx = [(KX1 + 4 * d, VL16, L_KX + d * 1024) for d in range(4)] + [(KX2 + 4 * d, VL16, L_KX + 4096 + d * 1024) for d in range(4)]
    extra = 0
    for c in range(2, 8):
        A("s_waitcnt lgkmcnt(%d)" % (7 - c + extra))
        if not opt.get("xnoq"): smf(Q0, c, 0)
        if c >= 4: rd128(*kx.pop(0)); extra += 1
        else: exp_turn(2 * (c - 2))
        smf(K0, c, 2)
        if c >= 4: rd128(*kx.pop(0)); extra += 1
        else: exp_turn(2 * (c - 2) + 1)
    assert not kx
    tr(3)
    OB = opt.get("ob", 0)
    seq = [(a_, c, t) for c in range(2, 8) for a_, t in ((Q1, 1), (K1, 3))]
    if OB: seq = [(Q1, c, 1) for c in range(2, 8)] + [(K1, c, 3) for c in range(2, 8)]
    for i, x in enumerate(seq):
        smf(*x)
        if i == 0: A("s_add_u32 s41, s%d, 1" % sSEG); A.nop(2)
        if i == 1:
            if not nokv:
                A("v_cmp_ne_u32 vcc, 0, v%d" % VFA)
                A("s_or_b64 s[%d:%d], s[%d:%d], vcc" % (sMASK, sMASK + 1, sMASK, sMASK + 1))
            else: A.nop(2)
        if i == 2: add1(Q0, 0)
        if i == 3: add1(Q0, 1)
        if i == 4: add1(K0, 0)
        if i == 5: add1(K0, 1)
        if i == 6: cvt(K0 + 3, Q0, Q0 + 1)
        if i == 7: cvt(K0 + 2, K0, K0 + 1)
        if i == 8:
            A("ds_write_b64 v%d, v[%d:%d] offset:%d" % (VZW, K0 + 2, K0 + 3, L_Z)); A("v_min_u32 v%d, -2, v%d" % (EXP, K0 + 2))
        if i == 9: rd128(VXC, VMLD, L_VX)
        if i == 10: rd128(VXC + 4, VMLD, L_VX + 1024)
        if OB and i == 9: add1(Q1, 0)
        if OB and i == 10: add1(Q1, 1)
        if OB and i == 11: cvt(Q1 + 3, Q1, Q1 + 1)
    tr(4)
    vq = [x for c in range(2, 8) for x in ((V0, c, 4), (V1, c, 5))]
    def vs(n=1):
        for _ in range(n):
            if vq: smf(*vq.pop(0))
    vs(); A.nop(3); vs(); A.nop(2 + OB)
    if OB:
        add1(K1, 0); add1(K1, 1); cvt(Q1 + 2, K1, K1 + 1)
    else:
        add1(Q1, 0); add1(Q1, 1); add1(K1, 0); add1(K1, 1)
        cvt(Q1 + 3, Q1, Q1 + 1); cvt(Q1 + 2, K1, K1 + 1)
    A("ds_write_b64 v%d, v[%d:%d] offset:%d" % (VZW, Q1 + 2, Q1 + 3, L_Z + 512))
    tr(5)
    vs()
    A("v_mov_b32 v%d, v%d" % (EXP + 1, Q1 + 2))
    vs(opt.get("vpre", 4) - 1)
    A("s_waitcnt lgkmcnt(0)")
    A("s_barrier")
    tr(6)
    tq = list(range(8))
    trd(tq.pop(0)); trd(tq.pop(0))
    while vq:
        vs()
        for _ in range(2 if len(tq) > len(vq) + 1 else 1):
            if tq: trd(tq.pop(0))
    while tq: trd(tq.pop(0))
    A("s_cmp_eq_u32 s%d, %d" % (sSEG, LAST))
    A("s_cbranch_scc1 L_ch_last")
    vq_last = []
    kv_check(52, "s41")
    kvo = kv_ops()
    if opt.get("nodma"): kvo = [["s_nop 0"]] * 4
    wrd = []
    for i in range(8):
        off = (i >> 1) * 2048 + (i & 1) * 1024
        wrd += [(SLOTS[i], VWO, off), (SLOTS[i] + 4, VWO, off + 512)]
    def w(): rd128(*wrd.pop(0))
    nw = 0
    R4 = opt.get("r4", 0)
    for dc in range(4):
        A("s_waitcnt lgkmcnt(%d)" % (6 - 2 * dc + nw))
        z = ZF + 4 * dc
        mf(S1, KX1 + 4 * dc, z, "0" if dc == 0 else acc(S1))
        if dc < (1 if R4 else 3): w(); nw += 1
        if dc == 2: add1(V0, 1)
        if dc == 3: cvt(VMA, V0, V0 + 1)
        mf(S2, KX2 + 4 * dc, z, "0" if dc == 0 else acc(S2))
        if dc < (1 if R4 else 3): w(); nw += 1
        if dc == 2: add1(V1, 0)
        if dc == 3: cvt(VMA + 1, V1, V1 + 1); A("v_min_u32 v%d, -2, v%d" % (VMA, VMA))
        if R4 and dc == 1: add1(V0, 0)
        mf(S0, z, z, "0" if dc == 0 else acc(S0))
        for t in kvo.pop(0): A(t)
        if dc == 1 and not R4: add1(V0, 0)
        if dc == 2: add1(V1, 1)
    tr(7)
    if not nokv: A("global_load_dword v%d, v%d, s[%d:%d] sc1" % (VFA, VL4, sFKV, sFKV + 1))
    else: A("s_nop 0")
    if EE: A(exp_st())
    A("v_mov_b32 v%d, 0x3f803f80" % ONES)
    A("v_mov_b32 v%d, 0x3f803f80" % (ONES + 1))
    A("v_max3_f32 v%d, v%d, v%d, v%d" % (M0_, S1, S1 + 1, S1 + 2))
    A("v_mov_b32 v%d, 0x3f803f80" % (ONES + 2))
    A("v_max3_f32 v%d, v%d, v%d, v%d" % (M1_, S1 + 3, S2, S2 + 1))
    A("v_max3_f32 v%d, v%d, v%d, v%d" % (M0_, M0_, S2 + 2, S2 + 3))
    A("v_max3_f32 v%d, v%d, v%d, v%d" % (M1_, M1_, S0, S0 + 1))
    A("v_max_f32 v%d, v%d, v%d" % (T0_, M0_, M1_))
    A("v_max_f32 v%d, v%d, v%d" % (T1_, M0_, M1_))
    A("v_mov_b32 v%d, 0x3f803f80" % (ONES + 3))
    A("s_add_u32 s40, s%d, 1" % sIT)
    A("v_permlane32_swap_b32 v%d, v%d" % (T0_, T1_))
    A("v_max_f32 v%d, v%d, v%d" % (M0_, T0_, T1_))
    A("v_max_f32 v%d, v%d, v%d" % (M1_, T0_, T1_))
    A("s_and_b32 s40, s40, 3")
    A("s_lshl_b32 s40, s40, 13")
    A("v_permlane16_swap_b32 v%d, v%d" % (M0_, M1_))
    A("v_max_f32 v%d, v%d, v%d" % (M0_, M0_, M1_))
    A("v_mul_f32 v%d, s%d, v%d" % (M0_, sC, M0_))
    tr(8)
    def pkf(r): A("v_pk_fma_f32 v[%d:%d], v[%d:%d], s[%d:%d], v[%d:%d] op_sel_hi:[1,0,0] neg_lo:[0,0,1] neg_hi:[0,0,1]" % (r, r + 1, r, r + 1, sC, sC + 1, M0_, M0_ + 1))
    def ex(r):
        if not opt.get("xnoexp"): A("v_exp_f32 v%d, v%d" % (r, r))
    pkf(S1); pkf(S1 + 2); ex(S1); ex(S1 + 1); pkf(S2); ex(S1 + 2); ex(S1 + 3); pkf(S2 + 2)
    cvt(PX, S1, S1 + 1); ex(S2); ex(S2 + 1); cvt(PX + 1, S1 + 2, S1 + 3); pkf(S0); ex(S2 + 2); ex(S2 + 3)
    cvt(PX + 2, S2, S2 + 1); ex(S0); cvt(PX + 3, S2 + 2, S2 + 3); ex(S0 + 1)
    tr(9)
    A("s_add_u32 s40, s40, 0x%x" % OFF_CMEM)
    mf(LA, ONES, PX, "0")
    if R4: w()
    cvt(PM, S0, S0 + 1)
    mf(O1, VXC + 4, PX, "0")
    w(); cvt(PMB + 1, S0, S0 + 1)
    mf(O0, VXC, PX, "0")
    w(); sadd64(A, sMG, S_WS, "s40")
    A("v_mov_b32 v%d, 0" % S1)
    mf(LA, ONES, PM, acc(LA), k32=False)
    w(); A("v_mov_b32 v%d, 0" % (S1 + 1)); A.nop(1)
    mf(O1, VMA, PMB, acc(O1), k32=False)
    w(); A("v_mov_b32 v%d, 0" % (S1 + 2))
    mf(O0, VMA, PM, acc(O0), k32=False)
    if R4: w()
    A("v_mov_b32 v%d, 0" % (S1 + 3))
    z64(WACC[1]); z64(WACC[1] + 2)
    A("v_rcp_f32 v%d, v%d" % (LA, LA))
    z64(WACC[2])
    for r in (O1, O1 + 2, O0, O0 + 2):
        if r == O0: z64(WACC[2] + 2)
        A("v_pk_mul_f32 v[%d:%d], v[%d:%d], v[%d:%d] op_sel_hi:[1,0]" % (r, r + 1, r, r + 1, LA, LA + 1))
    cvt(OP + 2, O1, O1 + 1); cvt(OP + 3, O1 + 2, O1 + 3); cvt(OP, O0, O0 + 1); cvt(OP + 1, O0 + 2, O0 + 3)
    A("ds_write_b128 v%d, v[%d:%d]" % (VOW, OP, OP + 3))
    tr(10)
    for t in (4, 5, 6, 7): z64(WACC[t]); z64(WACC[t] + 2)
    for _ in range(opt.get("wfill", 0)): A("v_mov_b32 v%d, 0" % CP)
    if R1: A("s_waitcnt lgkmcnt(0)")
    else: A("s_waitcnt vmcnt(%d) lgkmcnt(0)" % ((0 if opt.get("nodma") else 4 if nokv else 5) + EE))
    tr(11)
    A("s_barrier")
    tr(12)
    rd128(OA, VL16, L_O); rd128(OA + 4, VL16, L_O + 1024)
    z64(WACC[3]); z64(WACC[3] + 2)
    A("s_and_b32 s40, s%d, 3" % sIT); A("s_lshl_b32 s40, s40, 13"); A("s_add_u32 s40, s40, 0x%x" % OFF_CMEM)
    def tile_ops(d): return ["v_add_f32 v%d, v%d, v%d" % (d + e, d + e, d + 2 + e) for e in range(2)]
    def cv(d, x, y): return "v_cvt_pk_bf16_f32 v%d, v%d, v%d" % (d, x, y)
    t0, t1 = WACC[:4], WACC[4:]
    order = [(j, ch) for j in range(8) for ch in range(2)]
    a0, a1, a2, a3 = [tile_ops(x) for x in t0]
    b0, b1, b2, b3 = [tile_ops(x) for x in t1]
    mn = lambda r: "v_bfi_b32 v%d, 1, v%d, v%d" % (r, VP, r) if TAG else "v_min_u32 v%d, -2, v%d" % (r, r)
    fill = {3: ["s_nop 0"], 4: [a0[0]], 5: [a0[1]], 6: [a1[0]], 7: [a1[1]], 8: [cv(t0[0] + 2, t0[0], t0[1]), a2[0]],
            9: [cv(t0[0] + 3, t0[0] + 1, t0[1] + 1), a2[1]], 10: ["s_nop 0", a3[0]], 11: [a3[1], cv(t0[0], t0[2], t0[3])],
            12: [cv(t0[0] + 1, t0[2] + 1, t0[3] + 1), mn(t0[0])], 13: [b0[0]], 14: [b0[1], b1[0]], 15: [b1[1]]}
    nlate = len(wrd)
    R6 = opt.get("r6", 0)
    if R6: A("s_cmp_lg_u32 s%d, 0" % S_MIXED)
    issued = 0
    for i, (Tt, ch) in enumerate(order):
        if i == 0: A("s_waitcnt lgkmcnt(1)")
        if i == 1: A("s_waitcnt lgkmcnt(%d)" % issued)
        if i >= 8:
            need = 2 * (i - 8) + 2 - (16 - nlate)
            if need > 0: A("s_waitcnt lgkmcnt(%d)" % (issued - need))
        b = wo_base(Tt, ch) if i < 8 else SLOTS[i - 8]
        a_ = WACC[Tt]
        A("v_smfmac_f32_16x16x64_bf16 v[%d:%d], v[%d:%d], %s, v%d" % (a_, a_ + 3, OA + 4 * ch, OA + 4 * ch + 3, R(b, 8), VIDX))
        if i == 0: tr(13)
        if i == 7: tr(14)
        if i == 15: tr(15)
        if wrd: rd128(*wrd.pop(0)); issued += 1
        for t in fill.get(i, []): A(t)
        if i == 12:
            store_mixed(A, cold, ["global_store_dwordx4 v%d, v[%d:%d], s[%d:%d]" % (VPST, t0[0], t0[0] + 3, sP0, sP0 + 1)], cmp=not R6)
    assert not wrd
    for t in [cv(t1[0] + 2, t1[0], t1[1]), cv(t1[0] + 3, t1[0] + 1, t1[1] + 1)] + b2 + ["s_nop %d" % (2 + R6)] + b3 + \
             [cv(t1[0], t1[2], t1[3]), cv(t1[0] + 1, t1[2] + 1, t1[3] + 1), mn(t1[0])]: A(t)
    store_mixed(A, cold, ["global_store_dwordx4 v%d, v[%d:%d], s[%d:%d]" % (VPST, t1[0], t1[0] + 3, sP1, sP1 + 1)], cmp=not R6)
    tr(20)
    sadd64(A, sMR, S_WS, "s40")
    A("s_add_u32 s%d, s%d, 1" % (sSEG, sSEG))
    A("s_add_u32 s%d, s%d, 1" % (sIT, sIT))
    for r in (4, 6, 20, 22): z64(Q0 + r)
    A("s_cmp_lg_u32 s%d, 0" % S_WAVE)
    A("s_cbranch_scc1 L_ch_nored")
    for rr in range(4): A("v_cndmask_b32 v%d, 0, v%d, s[%d:%d]" % (SEL + rr, SELV, sSM + 2 * rr, sSM + 2 * rr + 1))
    if R1 and not TAG:
        sadd64(A, 42, sPR, 4096)
        store_mixed(A, cold, ["global_store_dword v%d, v%d, s[%d:%d] offset:%d" % (VL16, VSENT, sPR if i < 4 else 42, (sPR if i < 4 else 42) + 1, (i & 3) * 1024) for i in range(8)])
    prefetch_own(only=(0, 1, 2, 7))
    if opt.get("d1", 0): A.nop(opt["d1"])
    def ldB(i):
        b = sR0 if i < 4 else sR1
        A("global_load_dwordx4 v[%d:%d], v%d, s[%d:%d] offset:%d sc1" % (RB + 4 * i, RB + 4 * i + 3, VL16, b, b + 1, (i & 3) * 1024))
    tr(21)
    A.label("L_ch_rB")
    for i in range(8): ldB(i)
    if opt.get("cnt"): A("s_add_u32 s86, s86, 1")
    spin_guard(A)
    A("s_waitcnt vmcnt(7)")
    if TAG:
        A("v_bitop3_b32 v%d, v%d, v%d, 1 bitop3:0x28" % (RT, RB, VP))
        A("v_cmp_ne_u32 vcc, 0, v%d" % RT)
    else: A("v_cmp_eq_u32 vcc, -1, v%d" % RB)
    mf(RD, SEL, RB, "0")
    A("s_cbranch_vccnz L_ch_rB")
    if opt.get("cnt"): A("s_add_u32 s85, s85, 1")
    tr(22)
    for i in range(1, 8):
        A("s_waitcnt vmcnt(%d)" % (7 - i))
        mf(RD, SEL, RB + 4 * i, acc(RD))
        if TAG:
            A("v_bitop3_b32 v%d, v%d, v%d, v%d bitop3:0xbe" % (RT, RB + 4 * i, VP, RT))
        else:
            if i == 2: A("v_max_u32 v%d, v%d, v%d" % (RT, RB + 4, RB + 8))
            if i in (4, 6): A("v_max3_u32 v%d, v%d, v%d, v%d" % (RT, RT, RB + 4 * i - 4, RB + 4 * i))
    tr(23)
    if TAG:
        A("v_and_b32 v%d, 1, v%d" % (RT, RT))
        A("v_cmp_ne_u32 vcc, 0, v%d" % RT)
    else:
        A("v_max_u32 v%d, v%d, v%d" % (RT, RT, RB + 28))
        A("v_cmp_eq_u32 vcc, -1, v%d" % RT)
    if opt.get("oa"):
        A.nop(6 - TAG)
        cvt(RT, RD, RD + 1)
        A("v_min_u32 v%d, -2, v%d" % (RT, RT))
        A("s_cbranch_vccnz L_ch_rB")
    else:
        A.nop(5)
        A("s_cbranch_vccnz L_ch_rB")
        cvt(RT, RD, RD + 1)
        A("v_min_u32 v%d, -2, v%d" % (RT, RT))
    store_mixed(A, cold, ["global_store_dword v%d, v%d, s[%d:%d]" % (VMST, RT, sMG, sMG + 1),
                          "global_store_dword v%d, v%d, s[%d:%d]" % (VMST, VSENT, sMR, sMR + 1)])
    tr(24)
    A("s_barrier")
    setup_part_bases()
    if opt.get("d6", 0): A.nop(opt["d6"])
    tr(25)
    ldA()
    prefetch_own(only=(3, 4, 5, 6))
    for r in (0, 2, 8, 10, 12, 14, 16, 18): z64(Q0 + r)
    if opt.get("d7", 0): A.nop(opt["d7"])
    for k in range(1, PA): ldA()
    A("s_branch L_ch_pollA")
    A.label("L_ch_firstA")
    for k in range(PA):
        ldA()
        if k < PA - 1: A.nop(opt.get("d5", 24))
    A("s_branch L_ch_pollA")
    A.label("L_ch_nored")
    rt_stamp(A, opt, "s%d" % sIT, RT, RT + 1)
    setup_part_bases()
    prefetch_own()
    for r in (0, 2, 8, 10, 12, 14, 16, 18): z64(Q0 + r)
    A("s_barrier")
    if opt.get("d3", 0): A.nop(opt["d3"])
    A("s_branch L_ch_firstA")

    A.label("L_ch_flag")
    A("s_mov_b64 exec, 1")
    A("global_store_dword v%d, v%d, s[%d:%d] sc1" % (PM + 1, VSENT, sFM, sFM + 1))
    A("s_mov_b64 exec, -1")
    A("s_branch L_ch_noflag")
    A.label("L_ch_last")
    for x in vq_last: smf(*x)
    if not EE: sadd64(A, sKM, sKM, 32 * 8192)
    A.nop(8)
    pkadd(V0); pkadd(V1)
    cvt(VMA, V0, V0 + 1); cvt(VMA + 1, V1, V1 + 1)
    A("v_min_u32 v%d, -2, v%d" % (VMA, VMA))
    A(exp_st())
    A("s_waitcnt lgkmcnt(0)")
    A("s_barrier")
    if opt.get("rt") or opt.get("cyc"):
        A("s_add_u32 s47, s%d, 410" % sL)
        rt_stamp(A, dict(rt=opt.get("rt") or 2), "s47", 27, 28)
    if opt.get("dbgt"):
        A("s_lshl_b32 s47, s%d, 1" % sL); A("s_add_u32 s47, s47, 10")
        dbg_time(A, opt, "s47", 27, 28)
        A("s_cmp_eq_u32 s%d, 0" % sL)
        A("s_cselect_b32 s47, 14, 7")
        dbg_time(A, opt, "s47", 27, 28, cyc=True)
    A("s_add_u32 s%d, s%d, 1" % (sL, sL))
    A("s_cmp_lt_u32 s%d, %d" % (sL, opt.get("layers", 2)))
    A("s_cbranch_scc1 L_ch_layer")
    if opt.get("cnt"):
        rt_stamp(A, dict(rt=2), 420, 27, 28)
        for k, r in enumerate((85, 86, 87)):
            A("v_mov_b32 v28, s%d" % r)
            A("global_store_dword v27, v28, s[%d:%d] offset:%d" % (S_WS, S_WS + 1, 4 + 4 * k))
    A("s_branch L_end")
    cold.emit(A)
```
